```python
import torch

def _softmax(x, axis=-1):
    return torch.softmax(x, dim=axis)
def _gelu(x):
    return torch.nn.functional.gelu(x, approximate="tanh")
def _silu(x):
    return torch.nn.functional.silu(x)
def _sigmoid(x):
    return torch.sigmoid(x)
def _layernorm(x, axis=-1, eps=1e-5):
    m = x.mean(dim=axis, keepdim=True)
    v = x.var(dim=axis, keepdim=True, unbiased=False)
    return (x - m) / torch.sqrt(v + eps)
def _scatter_add(tgt, idx, src, axis=0):
    return tgt.clone().index_add_(axis, idx, src)
def _segment_sum(src, seg, n):
    out = torch.zeros((n,) + src.shape[1:], dtype=src.dtype)
    return out.index_add_(0, seg, src)
def _pad(x, pw):
    flat = tuple(v for pair in reversed(pw) for v in pair)
    return torch.nn.functional.pad(x, flat)

kernel_name = 'gated_mix__sliding_block_cached__mixer_channel_mlp__decode'

def setup_inputs():

    _w = (lambda a: (lambda t: t.to(torch.bfloat16) if t.is_floating_point() else t)(torch.as_tensor(a)))
    def _A_setup():
        B, Sq, D = 4, 1, 512
        Hq, Hkv, Sk, Dh = 32, 8, 4096, 128
        assert Hq % Hkv == 0, (Hq, Hkv)
        return {
            "x": _w((lambda *s: torch.randn(*s, dtype=torch.bfloat16) * 0.05)(B, Sq, D)),
            "k_cache": _w((lambda *s: torch.randn(*s, dtype=torch.bfloat16) * 6.4)(B, Hkv, Sk, Dh)),
            "v_cache": _w((lambda *s: torch.randn(*s, dtype=torch.bfloat16) * 0.4)(B, Hkv, Sk, Dh)),
            "wq": _w((lambda *s: torch.randn(*s, dtype=torch.bfloat16) * 6.4)(D, Hq * Dh) * (D ** -0.5)),
            "wo": _w((lambda *s: torch.randn(*s, dtype=torch.bfloat16) * 0.4)(Hq * Dh, D) * ((Hq * Dh) ** -0.5)),
        }
    _A_in = _A_setup()

    def _B_setup():
        B, S, D, F = 4, 1, 512, 1792
        return {
            "x": _w((lambda *s: torch.randn(*s, dtype=torch.bfloat16) * 0.05)(B, S, D)),
            "w1": _w((lambda *s: torch.randn(*s, dtype=torch.bfloat16) * 0.8)(D, F) * (D ** -0.5)),
            "b1": _w((lambda *s: torch.randn(*s, dtype=torch.bfloat16) * 0.8)(F)),
            "w2": _w((lambda *s: torch.randn(*s, dtype=torch.bfloat16) * 0.05)(F, D) * (F ** -0.5)),
            "b2": _w((lambda *s: torch.randn(*s, dtype=torch.bfloat16) * 0.05)(D)),
        }
    _B_in = _B_setup()

    return {
        "A_x": _A_in["x"],
        "A_k_cache": _A_in["k_cache"],
        "A_v_cache": _A_in["v_cache"],
        "A_wq": _A_in["wq"],
        "A_wo": _A_in["wo"],
        "B_x": _B_in["x"],
        "B_w1": _B_in["w1"],
        "B_b1": _B_in["b1"],
        "B_w2": _B_in["w2"],
        "B_b2": _B_in["b2"],
        "gate_w": _w((lambda *s: torch.randn(*s, dtype=torch.bfloat16) * 0.05)(512) * 16.0),
    }

def reference(A_x, A_k_cache, A_v_cache, A_wq, A_wo, B_x, B_w1, B_b1, B_w2, B_b2, gate_w):
    def _A_ref(x, k_cache, v_cache, wq, wo):
        B, Sq, D = x.shape
        Hq, Dh = 32, 128
        Hkv, Sk = k_cache.shape[1], k_cache.shape[2]
        W = min(4096, max(256, Sk // 4))
        rep = Hq // Hkv
        q = (lambda x, *d: x.permute(*d))((x @ wq).reshape(B, Sq, Hq, Dh), 0, 2, 1, 3)
        k = (lambda x, n, axis: torch.repeat_interleave(x, n, dim=axis))(k_cache[:, :, Sk - W:, :], rep, axis=1)
        v = (lambda x, n, axis: torch.repeat_interleave(x, n, dim=axis))(v_cache[:, :, Sk - W:, :], rep, axis=1)
        scores = torch.einsum("bhqd,bhkd->bhqk", q, k) * (Dh ** -0.5)
        p = _softmax(scores, axis=-1)
        o = torch.einsum("bhqk,bhkd->bhqd", p, v)
        return (lambda x, *d: x.permute(*d))(o, 0, 2, 1, 3).reshape(B, Sq, Hq * Dh) @ wo

    def _B_ref(x, w1, b1, w2, b2):
        y = _layernorm(x, axis=-1)
        h = _gelu(torch.einsum("bsd,df->bsf", y, w1) + b1)
        return torch.einsum("bsf,fd->bsd", h, w2) + b2

    x = A_x
    g = _sigmoid((x * gate_w).sum(-1, keepdims=True))
    a = _A_ref(x, A_k_cache, A_v_cache, A_wq, A_wo)
    b = _B_ref(x, B_w1, B_b1, B_w2, B_b2)
    return g * a + (1 - g) * b
```

```python
import sys

NAME = "gated_mix__sliding_block_cached__mixer_channel_mlp__decode"

OPT = dict(
    stamps=False,
    nt=False,
    v_early=False,
    sleep=1,
)
for a in sys.argv[2:]:
    k, v = a.split("=")
    OPT[k] = int(v) if v.lstrip("-").isdigit() else v

WS_GEN = 0
WS_QP = 0x10000
WS_HP = WS_QP + 4 * 4 * 2048 * 16
WS_APO = WS_HP + 4 * 4 * 896 * 16
WS_APM = WS_APO + 4 * 32 * 8 * 64 * 16
WS_OP = WS_APM + 4 * 32 * 8 * 16
WS_ST = WS_OP + 46 * 4 * 256 * 16
WS_END = WS_ST + 256 * 8 * 16 * 8
assert WS_END < (1 << 28)

L_PIECE = 0
L_QS = 8192
L_OW = 9216
L_ML = 17408
L_OA = 17536
L_HA = 18560
L_F = 19584
L_END = L_F + 736 * 8
LDS_BYTES = 26624
assert L_END <= LDS_BYTES

out = []


def e(s):
    out.append("    " + s)


def lab(s):
    out.append(s + ":")


NT = " nt" if OPT["nt"] else ""

S_WAVE = 3
SRD_X, SRD_K, SRD_V, SRD_W1, SRD_W3, SRD_WS, SRD_OUT, SRD_M = 44, 48, 52, 56, 60, 64, 68, 72
S_TAG = 76
S_SELLO, S_SELHI = 78, 79
S_T0 = 80
S_STAMP = 100


def srd(dst, ptr, nbytes):
    e(f"s_mov_b32 s{dst}, s{ptr}")
    e(f"s_and_b32 s{dst+1}, s{ptr+1}, 0xffff")
    e(f"s_mov_b32 s{dst+2}, {nbytes}")
    e(f"s_mov_b32 s{dst+3}, 0x00020000")


stamp_idx = [0]


def stamp(i, vtmp_addr, vtmp):
    if not OPT["stamps"]:
        return
    e(f"s_memrealtime s[{S_STAMP}:{S_STAMP+1}]")
    e("s_waitcnt lgkmcnt(0)")
    e(f"s_lshl_b32 s4, s2, 3")
    e(f"s_add_u32 s4, s4, s{S_WAVE}")
    e(f"s_lshl_b32 s4, s4, 7")
    e(f"s_add_u32 s4, s4, {WS_ST + 8 * i}")
    e(f"v_mov_b32 v{vtmp_addr}, s4")
    e(f"v_mov_b32 v{vtmp}, s{S_STAMP}")
    e(f"v_mov_b32 v{vtmp+1}, s{S_STAMP+1}")
    e(f"s_mov_b64 s[4:5], exec")
    e(f"s_mov_b64 exec, 1")
    e(f"buffer_store_dwordx2 v[{vtmp}:{vtmp+1}], v{vtmp_addr}, s[{SRD_WS}:{SRD_WS+3}], 0 offen")
    e(f"s_mov_b64 exec, s[4:5]")


def tile_mm(W, A, B, ACC):
    for q in range(4):
        for i in range(4):
            e(f"v_perm_b32 v{B+i}, v{W+4*(2*i+1)+q}, v{W+4*(2*i)+q}, s{S_SELLO}")
        for i in range(4):
            e(f"v_perm_b32 v{B+4+i}, v{W+4*(2*i+1)+q}, v{W+4*(2*i)+q}, s{S_SELHI}")
        e("s_nop 1")
        j = 2 * q
        e(f"v_mfma_f32_16x16x32_bf16 v[{ACC+4*j}:{ACC+4*j+3}], v[{A}:{A+3}], v[{B}:{B+3}], 0")
        j = 2 * q + 1
        e(f"v_mfma_f32_16x16x32_bf16 v[{ACC+4*j}:{ACC+4*j+3}], v[{A}:{A+3}], v[{B+4}:{B+7}], 0")


def poll(name, loads, quads, maxit=200000):
    e(f"s_mov_b32 s{S_T0+10}, {maxit}")
    lab(f"L_poll_{name}")
    for l in loads:
        e(l)
    e("s_waitcnt vmcnt(0)")
    e(f"v_cmp_ne_u64 s[{S_T0}:{S_T0+1}], s[{S_TAG}:{S_TAG+1}], v[{quads[0]+2}:{quads[0]+3}]")
    for q in quads[1:]:
        e(f"v_cmp_ne_u64 s[{S_T0+2}:{S_T0+3}], s[{S_TAG}:{S_TAG+1}], v[{q+2}:{q+3}]")
        e("s_nop 0")
        e(f"s_or_b64 s[{S_T0}:{S_T0+1}], s[{S_T0}:{S_T0+1}], s[{S_T0+2}:{S_T0+3}]")
    e("s_nop 0")
    e(f"s_cmp_eq_u64 s[{S_T0}:{S_T0+1}], 0")
    e(f"s_cbranch_scc1 L_pdone_{name}")
    e(f"s_sub_u32 s{S_T0+10}, s{S_T0+10}, 1")
    e(f"s_cmp_eq_u32 s{S_T0+10}, 0")
    e(f"s_cbranch_scc1 L_pdone_{name}")
    if OPT["sleep"]:
        e(f"s_sleep {OPT['sleep']}")
    e(f"s_branch L_poll_{name}")
    lab(f"L_pdone_{name}")


def bf16_round_pair(dst_pk, a, b, lo, hi):
    e(f"v_cvt_pk_bf16_f32 v{dst_pk}, v{a}, v{b}")
    e(f"v_lshlrev_b32 v{lo}, 16, v{dst_pk}")
    e(f"v_and_b32 v{hi}, 0xffff0000, v{dst_pk}")


def row16_reduce(op, regs):
    for ctl in ["quad_perm:[1,0,3,2]", "quad_perm:[2,3,0,1]", "row_half_mirror", "row_mirror"]:
        e("s_nop 1")
        for r in regs:
            e(f"{op}_dpp v{r}, v{r}, v{r} {ctl} row_mask:0xf bank_mask:0xf")


def cross_rows_reduce(op, regs, tmps):
    for sw in ["v_permlane16_swap_b32", "v_permlane32_swap_b32"]:
        for r, t in zip(regs, tmps):
            e(f"v_mov_b32 v{t}, v{r}")
        e("s_nop 1")
        for r, t in zip(regs, tmps):
            e(f"{sw} v{r}, v{t}")
        e("s_nop 1")
        for r, t in zip(regs, tmps):
            e(f"{op} v{r}, v{r}, v{t}")


hdr = open(f"cdna_kernels/{NAME}.s.ref").read().split("\n")
top = [l for l in hdr if l.startswith(";") and "@launch" not in l]
out.extend(top)
out.append(f"; @launch grid=(256,1,1) block=(512,1,1) lds={LDS_BYTES}")
out.append('.amdgcn_target "amdgcn-amd-amdhsa--gfx950"')
out.append(".text")
out.append(f".globl {NAME}_kernel")
out.append(".p2align 8")
out.append(f".type {NAME}_kernel,@function")
lab(f"{NAME}_kernel")

e("s_cmp_ge_u32 s2, 256")
e("s_cbranch_scc1 L_exit")
e("s_load_dwordx16 s[16:31], s[0:1], 0")
e("s_load_dwordx8 s[32:39], s[0:1], 64")
e("s_load_dwordx4 s[40:43], s[0:1], 96")
e("v_lshrrev_b32 v1, 6, v0")
e("v_and_b32 v0, 63, v0")
e(f"s_mov_b32 s{S_SELLO}, 0x05040100")
e(f"s_mov_b32 s{S_SELHI}, 0x07060302")
e(f"v_readfirstlane_b32 s{S_WAVE}, v1")
e("s_waitcnt lgkmcnt(0)")
srd(SRD_X, 16, 4096)
srd(SRD_WS, 42, WS_END)
e(f"s_cmp_ge_u32 s{S_WAVE}, 4")
e("s_cbranch_scc1 L_comm")

VW, VK, VV, VB, VACC = 16, 48, 80, 112, 120
VA = 12
VX = 120

srd(SRD_K, 18, 33554432)
srd(SRD_V, 20, 33554432)
stamp(0, 188, 190)
e("v_and_b32 v1, 7, v0")
e("v_bfe_u32 v2, v0, 3, 1")
e("v_lshrrev_b32 v3, 4, v0")
e("v_lshlrev_b32 v4, 5, v2")
e("v_lshl_add_u32 v4, v3, 3, v4")
e("v_and_b32 v5, 3, v0")
e("v_bfe_u32 v6, v0, 2, 1")
e("v_lshlrev_b32 v6, 5, v6")
e("v_lshl_add_u32 v6, v3, 3, v6")
e("v_lshlrev_b32 v11, 1, v6")
e("v_lshl_add_u32 v6, v5, 10, v11")
e("v_lshl_add_u32 v11, v5, 8, v11")
e("v_lshlrev_b32 v10, 7, v1")
e("v_lshl_add_u32 v10, v2, 10, v10")
e(f"s_lshl_b32 s4, s{S_WAVE}, 11")
e("v_add_u32 v10, s4, v10")

e(f"s_cmp_ge_u32 s{S_WAVE}, 2")
e("s_cbranch_scc1 L_p1_w1")
srd(SRD_W1, 22, 4194304)
e("s_mov_b32 s5, 8192")
e("s_lshr_b32 s6, s2, 6")
e("s_lshl_b32 s6, s6, 7")
e(f"s_lshl_b32 s9, s{S_WAVE}, 6")
e("s_add_u32 s6, s6, s9")
e("s_and_b32 s7, s2, 63")
e("s_lshl_b32 s7, s7, 7")
e("s_mov_b32 s8, 1")
e("s_branch L_p1_go")
lab("L_p1_w1")
srd(SRD_W1, 28, 512 * 1792 * 2)
e("s_mov_b32 s5, 3584")
e("s_and_b32 s6, s2, 3")
e("s_lshl_b32 s6, s6, 7")
e(f"s_sub_u32 s9, s{S_WAVE}, 2")
e("s_lshl_b32 s9, s9, 6")
e("s_add_u32 s6, s6, s9")
e("s_lshr_b32 s7, s2, 2")
e("s_lshl_b32 s7, s7, 7")
e("s_mov_b32 s8, 2")
e("s_cmp_lt_u32 s2, 112")
e("s_cbranch_scc1 L_p1_go")
e("s_mov_b32 s8, 0")
lab("L_p1_go")
e("s_cmp_eq_u32 s8, 0")
e("s_cbranch_scc1 L_p1_noload")
e("v_mul_lo_u32 v7, s5, v4")
e("v_lshl_add_u32 v7, v1, 4, v7")
e("s_mul_i32 s9, s6, s5")
e("s_add_u32 s9, s9, s7")
for i in range(8):
    e(f"buffer_load_dwordx4 v[{VW+4*i}:{VW+4*i+3}], v7, s[{SRD_W1}:{SRD_W1+3}], s9 offen{NT}")
    if i < 7:
        e("s_add_u32 s9, s9, s5")
e("s_lshl_b32 s9, s6, 1")
e(f"buffer_load_dwordx4 v[{VA}:{VA+3}], v6, s[{SRD_X}:{SRD_X+3}], s9 offen")
e("v_lshlrev_b32 v8, 4, v0")
for b in range(4):
    e(f"buffer_load_dwordx4 v[{VX+4*b}:{VX+4*b+3}], v8, s[{SRD_X}:{SRD_X+3}], 0 offen offset:{1024*b}")
lab("L_p1_noload")

e("s_lshr_b32 s10, s2, 3")
e("s_lshl_b32 s10, s10, 12")
e("s_and_b32 s11, s2, 7")
e("s_lshl_b32 s11, s11, 7")
e("s_add_u32 s10, s10, s11")
e(f"s_lshl_b32 s11, s{S_WAVE}, 5")
e("s_add_u32 s10, s10, s11")
e("s_add_u32 s10, s10, 3072")
e("s_lshl_b32 s10, s10, 8")
e("s_add_u32 s11, s10, 4096")
e("v_and_b32 v8, 15, v0")
e("v_lshlrev_b32 v9, 4, v8")
e("v_lshlrev_b32 v8, 8, v8")
e("v_lshl_add_u32 v8, v3, 4, v8")
e("v_lshl_add_u32 v9, v3, 10, v9")
for kb in range(2):
    for c in range(4):
        r = VK + 16 * kb + 4 * c
        e(f"buffer_load_dwordx4 v[{r}:{r+3}], v8, s[{SRD_K}:{SRD_K+3}], s{10+kb} offen offset:{64*c}{NT}")


def v_loads():
    for i in range(8):
        r = VV + 4 * i
        so = 10 if i < 4 else 11
        e(f"buffer_load_dwordx4 v[{r}:{r+3}], v9, s[{SRD_V}:{SRD_V+3}], s{so} offen offset:{256*(i&3)}{NT}")


nafter = 8
if OPT["v_early"]:
    v_loads()
    nafter = 16

e("s_cmp_eq_u32 s8, 0")
e("s_cbranch_scc1 L_p1_done")
e(f"s_waitcnt vmcnt({nafter})")
stamp(1, 188, 190)
e("s_cmp_eq_u32 s8, 1")
e("s_cbranch_scc1 L_p1_mm")
SUM = 152
T = 156
for b in range(4):
    e(f"v_lshlrev_b32 v{T}, 16, v{VX+4*b}")
    e(f"v_and_b32 v{T+1}, 0xffff0000, v{VX+4*b}")
    e(f"v_add_f32 v{SUM+b}, v{T}, v{T+1}")
    for d in range(1, 4):
        e(f"v_lshlrev_b32 v{T}, 16, v{VX+4*b+d}")
        e(f"v_and_b32 v{T+1}, 0xffff0000, v{VX+4*b+d}")
        e(f"v_add_f32 v{SUM+b}, v{SUM+b}, v{T}")
        e(f"v_add_f32 v{SUM+b}, v{SUM+b}, v{T+1}")
row16_reduce("v_add_f32", [SUM + b for b in range(4)])
cross_rows_reduce("v_add_f32", [SUM + b for b in range(4)], [T + b for b in range(4)])
for b in range(4):
    e(f"v_mul_f32 v{SUM+b}, 0x3b000000, v{SUM+b}")
SQ = 160
for b in range(4):
    for d in range(4):
        e(f"v_lshlrev_b32 v{T}, 16, v{VX+4*b+d}")
        e(f"v_and_b32 v{T+1}, 0xffff0000, v{VX+4*b+d}")
        e(f"v_sub_f32 v{T}, v{T}, v{SUM+b}")
        e(f"v_sub_f32 v{T+1}, v{T+1}, v{SUM+b}")
        if d == 0:
            e(f"v_mul_f32 v{SQ+b}, v{T}, v{T}")
        else:
            e(f"v_fmac_f32 v{SQ+b}, v{T}, v{T}")
        e(f"v_fmac_f32 v{SQ+b}, v{T+1}, v{T+1}")
row16_reduce("v_add_f32", [SQ + b for b in range(4)])
cross_rows_reduce("v_add_f32", [SQ + b for b in range(4)], [T + b for b in range(4)])
for b in range(4):
    e(f"v_mul_f32 v{SQ+b}, 0x3b000000, v{SQ+b}")
MEAN, DEN = 164, 165
e(f"v_mov_b32 v{MEAN}, v{SUM}")
e(f"v_mov_b32 v{DEN}, v{SQ}")
for b in range(1, 4):
    e(f"v_cmp_eq_u32 vcc, {b}, v5")
    e("s_nop 1")
    e(f"v_cndmask_b32 v{MEAN}, v{MEAN}, v{SUM+b}, vcc")
    e(f"v_cndmask_b32 v{DEN}, v{DEN}, v{SQ+b}, vcc")
bf16_round_pair(T, MEAN, DEN, MEAN, DEN)
e(f"v_add_f32 v{DEN}, 0x3727c5ac, v{DEN}")
e(f"v_cvt_pk_bf16_f32 v{T}, v{DEN}, v{DEN}")
e(f"v_lshlrev_b32 v{DEN}, 16, v{T}")
e(f"v_sqrt_f32 v{DEN}, v{DEN}")
e("s_nop 0")
e(f"v_cvt_pk_bf16_f32 v{T}, v{DEN}, v{DEN}")
e(f"v_lshlrev_b32 v{DEN}, 16, v{T}")
RCP = 166
e(f"v_rcp_f32 v{RCP}, v{DEN}")
e("s_nop 0")
for d in range(4):
    a0, a1 = T + 2, T + 3
    e(f"v_lshlrev_b32 v{a0}, 16, v{VA+d}")
    e(f"v_and_b32 v{a1}, 0xffff0000, v{VA+d}")
    e(f"v_sub_f32 v{a0}, v{a0}, v{MEAN}")
    e(f"v_sub_f32 v{a1}, v{a1}, v{MEAN}")
    bf16_round_pair(T, a0, a1, a0, a1)
    for a in (a0, a1):
        e(f"v_mul_f32 v{T+4}, v{a}, v{RCP}")
        e(f"v_fma_f32 v{T+5}, -v{T+4}, v{DEN}, v{a}")
        e(f"v_fma_f32 v{a}, v{T+5}, v{RCP}, v{T+4}")
    e(f"v_cvt_pk_bf16_f32 v{VA+d}, v{a0}, v{a1}")
lab("L_p1_mm")
tile_mm(VW, VA, VB, VACC)
e("s_nop 7")
e("s_nop 1")
e("s_mov_b64 s[12:13], exec")
e("s_mov_b32 exec_lo, 0xff0000ff"); e("s_mov_b32 exec_hi, 0")
for j in range(8):
    e(f"ds_write_b128 v10, v[{VACC+4*j}:{VACC+4*j+3}] offset:{L_PIECE+16*j}")
e("s_mov_b64 exec, s[12:13]")
lab("L_p1_done")
e("s_waitcnt lgkmcnt(0)")
e("s_barrier")
stamp(2, 188, 190)
if not OPT["v_early"]:
    v_loads()
e("s_barrier")
stamp(3, 188, 190)
VQ = 152
e("v_and_b32 v1, 3, v0")
e("v_lshlrev_b32 v1, 8, v1")
e("v_lshl_add_u32 v1, v3, 4, v1")
for c in range(4):
    e(f"ds_read_b128 v[{VQ+4*c}:{VQ+4*c+3}], v1 offset:{L_QS+64*c}")
e("s_waitcnt vmcnt(8) lgkmcnt(0)")
stamp(4, 188, 190)
if OPT["stamps"]:
    e("s_nop 0")
VS = VACC
for kb in range(2):
    for c in range(4):
        src2 = "0" if c == 0 else f"v[{VS+4*kb}:{VS+4*kb+3}]"
        e(f"v_mfma_f32_16x16x32_bf16 v[{VS+4*kb}:{VS+4*kb+3}], v[{VK+16*kb+4*c}:{VK+16*kb+4*c+3}], v[{VQ+4*c}:{VQ+4*c+3}], {src2}")
e("s_mov_b32 s8, 1")
e(f"s_cmp_ge_u32 s{S_WAVE}, 2")
e("s_cbranch_scc1 L_p3_w2")
srd(SRD_W3, 24, 4194304)
e("s_lshr_b32 s6, s2, 3")
e("s_lshl_b32 s6, s6, 7")
e(f"s_lshl_b32 s9, s{S_WAVE}, 6")
e("s_add_u32 s6, s6, s9")
e("s_and_b32 s7, s2, 7")
e("s_branch L_p3_go")
lab("L_p3_w2")
srd(SRD_W3, 32, 1792 * 512 * 2)
e("s_sub_u32 s9, s2, 112")
e("s_lshr_b32 s6, s9, 3")
e("s_lshl_b32 s6, s6, 7")
e("s_and_b32 s7, s9, 7")
e(f"s_sub_u32 s9, s{S_WAVE}, 2")
e("s_lshl_b32 s9, s9, 6")
e("s_add_u32 s6, s6, s9")
e("s_cmp_lt_u32 s2, 112")
e("s_cbranch_scc1 L_p3_none")
e("s_cmp_lt_u32 s2, 224")
e("s_cbranch_scc1 L_p3_go")
lab("L_p3_none")
e("s_mov_b32 s8, 0")
e("s_branch L_p3_issued")
lab("L_p3_go")
e("s_lshl_b32 s9, s6, 10")
e("s_lshl_b32 s7, s7, 7")
e("s_add_u32 s9, s9, s7")
e("v_and_b32 v7, 7, v0")
e("v_lshlrev_b32 v7, 4, v7")
e("v_lshl_add_u32 v7, v4, 10, v7")
for i in range(8):
    e(f"buffer_load_dwordx4 v[{VW+4*i}:{VW+4*i+3}], v7, s[{SRD_W3}:{SRD_W3+3}], s9 offen offset:{1024*(i&3)}{NT}")
    if i == 3:
        e("s_add_u32 s9, s9, 4096")
lab("L_p3_issued")
e("s_nop 7")
e("s_nop 1")
SC = 168
T = 176
for kb in range(2):
    for h2 in range(2):
        a = VS + 4 * kb + 2 * h2
        d = SC + 4 * kb + 2 * h2
        bf16_round_pair(T, a, a + 1, d, d + 1)
        e(f"v_mul_f32 v{d}, 0x3db504f3, v{d}")
        e(f"v_mul_f32 v{d+1}, 0x3db504f3, v{d+1}")
        bf16_round_pair(T, d, d + 1, d, d + 1)
MX = 177
e(f"v_max3_f32 v{MX}, v{SC}, v{SC+1}, v{SC+2}")
e(f"v_max3_f32 v{MX}, v{MX}, v{SC+3}, v{SC+4}")
e(f"v_max3_f32 v{MX}, v{MX}, v{SC+5}, v{SC+6}")
e(f"v_max_f32 v{MX}, v{MX}, v{SC+7}")
cross_rows_reduce("v_max_f32", [MX], [T])
for i in range(8):
    e(f"v_sub_f32 v{SC+i}, v{SC+i}, v{MX}")
    e(f"v_mul_f32 v{SC+i}, 0x3fb8aa3b, v{SC+i}")
    e(f"v_exp_f32 v{SC+i}, v{SC+i}")
e("s_nop 0")
LS = 178
e(f"v_add_f32 v{LS}, v{SC}, v{SC+1}")
for i in range(2, 8):
    e(f"v_add_f32 v{LS}, v{LS}, v{SC+i}")
cross_rows_reduce("v_add_f32", [LS], [T])
VP = 180
for i in range(4):
    e(f"v_cvt_pk_bf16_f32 v{VP+i}, v{SC+2*i}, v{SC+2*i+1}")
e("s_cmp_eq_u32 s8, 0")
e("s_cbranch_scc1 L_wv0")
e("s_waitcnt vmcnt(8)")
e("s_branch L_wvd")
lab("L_wv0")
e("s_waitcnt vmcnt(0)")
lab("L_wvd")
stamp(5, 188, 190)
tile_mm(VV, VP, VB, VACC)
e(f"s_lshl_b32 s4, s{S_WAVE}, 11")
e("v_lshlrev_b32 v1, 7, v0")
e("v_add_u32 v1, s4, v1")
e(f"s_lshl_b32 s4, s{S_WAVE}, 5")
e("v_lshlrev_b32 v2, 3, v0")
e("v_add_u32 v2, s4, v2")
e("s_nop 7")
e("s_mov_b64 s[12:13], exec")
e("s_mov_b32 exec_lo, 0xffff"); e("s_mov_b32 exec_hi, 0")
for j in range(8):
    e(f"ds_write_b128 v1, v[{VACC+4*j}:{VACC+4*j+3}] offset:{L_OW+16*j}")
e("s_mov_b64 exec, 0xf")
e(f"ds_write_b64 v2, v[{MX}:{MX+1}] offset:{L_ML}") if False else None
e(f"v_mov_b32 v184, v{MX}")
e(f"v_mov_b32 v185, v{LS}")
e(f"ds_write_b64 v2, v[184:185] offset:{L_ML}")
e("s_mov_b64 exec, s[12:13]")
e("s_waitcnt lgkmcnt(0)")
e("s_barrier")
stamp(6, 188, 190)
e("s_barrier")
stamp(7, 188, 190)
e("s_cmp_eq_u32 s8, 0")
e("s_cbranch_scc1 L_p3_done")
e(f"s_lshl_b32 s4, s{S_WAVE}, 7")
e(f"s_add_u32 s4, s4, {L_OA}")
e(f"s_cmp_ge_u32 s{S_WAVE}, 2")
e(f"s_cselect_b32 s5, {L_HA - L_OA - 256}, 0")
e("s_add_u32 s4, s4, s5")
e("v_add_u32 v1, s4, v11")
e(f"ds_read_b128 v[{VA}:{VA+3}], v1")
e("s_waitcnt vmcnt(0) lgkmcnt(0)")
tile_mm(VW, VA, VB, VACC)
e("s_nop 7")
e("s_nop 1")
e("s_mov_b32 exec_lo, 0xff0000ff"); e("s_mov_b32 exec_hi, 0")
for j in range(8):
    e(f"ds_write_b128 v10, v[{VACC+4*j}:{VACC+4*j+3}] offset:{L_PIECE+16*j}")
e("s_mov_b64 exec, -1")
lab("L_p3_done")
e("s_waitcnt lgkmcnt(0)")
e("s_barrier")
stamp(8, 188, 190)
e("s_endpgm")

lab("L_comm")
e("s_setprio 2")
e(f"s_sub_u32 s{S_WAVE}, s{S_WAVE}, 4")
if OPT["stamps"]:
    pass
e("v_mov_b32 v1, 0")
e(f"buffer_load_dwordx2 v[2:3], v1, s[{SRD_WS}:{SRD_WS+3}], 0 offen offset:{WS_GEN} sc1")
e("s_waitcnt vmcnt(0)")
e(f"v_readfirstlane_b32 s{S_TAG}, v2")
e(f"v_readfirstlane_b32 s{S_TAG+1}, v3")
e("s_nop 3")
e(f"s_add_u32 s{S_TAG}, s{S_TAG}, 1")
e(f"s_addc_u32 s{S_TAG+1}, s{S_TAG+1}, 0")
e(f"v_mov_b32 v10, s{S_TAG}")
e(f"v_mov_b32 v11, s{S_TAG+1}")


def reduce_pieces_and_store(tag, ws_base_sreg):
    e(f"s_lshr_b32 s4, s{S_WAVE}, 1")
    e("s_lshl_b32 s4, s4, 12")
    e("v_and_b32 v1, 31, v0")
    e("v_lshlrev_b32 v1, 5, v1")
    e("v_lshrrev_b32 v2, 5, v0")
    e(f"s_and_b32 s5, s{S_WAVE}, 1")
    e("s_lshl_b32 s5, s5, 1")
    e("v_add_u32 v2, s5, v2")
    e("v_lshl_add_u32 v1, v2, 2, v1")
    e("v_add_u32 v1, s4, v1")
    for p in range(4):
        e(f"ds_read_b32 v{16+2*p}, v1 offset:{L_PIECE+1024*p}")
        e(f"ds_read_b32 v{17+2*p}, v1 offset:{L_PIECE+1024*p+16}")
    e("s_waitcnt lgkmcnt(0)")
    e("v_add_f32 v8, v16, v18")
    e("v_add_f32 v9, v17, v19")
    e("v_add_f32 v20, v20, v22")
    e("v_add_f32 v21, v21, v23")
    e("v_add_f32 v8, v8, v20")
    e("v_add_f32 v9, v9, v21")


e("s_barrier")
reduce_pieces_and_store("p1", None)
e("v_and_b32 v3, 31, v0")
e(f"s_cmp_ge_u32 s{S_WAVE}, 2")
e("s_cbranch_scc1 L_c_hp")
e("s_lshr_b32 s4, s2, 6")
e("s_lshl_b32 s4, s4, 13")
e("s_and_b32 s5, s2, 63")
e("s_lshl_b32 s5, s5, 5")
e("s_add_u32 s4, s4, s5")
e("s_lshl_b32 s4, s4, 4")
e(f"s_add_u32 s4, s4, {WS_QP}")
e("v_lshl_add_u32 v3, v2, 11, v3")
e("v_lshlrev_b32 v3, 4, v3")
e(f"buffer_store_dwordx4 v[8:11], v3, s[{SRD_WS}:{SRD_WS+3}], s4 offen sc1")
e("s_branch L_c_pub1")
lab("L_c_hp")
e("s_cmp_ge_u32 s2, 112")
e("s_cbranch_scc1 L_c_pub1")
e("s_and_b32 s4, s2, 3")
e("s_mul_i32 s4, s4, 3584")
e("s_lshr_b32 s5, s2, 2")
e("s_lshl_b32 s5, s5, 5")
e("s_add_u32 s4, s4, s5")
e("s_lshl_b32 s4, s4, 4")
e(f"s_add_u32 s4, s4, {WS_HP}")
e("v_mul_u32_u24 v4, 896, v2")
e("v_add_u32 v3, v4, v3")
e("v_lshlrev_b32 v3, 4, v3")
e(f"buffer_store_dwordx4 v[8:11], v3, s[{SRD_WS}:{SRD_WS+3}], s4 offen sc1")
lab("L_c_pub1")
if OPT["stamps"]:
    e(f"s_add_u32 s{S_WAVE}, s{S_WAVE}, 4")
    stamp(0, 60, 62)
    e(f"s_sub_u32 s{S_WAVE}, s{S_WAVE}, 4")
e("s_lshr_b32 s4, s2, 6")
e("s_lshl_b32 s4, s4, 11")
e("s_lshr_b32 s5, s2, 3")
e("s_and_b32 s5, s5, 7")
e("s_lshl_b32 s5, s5, 8")
e("s_add_u32 s4, s4, s5")
e(f"s_lshl_b32 s5, s{S_WAVE}, 6")
e("s_add_u32 s4, s4, s5")
e("s_lshl_b32 s4, s4, 4")
e(f"s_add_u32 s4, s4, {WS_QP}")
for ks in range(1, 4):
    e(f"s_add_u32 s{4+ks}, s4, {ks*4*2048*16}")
e("v_lshlrev_b32 v3, 4, v0")
poll("q", [f"buffer_load_dwordx4 v[{16+4*ks}:{19+4*ks}], v3, s[{SRD_WS}:{SRD_WS+3}], s{4+ks} offen sc1" for ks in range(4)],
     [16 + 4 * ks for ks in range(4)])
e("v_add_f32 v4, v16, v20")
e("v_add_f32 v5, v17, v21")
e("v_add_f32 v6, v24, v28")
e("v_add_f32 v7, v25, v29")
e("v_add_f32 v4, v4, v6")
e("v_add_f32 v5, v5, v7")
e("v_cvt_pk_bf16_f32 v4, v4, v5")
e(f"s_lshl_b32 s4, s{S_WAVE}, 8")
e("v_lshlrev_b32 v5, 2, v0")
e("v_add_u32 v5, s4, v5")
e(f"ds_write_b32 v5, v4 offset:{L_QS}")
e("s_waitcnt lgkmcnt(0)")
e("s_barrier")
if OPT["stamps"]:
    e(f"s_add_u32 s{S_WAVE}, s{S_WAVE}, 4")
    stamp(1, 60, 62)
    e(f"s_sub_u32 s{S_WAVE}, s{S_WAVE}, 4")
e("s_cmp_lt_u32 s2, 112")
e("s_cbranch_scc1 L_c_nomlp2")
e("s_cmp_ge_u32 s2, 224")
e("s_cbranch_scc1 L_c_nomlp2")
e("s_sub_u32 s9, s2, 112")
e("s_lshr_b32 s9, s9, 3")
e(f"s_mul_i32 s4, s{S_WAVE}, 896")
e("s_lshl_b32 s5, s9, 6")
e("s_add_u32 s4, s4, s5")
e("s_lshl_b32 s4, s4, 4")
e(f"s_add_u32 s4, s4, {WS_HP}")
for ks in range(1, 4):
    e(f"s_add_u32 s{4+ks}, s4, {ks*4*896*16}")
srd(SRD_M, 30, 3584)
e("s_lshl_b32 s9, s9, 8")
e("v_lshlrev_b32 v6, 2, v0")
e(f"buffer_load_dword v7, v6, s[{SRD_M}:{SRD_M+3}], s9 offen")
poll("h", [f"buffer_load_dwordx4 v[{16+4*ks}:{19+4*ks}], v3, s[{SRD_WS}:{SRD_WS+3}], s{4+ks} offen sc1" for ks in range(4)],
     [16 + 4 * ks for ks in range(4)])
e("v_add_f32 v32, v16, v20")
e("v_add_f32 v33, v17, v21")
e("v_add_f32 v34, v24, v28")
e("v_add_f32 v35, v25, v29")
e("v_add_f32 v32, v32, v34")
e("v_add_f32 v33, v33, v35")
bf16_round_pair(34, 32, 33, 32, 33)
e("v_lshlrev_b32 v34, 16, v7")
e("v_and_b32 v35, 0xffff0000, v7")
e("v_add_f32 v32, v32, v34")
e("v_add_f32 v33, v33, v35")
bf16_round_pair(34, 32, 33, 32, 33)
for r in (32, 33):
    e(f"v_mul_f32 v36, v{r}, v{r}")
    e(f"v_mul_f32 v36, v36, v{r}")
    e(f"v_mov_b32 v37, 0x3d372713")
    e(f"v_fma_f32 v36, v36, v37, v{r}")
    e(f"v_mul_f32 v36, 0x40135761, v36")
    e(f"v_exp_f32 v36, v36")
    e("s_nop 0")
    e(f"v_add_f32 v36, 1.0, v36")
    e(f"v_rcp_f32 v36, v36")
    e("s_nop 0")
    e(f"v_fma_f32 v36, v36, -2.0, 2.0")
    e(f"v_mul_f32 v36, 0.5, v36")
    e(f"v_mul_f32 v{r}, v{r}, v36")
e("v_cvt_pk_bf16_f32 v32, v32, v33")
e(f"ds_write_b32 v5, v32 offset:{L_HA}")
lab("L_c_nomlp2")
e("s_waitcnt lgkmcnt(0)")
e("s_barrier")
if OPT["stamps"]:
    e(f"s_add_u32 s{S_WAVE}, s{S_WAVE}, 4")
    stamp(2, 60, 62)
    e(f"s_sub_u32 s{S_WAVE}, s{S_WAVE}, 4")
e(f"s_lshl_b32 s4, s{S_WAVE}, 3")
e("v_mov_b32 v1, s4")
for w in range(4):
    e(f"ds_read_b64 v[{16+2*w}:{17+2*w}], v1 offset:{L_ML+32*w}")
e(f"s_lshl_b32 s4, s{S_WAVE}, 2")
e("v_lshlrev_b32 v2, 5, v0")
e("v_add_u32 v2, s4, v2")
for w in range(4):
    e(f"ds_read_b32 v{24+2*w}, v2 offset:{L_OW+2048*w}")
    e(f"ds_read_b32 v{25+2*w}, v2 offset:{L_OW+2048*w+16}")
e("s_waitcnt lgkmcnt(0)")
e("v_max3_f32 v32, v16, v18, v20")
e("v_max_f32 v32, v32, v22")
for w in range(4):
    e(f"v_sub_f32 v{33+w}, v{16+2*w}, v32")
    e(f"v_mul_f32 v{33+w}, 0x3fb8aa3b, v{33+w}")
    e(f"v_exp_f32 v{33+w}, v{33+w}")
e("s_nop 0")
e("v_mul_f32 v37, v33, v17")
e("v_mul_f32 v8, v33, v24")
e("v_mul_f32 v9, v33, v25")
for w in range(1, 4):
    e(f"v_fmac_f32 v37, v{33+w}, v{17+2*w}")
    e(f"v_fmac_f32 v8, v{33+w}, v{24+2*w}")
    e(f"v_fmac_f32 v9, v{33+w}, v{25+2*w}")
e("s_lshr_b32 s4, s2, 3")
e("s_lshl_b32 s4, s4, 2")
e(f"s_add_u32 s4, s4, s{S_WAVE}")
e("s_lshl_b32 s4, s4, 3")
e("s_and_b32 s5, s2, 7")
e("s_add_u32 s4, s4, s5")
e("s_lshl_b32 s5, s4, 10")
e(f"s_add_u32 s5, s5, {WS_APO}")
e("s_lshl_b32 s4, s4, 4")
e(f"s_add_u32 s4, s4, {WS_APM}")
e(f"buffer_store_dwordx4 v[8:11], v3, s[{SRD_WS}:{SRD_WS+3}], s5 offen sc1")
e("v_mov_b32 v12, v32")
e("v_mov_b32 v13, v37")
e("v_mov_b32 v14, v10")
e("v_mov_b32 v15, v11")
e("s_mov_b64 exec, 1")
e(f"buffer_store_dwordx4 v[12:15], v3, s[{SRD_WS}:{SRD_WS+3}], s4 offen sc1")
e("s_mov_b64 exec, -1")
e(f"s_lshl_b32 s4, s{S_WAVE}, 5")
e("s_lshr_b32 s5, s2, 3")
e("s_add_u32 s4, s4, s5")
e("s_lshl_b32 s4, s4, 3")
e("s_lshl_b32 s5, s4, 10")
e(f"s_add_u32 s5, s5, {WS_APO}")
e("s_add_u32 s6, s5, 4096")
e("s_lshl_b32 s4, s4, 4")
e(f"s_add_u32 s4, s4, {WS_APM}")
e("v_and_b32 v4, 7, v0")
e("v_lshlrev_b32 v4, 4, v4")
lds_ = []
for s in range(8):
    lds_.append(f"buffer_load_dwordx4 v[{16+4*s}:{19+4*s}], v3, s[{SRD_WS}:{SRD_WS+3}], s{5 if s < 4 else 6} offen offset:{1024*(s&3)} sc1")
lds_.append(f"buffer_load_dwordx4 v[48:51], v4, s[{SRD_WS}:{SRD_WS+3}], s4 offen sc1")
poll("a", lds_, [16 + 4 * s for s in range(8)] + [48])
if OPT["stamps"]:
    e(f"s_add_u32 s{S_WAVE}, s{S_WAVE}, 4")
    stamp(3, 60, 62)
    e(f"s_sub_u32 s{S_WAVE}, s{S_WAVE}, 4")
e("v_mov_b32 v52, v48")
for ctl in ["quad_perm:[1,0,3,2]", "quad_perm:[2,3,0,1]", "row_half_mirror"]:
    e("s_nop 1")
    e(f"v_max_f32_dpp v52, v52, v52 {ctl} row_mask:0xf bank_mask:0xf")
e("v_sub_f32 v53, v48, v52")
e("v_mul_f32 v53, 0x3fb8aa3b, v53")
e("v_exp_f32 v53, v53")
e("s_nop 0")
e("v_mul_f32 v54, v53, v49")
for ctl in ["quad_perm:[1,0,3,2]", "quad_perm:[2,3,0,1]", "row_half_mirror"]:
    e("s_nop 1")
    e(f"v_add_f32_dpp v54, v54, v54 {ctl} row_mask:0xf bank_mask:0xf")
e("v_rcp_f32 v55, v54")
e("s_nop 0")
e("v_fma_f32 v56, -v54, v55, 2.0")
e("v_mul_f32 v55, v55, v56")
e("v_mul_f32 v53, v53, v55")
e("s_nop 1")
for s in range(8):
    e(f"v_readlane_b32 s{84+s}, v53, {s}")
e("s_nop 1")
e("v_mul_f32 v56, s84, v16")
e("v_mul_f32 v57, s84, v17")
for s in range(1, 8):
    e(f"v_fmac_f32 v56, s{84+s}, v{16+4*s}")
    e(f"v_fmac_f32 v57, s{84+s}, v{17+4*s}")
e("v_cvt_pk_bf16_f32 v56, v56, v57")
e(f"ds_write_b32 v5, v56 offset:{L_OA}")
e("s_waitcnt lgkmcnt(0)")
e("s_barrier")
e("s_barrier")
if OPT["stamps"]:
    e(f"s_add_u32 s{S_WAVE}, s{S_WAVE}, 4")
    stamp(4, 60, 62)
    e(f"s_sub_u32 s{S_WAVE}, s{S_WAVE}, 4")
reduce_pieces_and_store("p3", None)
e("v_and_b32 v4, 31, v0")
e("v_lshl_add_u32 v4, v2, 8, v4")
e("v_lshlrev_b32 v4, 4, v4")
e(f"s_cmp_ge_u32 s{S_WAVE}, 2")
e("s_cbranch_scc1 L_c_op2")
e("s_lshr_b32 s4, s2, 3")
e("s_and_b32 s5, s2, 7")
e("s_branch L_c_opgo")
lab("L_c_op2")
e("s_cmp_lt_u32 s2, 112")
e("s_cbranch_scc1 L_c_opdone")
e("s_cmp_ge_u32 s2, 224")
e("s_cbranch_scc1 L_c_opdone")
e("s_sub_u32 s5, s2, 112")
e("s_lshr_b32 s4, s5, 3")
e("s_add_u32 s4, s4, 32")
e("s_and_b32 s5, s5, 7")
lab("L_c_opgo")
e("s_lshl_b32 s4, s4, 10")
e("s_lshl_b32 s5, s5, 5")
e("s_add_u32 s4, s4, s5")
e("s_lshl_b32 s4, s4, 4")
e(f"s_add_u32 s4, s4, {WS_OP}")
e(f"buffer_store_dwordx4 v[8:11], v4, s[{SRD_WS}:{SRD_WS+3}], s4 offen sc1")
lab("L_c_opdone")
e("s_cmp_ge_u32 s2, 64")
e("s_cbranch_scc1 L_exit")
srd(SRD_M, 36, 1024)
e(f"buffer_load_dwordx4 v[64:67], v3, s[{SRD_M}:{SRD_M+3}], 0 offen")
for b in range(4):
    e(f"buffer_load_dwordx4 v[{68+4*b}:{71+4*b}], v3, s[{SRD_X}:{SRD_X+3}], 0 offen offset:{1024*b}")
srd(SRD_OUT, 34, 1024)
e("v_and_b32 v6, 7, v0")
e("v_lshlrev_b32 v6, 1, v6")
e("s_lshl_b32 s4, s2, 4")
e(f"buffer_load_ushort v84, v6, s[{SRD_OUT}:{SRD_OUT+3}], s4 offen")
e(f"s_lshl_b32 s4, s{S_WAVE}, 6")
e("v_add_u32 v6, s4, v0")
for k in range(3):
    e(f"v_add_u32 v{40+k}, {256*k}, v6")
    if k == 2:
        e(f"v_min_u32 v{40+k}, 735, v{40+k}")
    e(f"v_lshrrev_b32 v7, 2, v{40+k}")
    e(f"v_and_b32 v{44+k}, 3, v{40+k}")
    e(f"v_lshl_add_u32 v{44+k}, v7, 8, v{44+k}")
    e(f"v_lshlrev_b32 v{44+k}, 4, v{44+k}")
    e(f"v_lshlrev_b32 v{40+k}, 3, v{40+k}")
e("s_lshl_b32 s4, s2, 6")
e(f"s_add_u32 s4, s4, {WS_OP}")
poll("o", [f"buffer_load_dwordx4 v[{16+4*k}:{19+4*k}], v{44+k}, s[{SRD_WS}:{SRD_WS+3}], s4 offen sc1" for k in range(3)],
     [16 + 4 * k for k in range(3)])
if OPT["stamps"]:
    e(f"s_add_u32 s{S_WAVE}, s{S_WAVE}, 4")
    stamp(5, 60, 62)
    e(f"s_sub_u32 s{S_WAVE}, s{S_WAVE}, 4")
for k in range(3):
    e(f"ds_write_b64 v{40+k}, v[{16+4*k}:{17+4*k}] offset:{L_F}")
GS = 88
for b in range(4):
    for d in range(4):
        e(f"v_lshlrev_b32 v92, 16, v{68+4*b+d}")
        e(f"v_and_b32 v93, 0xffff0000, v{68+4*b+d}")
        e(f"v_lshlrev_b32 v94, 16, v{64+d}")
        e(f"v_and_b32 v95, 0xffff0000, v{64+d}")
        e("v_mul_f32 v92, v92, v94")
        e("v_mul_f32 v93, v93, v95")
        bf16_round_pair(94, 92, 93, 92, 93)
        if d == 0:
            e(f"v_add_f32 v{GS+b}, v92, v93")
        else:
            e(f"v_add_f32 v{GS+b}, v{GS+b}, v92")
            e(f"v_add_f32 v{GS+b}, v{GS+b}, v93")
row16_reduce("v_add_f32", [GS + b for b in range(4)])
cross_rows_reduce("v_add_f32", [GS + b for b in range(4)], [92 + b for b in range(4)])
e("s_waitcnt lgkmcnt(0)")
e("s_barrier")
e(f"s_cmp_lg_u32 s{S_WAVE}, 0")
e("s_cbranch_scc1 L_exit")
e("v_lshlrev_b32 v6, 2, v0")
for src in range(46):
    e(f"ds_read_b32 v{100+src}, v6 offset:{L_F+128*src}")
e("v_bfe_u32 v7, v0, 3, 2")
e(f"v_mov_b32 v96, v{GS}")
for b in range(1, 4):
    e(f"v_cmp_eq_u32 vcc, {b}, v7")
    e("s_nop 1")
    e(f"v_cndmask_b32 v96, v96, v{GS+b}, vcc")
e("v_cvt_pk_bf16_f32 v97, v96, v96")
e("v_lshlrev_b32 v96, 16, v97")
e("v_mul_f32 v96, 0xbfb8aa3b, v96")
e("v_exp_f32 v96, v96")
e("s_nop 0")
e("v_add_f32 v96, 1.0, v96")
e("v_rcp_f32 v97, v96")
e("s_nop 0")
e("v_fma_f32 v98, -v96, v97, 2.0")
e("v_mul_f32 v97, v97, v98")
e("v_cvt_pk_bf16_f32 v97, v97, v97")
e("v_lshlrev_b32 v96, 16, v97")
e("v_sub_f32 v97, 1.0, v96")
e("v_cvt_pk_bf16_f32 v97, v97, v97")
e("v_lshlrev_b32 v97, 16, v97")
e("s_waitcnt lgkmcnt(0)")
e("v_add_f32 v98, v100, v101")
for src in range(2, 32):
    e(f"v_add_f32 v98, v98, v{100+src}")
e("v_add_f32 v99, v132, v133")
for src in range(34, 46):
    e(f"v_add_f32 v99, v99, v{100+src}")
bf16_round_pair(92, 98, 99, 98, 99)
e("v_lshlrev_b32 v84, 16, v84")
e("v_add_f32 v99, v99, v84")
e("v_cvt_pk_bf16_f32 v92, v99, v99")
e("v_lshlrev_b32 v99, 16, v92")
e("v_mul_f32 v98, v96, v98")
e("v_mul_f32 v99, v97, v99")
bf16_round_pair(92, 98, 99, 98, 99)
e("v_add_f32 v98, v98, v99")
e("v_cvt_pk_bf16_f32 v98, v98, v98")
srd(SRD_OUT, 38, 4096)
e("v_and_b32 v6, 7, v0")
e("v_lshlrev_b32 v6, 1, v6")
e("v_lshl_add_u32 v6, v7, 10, v6")
e("s_lshl_b32 s4, s2, 4")
e("s_mov_b32 exec_lo, -1"); e("s_mov_b32 exec_hi, 0")
e(f"buffer_store_short v98, v6, s[{SRD_OUT}:{SRD_OUT+3}], s4 offen")
e("s_mov_b64 exec, -1")
e("s_cmp_lg_u32 s2, 0")
e("s_cbranch_scc1 L_exit")
e("s_mov_b64 exec, 1")
e(f"buffer_store_dwordx2 v[10:11], v1, s[{SRD_WS}:{SRD_WS+3}], 0 offen offset:{WS_GEN} sc1") if False else None
e("v_mov_b32 v1, 0")
e(f"buffer_store_dwordx2 v[10:11], v1, s[{SRD_WS}:{SRD_WS+3}], 0 offen offset:{WS_GEN} sc1")
lab("L_exit")
e("s_endpgm")

out.append('.section .rodata,"a"')
out.append(".p2align 6")
out.append(f".amdhsa_kernel {NAME}_kernel")
out.append("  .amdhsa_next_free_vgpr 192")
out.append("  .amdhsa_next_free_sgpr 102")
out.append("  .amdhsa_accum_offset 192")
out.append("  .amdhsa_group_segment_fixed_size 0")
out.append("  .amdhsa_kernarg_size 112")
out.append("  .amdhsa_user_sgpr_count 2")
out.append("  .amdhsa_user_sgpr_kernarg_segment_ptr 1")
out.append("  .amdhsa_system_sgpr_workgroup_id_x 1")
out.append(".end_amdhsa_kernel")

dst = sys.argv[1] if len(sys.argv) > 1 else f"cdna_kernels/{NAME}.s"
open(dst, "w").write("\n".join(out) + "\n")
print("wrote", dst, len(out), "lines")
```

```python
import sys

NAME = "gated_mix__sliding_block_cached__mixer_channel_mlp__decode"

OPT = dict(
    stamps=0,
    nt=1,
    depth=6,
    sleep_l=1,
    sleep_q=1,
    sleep_t=0,
    dry=1,
)
for a in sys.argv[2:]:
    k, v = a.split("=")
    OPT[k] = int(v)

WS_GEN = 0
WS_QP = 0x10000
WS_HP = WS_QP + 4 * 4 * 1024 * 16
WS_APO = WS_HP + 4 * 4 * 448 * 16
WS_APM = WS_APO + 4 * 32 * 4 * 8 * 8 * 16
WS_OP = WS_APM + 4 * 32 * 8 * 16
WS_ST = WS_OP + 142 * 4 * 128 * 16
WS_END = WS_ST + 256 * 8 * 16 * 8
open("gen_layout.py", "w").write(f"WS_ST = {WS_ST}\n")

L_PIECE = 0
L_QS = 8192
L_OW = 9216
L_ML = 17408
L_OA = 17536
L_HA = 17792
L_F = 18816
L_CNT = 19840
L_END = L_CNT + 64
LDS_BYTES = 20480
assert L_END <= LDS_BYTES
C_Q, C_O, C_H, C_A, C_F = 0, 4, 8, 12, 16

out = []


def e(s):
    out.append("    " + s)


def lab(s):
    out.append(s + ":")


NT = " nt" if OPT["nt"] else ""
S_WAVE = 3
SRD_X, SRD_K, SRD_V, SRD_W1, SRD_W3, SRD_WS, SRD_OUT, SRD_M = 44, 48, 52, 56, 60, 64, 68, 72
S_TAG = 76
S_SELLO, S_SELHI = 78, 79
S_T0 = 80
S_MASK = 96
S_DRY = 97
S_STAMP = 100
V_ST = 232
uid = [0]


def nid():
    uid[0] += 1
    return uid[0]


class Guard:
    def __enter__(self):
        self.n = nid()
        e(f"s_cmp_lg_u32 s{S_DRY}, 0")
        e(f"s_cbranch_scc1 L_g{self.n}")

    def __exit__(self, *a):
        lab(f"L_g{self.n}")


def if_dry_goto(label):
    e(f"s_cmp_lg_u32 s{S_DRY}, 0")
    e(f"s_cbranch_scc1 {label}")


def srd(dst, ptr, nbytes):
    e(f"s_mov_b32 s{dst}, s{ptr}")
    e(f"s_and_b32 s{dst+1}, s{ptr+1}, 0xffff")
    e(f"s_mov_b32 s{dst+2}, {nbytes}")
    e(f"s_mov_b32 s{dst+3}, 0x00020000")


def stamp_raw(i, comm):
    va, vt = V_ST, V_ST + 2
    e(f"s_lshl_b32 s98, s2, 3")
    e(f"s_add_u32 s98, s98, s{S_WAVE}")
    if comm:
        e("s_add_u32 s98, s98, 4")
    e(f"s_lshl_b32 s98, s98, 7")
    e(f"s_add_u32 s98, s98, {WS_ST + 8 * i}")
    e(f"v_mov_b32 v{va}, s98")
    e(f"v_mov_b32 v{vt}, s{S_STAMP}")
    e(f"v_mov_b32 v{vt+1}, s{S_STAMP+1}")
    e(f"s_mov_b64 s[98:99], exec")
    e(f"s_mov_b64 exec, 1")
    e(f"buffer_store_dwordx2 v[{vt}:{vt+1}], v{va}, s[{SRD_WS}:{SRD_WS+3}], 0 offen")
    e(f"s_mov_b64 exec, s[98:99]")


STAMP_MAP_D = {0: 0, 3: 1, 5: 2, 2: 3, 6: 4, 7: 5, 8: 6}
STAMP_MAP_C = {0: 0, 1: 1, 3: 2, 4: 3, 5: 4, 7: 6, 6: 5}


def stamp(i, comm=False):
    if not OPT["stamps"]:
        return
    m = STAMP_MAP_C if comm else STAMP_MAP_D
    if i not in m:
        return
    k = m[i]
    with Guard():
        e(f"s_memrealtime s[{16+2*k}:{17+2*k}]")


def dump_stamps(comm):
    if not OPT["stamps"]:
        return
    m = STAMP_MAP_C if comm else STAMP_MAP_D
    e("s_waitcnt lgkmcnt(0)")
    e("s_mov_b64 exec, -1")
    for i, k in m.items():
        e(f"s_mov_b32 s{S_STAMP}, s{16+2*k}")
        e(f"s_mov_b32 s{S_STAMP+1}, s{17+2*k}")
        stamp_raw(i, comm)
        e("s_nop 1")


def tile_mm(W, A, B, ACC, acc_in=False):
    for q in range(4):
        for i in range(4):
            e(f"v_perm_b32 v{B+i}, v{W+4*(2*i+1)+q}, v{W+4*(2*i)+q}, s{S_SELLO}")
        for i in range(4):
            e(f"v_perm_b32 v{B+4+i}, v{W+4*(2*i+1)+q}, v{W+4*(2*i)+q}, s{S_SELHI}")
        e("s_nop 1")
        for jj in range(2):
            j = 2 * q + jj
            c = f"v[{ACC+4*j}:{ACC+4*j+3}]" if acc_in else "0"
            e(f"v_mfma_f32_16x16x32_bf16 v[{ACC+4*j}:{ACC+4*j+3}], v[{A}:{A+3}], v[{B+4*jj}:{B+4*jj+3}], {c}")


VT = 188
VTRAW = 186


def load_tag(vtmp):
    e(f"v_mov_b32 v{vtmp}, 0")
    e(f"buffer_load_dwordx2 v[{VTRAW}:{VTRAW+1}], v{vtmp}, s[{SRD_WS}:{SRD_WS+3}], 0 offen offset:{WS_GEN} sc1")


def finish_tag():
    e(f"v_readfirstlane_b32 s{S_TAG}, v{VTRAW}")
    e(f"v_readfirstlane_b32 s{S_TAG+1}, v{VTRAW+1}")
    e("s_nop 3")
    e(f"s_add_u32 s{S_TAG}, s{S_TAG}, 1")
    e(f"s_addc_u32 s{S_TAG+1}, s{S_TAG+1}, 0")
    e(f"s_and_b32 s{S_T0}, s{S_TAG}, 0x3ff")
    e(f"s_bfe_u32 s{S_T0+1}, s{S_TAG}, 0xa000a")
    e(f"s_bfe_u32 s{S_T0+2}, s{S_TAG}, 0xa0014")
    e(f"s_lshr_b64 s[{S_T0+4}:{S_T0+5}], s[{S_TAG}:{S_TAG+1}], 30")
    e(f"s_and_b32 s{S_T0+3}, s{S_T0+4}, 0x3ff")
    for i in range(4):
        e(f"v_mov_b32 v{VT+i}, s{S_T0+i}")


def tagq(dst, srcs):
    for i in range(4):
        e(f"v_bfi_b32 v{dst+i}, s{S_MASK}, v{VT+i}, v{srcs[i]}")


def poll(name, loads, quads, vx, sleep, maxit=100000):
    e(f"s_mov_b32 s{S_T0+10}, {maxit}")
    lab(f"L_poll_{name}")
    for l in loads:
        e(l)
    with Guard():
        e("s_waitcnt vmcnt(0)")
    first = True
    for q in quads:
        for i in range(4):
            if first:
                e(f"v_xor_b32 v{vx}, v{q+i}, v{VT+i}")
                first = False
            else:
                e(f"v_xor_b32 v{vx+1}, v{q+i}, v{VT+i}")
                e(f"v_or_b32 v{vx}, v{vx}, v{vx+1}")
    e(f"v_and_b32 v{vx}, 0x3ff, v{vx}")
    e(f"v_cmp_ne_u32 vcc, 0, v{vx}")
    if_dry_goto(f"L_pdone_{name}")
    e(f"s_cmp_eq_u64 vcc, 0")
    e(f"s_cbranch_scc1 L_pdone_{name}")
    e(f"s_sub_u32 s{S_T0+10}, s{S_T0+10}, 1")
    e(f"s_cmp_eq_u32 s{S_T0+10}, 0")
    e(f"s_cbranch_scc1 L_pdone_{name}")
    if sleep:
        e(f"s_sleep {sleep}")
    e(f"s_branch L_poll_{name}")
    lab(f"L_pdone_{name}")


def lds_signal(cnt, vtmp):
    e("s_waitcnt lgkmcnt(0)")
    e(f"v_mov_b32 v{vtmp}, {L_CNT+cnt}")
    e(f"v_mov_b32 v{vtmp+1}, 1")
    e("s_mov_b64 exec, 1")
    e(f"ds_add_u32 v{vtmp}, v{vtmp+1}")
    e("s_mov_b64 exec, -1")


def lds_wait(cnt, target, vtmp):
    n = nid()
    e(f"v_mov_b32 v{vtmp}, {L_CNT+cnt}")
    e(f"s_mov_b32 s{S_T0+11}, 4000000")
    lab(f"L_lw{n}")
    e(f"ds_read_b32 v{vtmp+1}, v{vtmp}")
    e("s_waitcnt lgkmcnt(0)")
    e(f"v_readfirstlane_b32 s{S_T0+12}, v{vtmp+1}")
    if_dry_goto(f"L_lwd{n}")
    e("s_nop 1")
    e(f"s_cmp_ge_u32 s{S_T0+12}, {target}")
    e(f"s_cbranch_scc1 L_lwd{n}")
    e(f"s_sub_u32 s{S_T0+11}, s{S_T0+11}, 1")
    e(f"s_cmp_eq_u32 s{S_T0+11}, 0")
    e(f"s_cbranch_scc1 L_lwd{n}")
    if OPT["sleep_l"]:
        e(f"s_sleep {OPT['sleep_l']}")
    e(f"s_branch L_lw{n}")
    lab(f"L_lwd{n}")


def bf16_round_pair(dst_pk, a, b, lo, hi):
    e(f"v_cvt_pk_bf16_f32 v{dst_pk}, v{a}, v{b}")
    e(f"v_lshlrev_b32 v{lo}, 16, v{dst_pk}")
    e(f"v_and_b32 v{hi}, 0xffff0000, v{dst_pk}")


def dpp_reduce(op, regs, ctls):
    for ctl in ctls:
        e("s_nop 1")
        for r in regs:
            e(f"{op}_dpp v{r}, v{r}, v{r} {ctl} row_mask:0xf bank_mask:0xf")


ROW16 = ["quad_perm:[1,0,3,2]", "quad_perm:[2,3,0,1]", "row_half_mirror", "row_mirror"]


def swap_reduce(op, regs, tmps, sws=("v_permlane16_swap_b32", "v_permlane32_swap_b32")):
    for sw in sws:
        for r, t in zip(regs, tmps):
            e(f"v_mov_b32 v{t}, v{r}")
        e("s_nop 1")
        for r, t in zip(regs, tmps):
            e(f"{sw} v{r}, v{t}")
        e("s_nop 1")
        for r, t in zip(regs, tmps):
            e(f"{op} v{r}, v{r}, v{t}")


def set_exec(lo, hi):
    e(f"s_mov_b32 exec_lo, {lo}")
    e(f"s_mov_b32 exec_hi, {hi}")


VW, VK, VV, VB, VACC = 16, 80, 112, 144, 152
VA, VA2 = 12, 224
VX = 152
TMP = 192


def lane_setup():
    e("v_and_b32 v1, 7, v0")
    e("v_bfe_u32 v2, v0, 3, 1")
    e("v_lshrrev_b32 v3, 4, v0")
    e("v_lshlrev_b32 v4, 5, v2")
    e("v_lshl_add_u32 v4, v3, 3, v4")
    e("v_and_b32 v5, 3, v0")
    e("v_bfe_u32 v6, v0, 2, 1")
    e("v_lshlrev_b32 v6, 5, v6")
    e("v_lshl_add_u32 v6, v3, 3, v6")
    e("v_lshlrev_b32 v11, 1, v6")
    e("v_lshl_add_u32 v6, v5, 10, v11")
    e("v_lshl_add_u32 v11, v5, 8, v11")
    e("v_lshlrev_b32 v10, 7, v1")
    e("v_lshl_add_u32 v10, v2, 10, v10")


def tile128(A1, A2, piece_off_sreg):
    tile_mm(VW, A1, VB, VACC)
    tile_mm(VW + 32, A2, VB, VACC, acc_in=True)
    e("v_and_b32 v1, 15, v0")
    e("v_lshlrev_b32 v1, 6, v1")
    e(f"v_lshrrev_b32 v{TMP+8}, 4, v0")
    e(f"v_lshl_add_u32 v1, v{TMP+8}, 2, v1")
    e(f"v_add_u32 v1, s{piece_off_sreg}, v1")
    e(f"v_add_u32 v2, s{piece_off_sreg}, v10")
    e("s_nop 7")
    with Guard():
        set_exec("0xff0000ff", 0)
        for j in range(8):
            e(f"ds_write_b128 v2, v[{VACC+4*j}:{VACC+4*j+3}] offset:{16*j}")
        e("s_mov_b64 exec, -1")
    e("s_waitcnt lgkmcnt(0)")
    for p in range(2):
        for i in range(4):
            e(f"ds_read_b32 v{TMP+4*p+i}, v1 offset:{1024*p+16*i}")
    e("s_waitcnt lgkmcnt(0)")
    for i in range(4):
        e(f"v_add_f32 v{TMP+i}, v{TMP+i}, v{TMP+4+i}")
    tagq(TMP, [TMP, TMP + 1, TMP + 2, TMP + 3])


hdr = open(f"cdna_kernels/{NAME}.s.ref").read().split("\n")
top = [l for l in hdr if l.startswith(";") and "@launch" not in l]
out.extend(top)
out.append(f"; @launch grid=(256,1,1) block=(512,1,1) lds={LDS_BYTES}")
out.append('.amdgcn_target "amdgcn-amd-amdhsa--gfx950"')
out.append(".text")
out.append(f".globl {NAME}_kernel")
out.append(".p2align 8")
out.append(f".type {NAME}_kernel,@function")
lab(f"{NAME}_kernel")

e("s_cmp_ge_u32 s2, 256")
e("s_cbranch_scc1 L_exit")
e("s_load_dwordx16 s[16:31], s[0:1], 0")
e("s_load_dwordx8 s[32:39], s[0:1], 64")
e("s_load_dwordx4 s[40:43], s[0:1], 96")
e("v_lshrrev_b32 v1, 6, v0")
e("v_and_b32 v0, 63, v0")
e(f"s_mov_b32 s{S_SELLO}, 0x05040100")
e(f"s_mov_b32 s{S_SELHI}, 0x07060302")
e(f"s_mov_b32 s{S_MASK}, 0x3ff")
e(f"s_mov_b32 s{S_DRY}, 0")
e(f"v_readfirstlane_b32 s{S_WAVE}, v1")
lane_setup()
e("s_waitcnt lgkmcnt(0)")
srd(SRD_X, 16, 4096)
srd(SRD_WS, 42, WS_END)
e(f"s_cmp_ge_u32 s{S_WAVE}, 4")
e("s_cbranch_scc1 L_comm")

srd(SRD_K, 18, 33554432)
srd(SRD_V, 20, 33554432)
stamp(0)
e("s_lshr_b32 s10, s2, 3")
e("s_lshl_b32 s10, s10, 12")
e("s_and_b32 s11, s2, 7")
e("s_lshl_b32 s11, s11, 7")
e("s_add_u32 s10, s10, s11")
e(f"s_lshl_b32 s11, s{S_WAVE}, 5")
e("s_add_u32 s10, s10, s11")
e("s_add_u32 s10, s10, 3072")
e("s_lshl_b32 s10, s10, 8")
e("s_add_u32 s11, s10, 4096")
e("v_and_b32 v8, 15, v0")
e("v_lshlrev_b32 v9, 4, v8")
e("v_lshlrev_b32 v8, 8, v8")
e("v_lshl_add_u32 v8, v3, 4, v8")
e("v_lshl_add_u32 v9, v3, 10, v9")
load_tag(2)
D = OPT["depth"]
seq = []
for kb in range(2):
    for c in range(4):
        r = VK + 16 * kb + 4 * c
        seq.append(f"buffer_load_dwordx4 v[{r}:{r+3}], v8, s[{SRD_K}:{SRD_K+3}], s{10+kb} offen offset:{64*c}{NT}")
for i in range(8):
    r = VV + 4 * i
    so = 10 if i < 4 else 11
    seq.append(f"buffer_load_dwordx4 v[{r}:{r+3}], v9, s[{SRD_V}:{SRD_V+3}], s{so} offen offset:{256*(i&3)}{NT}")
for i, l in enumerate(seq):
    if i == D:
        e("s_barrier")
    if i >= D:
        e(f"s_waitcnt vmcnt({D-1})")
    e(l)
finish_tag()
e("s_mov_b32 s14, 0")
e(f"s_cmp_lt_u32 s{S_WAVE}, 2")
e("s_cbranch_scc1 L_nowo0")
srd(SRD_W3, 24, 4194304)
e("s_lshr_b32 s6, s2, 1")
e("s_lshl_b32 s9, s6, 15")
e("s_and_b32 s7, s2, 1")
e("s_lshl_b32 s7, s7, 9")
e("s_add_u32 s9, s9, s7")
e(f"s_sub_u32 s7, s{S_WAVE}, 2")
e("s_lshl_b32 s7, s7, 8")
e("s_add_u32 s9, s9, s7")
e("v_and_b32 v7, 15, v0")
e("v_lshlrev_b32 v7, 4, v7")
e("v_lshl_add_u32 v7, v3, 13, v7")
for i in range(8):
    e(f"s_waitcnt vmcnt({D-1})")
    e(f"buffer_load_dwordx4 v[{VW+4*i}:{VW+4*i+3}], v7, s[{SRD_W3}:{SRD_W3+3}], s9 offen offset:{1024*(i&3)}{NT}")
    if i == 3:
        e("s_add_u32 s9, s9, 4096")
e("s_branch L_now2")
lab("L_nowo0")
e(f"s_cmp_eq_u32 s{S_WAVE}, 1")
e("s_cbranch_scc0 L_now2")
e("s_cmp_lt_u32 s2, 112")
e("s_cbranch_scc1 L_now2")
e("s_cmp_ge_u32 s2, 224")
e("s_cbranch_scc1 L_now2")
e("s_mov_b32 s14, 1")
srd(SRD_W3, 32, 1792 * 512 * 2)
e("s_sub_u32 s9, s2, 112")
e("s_lshr_b32 s6, s9, 3")
e("s_lshl_b32 s6, s6, 17")
e("s_and_b32 s7, s9, 7")
e("s_lshl_b32 s7, s7, 7")
e("s_add_u32 s9, s6, s7")
e("v_and_b32 v7, 7, v0")
e("v_lshlrev_b32 v7, 4, v7")
e("v_lshl_add_u32 v7, v4, 10, v7")
for i in range(16):
    e(f"s_waitcnt vmcnt({D-1})")
    e(f"buffer_load_dwordx4 v[{VW+4*i}:{VW+4*i+3}], v7, s[{SRD_W3}:{SRD_W3+3}], s9 offen offset:{1024*(i&3)}{NT}")
    if i == 7:
        e(f"s_add_u32 s9, s9, {4096 + 56*1024}")
    elif i & 3 == 3 and i < 15:
        e("s_add_u32 s9, s9, 4096")
lab("L_now2")

lab("L_secA")
lds_wait(C_Q, 4, TMP)
stamp(3)
VQ = TMP
e("v_and_b32 v1, 3, v0")
e("v_lshlrev_b32 v1, 8, v1")
e("v_lshl_add_u32 v1, v3, 4, v1")
for c in range(4):
    e(f"ds_read_b128 v[{VQ+4*c}:{VQ+4*c+3}], v1 offset:{L_QS+64*c}")
with Guard():
    e(f"s_cmp_ge_u32 s{S_WAVE}, 2")
    e("s_cbranch_scc1 L_wk_b")
    e("s_cmp_eq_u32 s14, 1")
    e("s_cbranch_scc1 L_wk_c")
    e("s_waitcnt vmcnt(8)")
    e("s_branch L_wk_d")
    lab("L_wk_b")
    e("s_waitcnt vmcnt(16)")
    e("s_branch L_wk_d")
    lab("L_wk_c")
    e("s_waitcnt vmcnt(24)")
    lab("L_wk_d")
e("s_waitcnt lgkmcnt(0)")
stamp(4)
VS = VACC
for kb in range(2):
    for c in range(4):
        src2 = "0" if c == 0 else f"v[{VS+4*kb}:{VS+4*kb+3}]"
        e(f"v_mfma_f32_16x16x32_bf16 v[{VS+4*kb}:{VS+4*kb+3}], v[{VK+16*kb+4*c}:{VK+16*kb+4*c+3}], v[{VQ+4*c}:{VQ+4*c+3}], {src2}")
e("s_nop 7")
e("s_nop 1")
SC = TMP + 16
T = TMP + 24
for kb in range(2):
    for h2 in range(2):
        a = VS + 4 * kb + 2 * h2
        d = SC + 4 * kb + 2 * h2
        bf16_round_pair(T, a, a + 1, d, d + 1)
        e(f"v_mul_f32 v{d}, 0x3db504f3, v{d}")
        e(f"v_mul_f32 v{d+1}, 0x3db504f3, v{d+1}")
        bf16_round_pair(T, d, d + 1, d, d + 1)
MX = TMP + 26
LS = TMP + 27
e(f"v_max3_f32 v{MX}, v{SC}, v{SC+1}, v{SC+2}")
e(f"v_max3_f32 v{MX}, v{MX}, v{SC+3}, v{SC+4}")
e(f"v_max3_f32 v{MX}, v{MX}, v{SC+5}, v{SC+6}")
e(f"v_max_f32 v{MX}, v{MX}, v{SC+7}")
swap_reduce("v_max_f32", [MX], [T])
for i in range(8):
    e(f"v_sub_f32 v{SC+i}, v{SC+i}, v{MX}")
    e(f"v_mul_f32 v{SC+i}, 0x3fb8aa3b, v{SC+i}")
    e(f"v_exp_f32 v{SC+i}, v{SC+i}")
e("s_nop 0")
e(f"v_add_f32 v{LS}, v{SC}, v{SC+1}")
for i in range(2, 8):
    e(f"v_add_f32 v{LS}, v{LS}, v{SC+i}")
swap_reduce("v_add_f32", [LS], [T])
VP = TMP + 28
for i in range(4):
    e(f"v_cvt_pk_bf16_f32 v{VP+i}, v{SC+2*i}, v{SC+2*i+1}")
with Guard():
    e(f"s_cmp_ge_u32 s{S_WAVE}, 2")
    e("s_cbranch_scc1 L_wv_b")
    e("s_cmp_eq_u32 s14, 1")
    e("s_cbranch_scc1 L_wv_c")
    e("s_waitcnt vmcnt(0)")
    e("s_branch L_wv_d")
    lab("L_wv_b")
    e("s_waitcnt vmcnt(8)")
    e("s_branch L_wv_d")
    lab("L_wv_c")
    e("s_waitcnt vmcnt(16)")
    lab("L_wv_d")
stamp(5)
tile_mm(VV, VP, VB, VACC)
e(f"s_lshl_b32 s4, s{S_WAVE}, 11")
e("v_lshlrev_b32 v1, 7, v0")
e("v_add_u32 v1, s4, v1")
e(f"s_lshl_b32 s4, s{S_WAVE}, 5")
e("v_lshlrev_b32 v2, 3, v0")
e("v_add_u32 v2, s4, v2")
e("s_nop 7")
with Guard():
    set_exec("0xffff", 0)
    for j in range(8):
        e(f"ds_write_b128 v1, v[{VACC+4*j}:{VACC+4*j+3}] offset:{L_OW+16*j}")
    e("s_mov_b64 exec, 15")
    e(f"ds_write_b64 v2, v[{MX}:{MX+1}] offset:{L_ML}")
    e("s_mov_b64 exec, -1")
    lds_signal(C_O, TMP)
stamp(1)
e(f"s_lshl_b32 s4, s{S_WAVE}, 3")
e("v_mov_b32 v1, s4")
e(f"s_lshl_b32 s4, s{S_WAVE}, 2")
e("v_and_b32 v2, 31, v0")
e("v_lshlrev_b32 v2, 6, v2")
e("v_add_u32 v2, s4, v2")
e("s_lshr_b32 s4, s2, 3")
e("s_lshl_b32 s4, s4, 2")
e(f"s_add_u32 s4, s4, s{S_WAVE}")
e("s_and_b32 s5, s2, 7")
e("s_lshl_b32 s6, s4, 12")
e("s_lshl_b32 s7, s5, 7")
e("s_add_u32 s6, s6, s7")
e(f"s_add_u32 s6, s6, {WS_APO}")
e("s_lshl_b32 s4, s4, 3")
e("s_add_u32 s4, s4, s5")
e("s_lshl_b32 s4, s4, 4")
e(f"s_add_u32 s4, s4, {WS_APM}")
e("v_and_b32 v7, 7, v0")
e("v_lshlrev_b32 v7, 4, v7")
e(f"v_lshrrev_b32 v{TMP+12}, 3, v0")
e(f"v_lshl_add_u32 v7, v{TMP+12}, 10, v7")
lds_wait(C_O, 4, TMP)
stamp(2)
R = VACC
for w in range(4):
    e(f"ds_read_b64 v[{R+2*w}:{R+2*w+1}], v1 offset:{L_ML+32*w}")
for w in range(4):
    for i in range(4):
        e(f"ds_read_b32 v{R+8+4*w+i}, v2 offset:{L_OW+2048*w+16*i}")
e("s_waitcnt lgkmcnt(0)")
M_, L_ = R + 24, R + 25
e(f"v_max3_f32 v{M_}, v{R}, v{R+2}, v{R+4}")
e(f"v_max_f32 v{M_}, v{M_}, v{R+6}")
F_ = TMP
for w in range(4):
    e(f"v_sub_f32 v{F_+w}, v{R+2*w}, v{M_}")
    e(f"v_mul_f32 v{F_+w}, 0x3fb8aa3b, v{F_+w}")
    e(f"v_exp_f32 v{F_+w}, v{F_+w}")
e("s_nop 0")
O_ = TMP + 4
e(f"v_mul_f32 v{L_}, v{F_}, v{R+1}")
for i in range(4):
    e(f"v_mul_f32 v{O_+i}, v{F_}, v{R+8+i}")
for w in range(1, 4):
    e(f"v_fmac_f32 v{L_}, v{F_+w}, v{R+2*w+1}")
    for i in range(4):
        e(f"v_fmac_f32 v{O_+i}, v{F_+w}, v{R+8+4*w+i}")
tagq(O_, [O_, O_ + 1, O_ + 2, O_ + 3])
e(f"v_mov_b32 v{R+26}, 0")
e(f"v_mov_b32 v{R+27}, 0")
tagq(TMP + 8, [M_, L_, R + 26, R + 27])
e(f"v_mov_b32 v1, 0")
with Guard():
    set_exec("-1", 0)
    e(f"buffer_store_dwordx4 v[{O_}:{O_+3}], v7, s[{SRD_WS}:{SRD_WS+3}], s6 offen sc1")
    e("s_mov_b64 exec, 1")
    e(f"buffer_store_dwordx4 v[{TMP+8}:{TMP+11}], v1, s[{SRD_WS}:{SRD_WS+3}], s4 offen sc1")
    e("s_mov_b64 exec, -1")
stamp(6)
if_dry_goto("L_secC")
e(f"s_cmp_ge_u32 s{S_WAVE}, 2")
e("s_cbranch_scc1 L_secC")
e("s_cmp_eq_u32 s14, 1")
e("s_cbranch_scc0 L_exit_d")
lab("L_secB")
lds_wait(C_H, 4, TMP)
e(f"ds_read_b128 v[{VA}:{VA+3}], v11 offset:{L_HA}")
e(f"ds_read_b128 v[{VA2}:{VA2+3}], v11 offset:{L_HA+128}")
with Guard():
    e("s_waitcnt vmcnt(0)")
e("s_waitcnt lgkmcnt(0)")
e(f"s_mov_b32 s15, {L_PIECE}")
tile128(VA, VA2, 15)
e("s_sub_u32 s5, s2, 112")
e("s_lshr_b32 s4, s5, 3")
e("s_add_u32 s4, s4, 128")
e("s_lshl_b32 s4, s4, 9")
e("s_and_b32 s5, s5, 7")
e("s_lshl_b32 s5, s5, 4")
e("s_add_u32 s4, s4, s5")
e("s_lshl_b32 s4, s4, 4")
e(f"s_add_u32 s4, s4, {WS_OP}")
e("v_and_b32 v1, 15, v0")
e(f"v_lshl_add_u32 v1, v{TMP+8}, 7, v1")
e("v_lshlrev_b32 v1, 4, v1")
if_dry_goto("L_dry_done_data")
e(f"buffer_store_dwordx4 v[{TMP}:{TMP+3}], v1, s[{SRD_WS}:{SRD_WS+3}], s4 offen sc1")
lab("L_exit_d")
dump_stamps(False)
e("s_endpgm")
lab("L_secC")
e("s_lshr_b32 s4, s2, 1")
e("s_lshl_b32 s4, s4, 9")
e("s_and_b32 s5, s2, 1")
e("s_lshl_b32 s5, s5, 6")
e("s_add_u32 s4, s4, s5")
e(f"s_sub_u32 s5, s{S_WAVE}, 2")
e("s_lshl_b32 s5, s5, 5")
e("s_add_u32 s4, s4, s5")
e("s_lshl_b32 s4, s4, 4")
e(f"s_add_u32 s4, s4, {WS_OP}")
e("s_add_u32 s5, s4, 4096")
e("v_lshlrev_b32 v2, 5, v0")
e("v_lshlrev_b32 v1, 6, v5")
e("v_lshl_add_u32 v1, v3, 4, v1")
lds_wait(C_A, 4, TMP)
stamp(7)
e(f"ds_read_b128 v[{VA}:{VA+3}], v1 offset:{L_OA}")
with Guard():
    e("s_waitcnt vmcnt(0)")
e("s_waitcnt lgkmcnt(0)")
tile_mm(VW, VA, VB, VACC)
e("s_nop 7")
e("s_nop 1")
for b in range(4):
    for hf in range(2):
        d = TMP + 8 * b + 4 * hf
        tagq(d, [VACC + 4 * (4 * hf + i) + b for i in range(4)])
if_dry_goto("L_secB")
set_exec("0xffff", 0)
for b in range(4):
    for hf in range(2):
        d = TMP + 8 * b + 4 * hf
        e(f"buffer_store_dwordx4 v[{d}:{d+3}], v2, s[{SRD_WS}:{SRD_WS+3}], s{4+(b>>1)} offen offset:{2048*(b&1)+16*hf} sc1")
stamp(8)
e("s_branch L_exit_d")

lab("L_comm")
e("s_setprio 2")
e(f"s_sub_u32 s{S_WAVE}, s{S_WAVE}, 4")
stamp(6, True)
load_tag(7)
e("s_mov_b32 s8, 0")
e(f"s_cmp_ge_u32 s{S_WAVE}, 2")
e("s_cbranch_scc1 L_p1_noload")
e(f"s_cmp_eq_u32 s{S_WAVE}, 1")
e("s_cbranch_scc1 L_p1_w1")
srd(SRD_W1, 22, 4194304)
e("s_mov_b32 s5, 8192")
e("s_lshr_b32 s6, s2, 6")
e("s_lshl_b32 s6, s6, 7")
e("s_and_b32 s7, s2, 63")
e("s_lshl_b32 s7, s7, 7")
e("s_mov_b32 s8, 1")
e("s_branch L_p1_go")
lab("L_p1_w1")
e("s_cmp_ge_u32 s2, 112")
e("s_cbranch_scc1 L_p1_noload")
srd(SRD_W1, 28, 512 * 1792 * 2)
e("s_mov_b32 s5, 3584")
e("s_and_b32 s6, s2, 3")
e("s_lshl_b32 s6, s6, 7")
e("s_lshr_b32 s7, s2, 2")
e("s_lshl_b32 s7, s7, 7")
e("s_mov_b32 s8, 2")
lab("L_p1_go")
e("v_mul_lo_u32 v7, s5, v4")
e("v_lshl_add_u32 v7, v1, 4, v7")
e("s_mul_i32 s9, s6, s5")
e("s_add_u32 s9, s9, s7")
e("s_lshl_b32 s12, s6, 1")
e("s_mul_i32 s13, s5, 56")
for i in range(16):
    e(f"buffer_load_dwordx4 v[{VW+4*i}:{VW+4*i+3}], v7, s[{SRD_W1}:{SRD_W1+3}], s9 offen{NT}")
    if i < 15:
        e("s_add_u32 s9, s9, s5")
    if i == 7:
        e("s_add_u32 s9, s9, s13")
XA, XA2, XR = 96, 100, 104
e(f"buffer_load_dwordx4 v[{XA}:{XA+3}], v6, s[{SRD_X}:{SRD_X+3}], s12 offen")
e(f"buffer_load_dwordx4 v[{XA2}:{XA2+3}], v6, s[{SRD_X}:{SRD_X+3}], s12 offen offset:128")
e("v_lshlrev_b32 v1, 4, v0")
for b in range(4):
    e(f"buffer_load_dwordx4 v[{XR+4*b}:{XR+4*b+3}], v1, s[{SRD_X}:{SRD_X+3}], 0 offen offset:{1024*b}")
lab("L_p1_noload")
e(f"s_cmp_lg_u32 s{S_WAVE}, 0")
e("s_cbranch_scc1 L_c_noz")
e("v_mov_b32 v1, 0")
e("v_lshlrev_b32 v7, 2, v0")
e("s_mov_b64 exec, 0xffff")
e(f"ds_write_b32 v7, v1 offset:{L_CNT}")
e("s_mov_b64 exec, -1")
e("s_waitcnt lgkmcnt(0)")
lab("L_c_noz")
e("s_barrier")
e(f"s_lshl_b32 s15, s{S_WAVE}, 11")
e(f"s_add_u32 s15, s15, {L_PIECE + 4096}")
if OPT["dry"]:
    e(f"s_mov_b32 s{S_DRY}, 1")
    e("s_cmp_lg_u32 s8, 0")
    e("s_cbranch_scc1 L_secP1")
    e(f"s_cmp_eq_u32 s{S_WAVE}, 2")
    e("s_cbranch_scc1 L_secA")
    e("s_branch L_secQ")
    lab("L_dry_done_data")
    lab("L_dry_done_comm")
    e(f"s_mov_b32 s{S_DRY}, 0")
    lane_setup()
lab("L_real_start")
e("s_waitcnt vmcnt(0) lgkmcnt(0)")
stamp(7, True)
finish_tag()
e("s_cmp_eq_u32 s8, 0")
e("s_cbranch_scc1 L_secQ")
lab("L_secP1")
for d in range(4):
    e(f"v_mov_b32 v{VA+d}, v{XA+d}")
    e(f"v_mov_b32 v{VA2+d}, v{XA2+d}")
e("s_cmp_eq_u32 s8, 1")
e("s_cbranch_scc1 L_p1_mm")
SUM = TMP
T = TMP + 4
for b in range(4):
    e(f"v_lshlrev_b32 v{T}, 16, v{XR+4*b}")
    e(f"v_and_b32 v{T+1}, 0xffff0000, v{XR+4*b}")
    e(f"v_add_f32 v{SUM+b}, v{T}, v{T+1}")
    for d in range(1, 4):
        e(f"v_lshlrev_b32 v{T}, 16, v{XR+4*b+d}")
        e(f"v_and_b32 v{T+1}, 0xffff0000, v{XR+4*b+d}")
        e(f"v_add_f32 v{SUM+b}, v{SUM+b}, v{T}")
        e(f"v_add_f32 v{SUM+b}, v{SUM+b}, v{T+1}")
dpp_reduce("v_add_f32", [SUM + b for b in range(4)], ROW16)
swap_reduce("v_add_f32", [SUM + b for b in range(4)], [T + b for b in range(4)])
for b in range(4):
    e(f"v_mul_f32 v{SUM+b}, 0x3b000000, v{SUM+b}")
SQ = TMP + 12
for b in range(4):
    for d in range(4):
        e(f"v_lshlrev_b32 v{T}, 16, v{XR+4*b+d}")
        e(f"v_and_b32 v{T+1}, 0xffff0000, v{XR+4*b+d}")
        e(f"v_sub_f32 v{T}, v{T}, v{SUM+b}")
        e(f"v_sub_f32 v{T+1}, v{T+1}, v{SUM+b}")
        if d == 0:
            e(f"v_mul_f32 v{SQ+b}, v{T}, v{T}")
        else:
            e(f"v_fmac_f32 v{SQ+b}, v{T}, v{T}")
        e(f"v_fmac_f32 v{SQ+b}, v{T+1}, v{T+1}")
dpp_reduce("v_add_f32", [SQ + b for b in range(4)], ROW16)
swap_reduce("v_add_f32", [SQ + b for b in range(4)], [T + b for b in range(4)])
for b in range(4):
    e(f"v_mul_f32 v{SQ+b}, 0x3b000000, v{SQ+b}")
MEAN, DEN, RCP = TMP + 16, TMP + 17, TMP + 18
e(f"v_mov_b32 v{MEAN}, v{SUM}")
e(f"v_mov_b32 v{DEN}, v{SQ}")
for b in range(1, 4):
    e(f"v_cmp_eq_u32 vcc, {b}, v5")
    e("s_nop 1")
    e(f"v_cndmask_b32 v{MEAN}, v{MEAN}, v{SUM+b}, vcc")
    e(f"v_cndmask_b32 v{DEN}, v{DEN}, v{SQ+b}, vcc")
bf16_round_pair(T, MEAN, DEN, MEAN, DEN)
e(f"v_add_f32 v{DEN}, 0x3727c5ac, v{DEN}")
e(f"v_cvt_pk_bf16_f32 v{T}, v{DEN}, v{DEN}")
e(f"v_lshlrev_b32 v{DEN}, 16, v{T}")
e(f"v_sqrt_f32 v{DEN}, v{DEN}")
e("s_nop 0")
e(f"v_cvt_pk_bf16_f32 v{T}, v{DEN}, v{DEN}")
e(f"v_lshlrev_b32 v{DEN}, 16, v{T}")
e(f"v_rcp_f32 v{RCP}, v{DEN}")
e("s_nop 0")
for AA in (VA, VA2):
    for d in range(4):
        a0, a1 = T + 2, T + 3
        e(f"v_lshlrev_b32 v{a0}, 16, v{AA+d}")
        e(f"v_and_b32 v{a1}, 0xffff0000, v{AA+d}")
        e(f"v_sub_f32 v{a0}, v{a0}, v{MEAN}")
        e(f"v_sub_f32 v{a1}, v{a1}, v{MEAN}")
        bf16_round_pair(T, a0, a1, a0, a1)
        for a in (a0, a1):
            e(f"v_mul_f32 v{T+4}, v{a}, v{RCP}")
            e(f"v_fma_f32 v{T+5}, -v{T+4}, v{DEN}, v{a}")
            e(f"v_fma_f32 v{a}, v{T+5}, v{RCP}, v{T+4}")
        e(f"v_cvt_pk_bf16_f32 v{AA+d}, v{a0}, v{a1}")
lab("L_p1_mm")
tile128(VA, VA2, 15)
e("v_and_b32 v1, 15, v0")
e("s_cmp_eq_u32 s8, 1")
e("s_cbranch_scc1 L_pub_q")
e("s_and_b32 s4, s2, 3")
e("s_mul_i32 s4, s4, 1792")
e("s_lshr_b32 s5, s2, 2")
e("s_lshl_b32 s5, s5, 4")
e("s_add_u32 s4, s4, s5")
e("s_lshl_b32 s4, s4, 4")
e(f"s_add_u32 s4, s4, {WS_HP}")
e(f"v_mul_u32_u24 v2, 448, v{TMP+8}")
e("v_add_u32 v1, v2, v1")
e("s_branch L_pub_go")
lab("L_pub_q")
e("s_lshr_b32 s4, s2, 6")
e("s_lshl_b32 s4, s4, 12")
e("s_and_b32 s5, s2, 63")
e("s_lshl_b32 s5, s5, 4")
e("s_add_u32 s4, s4, s5")
e("s_lshl_b32 s4, s4, 4")
e(f"s_add_u32 s4, s4, {WS_QP}")
e(f"v_lshl_add_u32 v1, v{TMP+8}, 10, v1")
lab("L_pub_go")
e("v_lshlrev_b32 v1, 4, v1")
if_dry_goto("L_dry_done_comm")
e(f"buffer_store_dwordx4 v[{TMP}:{TMP+3}], v1, s[{SRD_WS}:{SRD_WS+3}], s4 offen sc1")
stamp(0, True)
lab("L_secQ")
e("v_lshlrev_b32 v3, 4, v0")
e("s_lshr_b32 s4, s2, 6")
e("s_lshl_b32 s4, s4, 10")
e("s_lshr_b32 s5, s2, 3")
e("s_and_b32 s5, s5, 7")
e("s_lshl_b32 s5, s5, 7")
e("s_add_u32 s4, s4, s5")
e(f"s_lshl_b32 s5, s{S_WAVE}, 5")
e("s_add_u32 s4, s4, s5")
e("s_lshl_b32 s4, s4, 4")
e(f"s_add_u32 s4, s4, {WS_QP}")
e(f"s_add_u32 s5, s4, {4*1024*16}")
e("v_and_b32 v4, 31, v0")
e("v_lshlrev_b32 v4, 4, v4")
e("v_lshrrev_b32 v5, 5, v0")
e("v_lshl_add_u32 v4, v5, 17, v4")
poll("q", [f"buffer_load_dwordx4 v[{16+4*k}:{19+4*k}], v4, s[{SRD_WS}:{SRD_WS+3}], s{4+k} offen sc1" for k in range(2)],
     [16, 20], 6, OPT["sleep_q"])
for i in range(4):
    e(f"v_add_f32 v{24+i}, v{16+i}, v{20+i}")
swap_reduce("v_add_f32", [24, 25, 26, 27], [28, 29, 30, 31], ("v_permlane32_swap_b32",))
e("v_cvt_pk_bf16_f32 v24, v24, v25")
e("v_cvt_pk_bf16_f32 v25, v26, v27")
e(f"s_lshl_b32 s4, s{S_WAVE}, 8")
e("v_and_b32 v5, 31, v0")
e("v_lshlrev_b32 v5, 3, v5")
e("v_add_u32 v5, s4, v5")
with Guard():
    e(f"ds_write_b64 v5, v[24:25] offset:{L_QS}")
    lds_signal(C_Q, 6)
stamp(1, True)
e("s_lshr_b32 s4, s2, 4")
e("s_lshl_b32 s4, s4, 7")
e("s_and_b32 s5, s2, 15")
e("s_lshl_b32 s5, s5, 3")
e("s_add_u32 s4, s4, s5")
e("s_lshl_b32 s4, s4, 4")
e(f"s_add_u32 s4, s4, {WS_OP}")
e(f"s_lshl_b32 s5, s{S_WAVE}, 18")
e("s_add_u32 s86, s4, s5")
for k in range(1, 4):
    e(f"s_add_u32 s{86+k}, s86, {k*65536}")
e(f"s_lshl_b32 s5, s{S_WAVE}, 15")
e("s_add_u32 s5, s4, s5")
e(f"s_add_u32 s85, s5, {128*8192}")
e("v_and_b32 v60, 7, v0")
e("v_lshlrev_b32 v60, 4, v60")
e("v_lshrrev_b32 v61, 3, v0")
e("v_lshl_add_u32 v60, v61, 13, v60")
e("v_and_b32 v62, 3, v61")
e(f"s_lshl_b32 s5, s{S_WAVE}, 2")
e("s_sub_u32 s5, 13, s5")
e("v_min_u32 v62, s5, v62")
e("v_and_b32 v63, 7, v0")
e("v_lshlrev_b32 v63, 4, v63")
e("v_lshl_add_u32 v62, v62, 13, v63")
o_loads = [f"buffer_load_dwordx4 v[{32+4*k}:{35+4*k}], v60, s[{SRD_WS}:{SRD_WS+3}], s{86+k} offen sc1" for k in range(4)]
o_loads.append(f"buffer_load_dwordx4 v[48:51], v62, s[{SRD_WS}:{SRD_WS+3}], s85 offen sc1")
e("s_cmp_ge_u32 s2, 64")
e("s_cbranch_scc1 L_c_nowarm")
with Guard():
    for l in o_loads:
        e(l)
    srd(SRD_M, 36, 1024)
    e(f"buffer_load_dwordx4 v[64:67], v3, s[{SRD_M}:{SRD_M+3}], 0 offen")
    e("s_lshr_b32 s4, s2, 4")
    e("s_lshl_b32 s4, s4, 10")
    e(f"buffer_load_dwordx4 v[68:71], v3, s[{SRD_X}:{SRD_X+3}], s4 offen")
    srd(SRD_OUT, 34, 1024)
    e("v_and_b32 v6, 31, v0")
    e("v_lshlrev_b32 v6, 1, v6")
    e("s_and_b32 s4, s2, 15")
    e("s_lshl_b32 s4, s4, 6")
    e(f"buffer_load_ushort v72, v6, s[{SRD_OUT}:{SRD_OUT+3}], s4 offen")
lab("L_c_nowarm")
if_dry_goto("L_secAG")
e("s_cmp_lt_u32 s2, 112")
e("s_cbranch_scc1 L_secAG")
e("s_cmp_ge_u32 s2, 224")
e("s_cbranch_scc1 L_secAG")
lab("L_secH")
e("s_sub_u32 s9, s2, 112")
e("s_lshr_b32 s9, s9, 3")
e("s_min_u32 s9, s9, 13")
e(f"s_mul_i32 s4, s{S_WAVE}, 448")
e("s_lshl_b32 s5, s9, 5")
e("s_add_u32 s4, s4, s5")
e("s_lshl_b32 s4, s4, 4")
e(f"s_add_u32 s4, s4, {WS_HP}")
e(f"s_add_u32 s5, s4, {4*448*16}")
srd(SRD_M, 30, 3584)
e("s_lshl_b32 s9, s9, 8")
e("v_and_b32 v6, 31, v0")
e("v_lshlrev_b32 v4, 4, v6")
e("v_lshlrev_b32 v6, 3, v6")
e(f"buffer_load_dwordx2 v[80:81], v6, s[{SRD_M}:{SRD_M+3}], s9 offen")
e("v_lshrrev_b32 v7, 5, v0")
e(f"s_mov_b32 s6, {2*4*448*16}")
e("v_mul_lo_u32 v7, s6, v7")
e("v_add_u32 v4, v7, v4")
poll("h", [f"buffer_load_dwordx4 v[{16+4*k}:{19+4*k}], v4, s[{SRD_WS}:{SRD_WS+3}], s{4+k} offen sc1" for k in range(2)],
     [16, 20], 6, OPT["sleep_q"])
for i in range(4):
    e(f"v_add_f32 v{24+i}, v{16+i}, v{20+i}")
swap_reduce("v_add_f32", [24, 25, 26, 27], [28, 29, 30, 31], ("v_permlane32_swap_b32",))
for p in range(2):
    a, b_ = 24 + 2 * p, 25 + 2 * p
    bf16_round_pair(28, a, b_, a, b_)
    e(f"v_lshlrev_b32 v28, 16, v{80+p}")
    e(f"v_and_b32 v29, 0xffff0000, v{80+p}")
    e(f"v_add_f32 v{a}, v{a}, v28")
    e(f"v_add_f32 v{b_}, v{b_}, v29")
    bf16_round_pair(28, a, b_, a, b_)
e("v_mov_b32 v31, 0x3d372713")
for r in (24, 25, 26, 27):
    e(f"v_mul_f32 v30, v{r}, v{r}")
    e(f"v_mul_f32 v30, v30, v{r}")
    e(f"v_fma_f32 v30, v30, v31, v{r}")
    e(f"v_mul_f32 v30, 0x40135761, v30")
    e(f"v_exp_f32 v30, v30")
    e("s_nop 0")
    e(f"v_add_f32 v30, 1.0, v30")
    e(f"v_rcp_f32 v30, v30")
    e("s_nop 0")
    e(f"v_fma_f32 v30, v30, -2.0, 2.0")
    e(f"v_mul_f32 v30, 0.5, v30")
    e(f"v_mul_f32 v{r}, v{r}, v30")
e("v_cvt_pk_bf16_f32 v24, v24, v25")
e("v_cvt_pk_bf16_f32 v25, v26, v27")
if_dry_goto("L_dry_done_comm")
e(f"ds_write_b64 v5, v[24:25] offset:{L_HA}")
lds_signal(C_H, 6)
lab("L_secAG")
stamp(2, True)
e(f"s_lshl_b32 s4, s{S_WAVE}, 5")
e("s_lshr_b32 s5, s2, 3")
e("s_add_u32 s4, s4, s5")
e("s_lshl_b32 s6, s4, 2")
e("s_bfe_u32 s5, s2, 0x20001")
e("s_add_u32 s6, s6, s5")
e("s_lshl_b32 s6, s6, 10")
e(f"s_add_u32 s6, s6, {WS_APO}")
e("s_lshl_b32 s4, s4, 7")
e(f"s_add_u32 s4, s4, {WS_APM}")
e("v_lshlrev_b32 v4, 4, v61")
poll("a", [f"buffer_load_dwordx4 v[16:19], v3, s[{SRD_WS}:{SRD_WS+3}], s6 offen sc1",
           f"buffer_load_dwordx4 v[20:23], v4, s[{SRD_WS}:{SRD_WS+3}], s4 offen sc1"], [16, 20], 6, OPT["sleep_t"])
stamp(3, True)
e("v_mov_b32 v24, v20")
dpp_reduce("v_max_f32", [24], ["row_ror:8"])
swap_reduce("v_max_f32", [24], [25])
e("v_sub_f32 v25, v20, v24")
e("v_mul_f32 v25, 0x3fb8aa3b, v25")
e("v_exp_f32 v25, v25")
e("s_nop 0")
e("v_mul_f32 v26, v25, v21")
for i in range(4):
    e(f"v_mul_f32 v{84+i}, v25, v{16+i}")
dpp_reduce("v_add_f32", [26, 84, 85, 86, 87], ["row_ror:8"])
swap_reduce("v_add_f32", [26, 84, 85, 86, 87], [27, 28, 29, 30, 31])
e("v_rcp_f32 v27, v26")
e("s_nop 0")
e("v_fma_f32 v28, -v26, v27, 2.0")
e("v_mul_f32 v27, v27, v28")
for i in range(4):
    e(f"v_mul_f32 v{84+i}, v27, v{84+i}")
e("v_cvt_pk_bf16_f32 v84, v84, v85")
e("v_cvt_pk_bf16_f32 v85, v86, v87")
e(f"s_lshl_b32 s4, s{S_WAVE}, 6")
e("v_lshlrev_b32 v4, 3, v0")
e("v_add_u32 v4, s4, v4")
with Guard():
    e("s_mov_b64 exec, 0xff")
    e(f"ds_write_b64 v4, v[84:85] offset:{L_OA}")
    e("s_mov_b64 exec, -1")
    lds_signal(C_A, 6)
stamp(4, True)
e("s_cmp_lt_u32 s2, 64")
e("s_cbranch_scc1 L_secF")
if_dry_goto("L_secH")
e("s_branch L_exit_c")
lab("L_secF")
GS = 74
for d in range(4):
    e(f"v_lshlrev_b32 v76, 16, v{68+d}")
    e(f"v_and_b32 v77, 0xffff0000, v{68+d}")
    e(f"v_lshlrev_b32 v78, 16, v{64+d}")
    e(f"v_and_b32 v79, 0xffff0000, v{64+d}")
    e("v_mul_f32 v76, v76, v78")
    e("v_mul_f32 v77, v77, v79")
    bf16_round_pair(78, 76, 77, 76, 77)
    if d == 0:
        e(f"v_add_f32 v{GS}, v76, v77")
    else:
        e(f"v_add_f32 v{GS}, v{GS}, v76")
        e(f"v_add_f32 v{GS}, v{GS}, v77")
dpp_reduce("v_add_f32", [GS], ROW16)
swap_reduce("v_add_f32", [GS], [76])
e(f"v_cvt_pk_bf16_f32 v75, v{GS}, v{GS}")
e("v_lshlrev_b32 v75, 16, v75")
e("v_mul_f32 v75, 0xbfb8aa3b, v75")
e("v_exp_f32 v75, v75")
e("s_nop 0")
e("v_add_f32 v75, 1.0, v75")
e("v_rcp_f32 v76, v75")
e("s_nop 0")
e("v_fma_f32 v77, -v75, v76, 2.0")
e("v_mul_f32 v76, v76, v77")
e("v_cvt_pk_bf16_f32 v76, v76, v76")
e("v_lshlrev_b32 v75, 16, v76")
e("v_sub_f32 v76, 1.0, v75")
e("v_cvt_pk_bf16_f32 v76, v76, v76")
e("v_lshlrev_b32 v76, 16, v76")
e("v_lshlrev_b32 v73, 16, v72")
poll("o", o_loads, [32, 36, 40, 44, 48], 1, OPT["sleep_t"])
stamp(5, True)
e(f"s_lshl_b32 s5, s{S_WAVE}, 5")
e("s_sub_u32 s5, 112, s5")
e("s_min_u32 s5, s5, 32")
e("v_cmp_gt_u32 vcc, s5, v0")
e("s_nop 1")
for i in range(4):
    e(f"v_cndmask_b32 v{92+i}, 0, v{48+i}, vcc")
    e(f"v_add_f32 v{88+i}, v{32+i}, v{36+i}")
    e(f"v_add_f32 v{52+i}, v{40+i}, v{44+i}")
for i in range(4):
    e(f"v_add_f32 v{88+i}, v{88+i}, v{52+i}")
regs = [88 + i for i in range(8)]
dpp_reduce("v_add_f32", regs, ["row_ror:8"])
swap_reduce("v_add_f32", regs, [52 + i for i in range(8)])
e(f"s_lshl_b32 s4, s{S_WAVE}, 7")
e("v_add_u32 v4, s4, v3")
with Guard():
    e("s_mov_b64 exec, 0xff")
    e(f"ds_write_b128 v4, v[88:91] offset:{L_F}")
    e(f"ds_write_b128 v4, v[92:95] offset:{L_F+512}")
    e("s_mov_b64 exec, -1")
    lds_signal(C_F, 6)
    e(f"s_cmp_lg_u32 s{S_WAVE}, 0")
    e("s_cbranch_scc1 L_exit_c")
lds_wait(C_F, 4, 6)
e("v_and_b32 v6, 31, v0")
e("v_lshlrev_b32 v4, 2, v6")
for w in range(8):
    e(f"ds_read_b32 v{52+w}, v4 offset:{L_F+128*w}")
e("s_waitcnt lgkmcnt(0)")
e("v_add_f32 v52, v52, v53")
e("v_add_f32 v54, v54, v55")
e("v_add_f32 v56, v56, v57")
e("v_add_f32 v58, v58, v59")
e("v_add_f32 v52, v52, v54")
e("v_add_f32 v56, v56, v58")
bf16_round_pair(54, 52, 56, 52, 56)
e("v_add_f32 v56, v56, v73")
e("v_cvt_pk_bf16_f32 v54, v56, v56")
e("v_lshlrev_b32 v56, 16, v54")
e("v_mul_f32 v52, v75, v52")
e("v_mul_f32 v56, v76, v56")
bf16_round_pair(54, 52, 56, 52, 56)
e("v_add_f32 v52, v52, v56")
e("v_cvt_pk_bf16_f32 v52, v52, v52")
e("v_lshlrev_b32 v6, 1, v6")
e("s_lshl_b32 s4, s2, 6")
if_dry_goto("L_secH")
srd(SRD_OUT, 38, 4096)
set_exec("-1", 0)
e(f"buffer_store_short v52, v6, s[{SRD_OUT}:{SRD_OUT+3}], s4 offen")
e("s_cmp_lg_u32 s2, 0")
e("s_cbranch_scc1 L_exit_c")
e("s_mov_b64 exec, 1")
e(f"v_mov_b32 v1, 0")
e(f"v_mov_b32 v4, s{S_TAG}")
e(f"v_mov_b32 v5, s{S_TAG+1}")
e(f"buffer_store_dwordx2 v[4:5], v1, s[{SRD_WS}:{SRD_WS+3}], 0 offen offset:{WS_GEN} sc1")
lab("L_exit_c")
dump_stamps(True)
lab("L_exit")
e("s_endpgm")
if not OPT["dry"]:
    lab("L_dry_done_data")
    lab("L_dry_done_comm")
    e("s_endpgm")

out.append('.section .rodata,"a"')
out.append(".p2align 6")
out.append(f".amdhsa_kernel {NAME}_kernel")
out.append("  .amdhsa_next_free_vgpr 240")
out.append("  .amdhsa_next_free_sgpr 102")
out.append("  .amdhsa_accum_offset 240")
out.append("  .amdhsa_group_segment_fixed_size 0")
out.append("  .amdhsa_kernarg_size 112")
out.append("  .amdhsa_user_sgpr_count 2")
out.append("  .amdhsa_user_sgpr_kernarg_segment_ptr 1")
out.append("  .amdhsa_system_sgpr_workgroup_id_x 1")
out.append(".end_amdhsa_kernel")

dst = sys.argv[1] if len(sys.argv) > 1 else f"cdna_kernels/{NAME}.s"
open(dst, "w").write("\n".join(out) + "\n")
print("wrote", dst, len(out), "lines")
```

```python
import sys

NAME = "gated_mix__sliding_block_cached__mixer_channel_mlp__decode"

OPT = dict(
    stamps=0,
    nt=1,
    depth=6,
    sleep_l=1,
    sleep_q=1,
    sleep_t=0,
    dry=1,
)
for a in sys.argv[2:]:
    k, v = a.split("=")
    OPT[k] = int(v)

WS_GEN = 0
WS_QP = 0x10000
WS_HP = WS_QP + 4 * 4 * 1024 * 16
WS_APO = WS_HP + 4 * 4 * 448 * 16
WS_APM = WS_APO + 4 * 32 * 4 * 8 * 8 * 16
WS_OP = WS_APM + 4 * 32 * 8 * 16
WS_ST = WS_OP + 142 * 4 * 128 * 16
WS_END = WS_ST + 256 * 8 * 16 * 8
open("gen_layout.py", "w").write(f"WS_ST = {WS_ST}\n")

L_PIECE = 0
L_QS = 8192
L_OW = 9216
L_ML = 17408
L_OA = 17536
L_HA = 17792
L_F = 18816
L_CNT = 19840
L_END = L_CNT + 64
LDS_BYTES = 20480
assert L_END <= LDS_BYTES
C_Q, C_O, C_H, C_A, C_F = 0, 4, 8, 12, 16

out = []


def e(s):
    out.append("    " + s)


def lab(s):
    out.append(s + ":")


NT = " nt" if OPT["nt"] else ""
S_WAVE = 3
SRD_X, SRD_K, SRD_V, SRD_W1, SRD_W3, SRD_WS, SRD_OUT, SRD_M = 44, 48, 52, 56, 60, 64, 68, 72
S_TAG = 76
S_SELLO, S_SELHI = 78, 79
S_T0 = 80
S_MASK = 96
S_DRY = 97
S_STAMP = 100
V_ST = 232
uid = [0]


def nid():
    uid[0] += 1
    return uid[0]


class Guard:
    def __enter__(self):
        self.n = nid()
        e(f"s_cmp_lg_u32 s{S_DRY}, 0")
        e(f"s_cbranch_scc1 L_g{self.n}")

    def __exit__(self, *a):
        lab(f"L_g{self.n}")


def if_dry_goto(label):
    e(f"s_cmp_lg_u32 s{S_DRY}, 0")
    e(f"s_cbranch_scc1 {label}")


def srd(dst, ptr, nbytes):
    e(f"s_mov_b32 s{dst}, s{ptr}")
    e(f"s_and_b32 s{dst+1}, s{ptr+1}, 0xffff")
    e(f"s_mov_b32 s{dst+2}, {nbytes}")
    e(f"s_mov_b32 s{dst+3}, 0x00020000")


def stamp_raw(i, comm):
    va, vt = V_ST, V_ST + 2
    e(f"s_lshl_b32 s98, s2, 3")
    e(f"s_add_u32 s98, s98, s{S_WAVE}")
    if comm:
        e("s_add_u32 s98, s98, 4")
    e(f"s_lshl_b32 s98, s98, 7")
    e(f"s_add_u32 s98, s98, {WS_ST + 8 * i}")
    e(f"v_mov_b32 v{va}, s98")
    e(f"v_mov_b32 v{vt}, s{S_STAMP}")
    e(f"v_mov_b32 v{vt+1}, s{S_STAMP+1}")
    e(f"s_mov_b64 s[98:99], exec")
    e(f"s_mov_b64 exec, 1")
    e(f"buffer_store_dwordx2 v[{vt}:{vt+1}], v{va}, s[{SRD_WS}:{SRD_WS+3}], 0 offen")
    e(f"s_mov_b64 exec, s[98:99]")


STAMP_MAP_D = {0: 0, 3: 1, 5: 2, 2: 3, 6: 4, 7: 5, 8: 6}
STAMP_MAP_C = {0: 0, 1: 1, 3: 2, 4: 3, 5: 4, 7: 6, 6: 5}


def stamp(i, comm=False):
    if not OPT["stamps"]:
        return
    m = STAMP_MAP_C if comm else STAMP_MAP_D
    if i not in m:
        return
    k = m[i]
    with Guard():
        e(f"s_memrealtime s[{16+2*k}:{17+2*k}]")


def dump_stamps(comm):
    if not OPT["stamps"]:
        return
    m = STAMP_MAP_C if comm else STAMP_MAP_D
    e("s_waitcnt lgkmcnt(0)")
    e("s_mov_b64 exec, -1")
    if OPT["stamps"] == 2:
        srd(SRD_M, 40, 256)
        e("s_mov_b64 exec, 1")
        for i, k in m.items():
            if comm and i in (6,):
                continue
            slot = i if not comm else {0: 9, 1: 10, 3: 11, 4: 12, 5: 13, 7: 14}[i]
            n_ = nid()
            if (not comm) and i in (7, 8):
                e(f"s_cmp_lt_u32 s{S_WAVE}, 2")
                e(f"s_cbranch_scc1 L_ds{n_}")
            if comm and i == 0:
                e("s_cmp_eq_u32 s8, 0")
                e(f"s_cbranch_scc1 L_ds{n_}")
            if comm and i == 5:
                e("s_cmp_ge_u32 s2, 64")
                e(f"s_cbranch_scc1 L_ds{n_}")
            e(f"v_mov_b32 v{V_ST}, {4*slot}")
            if (not comm) and i == 0:
                e(f"s_not_b32 s{S_STAMP}, s{16+2*k}")
                e(f"v_mov_b32 v{V_ST+1}, s{S_STAMP}")
            else:
                e(f"v_mov_b32 v{V_ST+1}, s{16+2*k}")
            e(f"buffer_atomic_umax v{V_ST+1}, v{V_ST}, s[{SRD_M}:{SRD_M+3}], 0 offen")
            e("s_nop 1")
            lab(f"L_ds{n_}")
        return
    for i, k in m.items():
        e(f"s_mov_b32 s{S_STAMP}, s{16+2*k}")
        e(f"s_mov_b32 s{S_STAMP+1}, s{17+2*k}")
        stamp_raw(i, comm)
        e("s_nop 1")


def tile_mm(W, A, B, ACC, acc_in=False):
    for q in range(4):
        for i in range(4):
            e(f"v_perm_b32 v{B+i}, v{W+4*(2*i+1)+q}, v{W+4*(2*i)+q}, s{S_SELLO}")
        for i in range(4):
            e(f"v_perm_b32 v{B+4+i}, v{W+4*(2*i+1)+q}, v{W+4*(2*i)+q}, s{S_SELHI}")
        e("s_nop 1")
        for jj in range(2):
            j = 2 * q + jj
            c = f"v[{ACC+4*j}:{ACC+4*j+3}]" if acc_in else "0"
            e(f"v_mfma_f32_16x16x32_bf16 v[{ACC+4*j}:{ACC+4*j+3}], v[{A}:{A+3}], v[{B+4*jj}:{B+4*jj+3}], {c}")


VT = 188
VTRAW = 186


def load_tag(vtmp):
    e(f"v_mov_b32 v{vtmp}, 0")
    e(f"buffer_load_dwordx2 v[{VTRAW}:{VTRAW+1}], v{vtmp}, s[{SRD_WS}:{SRD_WS+3}], 0 offen offset:{WS_GEN} sc1")


def finish_tag():
    e(f"v_readfirstlane_b32 s{S_TAG}, v{VTRAW}")
    e(f"v_readfirstlane_b32 s{S_TAG+1}, v{VTRAW+1}")
    e("s_nop 3")
    e(f"s_add_u32 s{S_TAG}, s{S_TAG}, 1")
    e(f"s_addc_u32 s{S_TAG+1}, s{S_TAG+1}, 0")
    e(f"s_and_b32 s{S_T0}, s{S_TAG}, 0x3ff")
    e(f"s_bfe_u32 s{S_T0+1}, s{S_TAG}, 0xa000a")
    e(f"s_bfe_u32 s{S_T0+2}, s{S_TAG}, 0xa0014")
    e(f"s_lshr_b64 s[{S_T0+4}:{S_T0+5}], s[{S_TAG}:{S_TAG+1}], 30")
    e(f"s_and_b32 s{S_T0+3}, s{S_T0+4}, 0x3ff")
    for i in range(4):
        e(f"v_mov_b32 v{VT+i}, s{S_T0+i}")


def tagq(dst, srcs):
    for i in range(4):
        e(f"v_bfi_b32 v{dst+i}, s{S_MASK}, v{VT+i}, v{srcs[i]}")


def poll(name, loads, quads, vx, sleep, maxit=100000):
    e(f"s_mov_b32 s{S_T0+10}, {maxit}")
    lab(f"L_poll_{name}")
    for l in loads:
        e(l)
    with Guard():
        e("s_waitcnt vmcnt(0)")
    first = True
    for q in quads:
        for i in range(4):
            if first:
                e(f"v_xor_b32 v{vx}, v{q+i}, v{VT+i}")
                first = False
            else:
                e(f"v_xor_b32 v{vx+1}, v{q+i}, v{VT+i}")
                e(f"v_or_b32 v{vx}, v{vx}, v{vx+1}")
    e(f"v_and_b32 v{vx}, 0x3ff, v{vx}")
    e(f"v_cmp_ne_u32 vcc, 0, v{vx}")
    if_dry_goto(f"L_pdone_{name}")
    e(f"s_cmp_eq_u64 vcc, 0")
    e(f"s_cbranch_scc1 L_pdone_{name}")
    e(f"s_sub_u32 s{S_T0+10}, s{S_T0+10}, 1")
    e(f"s_cmp_eq_u32 s{S_T0+10}, 0")
    e(f"s_cbranch_scc1 L_pdone_{name}")
    if sleep:
        e(f"s_sleep {sleep}")
    e(f"s_branch L_poll_{name}")
    lab(f"L_pdone_{name}")


def lds_signal(cnt, vtmp):
    e("s_waitcnt lgkmcnt(0)")
    e(f"v_mov_b32 v{vtmp}, {L_CNT+cnt}")
    e(f"v_mov_b32 v{vtmp+1}, 1")
    e("s_mov_b64 exec, 1")
    e(f"ds_add_u32 v{vtmp}, v{vtmp+1}")
    e("s_mov_b64 exec, -1")


def lds_wait(cnt, target, vtmp):
    n = nid()
    e(f"v_mov_b32 v{vtmp}, {L_CNT+cnt}")
    e(f"s_mov_b32 s{S_T0+11}, 4000000")
    lab(f"L_lw{n}")
    e(f"ds_read_b32 v{vtmp+1}, v{vtmp}")
    e("s_waitcnt lgkmcnt(0)")
    e(f"v_readfirstlane_b32 s{S_T0+12}, v{vtmp+1}")
    if_dry_goto(f"L_lwd{n}")
    e("s_nop 1")
    e(f"s_cmp_ge_u32 s{S_T0+12}, {target}")
    e(f"s_cbranch_scc1 L_lwd{n}")
    e(f"s_sub_u32 s{S_T0+11}, s{S_T0+11}, 1")
    e(f"s_cmp_eq_u32 s{S_T0+11}, 0")
    e(f"s_cbranch_scc1 L_lwd{n}")
    if OPT["sleep_l"]:
        e(f"s_sleep {OPT['sleep_l']}")
    e(f"s_branch L_lw{n}")
    lab(f"L_lwd{n}")


def bf16_round_pair(dst_pk, a, b, lo, hi):
    e(f"v_cvt_pk_bf16_f32 v{dst_pk}, v{a}, v{b}")
    e(f"v_lshlrev_b32 v{lo}, 16, v{dst_pk}")
    e(f"v_and_b32 v{hi}, 0xffff0000, v{dst_pk}")


def dpp_reduce(op, regs, ctls):
    for ctl in ctls:
        e("s_nop 1")
        for r in regs:
            e(f"{op}_dpp v{r}, v{r}, v{r} {ctl} row_mask:0xf bank_mask:0xf")


ROW16 = ["quad_perm:[1,0,3,2]", "quad_perm:[2,3,0,1]", "row_half_mirror", "row_mirror"]


def swap_reduce(op, regs, tmps, sws=("v_permlane16_swap_b32", "v_permlane32_swap_b32")):
    for sw in sws:
        for r, t in zip(regs, tmps):
            e(f"v_mov_b32 v{t}, v{r}")
        e("s_nop 1")
        for r, t in zip(regs, tmps):
            e(f"{sw} v{r}, v{t}")
        e("s_nop 1")
        for r, t in zip(regs, tmps):
            e(f"{op} v{r}, v{r}, v{t}")


def set_exec(lo, hi):
    e(f"s_mov_b32 exec_lo, {lo}")
    e(f"s_mov_b32 exec_hi, {hi}")


VW, VK, VV, VB, VACC = 16, 80, 112, 144, 152
VA, VA2 = 12, 224
VX = 152
TMP = 192


def lane_setup():
    e("v_and_b32 v1, 7, v0")
    e("v_bfe_u32 v2, v0, 3, 1")
    e("v_lshrrev_b32 v3, 4, v0")
    e("v_lshlrev_b32 v4, 5, v2")
    e("v_lshl_add_u32 v4, v3, 3, v4")
    e("v_and_b32 v5, 3, v0")
    e("v_bfe_u32 v6, v0, 2, 1")
    e("v_lshlrev_b32 v6, 5, v6")
    e("v_lshl_add_u32 v6, v3, 3, v6")
    e("v_lshlrev_b32 v11, 1, v6")
    e("v_lshl_add_u32 v6, v5, 10, v11")
    e("v_lshl_add_u32 v11, v5, 8, v11")
    e("v_lshlrev_b32 v10, 7, v1")
    e("v_lshl_add_u32 v10, v2, 10, v10")


def tile128(A1, A2, piece_off_sreg):
    tile_mm(VW, A1, VB, VACC)
    tile_mm(VW + 32, A2, VB, VACC, acc_in=True)
    e("v_and_b32 v1, 15, v0")
    e("v_lshlrev_b32 v1, 6, v1")
    e(f"v_lshrrev_b32 v{TMP+8}, 4, v0")
    e(f"v_lshl_add_u32 v1, v{TMP+8}, 2, v1")
    e(f"v_add_u32 v1, s{piece_off_sreg}, v1")
    e(f"v_add_u32 v2, s{piece_off_sreg}, v10")
    e("s_nop 7")
    with Guard():
        set_exec("0xff0000ff", 0)
        for j in range(8):
            e(f"ds_write_b128 v2, v[{VACC+4*j}:{VACC+4*j+3}] offset:{16*j}")
        e("s_mov_b64 exec, -1")
    e("s_waitcnt lgkmcnt(0)")
    for p in range(2):
        for i in range(4):
            e(f"ds_read_b32 v{TMP+4*p+i}, v1 offset:{1024*p+16*i}")
    e("s_waitcnt lgkmcnt(0)")
    for i in range(4):
        e(f"v_add_f32 v{TMP+i}, v{TMP+i}, v{TMP+4+i}")
    tagq(TMP, [TMP, TMP + 1, TMP + 2, TMP + 3])


hdr = open(f"cdna_kernels/{NAME}.s.ref").read().split("\n")
top = [l for l in hdr if l.startswith(";") and "@launch" not in l]
out.extend(top)
out.append(f"; @launch grid=(256,1,1) block=(512,1,1) lds={LDS_BYTES}")
out.append('.amdgcn_target "amdgcn-amd-amdhsa--gfx950"')
out.append(".text")
out.append(f".globl {NAME}_kernel")
out.append(".p2align 8")
out.append(f".type {NAME}_kernel,@function")
lab(f"{NAME}_kernel")

e("s_cmp_ge_u32 s2, 256")
e("s_cbranch_scc1 L_exit")
e("s_load_dwordx16 s[16:31], s[0:1], 0")
e("s_load_dwordx8 s[32:39], s[0:1], 64")
e("s_load_dwordx4 s[40:43], s[0:1], 96")
e("v_lshrrev_b32 v1, 6, v0")
e("v_and_b32 v0, 63, v0")
e(f"s_mov_b32 s{S_SELLO}, 0x05040100")
e(f"s_mov_b32 s{S_SELHI}, 0x07060302")
e(f"s_mov_b32 s{S_MASK}, 0x3ff")
e(f"s_mov_b32 s{S_DRY}, 0")
e(f"v_readfirstlane_b32 s{S_WAVE}, v1")
lane_setup()
e("s_waitcnt lgkmcnt(0)")
srd(SRD_X, 16, 4096)
srd(SRD_WS, 42, WS_END)
e(f"s_cmp_ge_u32 s{S_WAVE}, 4")
e("s_cbranch_scc1 L_comm")

srd(SRD_K, 18, 33554432)
srd(SRD_V, 20, 33554432)
stamp(0)
e("s_lshr_b32 s10, s2, 3")
e("s_lshl_b32 s10, s10, 12")
e("s_and_b32 s11, s2, 7")
e("s_lshl_b32 s11, s11, 7")
e("s_add_u32 s10, s10, s11")
e(f"s_lshl_b32 s11, s{S_WAVE}, 5")
e("s_add_u32 s10, s10, s11")
e("s_add_u32 s10, s10, 3072")
e("s_lshl_b32 s10, s10, 8")
e("s_add_u32 s11, s10, 4096")
e("v_and_b32 v8, 15, v0")
e("v_lshlrev_b32 v9, 4, v8")
e("v_lshlrev_b32 v8, 8, v8")
e("v_lshl_add_u32 v8, v3, 4, v8")
e("v_lshl_add_u32 v9, v3, 10, v9")
load_tag(2)
D = OPT["depth"]
seq = []
for kb in range(2):
    for c in range(4):
        r = VK + 16 * kb + 4 * c
        seq.append(f"buffer_load_dwordx4 v[{r}:{r+3}], v8, s[{SRD_K}:{SRD_K+3}], s{10+kb} offen offset:{64*c}{NT}")
for i in range(8):
    r = VV + 4 * i
    so = 10 if i < 4 else 11
    seq.append(f"buffer_load_dwordx4 v[{r}:{r+3}], v9, s[{SRD_V}:{SRD_V+3}], s{so} offen offset:{256*(i&3)}{NT}")
for i, l in enumerate(seq):
    if i == D:
        e("s_barrier")
    if i >= D:
        e(f"s_waitcnt vmcnt({D-1})")
    e(l)
finish_tag()
e("s_mov_b32 s14, 0")
e(f"s_cmp_lt_u32 s{S_WAVE}, 2")
e("s_cbranch_scc1 L_nowo0")
srd(SRD_W3, 24, 4194304)
e("s_lshr_b32 s6, s2, 1")
e("s_lshl_b32 s9, s6, 15")
e("s_and_b32 s7, s2, 1")
e("s_lshl_b32 s7, s7, 9")
e("s_add_u32 s9, s9, s7")
e(f"s_sub_u32 s7, s{S_WAVE}, 2")
e("s_lshl_b32 s7, s7, 8")
e("s_add_u32 s9, s9, s7")
e("v_and_b32 v7, 15, v0")
e("v_lshlrev_b32 v7, 4, v7")
e("v_lshl_add_u32 v7, v3, 13, v7")
for i in range(8):
    e(f"s_waitcnt vmcnt({D-1})")
    e(f"buffer_load_dwordx4 v[{VW+4*i}:{VW+4*i+3}], v7, s[{SRD_W3}:{SRD_W3+3}], s9 offen offset:{1024*(i&3)}{NT}")
    if i == 3:
        e("s_add_u32 s9, s9, 4096")
e("s_branch L_now2")
lab("L_nowo0")
e(f"s_cmp_eq_u32 s{S_WAVE}, 1")
e("s_cbranch_scc0 L_now2")
e("s_cmp_lt_u32 s2, 112")
e("s_cbranch_scc1 L_now2")
e("s_cmp_ge_u32 s2, 224")
e("s_cbranch_scc1 L_now2")
e("s_mov_b32 s14, 1")
srd(SRD_W3, 32, 1792 * 512 * 2)
e("s_sub_u32 s9, s2, 112")
e("s_lshr_b32 s6, s9, 3")
e("s_lshl_b32 s6, s6, 17")
e("s_and_b32 s7, s9, 7")
e("s_lshl_b32 s7, s7, 7")
e("s_add_u32 s9, s6, s7")
e("v_and_b32 v7, 7, v0")
e("v_lshlrev_b32 v7, 4, v7")
e("v_lshl_add_u32 v7, v4, 10, v7")
for i in range(16):
    e(f"s_waitcnt vmcnt({D-1})")
    e(f"buffer_load_dwordx4 v[{VW+4*i}:{VW+4*i+3}], v7, s[{SRD_W3}:{SRD_W3+3}], s9 offen offset:{1024*(i&3)}{NT}")
    if i == 7:
        e(f"s_add_u32 s9, s9, {4096 + 56*1024}")
    elif i & 3 == 3 and i < 15:
        e("s_add_u32 s9, s9, 4096")
lab("L_now2")

lab("L_secA")
lds_wait(C_Q, 4, TMP)
stamp(3)
VQ = TMP
e("v_and_b32 v1, 3, v0")
e("v_lshlrev_b32 v1, 8, v1")
e("v_lshl_add_u32 v1, v3, 4, v1")
for c in range(4):
    e(f"ds_read_b128 v[{VQ+4*c}:{VQ+4*c+3}], v1 offset:{L_QS+64*c}")
with Guard():
    e(f"s_cmp_ge_u32 s{S_WAVE}, 2")
    e("s_cbranch_scc1 L_wk_b")
    e("s_cmp_eq_u32 s14, 1")
    e("s_cbranch_scc1 L_wk_c")
    e("s_waitcnt vmcnt(8)")
    e("s_branch L_wk_d")
    lab("L_wk_b")
    e("s_waitcnt vmcnt(16)")
    e("s_branch L_wk_d")
    lab("L_wk_c")
    e("s_waitcnt vmcnt(24)")
    lab("L_wk_d")
e("s_waitcnt lgkmcnt(0)")
stamp(4)
VS = VACC
for kb in range(2):
    for c in range(4):
        src2 = "0" if c == 0 else f"v[{VS+4*kb}:{VS+4*kb+3}]"
        e(f"v_mfma_f32_16x16x32_bf16 v[{VS+4*kb}:{VS+4*kb+3}], v[{VK+16*kb+4*c}:{VK+16*kb+4*c+3}], v[{VQ+4*c}:{VQ+4*c+3}], {src2}")
e("s_nop 7")
e("s_nop 1")
SC = TMP + 16
T = TMP + 24
for kb in range(2):
    for h2 in range(2):
        a = VS + 4 * kb + 2 * h2
        d = SC + 4 * kb + 2 * h2
        bf16_round_pair(T, a, a + 1, d, d + 1)
        e(f"v_mul_f32 v{d}, 0x3db504f3, v{d}")
        e(f"v_mul_f32 v{d+1}, 0x3db504f3, v{d+1}")
        bf16_round_pair(T, d, d + 1, d, d + 1)
MX = TMP + 26
LS = TMP + 27
e(f"v_max3_f32 v{MX}, v{SC}, v{SC+1}, v{SC+2}")
e(f"v_max3_f32 v{MX}, v{MX}, v{SC+3}, v{SC+4}")
e(f"v_max3_f32 v{MX}, v{MX}, v{SC+5}, v{SC+6}")
e(f"v_max_f32 v{MX}, v{MX}, v{SC+7}")
swap_reduce("v_max_f32", [MX], [T])
for i in range(8):
    e(f"v_sub_f32 v{SC+i}, v{SC+i}, v{MX}")
    e(f"v_mul_f32 v{SC+i}, 0x3fb8aa3b, v{SC+i}")
    e(f"v_exp_f32 v{SC+i}, v{SC+i}")
e("s_nop 0")
e(f"v_add_f32 v{LS}, v{SC}, v{SC+1}")
for i in range(2, 8):
    e(f"v_add_f32 v{LS}, v{LS}, v{SC+i}")
swap_reduce("v_add_f32", [LS], [T])
VP = TMP + 28
for i in range(4):
    e(f"v_cvt_pk_bf16_f32 v{VP+i}, v{SC+2*i}, v{SC+2*i+1}")
with Guard():
    e(f"s_cmp_ge_u32 s{S_WAVE}, 2")
    e("s_cbranch_scc1 L_wv_b")
    e("s_cmp_eq_u32 s14, 1")
    e("s_cbranch_scc1 L_wv_c")
    e("s_waitcnt vmcnt(0)")
    e("s_branch L_wv_d")
    lab("L_wv_b")
    e("s_waitcnt vmcnt(8)")
    e("s_branch L_wv_d")
    lab("L_wv_c")
    e("s_waitcnt vmcnt(16)")
    lab("L_wv_d")
stamp(5)
tile_mm(VV, VP, VB, VACC)
e(f"s_lshl_b32 s4, s{S_WAVE}, 11")
e("v_lshlrev_b32 v1, 7, v0")
e("v_add_u32 v1, s4, v1")
e(f"s_lshl_b32 s4, s{S_WAVE}, 5")
e("v_lshlrev_b32 v2, 3, v0")
e("v_add_u32 v2, s4, v2")
e("s_nop 7")
with Guard():
    set_exec("0xffff", 0)
    for j in range(8):
        e(f"ds_write_b128 v1, v[{VACC+4*j}:{VACC+4*j+3}] offset:{L_OW+16*j}")
    e("s_mov_b64 exec, 15")
    e(f"ds_write_b64 v2, v[{MX}:{MX+1}] offset:{L_ML}")
    e("s_mov_b64 exec, -1")
    lds_signal(C_O, TMP)
stamp(1)
e(f"s_lshl_b32 s4, s{S_WAVE}, 3")
e("v_mov_b32 v1, s4")
e(f"s_lshl_b32 s4, s{S_WAVE}, 2")
e("v_and_b32 v2, 31, v0")
e("v_lshlrev_b32 v2, 6, v2")
e("v_add_u32 v2, s4, v2")
e("s_lshr_b32 s4, s2, 3")
e("s_lshl_b32 s4, s4, 2")
e(f"s_add_u32 s4, s4, s{S_WAVE}")
e("s_and_b32 s5, s2, 7")
e("s_lshl_b32 s6, s4, 12")
e("s_lshl_b32 s7, s5, 7")
e("s_add_u32 s6, s6, s7")
e(f"s_add_u32 s6, s6, {WS_APO}")
e("s_lshl_b32 s4, s4, 3")
e("s_add_u32 s4, s4, s5")
e("s_lshl_b32 s4, s4, 4")
e(f"s_add_u32 s4, s4, {WS_APM}")
e("v_and_b32 v7, 7, v0")
e("v_lshlrev_b32 v7, 4, v7")
e(f"v_lshrrev_b32 v{TMP+12}, 3, v0")
e(f"v_lshl_add_u32 v7, v{TMP+12}, 10, v7")
lds_wait(C_O, 4, TMP)
stamp(2)
R = VACC
for w in range(4):
    e(f"ds_read_b64 v[{R+2*w}:{R+2*w+1}], v1 offset:{L_ML+32*w}")
for w in range(4):
    for i in range(4):
        e(f"ds_read_b32 v{R+8+4*w+i}, v2 offset:{L_OW+2048*w+16*i}")
e("s_waitcnt lgkmcnt(0)")
M_, L_ = R + 24, R + 25
e(f"v_max3_f32 v{M_}, v{R}, v{R+2}, v{R+4}")
e(f"v_max_f32 v{M_}, v{M_}, v{R+6}")
F_ = TMP
for w in range(4):
    e(f"v_sub_f32 v{F_+w}, v{R+2*w}, v{M_}")
    e(f"v_mul_f32 v{F_+w}, 0x3fb8aa3b, v{F_+w}")
    e(f"v_exp_f32 v{F_+w}, v{F_+w}")
e("s_nop 0")
O_ = TMP + 4
e(f"v_mul_f32 v{L_}, v{F_}, v{R+1}")
for i in range(4):
    e(f"v_mul_f32 v{O_+i}, v{F_}, v{R+8+i}")
for w in range(1, 4):
    e(f"v_fmac_f32 v{L_}, v{F_+w}, v{R+2*w+1}")
    for i in range(4):
        e(f"v_fmac_f32 v{O_+i}, v{F_+w}, v{R+8+4*w+i}")
tagq(O_, [O_, O_ + 1, O_ + 2, O_ + 3])
e(f"v_mov_b32 v{R+26}, 0")
e(f"v_mov_b32 v{R+27}, 0")
tagq(TMP + 8, [M_, L_, R + 26, R + 27])
e(f"v_mov_b32 v1, 0")
with Guard():
    set_exec("-1", 0)
    e(f"buffer_store_dwordx4 v[{O_}:{O_+3}], v7, s[{SRD_WS}:{SRD_WS+3}], s6 offen sc1")
    e("s_mov_b64 exec, 1")
    e(f"buffer_store_dwordx4 v[{TMP+8}:{TMP+11}], v1, s[{SRD_WS}:{SRD_WS+3}], s4 offen sc1")
    e("s_mov_b64 exec, -1")
stamp(6)
if_dry_goto("L_secC")
e(f"s_cmp_ge_u32 s{S_WAVE}, 2")
e("s_cbranch_scc1 L_secC")
e("s_cmp_eq_u32 s14, 1")
e("s_cbranch_scc0 L_exit_d")
lab("L_secB")
lds_wait(C_H, 4, TMP)
e(f"ds_read_b128 v[{VA}:{VA+3}], v11 offset:{L_HA}")
e(f"ds_read_b128 v[{VA2}:{VA2+3}], v11 offset:{L_HA+128}")
with Guard():
    e("s_waitcnt vmcnt(0)")
e("s_waitcnt lgkmcnt(0)")
e(f"s_mov_b32 s15, {L_PIECE}")
tile128(VA, VA2, 15)
e("s_sub_u32 s5, s2, 112")
e("s_lshr_b32 s4, s5, 3")
e("s_add_u32 s4, s4, 128")
e("s_lshl_b32 s4, s4, 9")
e("s_and_b32 s5, s5, 7")
e("s_lshl_b32 s5, s5, 4")
e("s_add_u32 s4, s4, s5")
e("s_lshl_b32 s4, s4, 4")
e(f"s_add_u32 s4, s4, {WS_OP}")
e("v_and_b32 v1, 15, v0")
e(f"v_lshl_add_u32 v1, v{TMP+8}, 7, v1")
e("v_lshlrev_b32 v1, 4, v1")
if_dry_goto("L_dry_done_data")
e(f"buffer_store_dwordx4 v[{TMP}:{TMP+3}], v1, s[{SRD_WS}:{SRD_WS+3}], s4 offen sc1")
lab("L_exit_d")
dump_stamps(False)
e("s_endpgm")
lab("L_secC")
e("s_lshr_b32 s4, s2, 1")
e("s_lshl_b32 s4, s4, 9")
e("s_and_b32 s5, s2, 1")
e("s_lshl_b32 s5, s5, 6")
e("s_add_u32 s4, s4, s5")
e(f"s_sub_u32 s5, s{S_WAVE}, 2")
e("s_lshl_b32 s5, s5, 5")
e("s_add_u32 s4, s4, s5")
e("s_lshl_b32 s4, s4, 4")
e(f"s_add_u32 s4, s4, {WS_OP}")
e("s_add_u32 s5, s4, 4096")
e("v_lshlrev_b32 v2, 5, v0")
e("v_lshlrev_b32 v1, 6, v5")
e("v_lshl_add_u32 v1, v3, 4, v1")
lds_wait(C_A, 4, TMP)
stamp(7)
e(f"ds_read_b128 v[{VA}:{VA+3}], v1 offset:{L_OA}")
with Guard():
    e("s_waitcnt vmcnt(0)")
e("s_waitcnt lgkmcnt(0)")
tile_mm(VW, VA, VB, VACC)
e("s_nop 7")
e("s_nop 1")
for b in range(4):
    for hf in range(2):
        d = TMP + 8 * b + 4 * hf
        tagq(d, [VACC + 4 * (4 * hf + i) + b for i in range(4)])
if_dry_goto("L_secB")
set_exec("0xffff", 0)
for b in range(4):
    for hf in range(2):
        d = TMP + 8 * b + 4 * hf
        e(f"buffer_store_dwordx4 v[{d}:{d+3}], v2, s[{SRD_WS}:{SRD_WS+3}], s{4+(b>>1)} offen offset:{2048*(b&1)+16*hf} sc1")
stamp(8)
e("s_branch L_exit_d")

lab("L_comm")
e("s_setprio 2")
e(f"s_sub_u32 s{S_WAVE}, s{S_WAVE}, 4")
stamp(6, True)
load_tag(7)
e("s_mov_b32 s8, 0")
e(f"s_cmp_ge_u32 s{S_WAVE}, 2")
e("s_cbranch_scc1 L_p1_noload")
e(f"s_cmp_eq_u32 s{S_WAVE}, 1")
e("s_cbranch_scc1 L_p1_w1")
srd(SRD_W1, 22, 4194304)
e("s_mov_b32 s5, 8192")
e("s_lshr_b32 s6, s2, 6")
e("s_lshl_b32 s6, s6, 7")
e("s_and_b32 s7, s2, 63")
e("s_lshl_b32 s7, s7, 7")
e("s_mov_b32 s8, 1")
e("s_branch L_p1_go")
lab("L_p1_w1")
e("s_cmp_ge_u32 s2, 112")
e("s_cbranch_scc1 L_p1_noload")
srd(SRD_W1, 28, 512 * 1792 * 2)
e("s_mov_b32 s5, 3584")
e("s_and_b32 s6, s2, 3")
e("s_lshl_b32 s6, s6, 7")
e("s_lshr_b32 s7, s2, 2")
e("s_lshl_b32 s7, s7, 7")
e("s_mov_b32 s8, 2")
lab("L_p1_go")
e("v_mul_lo_u32 v7, s5, v4")
e("v_lshl_add_u32 v7, v1, 4, v7")
e("s_mul_i32 s9, s6, s5")
e("s_add_u32 s9, s9, s7")
e("s_lshl_b32 s12, s6, 1")
e("s_mul_i32 s13, s5, 56")
for i in range(16):
    e(f"buffer_load_dwordx4 v[{VW+4*i}:{VW+4*i+3}], v7, s[{SRD_W1}:{SRD_W1+3}], s9 offen{NT}")
    if i < 15:
        e("s_add_u32 s9, s9, s5")
    if i == 7:
        e("s_add_u32 s9, s9, s13")
XA, XA2, XR = 96, 100, 104
e(f"buffer_load_dwordx4 v[{XA}:{XA+3}], v6, s[{SRD_X}:{SRD_X+3}], s12 offen")
e(f"buffer_load_dwordx4 v[{XA2}:{XA2+3}], v6, s[{SRD_X}:{SRD_X+3}], s12 offen offset:128")
e("v_lshlrev_b32 v1, 4, v0")
for b in range(4):
    e(f"buffer_load_dwordx4 v[{XR+4*b}:{XR+4*b+3}], v1, s[{SRD_X}:{SRD_X+3}], 0 offen offset:{1024*b}")
lab("L_p1_noload")
e(f"s_cmp_lg_u32 s{S_WAVE}, 0")
e("s_cbranch_scc1 L_c_noz")
e("v_mov_b32 v1, 0")
e("v_lshlrev_b32 v7, 2, v0")
e("s_mov_b64 exec, 0xffff")
e(f"ds_write_b32 v7, v1 offset:{L_CNT}")
e("s_mov_b64 exec, -1")
e("s_waitcnt lgkmcnt(0)")
lab("L_c_noz")
e("s_barrier")
e(f"s_lshl_b32 s15, s{S_WAVE}, 11")
e(f"s_add_u32 s15, s15, {L_PIECE + 4096}")
if OPT["dry"]:
    e(f"s_mov_b32 s{S_DRY}, 1")
    e("s_cmp_lg_u32 s8, 0")
    e("s_cbranch_scc1 L_secP1")
    e(f"s_cmp_eq_u32 s{S_WAVE}, 2")
    e("s_cbranch_scc1 L_secA")
    e("s_branch L_secQ")
    lab("L_dry_done_data")
    lab("L_dry_done_comm")
    e(f"s_mov_b32 s{S_DRY}, 0")
    lane_setup()
lab("L_real_start")
e("s_waitcnt vmcnt(0) lgkmcnt(0)")
stamp(7, True)
finish_tag()
e("s_cmp_eq_u32 s8, 0")
e("s_cbranch_scc1 L_secQ")
lab("L_secP1")
for d in range(4):
    e(f"v_mov_b32 v{VA+d}, v{XA+d}")
    e(f"v_mov_b32 v{VA2+d}, v{XA2+d}")
e("s_cmp_eq_u32 s8, 1")
e("s_cbranch_scc1 L_p1_mm")
SUM = TMP
T = TMP + 4
for b in range(4):
    e(f"v_lshlrev_b32 v{T}, 16, v{XR+4*b}")
    e(f"v_and_b32 v{T+1}, 0xffff0000, v{XR+4*b}")
    e(f"v_add_f32 v{SUM+b}, v{T}, v{T+1}")
    for d in range(1, 4):
        e(f"v_lshlrev_b32 v{T}, 16, v{XR+4*b+d}")
        e(f"v_and_b32 v{T+1}, 0xffff0000, v{XR+4*b+d}")
        e(f"v_add_f32 v{SUM+b}, v{SUM+b}, v{T}")
        e(f"v_add_f32 v{SUM+b}, v{SUM+b}, v{T+1}")
dpp_reduce("v_add_f32", [SUM + b for b in range(4)], ROW16)
swap_reduce("v_add_f32", [SUM + b for b in range(4)], [T + b for b in range(4)])
for b in range(4):
    e(f"v_mul_f32 v{SUM+b}, 0x3b000000, v{SUM+b}")
SQ = TMP + 12
for b in range(4):
    for d in range(4):
        e(f"v_lshlrev_b32 v{T}, 16, v{XR+4*b+d}")
        e(f"v_and_b32 v{T+1}, 0xffff0000, v{XR+4*b+d}")
        e(f"v_sub_f32 v{T}, v{T}, v{SUM+b}")
        e(f"v_sub_f32 v{T+1}, v{T+1}, v{SUM+b}")
        if d == 0:
            e(f"v_mul_f32 v{SQ+b}, v{T}, v{T}")
        else:
            e(f"v_fmac_f32 v{SQ+b}, v{T}, v{T}")
        e(f"v_fmac_f32 v{SQ+b}, v{T+1}, v{T+1}")
dpp_reduce("v_add_f32", [SQ + b for b in range(4)], ROW16)
swap_reduce("v_add_f32", [SQ + b for b in range(4)], [T + b for b in range(4)])
for b in range(4):
    e(f"v_mul_f32 v{SQ+b}, 0x3b000000, v{SQ+b}")
MEAN, DEN, RCP = TMP + 16, TMP + 17, TMP + 18
e(f"v_mov_b32 v{MEAN}, v{SUM}")
e(f"v_mov_b32 v{DEN}, v{SQ}")
for b in range(1, 4):
    e(f"v_cmp_eq_u32 vcc, {b}, v5")
    e("s_nop 1")
    e(f"v_cndmask_b32 v{MEAN}, v{MEAN}, v{SUM+b}, vcc")
    e(f"v_cndmask_b32 v{DEN}, v{DEN}, v{SQ+b}, vcc")
bf16_round_pair(T, MEAN, DEN, MEAN, DEN)
e(f"v_add_f32 v{DEN}, 0x3727c5ac, v{DEN}")
e(f"v_cvt_pk_bf16_f32 v{T}, v{DEN}, v{DEN}")
e(f"v_lshlrev_b32 v{DEN}, 16, v{T}")
e(f"v_sqrt_f32 v{DEN}, v{DEN}")
e("s_nop 0")
e(f"v_cvt_pk_bf16_f32 v{T}, v{DEN}, v{DEN}")
e(f"v_lshlrev_b32 v{DEN}, 16, v{T}")
e(f"v_rcp_f32 v{RCP}, v{DEN}")
e("s_nop 0")
for AA in (VA, VA2):
    for d in range(4):
        a0, a1 = T + 2, T + 3
        e(f"v_lshlrev_b32 v{a0}, 16, v{AA+d}")
        e(f"v_and_b32 v{a1}, 0xffff0000, v{AA+d}")
        e(f"v_sub_f32 v{a0}, v{a0}, v{MEAN}")
        e(f"v_sub_f32 v{a1}, v{a1}, v{MEAN}")
        bf16_round_pair(T, a0, a1, a0, a1)
        for a in (a0, a1):
            e(f"v_mul_f32 v{T+4}, v{a}, v{RCP}")
            e(f"v_fma_f32 v{T+5}, -v{T+4}, v{DEN}, v{a}")
            e(f"v_fma_f32 v{a}, v{T+5}, v{RCP}, v{T+4}")
        e(f"v_cvt_pk_bf16_f32 v{AA+d}, v{a0}, v{a1}")
lab("L_p1_mm")
tile128(VA, VA2, 15)
e("v_and_b32 v1, 15, v0")
e("s_cmp_eq_u32 s8, 1")
e("s_cbranch_scc1 L_pub_q")
e("s_and_b32 s4, s2, 3")
e("s_mul_i32 s4, s4, 1792")
e("s_lshr_b32 s5, s2, 2")
e("s_lshl_b32 s5, s5, 4")
e("s_add_u32 s4, s4, s5")
e("s_lshl_b32 s4, s4, 4")
e(f"s_add_u32 s4, s4, {WS_HP}")
e(f"v_mul_u32_u24 v2, 448, v{TMP+8}")
e("v_add_u32 v1, v2, v1")
e("s_branch L_pub_go")
lab("L_pub_q")
e("s_lshr_b32 s4, s2, 6")
e("s_lshl_b32 s4, s4, 12")
e("s_and_b32 s5, s2, 63")
e("s_lshl_b32 s5, s5, 4")
e("s_add_u32 s4, s4, s5")
e("s_lshl_b32 s4, s4, 4")
e(f"s_add_u32 s4, s4, {WS_QP}")
e(f"v_lshl_add_u32 v1, v{TMP+8}, 10, v1")
lab("L_pub_go")
e("v_lshlrev_b32 v1, 4, v1")
if_dry_goto("L_dry_done_comm")
e(f"buffer_store_dwordx4 v[{TMP}:{TMP+3}], v1, s[{SRD_WS}:{SRD_WS+3}], s4 offen sc1")
stamp(0, True)
lab("L_secQ")
e("v_lshlrev_b32 v3, 4, v0")
e("s_lshr_b32 s4, s2, 6")
e("s_lshl_b32 s4, s4, 10")
e("s_lshr_b32 s5, s2, 3")
e("s_and_b32 s5, s5, 7")
e("s_lshl_b32 s5, s5, 7")
e("s_add_u32 s4, s4, s5")
e(f"s_lshl_b32 s5, s{S_WAVE}, 5")
e("s_add_u32 s4, s4, s5")
e("s_lshl_b32 s4, s4, 4")
e(f"s_add_u32 s4, s4, {WS_QP}")
e(f"s_add_u32 s5, s4, {4*1024*16}")
e("v_and_b32 v4, 31, v0")
e("v_lshlrev_b32 v4, 4, v4")
e("v_lshrrev_b32 v5, 5, v0")
e("v_lshl_add_u32 v4, v5, 17, v4")
poll("q", [f"buffer_load_dwordx4 v[{16+4*k}:{19+4*k}], v4, s[{SRD_WS}:{SRD_WS+3}], s{4+k} offen sc1" for k in range(2)],
     [16, 20], 6, OPT["sleep_q"])
for i in range(4):
    e(f"v_add_f32 v{24+i}, v{16+i}, v{20+i}")
swap_reduce("v_add_f32", [24, 25, 26, 27], [28, 29, 30, 31], ("v_permlane32_swap_b32",))
e("v_cvt_pk_bf16_f32 v24, v24, v25")
e("v_cvt_pk_bf16_f32 v25, v26, v27")
e(f"s_lshl_b32 s4, s{S_WAVE}, 8")
e("v_and_b32 v5, 31, v0")
e("v_lshlrev_b32 v5, 3, v5")
e("v_add_u32 v5, s4, v5")
with Guard():
    e(f"ds_write_b64 v5, v[24:25] offset:{L_QS}")
    lds_signal(C_Q, 6)
stamp(1, True)
e("s_lshr_b32 s4, s2, 4")
e("s_lshl_b32 s4, s4, 7")
e("s_and_b32 s5, s2, 15")
e("s_lshl_b32 s5, s5, 3")
e("s_add_u32 s4, s4, s5")
e("s_lshl_b32 s4, s4, 4")
e(f"s_add_u32 s4, s4, {WS_OP}")
e(f"s_lshl_b32 s5, s{S_WAVE}, 18")
e("s_add_u32 s86, s4, s5")
for k in range(1, 4):
    e(f"s_add_u32 s{86+k}, s86, {k*65536}")
e(f"s_lshl_b32 s5, s{S_WAVE}, 15")
e("s_add_u32 s5, s4, s5")
e(f"s_add_u32 s85, s5, {128*8192}")
e("v_and_b32 v60, 7, v0")
e("v_lshlrev_b32 v60, 4, v60")
e("v_lshrrev_b32 v61, 3, v0")
e("v_lshl_add_u32 v60, v61, 13, v60")
e("v_and_b32 v62, 3, v61")
e(f"s_lshl_b32 s5, s{S_WAVE}, 2")
e("s_sub_u32 s5, 13, s5")
e("v_min_u32 v62, s5, v62")
e("v_and_b32 v63, 7, v0")
e("v_lshlrev_b32 v63, 4, v63")
e("v_lshl_add_u32 v62, v62, 13, v63")
o_loads = [f"buffer_load_dwordx4 v[{32+4*k}:{35+4*k}], v60, s[{SRD_WS}:{SRD_WS+3}], s{86+k} offen sc1" for k in range(4)]
o_loads.append(f"buffer_load_dwordx4 v[48:51], v62, s[{SRD_WS}:{SRD_WS+3}], s85 offen sc1")
e("s_cmp_ge_u32 s2, 64")
e("s_cbranch_scc1 L_c_nowarm")
with Guard():
    for l in o_loads:
        e(l)
    srd(SRD_M, 36, 1024)
    e(f"buffer_load_dwordx4 v[64:67], v3, s[{SRD_M}:{SRD_M+3}], 0 offen")
    e("s_lshr_b32 s4, s2, 4")
    e("s_lshl_b32 s4, s4, 10")
    e(f"buffer_load_dwordx4 v[68:71], v3, s[{SRD_X}:{SRD_X+3}], s4 offen")
    srd(SRD_OUT, 34, 1024)
    e("v_and_b32 v6, 31, v0")
    e("v_lshlrev_b32 v6, 1, v6")
    e("s_and_b32 s4, s2, 15")
    e("s_lshl_b32 s4, s4, 6")
    e(f"buffer_load_ushort v72, v6, s[{SRD_OUT}:{SRD_OUT+3}], s4 offen")
lab("L_c_nowarm")
if_dry_goto("L_secAG")
e("s_cmp_lt_u32 s2, 112")
e("s_cbranch_scc1 L_secAG")
e("s_cmp_ge_u32 s2, 224")
e("s_cbranch_scc1 L_secAG")
lab("L_secH")
e("s_sub_u32 s9, s2, 112")
e("s_lshr_b32 s9, s9, 3")
e("s_min_u32 s9, s9, 13")
e(f"s_mul_i32 s4, s{S_WAVE}, 448")
e("s_lshl_b32 s5, s9, 5")
e("s_add_u32 s4, s4, s5")
e("s_lshl_b32 s4, s4, 4")
e(f"s_add_u32 s4, s4, {WS_HP}")
e(f"s_add_u32 s5, s4, {4*448*16}")
srd(SRD_M, 30, 3584)
e("s_lshl_b32 s9, s9, 8")
e("v_and_b32 v6, 31, v0")
e("v_lshlrev_b32 v4, 4, v6")
e("v_lshlrev_b32 v6, 3, v6")
e(f"buffer_load_dwordx2 v[80:81], v6, s[{SRD_M}:{SRD_M+3}], s9 offen")
e("v_lshrrev_b32 v7, 5, v0")
e(f"s_mov_b32 s6, {2*4*448*16}")
e("v_mul_lo_u32 v7, s6, v7")
e("v_add_u32 v4, v7, v4")
poll("h", [f"buffer_load_dwordx4 v[{16+4*k}:{19+4*k}], v4, s[{SRD_WS}:{SRD_WS+3}], s{4+k} offen sc1" for k in range(2)],
     [16, 20], 6, OPT["sleep_q"])
for i in range(4):
    e(f"v_add_f32 v{24+i}, v{16+i}, v{20+i}")
swap_reduce("v_add_f32", [24, 25, 26, 27], [28, 29, 30, 31], ("v_permlane32_swap_b32",))
for p in range(2):
    a, b_ = 24 + 2 * p, 25 + 2 * p
    bf16_round_pair(28, a, b_, a, b_)
    e(f"v_lshlrev_b32 v28, 16, v{80+p}")
    e(f"v_and_b32 v29, 0xffff0000, v{80+p}")
    e(f"v_add_f32 v{a}, v{a}, v28")
    e(f"v_add_f32 v{b_}, v{b_}, v29")
    bf16_round_pair(28, a, b_, a, b_)
e("v_mov_b32 v31, 0x3d372713")
for r in (24, 25, 26, 27):
    e(f"v_mul_f32 v30, v{r}, v{r}")
    e(f"v_mul_f32 v30, v30, v{r}")
    e(f"v_fma_f32 v30, v30, v31, v{r}")
    e(f"v_mul_f32 v30, 0x40135761, v30")
    e(f"v_exp_f32 v30, v30")
    e("s_nop 0")
    e(f"v_add_f32 v30, 1.0, v30")
    e(f"v_rcp_f32 v30, v30")
    e("s_nop 0")
    e(f"v_fma_f32 v30, v30, -2.0, 2.0")
    e(f"v_mul_f32 v30, 0.5, v30")
    e(f"v_mul_f32 v{r}, v{r}, v30")
e("v_cvt_pk_bf16_f32 v24, v24, v25")
e("v_cvt_pk_bf16_f32 v25, v26, v27")
if_dry_goto("L_dry_done_comm")
e(f"ds_write_b64 v5, v[24:25] offset:{L_HA}")
lds_signal(C_H, 6)
lab("L_secAG")
stamp(2, True)
e(f"s_lshl_b32 s4, s{S_WAVE}, 5")
e("s_lshr_b32 s5, s2, 3")
e("s_add_u32 s4, s4, s5")
e("s_lshl_b32 s6, s4, 2")
e("s_bfe_u32 s5, s2, 0x20001")
e("s_add_u32 s6, s6, s5")
e("s_lshl_b32 s6, s6, 10")
e(f"s_add_u32 s6, s6, {WS_APO}")
e("s_lshl_b32 s4, s4, 7")
e(f"s_add_u32 s4, s4, {WS_APM}")
e("v_lshlrev_b32 v4, 4, v61")
poll("a", [f"buffer_load_dwordx4 v[16:19], v3, s[{SRD_WS}:{SRD_WS+3}], s6 offen sc1",
           f"buffer_load_dwordx4 v[20:23], v4, s[{SRD_WS}:{SRD_WS+3}], s4 offen sc1"], [16, 20], 6, OPT["sleep_t"])
stamp(3, True)
e("v_mov_b32 v24, v20")
dpp_reduce("v_max_f32", [24], ["row_ror:8"])
swap_reduce("v_max_f32", [24], [25])
e("v_sub_f32 v25, v20, v24")
e("v_mul_f32 v25, 0x3fb8aa3b, v25")
e("v_exp_f32 v25, v25")
e("s_nop 0")
e("v_mul_f32 v26, v25, v21")
for i in range(4):
    e(f"v_mul_f32 v{84+i}, v25, v{16+i}")
dpp_reduce("v_add_f32", [26, 84, 85, 86, 87], ["row_ror:8"])
swap_reduce("v_add_f32", [26, 84, 85, 86, 87], [27, 28, 29, 30, 31])
e("v_rcp_f32 v27, v26")
e("s_nop 0")
e("v_fma_f32 v28, -v26, v27, 2.0")
e("v_mul_f32 v27, v27, v28")
for i in range(4):
    e(f"v_mul_f32 v{84+i}, v27, v{84+i}")
e("v_cvt_pk_bf16_f32 v84, v84, v85")
e("v_cvt_pk_bf16_f32 v85, v86, v87")
e(f"s_lshl_b32 s4, s{S_WAVE}, 6")
e("v_lshlrev_b32 v4, 3, v0")
e("v_add_u32 v4, s4, v4")
with Guard():
    e("s_mov_b64 exec, 0xff")
    e(f"ds_write_b64 v4, v[84:85] offset:{L_OA}")
    e("s_mov_b64 exec, -1")
    lds_signal(C_A, 6)
stamp(4, True)
e("s_cmp_lt_u32 s2, 64")
e("s_cbranch_scc1 L_secF")
if_dry_goto("L_secH")
e("s_branch L_exit_c")
lab("L_secF")
GS = 74
for d in range(4):
    e(f"v_lshlrev_b32 v76, 16, v{68+d}")
    e(f"v_and_b32 v77, 0xffff0000, v{68+d}")
    e(f"v_lshlrev_b32 v78, 16, v{64+d}")
    e(f"v_and_b32 v79, 0xffff0000, v{64+d}")
    e("v_mul_f32 v76, v76, v78")
    e("v_mul_f32 v77, v77, v79")
    bf16_round_pair(78, 76, 77, 76, 77)
    if d == 0:
        e(f"v_add_f32 v{GS}, v76, v77")
    else:
        e(f"v_add_f32 v{GS}, v{GS}, v76")
        e(f"v_add_f32 v{GS}, v{GS}, v77")
dpp_reduce("v_add_f32", [GS], ROW16)
swap_reduce("v_add_f32", [GS], [76])
e(f"v_cvt_pk_bf16_f32 v75, v{GS}, v{GS}")
e("v_lshlrev_b32 v75, 16, v75")
e("v_mul_f32 v75, 0xbfb8aa3b, v75")
e("v_exp_f32 v75, v75")
e("s_nop 0")
e("v_add_f32 v75, 1.0, v75")
e("v_rcp_f32 v76, v75")
e("s_nop 0")
e("v_fma_f32 v77, -v75, v76, 2.0")
e("v_mul_f32 v76, v76, v77")
e("v_cvt_pk_bf16_f32 v76, v76, v76")
e("v_lshlrev_b32 v75, 16, v76")
e("v_sub_f32 v76, 1.0, v75")
e("v_cvt_pk_bf16_f32 v76, v76, v76")
e("v_lshlrev_b32 v76, 16, v76")
e("v_lshlrev_b32 v73, 16, v72")
poll("o", o_loads, [32, 36, 40, 44, 48], 1, OPT["sleep_t"])
stamp(5, True)
e(f"s_lshl_b32 s5, s{S_WAVE}, 5")
e("s_sub_u32 s5, 112, s5")
e("s_min_u32 s5, s5, 32")
e("v_cmp_gt_u32 vcc, s5, v0")
e("s_nop 1")
for i in range(4):
    e(f"v_cndmask_b32 v{92+i}, 0, v{48+i}, vcc")
    e(f"v_add_f32 v{88+i}, v{32+i}, v{36+i}")
    e(f"v_add_f32 v{52+i}, v{40+i}, v{44+i}")
for i in range(4):
    e(f"v_add_f32 v{88+i}, v{88+i}, v{52+i}")
regs = [88 + i for i in range(8)]
dpp_reduce("v_add_f32", regs, ["row_ror:8"])
swap_reduce("v_add_f32", regs, [52 + i for i in range(8)])
e(f"s_lshl_b32 s4, s{S_WAVE}, 7")
e("v_add_u32 v4, s4, v3")
with Guard():
    e("s_mov_b64 exec, 0xff")
    e(f"ds_write_b128 v4, v[88:91] offset:{L_F}")
    e(f"ds_write_b128 v4, v[92:95] offset:{L_F+512}")
    e("s_mov_b64 exec, -1")
    lds_signal(C_F, 6)
    e(f"s_cmp_lg_u32 s{S_WAVE}, 0")
    e("s_cbranch_scc1 L_exit_c")
lds_wait(C_F, 4, 6)
e("v_and_b32 v6, 31, v0")
e("v_lshlrev_b32 v4, 2, v6")
for w in range(8):
    e(f"ds_read_b32 v{52+w}, v4 offset:{L_F+128*w}")
e("s_waitcnt lgkmcnt(0)")
e("v_add_f32 v52, v52, v53")
e("v_add_f32 v54, v54, v55")
e("v_add_f32 v56, v56, v57")
e("v_add_f32 v58, v58, v59")
e("v_add_f32 v52, v52, v54")
e("v_add_f32 v56, v56, v58")
bf16_round_pair(54, 52, 56, 52, 56)
e("v_add_f32 v56, v56, v73")
e("v_cvt_pk_bf16_f32 v54, v56, v56")
e("v_lshlrev_b32 v56, 16, v54")
e("v_mul_f32 v52, v75, v52")
e("v_mul_f32 v56, v76, v56")
bf16_round_pair(54, 52, 56, 52, 56)
e("v_add_f32 v52, v52, v56")
e("v_cvt_pk_bf16_f32 v52, v52, v52")
e("v_lshlrev_b32 v6, 1, v6")
e("s_lshl_b32 s4, s2, 6")
if_dry_goto("L_secH")
srd(SRD_OUT, 38, 4096)
set_exec("-1", 0)
e(f"buffer_store_short v52, v6, s[{SRD_OUT}:{SRD_OUT+3}], s4 offen")
e("s_cmp_lg_u32 s2, 0")
e("s_cbranch_scc1 L_exit_c")
e("s_mov_b64 exec, 1")
e(f"v_mov_b32 v1, 0")
e(f"v_mov_b32 v4, s{S_TAG}")
e(f"v_mov_b32 v5, s{S_TAG+1}")
e(f"buffer_store_dwordx2 v[4:5], v1, s[{SRD_WS}:{SRD_WS+3}], 0 offen offset:{WS_GEN} sc1")
lab("L_exit_c")
dump_stamps(True)
lab("L_exit")
e("s_endpgm")
if not OPT["dry"]:
    lab("L_dry_done_data")
    lab("L_dry_done_comm")
    e("s_endpgm")

out.append('.section .rodata,"a"')
out.append(".p2align 6")
out.append(f".amdhsa_kernel {NAME}_kernel")
out.append("  .amdhsa_next_free_vgpr 240")
out.append("  .amdhsa_next_free_sgpr 102")
out.append("  .amdhsa_accum_offset 240")
out.append("  .amdhsa_group_segment_fixed_size 0")
out.append("  .amdhsa_kernarg_size 112")
out.append("  .amdhsa_user_sgpr_count 2")
out.append("  .amdhsa_user_sgpr_kernarg_segment_ptr 1")
out.append("  .amdhsa_system_sgpr_workgroup_id_x 1")
out.append(".end_amdhsa_kernel")

dst = sys.argv[1] if len(sys.argv) > 1 else f"cdna_kernels/{NAME}.s"
open(dst, "w").write("\n".join(out) + "\n")
print("wrote", dst, len(out), "lines")
```

```python
import sys
import re

NAME = "gated_mix__sliding_block_cached__mixer_channel_mlp__decode"

OPT = dict(
    stamps=0,
    nt=1,
    depth=6,
    sleep_l=1,
    sleep_q=1,
    sleep_t=0,
    dry=1,
    k_after=0,
    pp=0,
    vstamp=0,
    w1_late=0,
    go_pub=0,
    opfull=1,
    apm128=1,
)
for a in sys.argv[2:]:
    k, v = a.split("=")
    OPT[k] = int(v)

WS_GEN = 0
WS_QP = 0x10000
WS_HP = WS_QP + 4 * 4 * 1024 * 16
WS_APO = WS_HP + 4 * 4 * 448 * 16
WS_APM = WS_APO + 4 * 32 * 4 * 8 * 8 * 16
WS_OP = WS_APM + 4 * 32 * 8 * 128
WS_ST = WS_OP + 142 * 4 * 128 * 16
WS_END = WS_ST + 256 * 8 * 16 * 8
open("gen_layout.py", "w").write(f"WS_ST = {WS_ST}\n")

L_PIECE = 0
L_QS = 8192
L_OW = 9216
L_ML = 17408
L_OA = 17536
L_HA = 17792
L_F = 18816
L_CNT = 19840
L_END = L_CNT + 64
LDS_BYTES = 20480
assert L_END <= LDS_BYTES
C_Q, C_O, C_H, C_A, C_F, C_GO = 0, 4, 8, 12, 16, 20

out = []


def e(s):
    out.append("    " + s)


def lab(s):
    out.append(s + ":")


NT = " nt" if OPT["nt"] else ""
S_WAVE = 3
SRD_X, SRD_K, SRD_V, SRD_W1, SRD_W3, SRD_WS, SRD_OUT, SRD_M = 44, 48, 52, 56, 60, 64, 68, 72
S_TAG = 76
S_SELLO, S_SELHI = 78, 79
S_T0 = 80
S_MASK = 96
S_DRY = 97
S_STAMP = 100
V_ST = 232
uid = [0]


def nid():
    uid[0] += 1
    return uid[0]


class Guard:
    def __enter__(self):
        self.n = nid()
        e(f"s_cmp_lg_u32 s{S_DRY}, 0")
        e(f"s_cbranch_scc1 L_g{self.n}")

    def __exit__(self, *a):
        lab(f"L_g{self.n}")


def if_dry_goto(label):
    e(f"s_cmp_lg_u32 s{S_DRY}, 0")
    e(f"s_cbranch_scc1 {label}")


def srd(dst, ptr, nbytes):
    e(f"s_mov_b32 s{dst}, s{ptr}")
    e(f"s_and_b32 s{dst+1}, s{ptr+1}, 0xffff")
    e(f"s_mov_b32 s{dst+2}, {nbytes}")
    e(f"s_mov_b32 s{dst+3}, 0x00020000")


def stamp_raw(i, comm):
    va, vt = V_ST, V_ST + 2
    e(f"s_lshl_b32 s98, s2, 3")
    e(f"s_add_u32 s98, s98, s{S_WAVE}")
    if comm:
        e("s_add_u32 s98, s98, 4")
    e(f"s_lshl_b32 s98, s98, 7")
    e(f"s_add_u32 s98, s98, {WS_ST + 8 * i}")
    e(f"v_mov_b32 v{va}, s98")
    e(f"v_mov_b32 v{vt}, s{S_STAMP}")
    e(f"v_mov_b32 v{vt+1}, s{S_STAMP+1}")
    e(f"s_mov_b64 s[98:99], exec")
    e(f"s_mov_b64 exec, 1")
    e(f"buffer_store_dwordx2 v[{vt}:{vt+1}], v{va}, s[{SRD_WS}:{SRD_WS+3}], 0 offen")
    e(f"s_mov_b64 exec, s[98:99]")


STAMP_MAP_D = {0: 0, 3: 1, 5: 2, 2: 3, 6: 4, 7: 5, 8: 6}
STAMP_MAP_C = {0: 0, 1: 1, 3: 2, 2: 3, 5: 4, 7: 6, 6: 5}


def stamp(i, comm=False):
    if not OPT["stamps"]:
        return
    m = STAMP_MAP_C if comm else STAMP_MAP_D
    if i not in m:
        return
    k = m[i]
    with Guard():
        e(f"s_memrealtime s[{16+2*k}:{17+2*k}]")


def dump_stamps(comm):
    if not OPT["stamps"]:
        return
    m = STAMP_MAP_C if comm else STAMP_MAP_D
    e("s_waitcnt lgkmcnt(0)")
    e("s_mov_b64 exec, -1")
    if OPT["stamps"] == 2:
        srd(SRD_M, 40, 256)
        e("s_mov_b64 exec, 1")
        for i, k in m.items():
            if comm and i in (6,):
                continue
            slot = i if not comm else {0: 9, 1: 10, 3: 11, 4: 12, 5: 13, 7: 14}[i]
            n_ = nid()
            if (not comm) and i in (7, 8):
                e(f"s_cmp_lt_u32 s{S_WAVE}, 2")
                e(f"s_cbranch_scc1 L_ds{n_}")
            if comm and i == 0:
                e("s_cmp_eq_u32 s8, 0")
                e(f"s_cbranch_scc1 L_ds{n_}")
            if comm and i == 5:
                e("s_cmp_ge_u32 s2, 64")
                e(f"s_cbranch_scc1 L_ds{n_}")
            e(f"v_mov_b32 v{V_ST}, {4*slot}")
            if (not comm) and i == 0:
                e(f"s_not_b32 s{S_STAMP}, s{16+2*k}")
                e(f"v_mov_b32 v{V_ST+1}, s{S_STAMP}")
            else:
                e(f"v_mov_b32 v{V_ST+1}, s{16+2*k}")
            e(f"buffer_atomic_umax v{V_ST+1}, v{V_ST}, s[{SRD_M}:{SRD_M+3}], 0 offen")
            e("s_nop 1")
            lab(f"L_ds{n_}")
        return
    for i, k in m.items():
        e(f"s_mov_b32 s{S_STAMP}, s{16+2*k}")
        e(f"s_mov_b32 s{S_STAMP+1}, s{17+2*k}")
        stamp_raw(i, comm)
        e("s_nop 1")


def tile_mm(W, A, B, ACC, acc_in=False):
    for q in range(4):
        for i in range(4):
            e(f"v_perm_b32 v{B+i}, v{W+4*(2*i+1)+q}, v{W+4*(2*i)+q}, s{S_SELLO}")
        for i in range(4):
            e(f"v_perm_b32 v{B+4+i}, v{W+4*(2*i+1)+q}, v{W+4*(2*i)+q}, s{S_SELHI}")
        e("s_nop 1")
        for jj in range(2):
            j = 2 * q + jj
            c = f"v[{ACC+4*j}:{ACC+4*j+3}]" if acc_in else "0"
            e(f"v_mfma_f32_16x16x32_bf16 v[{ACC+4*j}:{ACC+4*j+3}], v[{A}:{A+3}], v[{B+4*jj}:{B+4*jj+3}], {c}")


VT = 188
VTRAW = 186


def load_tag(vtmp):
    e(f"v_mov_b32 v{vtmp}, 0")
    e(f"buffer_load_dwordx2 v[{VTRAW}:{VTRAW+1}], v{vtmp}, s[{SRD_WS}:{SRD_WS+3}], 0 offen offset:{WS_GEN} sc1")


def finish_tag():
    e(f"v_readfirstlane_b32 s{S_TAG}, v{VTRAW}")
    e(f"v_readfirstlane_b32 s{S_TAG+1}, v{VTRAW+1}")
    e("s_nop 3")
    e(f"s_add_u32 s{S_TAG}, s{S_TAG}, 1")
    e(f"s_addc_u32 s{S_TAG+1}, s{S_TAG+1}, 0")
    e(f"s_and_b32 s{S_T0}, s{S_TAG}, 0x3ff")
    e(f"s_bfe_u32 s{S_T0+1}, s{S_TAG}, 0xa000a")
    e(f"s_bfe_u32 s{S_T0+2}, s{S_TAG}, 0xa0014")
    e(f"s_lshr_b64 s[{S_T0+4}:{S_T0+5}], s[{S_TAG}:{S_TAG+1}], 30")
    e(f"s_and_b32 s{S_T0+3}, s{S_T0+4}, 0x3ff")
    for i in range(4):
        e(f"v_mov_b32 v{VT+i}, s{S_T0+i}")


def tagq(dst, srcs):
    for i in range(4):
        e(f"v_bfi_b32 v{dst+i}, s{S_MASK}, v{VT+i}, v{srcs[i]}")


def poll(name, loads, quads, vx, sleep, maxit=100000, altbase=None):
    n = len(loads)

    def issue(base_map):
        for l, q in zip(loads, quads):
            r = base_map(q)
            e(l.replace("@", f"v[{r}:{r+3}]"))

    def check(base_map):
        first = True
        for q in quads:
            r = base_map(q)
            for i in range(4):
                if first:
                    e(f"v_xor_b32 v{vx}, v{r+i}, v{VT+i}")
                    first = False
                else:
                    e(f"v_xor_b32 v{vx+1}, v{r+i}, v{VT+i}")
                    e(f"v_or_b32 v{vx}, v{vx}, v{vx+1}")
        e(f"v_and_b32 v{vx}, 0x3ff, v{vx}")
        e(f"v_cmp_ne_u32 vcc, 0, v{vx}")

    A = lambda q: q
    e(f"s_mov_b32 s{S_T0+10}, {maxit}")
    if not OPT["pp"] or altbase is None:
        lab(f"L_poll_{name}")
        issue(A)
        with Guard():
            e("s_waitcnt vmcnt(0)")
        check(A)
        if_dry_goto(f"L_pdone_{name}")
        e(f"s_cmp_eq_u64 vcc, 0")
        e(f"s_cbranch_scc1 L_pdone_{name}")
        e(f"s_sub_u32 s{S_T0+10}, s{S_T0+10}, 1")
        e(f"s_cmp_eq_u32 s{S_T0+10}, 0")
        e(f"s_cbranch_scc1 L_pdone_{name}")
        if sleep:
            e(f"s_sleep {sleep}")
        e(f"s_branch L_poll_{name}")
        lab(f"L_pdone_{name}")
        return
    B = lambda q: altbase + (q - quads[0])
    issue(A)
    lab(f"L_poll_{name}")
    e(f"s_sleep {OPT['pp']}")
    issue(B)
    with Guard():
        e(f"s_waitcnt vmcnt({n})")
    check(A)
    if_dry_goto(f"L_pB_{name}")
    e(f"s_cmp_eq_u64 vcc, 0")
    e(f"s_cbranch_scc1 L_pdone_{name}")
    e(f"s_sleep {OPT['pp']}")
    issue(A)
    e(f"s_waitcnt vmcnt({n})")
    check(B)
    e(f"s_cmp_eq_u64 vcc, 0")
    e(f"s_cbranch_scc1 L_pB_{name}")
    e(f"s_sub_u32 s{S_T0+10}, s{S_T0+10}, 1")
    e(f"s_cmp_eq_u32 s{S_T0+10}, 0")
    e(f"s_cbranch_scc0 L_poll_{name}")
    lab(f"L_pB_{name}")
    for q in quads:
        for i in range(4):
            e(f"v_mov_b32 v{q+i}, v{B(q)+i}")
    lab(f"L_pdone_{name}")


def lds_signal(cnt, vtmp):
    e("s_waitcnt lgkmcnt(0)")
    e(f"v_mov_b32 v{vtmp}, {L_CNT+cnt}")
    e(f"v_mov_b32 v{vtmp+1}, 1")
    e("s_mov_b64 exec, 1")
    e(f"ds_add_u32 v{vtmp}, v{vtmp+1}")
    e("s_mov_b64 exec, -1")


def lds_wait(cnt, target, vtmp):
    n = nid()
    e(f"v_mov_b32 v{vtmp}, {L_CNT+cnt}")
    e(f"s_mov_b32 s{S_T0+11}, 4000000")
    lab(f"L_lw{n}")
    e(f"ds_read_b32 v{vtmp+1}, v{vtmp}")
    e("s_waitcnt lgkmcnt(0)")
    e(f"v_readfirstlane_b32 s{S_T0+12}, v{vtmp+1}")
    if_dry_goto(f"L_lwd{n}")
    e("s_nop 1")
    e(f"s_cmp_ge_u32 s{S_T0+12}, {target}")
    e(f"s_cbranch_scc1 L_lwd{n}")
    e(f"s_sub_u32 s{S_T0+11}, s{S_T0+11}, 1")
    e(f"s_cmp_eq_u32 s{S_T0+11}, 0")
    e(f"s_cbranch_scc1 L_lwd{n}")
    if OPT["sleep_l"]:
        e(f"s_sleep {OPT['sleep_l']}")
    e(f"s_branch L_lw{n}")
    lab(f"L_lwd{n}")


def bf16_round_pair(dst_pk, a, b, lo, hi):
    e(f"v_cvt_pk_bf16_f32 v{dst_pk}, v{a}, v{b}")
    e(f"v_lshlrev_b32 v{lo}, 16, v{dst_pk}")
    e(f"v_and_b32 v{hi}, 0xffff0000, v{dst_pk}")


def dpp_reduce(op, regs, ctls):
    for ctl in ctls:
        e("s_nop 1")
        for r in regs:
            e(f"{op}_dpp v{r}, v{r}, v{r} {ctl} row_mask:0xf bank_mask:0xf")


ROW16 = ["quad_perm:[1,0,3,2]", "quad_perm:[2,3,0,1]", "row_half_mirror", "row_mirror"]


def swap_reduce(op, regs, tmps, sws=("v_permlane16_swap_b32", "v_permlane32_swap_b32")):
    for sw in sws:
        for r, t in zip(regs, tmps):
            e(f"v_mov_b32 v{t}, v{r}")
        e("s_nop 1")
        for r, t in zip(regs, tmps):
            e(f"{sw} v{r}, v{t}")
        e("s_nop 1")
        for r, t in zip(regs, tmps):
            e(f"{op} v{r}, v{r}, v{t}")


def set_exec(lo, hi):
    e(f"s_mov_b32 exec_lo, {lo}")
    e(f"s_mov_b32 exec_hi, {hi}")


VW, VK, VV, VB, VACC = 16, 80, 112, 144, 152
VA, VA2 = 12, 224
VX = 152
TMP = 192


def lane_setup():
    e("v_and_b32 v1, 7, v0")
    e("v_bfe_u32 v2, v0, 3, 1")
    e("v_lshrrev_b32 v3, 4, v0")
    e("v_lshlrev_b32 v4, 5, v2")
    e("v_lshl_add_u32 v4, v3, 3, v4")
    e("v_and_b32 v5, 3, v0")
    e("v_bfe_u32 v6, v0, 2, 1")
    e("v_lshlrev_b32 v6, 5, v6")
    e("v_lshl_add_u32 v6, v3, 3, v6")
    e("v_lshlrev_b32 v11, 1, v6")
    e("v_lshl_add_u32 v6, v5, 10, v11")
    e("v_lshl_add_u32 v11, v5, 8, v11")
    e("v_lshlrev_b32 v10, 5, v1")
    e("v_lshl_add_u32 v10, v2, 10, v10")


def gather_quads(G, ACC=None):
    ACC = VACC if ACC is None else ACC
    for b in range(4):
        for hf in range(2):
            for i in range(4):
                e(f"v_mov_b32 v{G+8*b+4*hf+i}, v{ACC+4*(4*hf+i)+b}")


def tile128(A1, A2, piece_off_sreg, W=None, B=None, ACC=None, G=120):
    W = VW if W is None else W
    B = VB if B is None else B
    ACC = VACC if ACC is None else ACC
    tile_mm(W, A1, B, ACC)
    tile_mm(W + 32, A2, B, ACC, acc_in=True)
    e("v_lshlrev_b32 v1, 4, v0")
    e(f"v_lshrrev_b32 v{TMP+8}, 4, v0")
    e(f"v_add_u32 v1, s{piece_off_sreg}, v1")
    e(f"v_add_u32 v2, s{piece_off_sreg}, v10")
    e("s_nop 7")
    gather_quads(G, ACC)
    with Guard():
        set_exec("0xff0000ff", 0)
        for b in range(4):
            for hf in range(2):
                e(f"ds_write_b128 v2, v[{G+8*b+4*hf}:{G+8*b+4*hf+3}] offset:{256*b+16*hf}")
        e("s_mov_b64 exec, -1")
    e("s_waitcnt lgkmcnt(0)")
    e(f"ds_read_b128 v[{TMP}:{TMP+3}], v1")
    e(f"ds_read_b128 v[{TMP+4}:{TMP+7}], v1 offset:1024")
    e("s_waitcnt lgkmcnt(0)")
    for i in range(4):
        e(f"v_add_f32 v{TMP+i}, v{TMP+i}, v{TMP+4+i}")
    tagq(TMP, [TMP, TMP + 1, TMP + 2, TMP + 3])


hdr = open(f"cdna_kernels/{NAME}.s.ref").read().split("\n")
top = [l for l in hdr if l.startswith(";") and "@launch" not in l]
out.extend(top)
out.append(f"; @launch grid=(256,1,1) block=(512,1,1) lds={LDS_BYTES}")
out.append('.amdgcn_target "amdgcn-amd-amdhsa--gfx950"')
out.append(".text")
out.append(f".globl {NAME}_kernel")
out.append(".p2align 8")
out.append(f".type {NAME}_kernel,@function")
lab(f"{NAME}_kernel")

e("s_cmp_ge_u32 s2, 256")
e("s_cbranch_scc1 L_exit")
e("s_load_dwordx16 s[16:31], s[0:1], 0")
e("s_load_dwordx8 s[32:39], s[0:1], 64")
e("s_load_dwordx4 s[40:43], s[0:1], 96")
e("v_lshrrev_b32 v1, 6, v0")
e("v_and_b32 v0, 63, v0")
e(f"s_mov_b32 s{S_SELLO}, 0x05040100")
e(f"s_mov_b32 s{S_SELHI}, 0x07060302")
e(f"s_mov_b32 s{S_MASK}, 0x3ff")
e(f"s_mov_b32 s{S_DRY}, 0")
e(f"v_readfirstlane_b32 s{S_WAVE}, v1")
lane_setup()
e("s_waitcnt lgkmcnt(0)")
srd(SRD_X, 16, 4096)
srd(SRD_WS, 42, WS_END)
e(f"s_cmp_ge_u32 s{S_WAVE}, 4")
e("s_cbranch_scc1 L_comm")

srd(SRD_K, 18, 33554432)
srd(SRD_V, 20, 33554432)
stamp(0)
e("s_lshr_b32 s10, s2, 3")
e("s_lshl_b32 s10, s10, 12")
e("s_and_b32 s11, s2, 7")
e("s_lshl_b32 s11, s11, 7")
e("s_add_u32 s10, s10, s11")
e(f"s_lshl_b32 s11, s{S_WAVE}, 5")
e("s_add_u32 s10, s10, s11")
e("s_add_u32 s10, s10, 3072")
e("s_lshl_b32 s10, s10, 8")
e("s_add_u32 s11, s10, 4096")
e("v_and_b32 v8, 15, v0")
e("v_lshlrev_b32 v9, 4, v8")
e("v_lshlrev_b32 v8, 8, v8")
e("v_lshl_add_u32 v8, v3, 4, v8")
e("v_lshl_add_u32 v9, v3, 10, v9")
load_tag(2)
D = OPT["depth"]
seq = []
for kb in range(2):
    for c in range(4):
        r = VK + 16 * kb + 4 * c
        seq.append(f"buffer_load_dwordx4 v[{r}:{r+3}], v8, s[{SRD_K}:{SRD_K+3}], s{10+kb} offen offset:{64*c}{NT}")
for i in range(8):
    r = VV + 4 * i
    so = 10 if i < 4 else 11
    seq.append(f"buffer_load_dwordx4 v[{r}:{r+3}], v9, s[{SRD_V}:{SRD_V+3}], s{so} offen offset:{256*(i&3)}{NT}")
if OPT["k_after"] or OPT["go_pub"]:
    e("s_barrier")
    lds_wait(C_GO, 1, TMP)
for i, l in enumerate(seq):
    if i == D and not (OPT["k_after"] or OPT["go_pub"]):
        e("s_barrier")
    if i >= D:
        e(f"s_waitcnt vmcnt({D-1})")
    e(l)
finish_tag()
if OPT["vstamp"]:
    e("s_waitcnt vmcnt(0)")
    stamp(7)
lab("L_secA")
lds_wait(C_Q, 4, TMP)
stamp(3)
VQ = TMP
e("v_and_b32 v1, 3, v0")
e("v_lshlrev_b32 v1, 8, v1")
e("v_lshl_add_u32 v1, v3, 4, v1")
for c in range(4):
    e(f"ds_read_b128 v[{VQ+4*c}:{VQ+4*c+3}], v1 offset:{L_QS+64*c}")
with Guard():
    e("s_waitcnt vmcnt(8)")
e("s_waitcnt lgkmcnt(0)")
stamp(4)
VS = VACC
for kb in range(2):
    for c in range(4):
        src2 = "0" if c == 0 else f"v[{VS+4*kb}:{VS+4*kb+3}]"
        e(f"v_mfma_f32_16x16x32_bf16 v[{VS+4*kb}:{VS+4*kb+3}], v[{VK+16*kb+4*c}:{VK+16*kb+4*c+3}], v[{VQ+4*c}:{VQ+4*c+3}], {src2}")
e("s_nop 7")
e("s_nop 1")
SC = TMP + 16
T = TMP + 24
for kb in range(2):
    for h2 in range(2):
        a = VS + 4 * kb + 2 * h2
        d = SC + 4 * kb + 2 * h2
        bf16_round_pair(T, a, a + 1, d, d + 1)
        e(f"v_mul_f32 v{d}, 0x3db504f3, v{d}")
        e(f"v_mul_f32 v{d+1}, 0x3db504f3, v{d+1}")
        bf16_round_pair(T, d, d + 1, d, d + 1)
MX = TMP + 26
LS = TMP + 27
e(f"v_max3_f32 v{MX}, v{SC}, v{SC+1}, v{SC+2}")
e(f"v_max3_f32 v{MX}, v{MX}, v{SC+3}, v{SC+4}")
e(f"v_max3_f32 v{MX}, v{MX}, v{SC+5}, v{SC+6}")
e(f"v_max_f32 v{MX}, v{MX}, v{SC+7}")
swap_reduce("v_max_f32", [MX], [T])
for i in range(8):
    e(f"v_sub_f32 v{SC+i}, v{SC+i}, v{MX}")
    e(f"v_mul_f32 v{SC+i}, 0x3fb8aa3b, v{SC+i}")
    e(f"v_exp_f32 v{SC+i}, v{SC+i}")
e("s_nop 0")
e(f"v_add_f32 v{LS}, v{SC}, v{SC+1}")
for i in range(2, 8):
    e(f"v_add_f32 v{LS}, v{LS}, v{SC+i}")
swap_reduce("v_add_f32", [LS], [T])
VP = TMP + 28
for i in range(4):
    e(f"v_cvt_pk_bf16_f32 v{VP+i}, v{SC+2*i}, v{SC+2*i+1}")
with Guard():
    e("s_waitcnt vmcnt(0)")
stamp(5)
tile_mm(VV, VP, VB, VACC)
e(f"s_lshl_b32 s4, s{S_WAVE}, 11")
e("v_lshlrev_b32 v1, 5, v0")
e("v_add_u32 v1, s4, v1")
e(f"s_lshl_b32 s4, s{S_WAVE}, 5")
e("v_lshlrev_b32 v2, 3, v0")
e("v_add_u32 v2, s4, v2")
e("s_nop 7")
gather_quads(VK)
with Guard():
    set_exec("0xffff", 0)
    for r in range(4):
        for hf in range(2):
            e(f"ds_write_b128 v1, v[{VK+8*r+4*hf}:{VK+8*r+4*hf+3}] offset:{L_OW+512*r+16*hf}")
    e("s_mov_b64 exec, 15")
    e(f"ds_write_b64 v2, v[{MX}:{MX+1}] offset:{L_ML}")
    e("s_mov_b64 exec, -1")
    lds_signal(C_O, TMP)
stamp(1)
e(f"s_lshl_b32 s4, s{S_WAVE}, 3")
e("v_mov_b32 v1, s4")
e(f"s_lshl_b32 s4, s{S_WAVE}, 9")
e("v_and_b32 v2, 31, v0")
e("v_lshlrev_b32 v2, 4, v2")
e("v_add_u32 v2, s4, v2")
e("s_lshr_b32 s4, s2, 3")
e("s_lshl_b32 s4, s4, 2")
e(f"s_add_u32 s4, s4, s{S_WAVE}")
e("s_and_b32 s5, s2, 7")
e("s_lshl_b32 s6, s4, 12")
e("s_lshl_b32 s7, s5, 7")
e("s_add_u32 s6, s6, s7")
e(f"s_add_u32 s6, s6, {WS_APO}")
e("s_lshl_b32 s4, s4, 3")
e("s_add_u32 s4, s4, s5")
e(f"s_lshl_b32 s4, s4, {7 if OPT['apm128'] else 4}")
e(f"s_add_u32 s4, s4, {WS_APM}")
e("v_and_b32 v7, 7, v0")
e("v_lshlrev_b32 v7, 4, v7")
e(f"v_lshrrev_b32 v{TMP+12}, 3, v0")
e(f"v_lshl_add_u32 v7, v{TMP+12}, 10, v7")
lds_wait(C_O, 4, TMP)
stamp(2)
R = VACC
for w in range(4):
    e(f"ds_read_b64 v[{R+2*w}:{R+2*w+1}], v1 offset:{L_ML+32*w}")
for w in range(4):
    e(f"ds_read_b128 v[{R+8+4*w}:{R+11+4*w}], v2 offset:{L_OW+2048*w}")
e("s_waitcnt lgkmcnt(0)")
M_, L_ = R + 24, R + 25
e(f"v_max3_f32 v{M_}, v{R}, v{R+2}, v{R+4}")
e(f"v_max_f32 v{M_}, v{M_}, v{R+6}")
F_ = TMP
for w in range(4):
    e(f"v_sub_f32 v{F_+w}, v{R+2*w}, v{M_}")
    e(f"v_mul_f32 v{F_+w}, 0x3fb8aa3b, v{F_+w}")
    e(f"v_exp_f32 v{F_+w}, v{F_+w}")
e("s_nop 0")
O_ = TMP + 4
e(f"v_mul_f32 v{L_}, v{F_}, v{R+1}")
for i in range(4):
    e(f"v_mul_f32 v{O_+i}, v{F_}, v{R+8+i}")
for w in range(1, 4):
    e(f"v_fmac_f32 v{L_}, v{F_+w}, v{R+2*w+1}")
    for i in range(4):
        e(f"v_fmac_f32 v{O_+i}, v{F_+w}, v{R+8+4*w+i}")
tagq(O_, [O_, O_ + 1, O_ + 2, O_ + 3])
e(f"v_mov_b32 v{R+26}, 0")
e(f"v_mov_b32 v{R+27}, 0")
tagq(TMP + 8, [M_, L_, R + 26, R + 27])
e(f"v_mov_b32 v1, 0")
with Guard():
    set_exec("-1", 0)
    e(f"buffer_store_dwordx4 v[{O_}:{O_+3}], v7, s[{SRD_WS}:{SRD_WS+3}], s6 offen sc1")
    e("s_mov_b64 exec, 1")
    e(f"buffer_store_dwordx4 v[{TMP+8}:{TMP+11}], v1, s[{SRD_WS}:{SRD_WS+3}], s4 offen sc1")
    e("s_mov_b64 exec, -1")
stamp(6)
if_dry_goto("L_dry_done_data")
lab("L_exit_d")
dump_stamps(False)
e("s_endpgm")

lab("L_comm")
e("s_setprio 2")
e(f"s_sub_u32 s{S_WAVE}, s{S_WAVE}, 4")
stamp(6, True)
load_tag(7)
e("s_mov_b32 s8, 0")
e(f"s_cmp_ge_u32 s{S_WAVE}, 2")
e("s_cbranch_scc1 L_p1_noload")
e(f"s_cmp_eq_u32 s{S_WAVE}, 1")
e("s_cbranch_scc1 L_p1_w1")
srd(SRD_W1, 22, 4194304)
e("s_mov_b32 s5, 8192")
e("s_lshr_b32 s6, s2, 6")
e("s_lshl_b32 s6, s6, 7")
e("s_and_b32 s7, s2, 63")
e("s_lshl_b32 s7, s7, 7")
e("s_mov_b32 s8, 1")
e("s_branch L_p1_go")
lab("L_p1_w1")
e("s_cmp_ge_u32 s2, 112")
e("s_cbranch_scc1 L_p1_noload")
srd(SRD_W1, 28, 512 * 1792 * 2)
e("s_mov_b32 s5, 3584")
e("s_and_b32 s6, s2, 3")
e("s_lshl_b32 s6, s6, 7")
e("s_lshr_b32 s7, s2, 2")
e("s_lshl_b32 s7, s7, 7")
e("s_mov_b32 s8, 2")
if OPT["w1_late"]:
    e("s_barrier")
    lds_wait(C_GO, 1, TMP)
lab("L_p1_go")
e("v_mul_lo_u32 v7, s5, v4")
e("v_lshl_add_u32 v7, v1, 4, v7")
e("s_mul_i32 s9, s6, s5")
e("s_add_u32 s9, s9, s7")
e("s_lshl_b32 s12, s6, 1")
e("s_mul_i32 s13, s5, 56")
for i in range(16):
    e(f"buffer_load_dwordx4 v[{VW+4*i}:{VW+4*i+3}], v7, s[{SRD_W1}:{SRD_W1+3}], s9 offen{NT}")
    if i < 15:
        e("s_add_u32 s9, s9, s5")
    if i == 7:
        e("s_add_u32 s9, s9, s13")
XA, XA2, XR = 96, 100, 104
e(f"buffer_load_dwordx4 v[{XA}:{XA+3}], v6, s[{SRD_X}:{SRD_X+3}], s12 offen")
e(f"buffer_load_dwordx4 v[{XA2}:{XA2+3}], v6, s[{SRD_X}:{SRD_X+3}], s12 offen offset:128")
e("v_lshlrev_b32 v1, 4, v0")
for b in range(4):
    e(f"buffer_load_dwordx4 v[{XR+4*b}:{XR+4*b+3}], v1, s[{SRD_X}:{SRD_X+3}], 0 offen offset:{1024*b}")
lab("L_p1_noload")
e(f"s_cmp_lg_u32 s{S_WAVE}, 0")
e("s_cbranch_scc1 L_c_noz")
e("v_mov_b32 v1, 0")
e("v_lshlrev_b32 v7, 2, v0")
e("s_mov_b64 exec, 0xffff")
e(f"ds_write_b32 v7, v1 offset:{L_CNT}")
e("s_mov_b64 exec, -1")
e("s_waitcnt lgkmcnt(0)")
lab("L_c_noz")
if OPT["w1_late"]:
    e("s_cmp_eq_u32 s8, 2")
    e("s_cbranch_scc1 L_skipb0")
e("s_barrier")
lab("L_skipb0")
e(f"s_lshl_b32 s15, s{S_WAVE}, 11")
e(f"s_add_u32 s15, s15, {L_PIECE + 4096}")
if OPT["dry"]:
    e(f"s_mov_b32 s{S_DRY}, 1")
    e("s_cmp_lg_u32 s8, 0")
    e("s_cbranch_scc1 L_secP1")
    e(f"s_cmp_eq_u32 s{S_WAVE}, 2")
    e("s_cbranch_scc1 L_secA")
    e("s_branch L_secQ")
    lab("L_dry_done_data")
    lab("L_dry_done_comm")
    e(f"s_mov_b32 s{S_DRY}, 0")
    lane_setup()
lab("L_real_start")
if OPT["k_after"]:
    e(f"s_cmp_eq_u32 s{S_WAVE}, 0")
    e("s_cbranch_scc0 L_nogo")
    e(f"s_waitcnt vmcnt({22-OPT['k_after']})")
    lds_signal(C_GO, TMP)
    lab("L_nogo")
e("s_waitcnt vmcnt(0) lgkmcnt(0)")
stamp(7, True)
finish_tag()
e("s_cmp_eq_u32 s8, 0")
e("s_cbranch_scc1 L_secQ")
lab("L_secP1")
for d in range(4):
    e(f"v_mov_b32 v{VA+d}, v{XA+d}")
    e(f"v_mov_b32 v{VA2+d}, v{XA2+d}")
e("s_cmp_eq_u32 s8, 1")
e("s_cbranch_scc1 L_p1_mm")
SUM = TMP
T = TMP + 4
for b in range(4):
    e(f"v_lshlrev_b32 v{T}, 16, v{XR+4*b}")
    e(f"v_and_b32 v{T+1}, 0xffff0000, v{XR+4*b}")
    e(f"v_add_f32 v{SUM+b}, v{T}, v{T+1}")
    for d in range(1, 4):
        e(f"v_lshlrev_b32 v{T}, 16, v{XR+4*b+d}")
        e(f"v_and_b32 v{T+1}, 0xffff0000, v{XR+4*b+d}")
        e(f"v_add_f32 v{SUM+b}, v{SUM+b}, v{T}")
        e(f"v_add_f32 v{SUM+b}, v{SUM+b}, v{T+1}")
dpp_reduce("v_add_f32", [SUM + b for b in range(4)], ROW16)
swap_reduce("v_add_f32", [SUM + b for b in range(4)], [T + b for b in range(4)])
for b in range(4):
    e(f"v_mul_f32 v{SUM+b}, 0x3b000000, v{SUM+b}")
SQ = TMP + 12
for b in range(4):
    for d in range(4):
        e(f"v_lshlrev_b32 v{T}, 16, v{XR+4*b+d}")
        e(f"v_and_b32 v{T+1}, 0xffff0000, v{XR+4*b+d}")
        e(f"v_sub_f32 v{T}, v{T}, v{SUM+b}")
        e(f"v_sub_f32 v{T+1}, v{T+1}, v{SUM+b}")
        if d == 0:
            e(f"v_mul_f32 v{SQ+b}, v{T}, v{T}")
        else:
            e(f"v_fmac_f32 v{SQ+b}, v{T}, v{T}")
        e(f"v_fmac_f32 v{SQ+b}, v{T+1}, v{T+1}")
dpp_reduce("v_add_f32", [SQ + b for b in range(4)], ROW16)
swap_reduce("v_add_f32", [SQ + b for b in range(4)], [T + b for b in range(4)])
for b in range(4):
    e(f"v_mul_f32 v{SQ+b}, 0x3b000000, v{SQ+b}")
MEAN, DEN, RCP = TMP + 16, TMP + 17, TMP + 18
e(f"v_mov_b32 v{MEAN}, v{SUM}")
e(f"v_mov_b32 v{DEN}, v{SQ}")
for b in range(1, 4):
    e(f"v_cmp_eq_u32 vcc, {b}, v5")
    e("s_nop 1")
    e(f"v_cndmask_b32 v{MEAN}, v{MEAN}, v{SUM+b}, vcc")
    e(f"v_cndmask_b32 v{DEN}, v{DEN}, v{SQ+b}, vcc")
bf16_round_pair(T, MEAN, DEN, MEAN, DEN)
e(f"v_add_f32 v{DEN}, 0x3727c5ac, v{DEN}")
e(f"v_cvt_pk_bf16_f32 v{T}, v{DEN}, v{DEN}")
e(f"v_lshlrev_b32 v{DEN}, 16, v{T}")
e(f"v_sqrt_f32 v{DEN}, v{DEN}")
e("s_nop 0")
e(f"v_cvt_pk_bf16_f32 v{T}, v{DEN}, v{DEN}")
e(f"v_lshlrev_b32 v{DEN}, 16, v{T}")
e(f"v_rcp_f32 v{RCP}, v{DEN}")
e("s_nop 0")
for AA in (VA, VA2):
    for d in range(4):
        a0, a1 = T + 2, T + 3
        e(f"v_lshlrev_b32 v{a0}, 16, v{AA+d}")
        e(f"v_and_b32 v{a1}, 0xffff0000, v{AA+d}")
        e(f"v_sub_f32 v{a0}, v{a0}, v{MEAN}")
        e(f"v_sub_f32 v{a1}, v{a1}, v{MEAN}")
        bf16_round_pair(T, a0, a1, a0, a1)
        for a in (a0, a1):
            e(f"v_mul_f32 v{T+4}, v{a}, v{RCP}")
            e(f"v_fma_f32 v{T+5}, -v{T+4}, v{DEN}, v{a}")
            e(f"v_fma_f32 v{a}, v{T+5}, v{RCP}, v{T+4}")
        e(f"v_cvt_pk_bf16_f32 v{AA+d}, v{a0}, v{a1}")
lab("L_p1_mm")
tile128(VA, VA2, 15)
e("v_and_b32 v1, 15, v0")
e("s_cmp_eq_u32 s8, 1")
e("s_cbranch_scc1 L_pub_q")
e("s_and_b32 s4, s2, 3")
e("s_mul_i32 s4, s4, 1792")
e("s_lshr_b32 s5, s2, 2")
e("s_lshl_b32 s5, s5, 4")
e("s_add_u32 s4, s4, s5")
e("s_lshl_b32 s4, s4, 4")
e(f"s_add_u32 s4, s4, {WS_HP}")
e(f"v_mul_u32_u24 v2, 448, v{TMP+8}")
e("v_add_u32 v1, v2, v1")
e("s_branch L_pub_go")
lab("L_pub_q")
e("s_lshr_b32 s4, s2, 6")
e("s_lshl_b32 s4, s4, 12")
e("s_and_b32 s5, s2, 63")
e("s_lshl_b32 s5, s5, 4")
e("s_add_u32 s4, s4, s5")
e("s_lshl_b32 s4, s4, 4")
e(f"s_add_u32 s4, s4, {WS_QP}")
e(f"v_lshl_add_u32 v1, v{TMP+8}, 10, v1")
lab("L_pub_go")
e("v_lshlrev_b32 v1, 4, v1")
if_dry_goto("L_dry_done_comm")
e(f"buffer_store_dwordx4 v[{TMP}:{TMP+3}], v1, s[{SRD_WS}:{SRD_WS+3}], s4 offen sc1")
if OPT["go_pub"]:
    e("s_cmp_eq_u32 s8, 1")
    e("s_cbranch_scc0 L_nogo2")
    lds_signal(C_GO, TMP + 10)
    stamp(0, True)
    lab("L_nogo2")
else:
    stamp(0, True)
lab("L_secQ")
e("v_lshlrev_b32 v3, 4, v0")
e("s_lshr_b32 s4, s2, 6")
e("s_lshl_b32 s4, s4, 10")
e("s_lshr_b32 s5, s2, 3")
e("s_and_b32 s5, s5, 7")
e("s_lshl_b32 s5, s5, 7")
e("s_add_u32 s4, s4, s5")
e(f"s_lshl_b32 s5, s{S_WAVE}, 5")
e("s_add_u32 s4, s4, s5")
e("s_lshl_b32 s4, s4, 4")
e(f"s_add_u32 s4, s4, {WS_QP}")
e(f"s_add_u32 s5, s4, {4*1024*16}")
e("v_and_b32 v4, 31, v0")
e("v_lshlrev_b32 v4, 4, v4")
e("v_lshrrev_b32 v5, 5, v0")
e("v_lshl_add_u32 v4, v5, 17, v4")
poll("q", [f"buffer_load_dwordx4 @, v4, s[{SRD_WS}:{SRD_WS+3}], s{4+k} offen sc1" for k in range(2)],
     [16, 20], 6, OPT["sleep_q"], altbase=168)
for i in range(4):
    e(f"v_add_f32 v{24+i}, v{16+i}, v{20+i}")
swap_reduce("v_add_f32", [24, 25, 26, 27], [28, 29, 30, 31], ("v_permlane32_swap_b32",))
e("v_cvt_pk_bf16_f32 v24, v24, v25")
e("v_cvt_pk_bf16_f32 v25, v26, v27")
e(f"s_lshl_b32 s4, s{S_WAVE}, 8")
e("v_and_b32 v5, 31, v0")
e("v_lshlrev_b32 v5, 3, v5")
e("v_add_u32 v5, s4, v5")
with Guard():
    e(f"ds_write_b64 v5, v[24:25] offset:{L_QS}")
    lds_signal(C_Q, 6)
stamp(1, True)
W3, B3, ACC3 = 96, 160, 16
e("s_mov_b32 s14, 0")
with Guard():
    e("v_lshrrev_b32 v9, 4, v0")
    e(f"s_cmp_lt_u32 s{S_WAVE}, 2")
    e("s_cbranch_scc1 L_nowo0")
    srd(SRD_W3, 24, 4194304)
    e("s_lshr_b32 s6, s2, 1")
    e("s_lshl_b32 s9, s6, 15")
    e("s_and_b32 s7, s2, 1")
    e("s_lshl_b32 s7, s7, 9")
    e("s_add_u32 s9, s9, s7")
    e(f"s_sub_u32 s7, s{S_WAVE}, 2")
    e("s_lshl_b32 s7, s7, 8")
    e("s_add_u32 s9, s9, s7")
    e("v_and_b32 v7, 15, v0")
    e("v_lshlrev_b32 v7, 4, v7")
    e("v_lshl_add_u32 v7, v9, 13, v7")
    for i in range(8):
        e(f"buffer_load_dwordx4 v[{W3+4*i}:{W3+4*i+3}], v7, s[{SRD_W3}:{SRD_W3+3}], s9 offen offset:{1024*(i&3)}{NT}")
        if i == 3:
            e("s_add_u32 s9, s9, 4096")
    e("s_branch L_now2")
    lab("L_nowo0")
    e(f"s_cmp_eq_u32 s{S_WAVE}, 1")
    e("s_cbranch_scc0 L_now2")
    e("s_cmp_lt_u32 s2, 112")
    e("s_cbranch_scc1 L_now2")
    e("s_cmp_ge_u32 s2, 224")
    e("s_cbranch_scc1 L_now2")
    e("s_mov_b32 s14, 1")
    srd(SRD_W3, 32, 1792 * 512 * 2)
    e("s_sub_u32 s9, s2, 112")
    e("s_lshr_b32 s6, s9, 3")
    e("s_lshl_b32 s6, s6, 17")
    e("s_and_b32 s7, s9, 7")
    e("s_lshl_b32 s7, s7, 7")
    e("s_add_u32 s9, s6, s7")
    e("v_bfe_u32 v7, v0, 3, 1")
    e("v_lshlrev_b32 v7, 5, v7")
    e("v_lshl_add_u32 v9, v9, 3, v7")
    e("v_and_b32 v7, 7, v0")
    e("v_lshlrev_b32 v7, 4, v7")
    e("v_lshl_add_u32 v7, v9, 10, v7")
    for i in range(16):
        e(f"buffer_load_dwordx4 v[{W3+4*i}:{W3+4*i+3}], v7, s[{SRD_W3}:{SRD_W3+3}], s9 offen offset:{1024*(i&3)}{NT}")
        if i == 7:
            e(f"s_add_u32 s9, s9, {4096 + 56*1024}")
        elif i & 3 == 3 and i < 15:
            e("s_add_u32 s9, s9, 4096")
    lab("L_now2")
e("s_lshr_b32 s4, s2, 4")
e("s_lshl_b32 s4, s4, 7")
e("s_and_b32 s5, s2, 15")
e("s_lshl_b32 s5, s5, 3")
e("s_add_u32 s4, s4, s5")
e("s_lshl_b32 s4, s4, 4")
e(f"s_add_u32 s4, s4, {WS_OP}")
e(f"s_lshl_b32 s5, s{S_WAVE}, 18")
e("s_add_u32 s86, s4, s5")
for k in range(1, 4):
    e(f"s_add_u32 s{86+k}, s86, {k*65536}")
e(f"s_lshl_b32 s5, s{S_WAVE}, 15")
e("s_add_u32 s5, s4, s5")
e(f"s_add_u32 s85, s5, {128*8192}")
e("v_and_b32 v60, 7, v0")
e("v_lshlrev_b32 v60, 4, v60")
e("v_lshrrev_b32 v61, 3, v0")
e("v_lshl_add_u32 v60, v61, 13, v60")
e("v_and_b32 v62, 3, v61")
e(f"s_lshl_b32 s5, s{S_WAVE}, 2")
e("s_sub_u32 s5, 13, s5")
e("v_min_u32 v62, s5, v62")
e("v_and_b32 v63, 7, v0")
e("v_lshlrev_b32 v63, 4, v63")
e("v_lshl_add_u32 v62, v62, 13, v63")
o_loads = [f"buffer_load_dwordx4 v[{32+4*k}:{35+4*k}], v60, s[{SRD_WS}:{SRD_WS+3}], s{86+k} offen sc1" for k in range(4)]
o_loads.append(f"buffer_load_dwordx4 v[48:51], v62, s[{SRD_WS}:{SRD_WS+3}], s85 offen sc1")
e("s_cmp_ge_u32 s2, 64")
e("s_cbranch_scc1 L_c_nowarm")
with Guard():
    for l in o_loads:
        e(l)
    srd(SRD_M, 36, 1024)
    e(f"buffer_load_dwordx4 v[64:67], v3, s[{SRD_M}:{SRD_M+3}], 0 offen")
    e("s_lshr_b32 s4, s2, 4")
    e("s_lshl_b32 s4, s4, 10")
    e(f"buffer_load_dwordx4 v[68:71], v3, s[{SRD_X}:{SRD_X+3}], s4 offen")
    srd(SRD_OUT, 34, 1024)
    e("v_and_b32 v6, 31, v0")
    e("v_lshlrev_b32 v6, 1, v6")
    e("s_and_b32 s4, s2, 15")
    e("s_lshl_b32 s4, s4, 6")
    e(f"buffer_load_ushort v72, v6, s[{SRD_OUT}:{SRD_OUT+3}], s4 offen")
lab("L_c_nowarm")
if_dry_goto("L_secAG")
e("s_cmp_lt_u32 s2, 112")
e("s_cbranch_scc1 L_secAG")
e("s_cmp_ge_u32 s2, 224")
e("s_cbranch_scc1 L_secAG")
lab("L_secH")
e("s_sub_u32 s9, s2, 112")
e("s_lshr_b32 s9, s9, 3")
e("s_min_u32 s9, s9, 13")
e(f"s_mul_i32 s4, s{S_WAVE}, 448")
e("s_lshl_b32 s5, s9, 5")
e("s_add_u32 s4, s4, s5")
e("s_lshl_b32 s4, s4, 4")
e(f"s_add_u32 s4, s4, {WS_HP}")
e(f"s_add_u32 s5, s4, {4*448*16}")
srd(SRD_M, 30, 3584)
e("s_lshl_b32 s9, s9, 8")
e("v_and_b32 v6, 31, v0")
e("v_lshlrev_b32 v4, 4, v6")
e("v_lshlrev_b32 v6, 3, v6")
e(f"buffer_load_dwordx2 v[80:81], v6, s[{SRD_M}:{SRD_M+3}], s9 offen")
e("v_lshrrev_b32 v7, 5, v0")
e(f"s_mov_b32 s6, {2*4*448*16}")
e("v_mul_lo_u32 v7, s6, v7")
e("v_add_u32 v4, v7, v4")
poll("h", [f"buffer_load_dwordx4 @, v4, s[{SRD_WS}:{SRD_WS+3}], s{4+k} offen sc1" for k in range(2)],
     [16, 20], 6, OPT["sleep_q"])
for i in range(4):
    e(f"v_add_f32 v{24+i}, v{16+i}, v{20+i}")
swap_reduce("v_add_f32", [24, 25, 26, 27], [28, 29, 30, 31], ("v_permlane32_swap_b32",))
for p in range(2):
    a, b_ = 24 + 2 * p, 25 + 2 * p
    bf16_round_pair(28, a, b_, a, b_)
    e(f"v_lshlrev_b32 v28, 16, v{80+p}")
    e(f"v_and_b32 v29, 0xffff0000, v{80+p}")
    e(f"v_add_f32 v{a}, v{a}, v28")
    e(f"v_add_f32 v{b_}, v{b_}, v29")
    bf16_round_pair(28, a, b_, a, b_)
e("v_mov_b32 v31, 0x3d372713")
for r in (24, 25, 26, 27):
    e(f"v_mul_f32 v30, v{r}, v{r}")
    e(f"v_mul_f32 v30, v30, v{r}")
    e(f"v_fma_f32 v30, v30, v31, v{r}")
    e(f"v_mul_f32 v30, 0x40135761, v30")
    e(f"v_exp_f32 v30, v30")
    e("s_nop 0")
    e(f"v_add_f32 v30, 1.0, v30")
    e(f"v_rcp_f32 v30, v30")
    e("s_nop 0")
    e(f"v_fma_f32 v30, v30, -2.0, 2.0")
    e(f"v_mul_f32 v30, 0.5, v30")
    e(f"v_mul_f32 v{r}, v{r}, v30")
e("v_cvt_pk_bf16_f32 v24, v24, v25")
e("v_cvt_pk_bf16_f32 v25, v26, v27")
with Guard():
    e(f"ds_write_b64 v5, v[24:25] offset:{L_HA}")
    lds_signal(C_H, 6)
    e("s_cmp_eq_u32 s14, 1")
    e("s_cbranch_scc0 L_secAG")
lds_wait(C_H, 4, 6)
e(f"ds_read_b128 v[{VA}:{VA+3}], v11 offset:{L_HA}")
e(f"ds_read_b128 v[{VA2}:{VA2+3}], v11 offset:{L_HA+128}")
with Guard():
    e("s_waitcnt vmcnt(0)")
e("s_waitcnt lgkmcnt(0)")
tile128(VA, VA2, 15, W=W3, B=B3, ACC=ACC3, G=W3)
e("s_sub_u32 s5, s2, 112")
e("s_lshr_b32 s4, s5, 3")
e("s_add_u32 s4, s4, 128")
e("s_lshl_b32 s4, s4, 9")
e("s_and_b32 s5, s5, 7")
e("s_lshl_b32 s5, s5, 4")
e("s_add_u32 s4, s4, s5")
e("s_lshl_b32 s4, s4, 4")
e(f"s_add_u32 s4, s4, {WS_OP}")
e("v_and_b32 v1, 15, v0")
e(f"v_lshl_add_u32 v1, v{TMP+8}, 7, v1")
e("v_lshlrev_b32 v1, 4, v1")
if_dry_goto("L_dry_done_comm")
e(f"buffer_store_dwordx4 v[{TMP}:{TMP+3}], v1, s[{SRD_WS}:{SRD_WS+3}], s4 offen sc1")
lab("L_secAG")
e(f"s_lshl_b32 s4, s{S_WAVE}, 5")
e("s_lshr_b32 s5, s2, 3")
e("s_add_u32 s4, s4, s5")
e("s_lshl_b32 s6, s4, 2")
e("s_bfe_u32 s5, s2, 0x20001")
e("s_add_u32 s6, s6, s5")
e("s_lshl_b32 s6, s6, 10")
e(f"s_add_u32 s6, s6, {WS_APO}")
e(f"s_lshl_b32 s4, s4, {10 if OPT['apm128'] else 7}")
e(f"s_add_u32 s4, s4, {WS_APM}")
e(f"v_lshlrev_b32 v4, {7 if OPT['apm128'] else 4}, v61")
poll("a", [f"buffer_load_dwordx4 @, v3, s[{SRD_WS}:{SRD_WS+3}], s6 offen sc1",
           f"buffer_load_dwordx4 @, v4, s[{SRD_WS}:{SRD_WS+3}], s4 offen sc1"], [16, 20], 6, OPT["sleep_t"], altbase=168)
stamp(3, True)
e("v_mov_b32 v24, v20")
dpp_reduce("v_max_f32", [24], ["row_ror:8"])
swap_reduce("v_max_f32", [24], [25])
e("v_sub_f32 v25, v20, v24")
e("v_mul_f32 v25, 0x3fb8aa3b, v25")
e("v_exp_f32 v25, v25")
e("s_nop 0")
e("v_mul_f32 v26, v25, v21")
for i in range(4):
    e(f"v_mul_f32 v{84+i}, v25, v{16+i}")
dpp_reduce("v_add_f32", [26, 84, 85, 86, 87], ["row_ror:8"])
swap_reduce("v_add_f32", [26, 84, 85, 86, 87], [27, 28, 29, 30, 31])
e("v_rcp_f32 v27, v26")
e("s_nop 0")
e("v_fma_f32 v28, -v26, v27, 2.0")
e("v_mul_f32 v27, v27, v28")
for i in range(4):
    e(f"v_mul_f32 v{84+i}, v27, v{84+i}")
e("v_cvt_pk_bf16_f32 v84, v84, v85")
e("v_cvt_pk_bf16_f32 v85, v86, v87")
e(f"s_lshl_b32 s4, s{S_WAVE}, 6")
e("v_lshlrev_b32 v4, 3, v0")
e("v_add_u32 v4, s4, v4")
with Guard():
    e("s_mov_b64 exec, 0xff")
    e(f"ds_write_b64 v4, v[84:85] offset:{L_OA}")
    e("s_mov_b64 exec, -1")
    lds_signal(C_A, 6)
stamp(4, True)
if_dry_goto("L_secC")
e(f"s_cmp_lt_u32 s{S_WAVE}, 2")
e("s_cbranch_scc1 L_secC_done")
lab("L_secC")
e("s_lshr_b32 s4, s2, 1")
e("s_lshl_b32 s4, s4, 9")
e("s_and_b32 s5, s2, 1")
e("s_lshl_b32 s5, s5, 6")
e("s_add_u32 s4, s4, s5")
e(f"s_sub_u32 s5, s{S_WAVE}, 2")
e("s_lshl_b32 s5, s5, 5")
e("s_add_u32 s4, s4, s5")
e("s_lshl_b32 s4, s4, 4")
e(f"s_add_u32 s4, s4, {WS_OP}")
e("s_add_u32 s5, s4, 4096")
e("v_lshlrev_b32 v2, 5, v0")
e("v_and_b32 v1, 3, v0")
e("v_lshlrev_b32 v1, 6, v1")
e("v_lshrrev_b32 v9, 4, v0")
e("v_lshl_add_u32 v1, v9, 4, v1")
lds_wait(C_A, 4, 6)
e(f"ds_read_b128 v[{VA}:{VA+3}], v1 offset:{L_OA}")
with Guard():
    e("s_waitcnt vmcnt(0)")
e("s_waitcnt lgkmcnt(0)")
tile_mm(W3, VA, B3, ACC3)
e("s_nop 7")
e("s_nop 1")
if not OPT["opfull"]:
    for b in range(4):
        for hf in range(2):
            d = TMP + 8 * b + 4 * hf
            tagq(d, [ACC3 + 4 * (4 * hf + i) + b for i in range(4)])
    with Guard():
        set_exec("0xffff", 0)
        for b in range(4):
            for hf in range(2):
                d = TMP + 8 * b + 4 * hf
                e(f"buffer_store_dwordx4 v[{d}:{d+3}], v2, s[{SRD_WS}:{SRD_WS+3}], s{4+(b>>1)} offen offset:{2048*(b&1)+16*hf} sc1")
        e("s_mov_b64 exec, -1")
else:
    e("v_and_b32 v6, 16, v0")
    e("v_cmp_ne_u32 s[90:91], 0, v6")
    e("v_cmp_lt_u32 s[92:93], 31, v0")
    e("s_nop 1")
    for k in range(2):
        for i in range(4):
            t0, t1 = TMP + 16, TMP + 17
            e(f"v_cndmask_b32 v{t0}, v{ACC3+4*i+k}, v{ACC3+4*(4+i)+k}, s[90:91]")
            e(f"v_cndmask_b32 v{t1}, v{ACC3+4*i+2+k}, v{ACC3+4*(4+i)+2+k}, s[90:91]")
            e(f"v_cndmask_b32 v{TMP+8+4*k+i}, v{t0}, v{t1}, s[92:93]")
        tagq(TMP + 4 * k, [TMP + 8 + 4 * k + i for i in range(4)])
    e("v_and_b32 v2, 15, v0")
    e("v_lshlrev_b32 v2, 5, v2")
    e("v_add_u32 v2, v6, v2")
    e("v_lshrrev_b32 v6, 5, v0")
    e("v_lshl_add_u32 v2, v6, 12, v2")
    with Guard():
        for k in range(2):
            e(f"buffer_store_dwordx4 v[{TMP+4*k}:{TMP+4*k+3}], v2, s[{SRD_WS}:{SRD_WS+3}], s4 offen offset:{2048*k} sc1")
stamp(2, True)
lab("L_secC_done")
e("s_cmp_lt_u32 s2, 64")
e("s_cbranch_scc1 L_secF")
if_dry_goto("L_secH")
e("s_branch L_exit_c")
lab("L_secF")
GS = 74
for d in range(4):
    e(f"v_lshlrev_b32 v76, 16, v{68+d}")
    e(f"v_and_b32 v77, 0xffff0000, v{68+d}")
    e(f"v_lshlrev_b32 v78, 16, v{64+d}")
    e(f"v_and_b32 v79, 0xffff0000, v{64+d}")
    e("v_mul_f32 v76, v76, v78")
    e("v_mul_f32 v77, v77, v79")
    bf16_round_pair(78, 76, 77, 76, 77)
    if d == 0:
        e(f"v_add_f32 v{GS}, v76, v77")
    else:
        e(f"v_add_f32 v{GS}, v{GS}, v76")
        e(f"v_add_f32 v{GS}, v{GS}, v77")
dpp_reduce("v_add_f32", [GS], ROW16)
swap_reduce("v_add_f32", [GS], [76])
e(f"v_cvt_pk_bf16_f32 v75, v{GS}, v{GS}")
e("v_lshlrev_b32 v75, 16, v75")
e("v_mul_f32 v75, 0xbfb8aa3b, v75")
e("v_exp_f32 v75, v75")
e("s_nop 0")
e("v_add_f32 v75, 1.0, v75")
e("v_rcp_f32 v76, v75")
e("s_nop 0")
e("v_fma_f32 v77, -v75, v76, 2.0")
e("v_mul_f32 v76, v76, v77")
e("v_cvt_pk_bf16_f32 v76, v76, v76")
e("v_lshlrev_b32 v75, 16, v76")
e("v_sub_f32 v76, 1.0, v75")
e("v_cvt_pk_bf16_f32 v76, v76, v76")
e("v_lshlrev_b32 v76, 16, v76")
e("v_lshlrev_b32 v73, 16, v72")
poll("o", [re.sub(r"v\[\d+:\d+\]", "@", l, count=1) for l in o_loads], [32, 36, 40, 44, 48], 1, OPT["sleep_t"], altbase=128)
stamp(5, True)
e(f"s_lshl_b32 s5, s{S_WAVE}, 5")
e("s_sub_u32 s5, 112, s5")
e("s_min_u32 s5, s5, 32")
e("v_cmp_gt_u32 vcc, s5, v0")
e("s_nop 1")
for i in range(4):
    e(f"v_cndmask_b32 v{92+i}, 0, v{48+i}, vcc")
    e(f"v_add_f32 v{88+i}, v{32+i}, v{36+i}")
    e(f"v_add_f32 v{52+i}, v{40+i}, v{44+i}")
for i in range(4):
    e(f"v_add_f32 v{88+i}, v{88+i}, v{52+i}")
regs = [88 + i for i in range(8)]
dpp_reduce("v_add_f32", regs, ["row_ror:8"])
swap_reduce("v_add_f32", regs, [52 + i for i in range(8)])
e(f"s_lshl_b32 s4, s{S_WAVE}, 7")
e("v_add_u32 v4, s4, v3")
with Guard():
    e("s_mov_b64 exec, 0xff")
    e(f"ds_write_b128 v4, v[88:91] offset:{L_F}")
    e(f"ds_write_b128 v4, v[92:95] offset:{L_F+512}")
    e("s_mov_b64 exec, -1")
    lds_signal(C_F, 6)
    e(f"s_cmp_lg_u32 s{S_WAVE}, 0")
    e("s_cbranch_scc1 L_exit_c")
lds_wait(C_F, 4, 6)
e("v_and_b32 v6, 31, v0")
e("v_lshlrev_b32 v4, 2, v6")
for w in range(8):
    e(f"ds_read_b32 v{52+w}, v4 offset:{L_F+128*w}")
e("s_waitcnt lgkmcnt(0)")
e("v_add_f32 v52, v52, v53")
e("v_add_f32 v54, v54, v55")
e("v_add_f32 v56, v56, v57")
e("v_add_f32 v58, v58, v59")
e("v_add_f32 v52, v52, v54")
e("v_add_f32 v56, v56, v58")
bf16_round_pair(54, 52, 56, 52, 56)
e("v_add_f32 v56, v56, v73")
e("v_cvt_pk_bf16_f32 v54, v56, v56")
e("v_lshlrev_b32 v56, 16, v54")
e("v_mul_f32 v52, v75, v52")
e("v_mul_f32 v56, v76, v56")
bf16_round_pair(54, 52, 56, 52, 56)
e("v_add_f32 v52, v52, v56")
e("v_cvt_pk_bf16_f32 v52, v52, v52")
e("v_lshlrev_b32 v6, 1, v6")
e("s_lshl_b32 s4, s2, 6")
if_dry_goto("L_secH")
srd(SRD_OUT, 38, 4096)
set_exec("-1", 0)
e(f"buffer_store_short v52, v6, s[{SRD_OUT}:{SRD_OUT+3}], s4 offen")
e("s_cmp_lg_u32 s2, 0")
e("s_cbranch_scc1 L_exit_c")
e("s_mov_b64 exec, 1")
e(f"v_mov_b32 v1, 0")
e(f"v_mov_b32 v4, s{S_TAG}")
e(f"v_mov_b32 v5, s{S_TAG+1}")
e(f"buffer_store_dwordx2 v[4:5], v1, s[{SRD_WS}:{SRD_WS+3}], 0 offen offset:{WS_GEN} sc1")
lab("L_exit_c")
dump_stamps(True)
lab("L_exit")
e("s_endpgm")
if not OPT["dry"]:
    lab("L_dry_done_data")
    lab("L_dry_done_comm")
    e("s_endpgm")

out.append('.section .rodata,"a"')
out.append(".p2align 6")
out.append(f".amdhsa_kernel {NAME}_kernel")
out.append("  .amdhsa_next_free_vgpr 240")
out.append("  .amdhsa_next_free_sgpr 102")
out.append("  .amdhsa_accum_offset 240")
out.append("  .amdhsa_group_segment_fixed_size 0")
out.append("  .amdhsa_kernarg_size 112")
out.append("  .amdhsa_user_sgpr_count 2")
out.append("  .amdhsa_user_sgpr_kernarg_segment_ptr 1")
out.append("  .amdhsa_system_sgpr_workgroup_id_x 1")
out.append(".end_amdhsa_kernel")

dst = sys.argv[1] if len(sys.argv) > 1 else f"cdna_kernels/{NAME}.s"
open(dst, "w").write("\n".join(out) + "\n")
print("wrote", dst, len(out), "lines")
```

```python
import sys
import re

NAME = "gated_mix__sliding_block_cached__mixer_channel_mlp__decode"

OPT = dict(
    stamps=0,
    nt=1,
    depth=6,
    sleep_l=1,
    sleep_q=1,
    sleep_t=0,
    dry=1,
    k_after=0,
    pp=0,
    jit=0,
    jit_k=7,
    vstamp=0,
    w1_late=0,
    go_pub=0,
    opfull=1,
    apm128=1,
)
for a in sys.argv[2:]:
    k, v = a.split("=")
    OPT[k] = int(v)

WS_GEN = 0
WS_QP = 0x10000
WS_HP = WS_QP + 4 * 4 * 1024 * 16
WS_APO = WS_HP + 4 * 4 * 448 * 16
WS_APM = WS_APO + 4 * 32 * 4 * 8 * 8 * 16
WS_OP = WS_APM + 4 * 32 * 8 * 128
WS_ST = WS_OP + 142 * 4 * 128 * 16
WS_END = WS_ST + 256 * 8 * 16 * 8
open("gen_layout.py", "w").write(f"WS_ST = {WS_ST}\n")

L_PIECE = 0
L_QS = 8192
L_OW = 9216
L_ML = 17408
L_OA = 17536
L_HA = 17792
L_F = 18816
L_CNT = 19840
L_END = L_CNT + 64
LDS_BYTES = 20480
assert L_END <= LDS_BYTES
C_Q, C_O, C_H, C_A, C_F, C_GO, C_K = 0, 4, 8, 12, 16, 20, 24

out = []


def e(s):
    out.append("    " + s)


def lab(s):
    out.append(s + ":")


NT = " nt" if OPT["nt"] else ""
S_WAVE = 3
SRD_X, SRD_K, SRD_V, SRD_W1, SRD_W3, SRD_WS, SRD_OUT, SRD_M = 44, 48, 52, 56, 60, 64, 68, 72
S_TAG = 76
S_SELLO, S_SELHI = 78, 79
S_T0 = 80
S_MASK = 96
S_DRY = 97
S_STAMP = 100
V_ST = 232
uid = [0]


def nid():
    uid[0] += 1
    return uid[0]


class Guard:
    def __enter__(self):
        self.n = nid()
        e(f"s_cmp_lg_u32 s{S_DRY}, 0")
        e(f"s_cbranch_scc1 L_g{self.n}")

    def __exit__(self, *a):
        lab(f"L_g{self.n}")


def if_dry_goto(label):
    e(f"s_cmp_lg_u32 s{S_DRY}, 0")
    e(f"s_cbranch_scc1 {label}")


def srd(dst, ptr, nbytes):
    e(f"s_mov_b32 s{dst}, s{ptr}")
    e(f"s_and_b32 s{dst+1}, s{ptr+1}, 0xffff")
    e(f"s_mov_b32 s{dst+2}, {nbytes}")
    e(f"s_mov_b32 s{dst+3}, 0x00020000")


def stamp_raw(i, comm):
    va, vt = V_ST, V_ST + 2
    e(f"s_lshl_b32 s98, s2, 3")
    e(f"s_add_u32 s98, s98, s{S_WAVE}")
    if comm:
        e("s_add_u32 s98, s98, 4")
    e(f"s_lshl_b32 s98, s98, 7")
    e(f"s_add_u32 s98, s98, {WS_ST + 8 * i}")
    e(f"v_mov_b32 v{va}, s98")
    e(f"v_mov_b32 v{vt}, s{S_STAMP}")
    e(f"v_mov_b32 v{vt+1}, s{S_STAMP+1}")
    e(f"s_mov_b64 s[98:99], exec")
    e(f"s_mov_b64 exec, 1")
    e(f"buffer_store_dwordx2 v[{vt}:{vt+1}], v{va}, s[{SRD_WS}:{SRD_WS+3}], 0 offen")
    e(f"s_mov_b64 exec, s[98:99]")


STAMP_MAP_D = {0: 0, 3: 1, 5: 2, 2: 3, 6: 4, 7: 5, 8: 6}
STAMP_MAP_C = {0: 0, 1: 1, 3: 2, 2: 3, 5: 4, 7: 6, 6: 5}


def stamp(i, comm=False):
    if not OPT["stamps"]:
        return
    m = STAMP_MAP_C if comm else STAMP_MAP_D
    if i not in m:
        return
    k = m[i]
    with Guard():
        e(f"s_memrealtime s[{16+2*k}:{17+2*k}]")


def dump_stamps(comm):
    if not OPT["stamps"]:
        return
    m = STAMP_MAP_C if comm else STAMP_MAP_D
    e("s_waitcnt lgkmcnt(0)")
    e("s_mov_b64 exec, -1")
    if OPT["stamps"] == 2:
        srd(SRD_M, 40, 256)
        e("s_mov_b64 exec, 1")
        for i, k in m.items():
            if comm and i in (6,):
                continue
            slot = i if not comm else {0: 9, 1: 10, 3: 11, 4: 12, 5: 13, 7: 14}[i]
            n_ = nid()
            if (not comm) and i in (7, 8):
                e(f"s_cmp_lt_u32 s{S_WAVE}, 2")
                e(f"s_cbranch_scc1 L_ds{n_}")
            if comm and i == 0:
                e("s_cmp_eq_u32 s8, 0")
                e(f"s_cbranch_scc1 L_ds{n_}")
            if comm and i == 5:
                e("s_cmp_ge_u32 s2, 64")
                e(f"s_cbranch_scc1 L_ds{n_}")
            e(f"v_mov_b32 v{V_ST}, {4*slot}")
            if (not comm) and i == 0:
                e(f"s_not_b32 s{S_STAMP}, s{16+2*k}")
                e(f"v_mov_b32 v{V_ST+1}, s{S_STAMP}")
            else:
                e(f"v_mov_b32 v{V_ST+1}, s{16+2*k}")
            e(f"buffer_atomic_umax v{V_ST+1}, v{V_ST}, s[{SRD_M}:{SRD_M+3}], 0 offen")
            e("s_nop 1")
            lab(f"L_ds{n_}")
        return
    for i, k in m.items():
        e(f"s_mov_b32 s{S_STAMP}, s{16+2*k}")
        e(f"s_mov_b32 s{S_STAMP+1}, s{17+2*k}")
        stamp_raw(i, comm)
        e("s_nop 1")


def tile_mm(W, A, B, ACC, acc_in=False):
    for q in range(4):
        for i in range(4):
            e(f"v_perm_b32 v{B+i}, v{W+4*(2*i+1)+q}, v{W+4*(2*i)+q}, s{S_SELLO}")
        for i in range(4):
            e(f"v_perm_b32 v{B+4+i}, v{W+4*(2*i+1)+q}, v{W+4*(2*i)+q}, s{S_SELHI}")
        e("s_nop 1")
        for jj in range(2):
            j = 2 * q + jj
            c = f"v[{ACC+4*j}:{ACC+4*j+3}]" if acc_in else "0"
            e(f"v_mfma_f32_16x16x32_bf16 v[{ACC+4*j}:{ACC+4*j+3}], v[{A}:{A+3}], v[{B+4*jj}:{B+4*jj+3}], {c}")


VT = 188
VTRAW = 186


def load_tag(vtmp):
    e(f"v_mov_b32 v{vtmp}, 0")
    e(f"buffer_load_dwordx2 v[{VTRAW}:{VTRAW+1}], v{vtmp}, s[{SRD_WS}:{SRD_WS+3}], 0 offen offset:{WS_GEN} sc1")


def finish_tag():
    e(f"v_readfirstlane_b32 s{S_TAG}, v{VTRAW}")
    e(f"v_readfirstlane_b32 s{S_TAG+1}, v{VTRAW+1}")
    e("s_nop 3")
    e(f"s_add_u32 s{S_TAG}, s{S_TAG}, 1")
    e(f"s_addc_u32 s{S_TAG+1}, s{S_TAG+1}, 0")
    e(f"s_and_b32 s{S_T0}, s{S_TAG}, 0x3ff")
    e(f"s_bfe_u32 s{S_T0+1}, s{S_TAG}, 0xa000a")
    e(f"s_bfe_u32 s{S_T0+2}, s{S_TAG}, 0xa0014")
    e(f"s_lshr_b64 s[{S_T0+4}:{S_T0+5}], s[{S_TAG}:{S_TAG+1}], 30")
    e(f"s_and_b32 s{S_T0+3}, s{S_T0+4}, 0x3ff")
    for i in range(4):
        e(f"v_mov_b32 v{VT+i}, s{S_T0+i}")


def tagq(dst, srcs):
    for i in range(4):
        e(f"v_bfi_b32 v{dst+i}, s{S_MASK}, v{VT+i}, v{srcs[i]}")


def poll(name, loads, quads, vx, sleep, maxit=100000, altbase=None):
    n = len(loads)

    def issue(base_map):
        for l, q in zip(loads, quads):
            r = base_map(q)
            e(l.replace("@", f"v[{r}:{r+3}]"))

    def check(base_map):
        first = True
        for q in quads:
            r = base_map(q)
            for i in range(4):
                if first:
                    e(f"v_xor_b32 v{vx}, v{r+i}, v{VT+i}")
                    first = False
                else:
                    e(f"v_xor_b32 v{vx+1}, v{r+i}, v{VT+i}")
                    e(f"v_or_b32 v{vx}, v{vx}, v{vx+1}")
        e(f"v_and_b32 v{vx}, 0x3ff, v{vx}")
        e(f"v_cmp_ne_u32 vcc, 0, v{vx}")

    A = lambda q: q
    e(f"s_mov_b32 s{S_T0+10}, {maxit}")
    if not OPT["pp"] or altbase is None:
        lab(f"L_poll_{name}")
        issue(A)
        with Guard():
            e("s_waitcnt vmcnt(0)")
        check(A)
        if_dry_goto(f"L_pdone_{name}")
        e(f"s_cmp_eq_u64 vcc, 0")
        e(f"s_cbranch_scc1 L_pdone_{name}")
        e(f"s_sub_u32 s{S_T0+10}, s{S_T0+10}, 1")
        e(f"s_cmp_eq_u32 s{S_T0+10}, 0")
        e(f"s_cbranch_scc1 L_pdone_{name}")
        if sleep:
            e(f"s_sleep {sleep}")
        e(f"s_branch L_poll_{name}")
        lab(f"L_pdone_{name}")
        return
    B = lambda q: altbase + (q - quads[0])
    issue(A)
    lab(f"L_poll_{name}")
    e(f"s_sleep {OPT['pp']}")
    issue(B)
    with Guard():
        e(f"s_waitcnt vmcnt({n})")
    check(A)
    if_dry_goto(f"L_pB_{name}")
    e(f"s_cmp_eq_u64 vcc, 0")
    e(f"s_cbranch_scc1 L_pdone_{name}")
    e(f"s_sleep {OPT['pp']}")
    issue(A)
    e(f"s_waitcnt vmcnt({n})")
    check(B)
    e(f"s_cmp_eq_u64 vcc, 0")
    e(f"s_cbranch_scc1 L_pB_{name}")
    e(f"s_sub_u32 s{S_T0+10}, s{S_T0+10}, 1")
    e(f"s_cmp_eq_u32 s{S_T0+10}, 0")
    e(f"s_cbranch_scc0 L_poll_{name}")
    lab(f"L_pB_{name}")
    for q in quads:
        for i in range(4):
            e(f"v_mov_b32 v{q+i}, v{B(q)+i}")
    lab(f"L_pdone_{name}")


def lds_signal(cnt, vtmp):
    e("s_waitcnt lgkmcnt(0)")
    e(f"v_mov_b32 v{vtmp}, {L_CNT+cnt}")
    e(f"v_mov_b32 v{vtmp+1}, 1")
    e("s_mov_b64 exec, 1")
    e(f"ds_add_u32 v{vtmp}, v{vtmp+1}")
    e("s_mov_b64 exec, -1")


def lds_wait(cnt, target, vtmp):
    n = nid()
    e(f"v_mov_b32 v{vtmp}, {L_CNT+cnt}")
    e(f"s_mov_b32 s{S_T0+11}, 4000000")
    lab(f"L_lw{n}")
    e(f"ds_read_b32 v{vtmp+1}, v{vtmp}")
    e("s_waitcnt lgkmcnt(0)")
    e(f"v_readfirstlane_b32 s{S_T0+12}, v{vtmp+1}")
    if_dry_goto(f"L_lwd{n}")
    e("s_nop 1")
    e(f"s_cmp_ge_u32 s{S_T0+12}, {target}")
    e(f"s_cbranch_scc1 L_lwd{n}")
    e(f"s_sub_u32 s{S_T0+11}, s{S_T0+11}, 1")
    e(f"s_cmp_eq_u32 s{S_T0+11}, 0")
    e(f"s_cbranch_scc1 L_lwd{n}")
    if OPT["sleep_l"]:
        e(f"s_sleep {OPT['sleep_l']}")
    e(f"s_branch L_lw{n}")
    lab(f"L_lwd{n}")


def bf16_round_pair(dst_pk, a, b, lo, hi):
    e(f"v_cvt_pk_bf16_f32 v{dst_pk}, v{a}, v{b}")
    e(f"v_lshlrev_b32 v{lo}, 16, v{dst_pk}")
    e(f"v_and_b32 v{hi}, 0xffff0000, v{dst_pk}")


def dpp_reduce(op, regs, ctls):
    for ctl in ctls:
        e("s_nop 1")
        for r in regs:
            e(f"{op}_dpp v{r}, v{r}, v{r} {ctl} row_mask:0xf bank_mask:0xf")


ROW16 = ["quad_perm:[1,0,3,2]", "quad_perm:[2,3,0,1]", "row_half_mirror", "row_mirror"]


def swap_reduce(op, regs, tmps, sws=("v_permlane16_swap_b32", "v_permlane32_swap_b32")):
    for sw in sws:
        for r, t in zip(regs, tmps):
            e(f"v_mov_b32 v{t}, v{r}")
        e("s_nop 1")
        for r, t in zip(regs, tmps):
            e(f"{sw} v{r}, v{t}")
        e("s_nop 1")
        for r, t in zip(regs, tmps):
            e(f"{op} v{r}, v{r}, v{t}")


def set_exec(lo, hi):
    e(f"s_mov_b32 exec_lo, {lo}")
    e(f"s_mov_b32 exec_hi, {hi}")


VW, VK, VV, VB, VACC = 16, 80, 112, 144, 152
VA, VA2 = 12, 224
VX = 152
TMP = 192


def lane_setup():
    e("v_and_b32 v1, 7, v0")
    e("v_bfe_u32 v2, v0, 3, 1")
    e("v_lshrrev_b32 v3, 4, v0")
    e("v_lshlrev_b32 v4, 5, v2")
    e("v_lshl_add_u32 v4, v3, 3, v4")
    e("v_and_b32 v5, 3, v0")
    e("v_bfe_u32 v6, v0, 2, 1")
    e("v_lshlrev_b32 v6, 5, v6")
    e("v_lshl_add_u32 v6, v3, 3, v6")
    e("v_lshlrev_b32 v11, 1, v6")
    e("v_lshl_add_u32 v6, v5, 10, v11")
    e("v_lshl_add_u32 v11, v5, 8, v11")
    e("v_lshlrev_b32 v10, 5, v1")
    e("v_lshl_add_u32 v10, v2, 10, v10")


def gather_quads(G, ACC=None):
    ACC = VACC if ACC is None else ACC
    for b in range(4):
        for hf in range(2):
            for i in range(4):
                e(f"v_mov_b32 v{G+8*b+4*hf+i}, v{ACC+4*(4*hf+i)+b}")


def tile128(A1, A2, piece_off_sreg, W=None, B=None, ACC=None, G=120):
    W = VW if W is None else W
    B = VB if B is None else B
    ACC = VACC if ACC is None else ACC
    tile_mm(W, A1, B, ACC)
    tile_mm(W + 32, A2, B, ACC, acc_in=True)
    e("v_lshlrev_b32 v1, 4, v0")
    e(f"v_lshrrev_b32 v{TMP+8}, 4, v0")
    e(f"v_add_u32 v1, s{piece_off_sreg}, v1")
    e(f"v_add_u32 v2, s{piece_off_sreg}, v10")
    e("s_nop 7")
    gather_quads(G, ACC)
    with Guard():
        set_exec("0xff0000ff", 0)
        for b in range(4):
            for hf in range(2):
                e(f"ds_write_b128 v2, v[{G+8*b+4*hf}:{G+8*b+4*hf+3}] offset:{256*b+16*hf}")
        e("s_mov_b64 exec, -1")
    e("s_waitcnt lgkmcnt(0)")
    e(f"ds_read_b128 v[{TMP}:{TMP+3}], v1")
    e(f"ds_read_b128 v[{TMP+4}:{TMP+7}], v1 offset:1024")
    e("s_waitcnt lgkmcnt(0)")
    for i in range(4):
        e(f"v_add_f32 v{TMP+i}, v{TMP+i}, v{TMP+4+i}")
    tagq(TMP, [TMP, TMP + 1, TMP + 2, TMP + 3])


hdr = open(f"cdna_kernels/{NAME}.s.ref").read().split("\n")
top = [l for l in hdr if l.startswith(";") and "@launch" not in l]
out.extend(top)
out.append(f"; @launch grid=(256,1,1) block=(512,1,1) lds={LDS_BYTES}")
out.append('.amdgcn_target "amdgcn-amd-amdhsa--gfx950"')
out.append(".text")
out.append(f".globl {NAME}_kernel")
out.append(".p2align 8")
out.append(f".type {NAME}_kernel,@function")
lab(f"{NAME}_kernel")

e("s_cmp_ge_u32 s2, 256")
e("s_cbranch_scc1 L_exit")
e("s_load_dwordx16 s[16:31], s[0:1], 0")
e("s_load_dwordx8 s[32:39], s[0:1], 64")
e("s_load_dwordx4 s[40:43], s[0:1], 96")
e("v_lshrrev_b32 v1, 6, v0")
e("v_and_b32 v0, 63, v0")
e(f"s_mov_b32 s{S_SELLO}, 0x05040100")
e(f"s_mov_b32 s{S_SELHI}, 0x07060302")
e(f"s_mov_b32 s{S_MASK}, 0x3ff")
e(f"s_mov_b32 s{S_DRY}, 0")
e(f"v_readfirstlane_b32 s{S_WAVE}, v1")
lane_setup()
e("s_waitcnt lgkmcnt(0)")
srd(SRD_X, 16, 4096)
srd(SRD_WS, 42, WS_END)
e(f"s_cmp_ge_u32 s{S_WAVE}, 4")
e("s_cbranch_scc1 L_comm")

srd(SRD_K, 18, 33554432)
srd(SRD_V, 20, 33554432)
stamp(0)
e("s_lshr_b32 s10, s2, 3")
e("s_lshl_b32 s10, s10, 12")
e("s_and_b32 s11, s2, 7")
e("s_lshl_b32 s11, s11, 7")
e("s_add_u32 s10, s10, s11")
e(f"s_lshl_b32 s11, s{S_WAVE}, 5")
e("s_add_u32 s10, s10, s11")
e("s_add_u32 s10, s10, 3072")
e("s_lshl_b32 s10, s10, 8")
e("s_add_u32 s11, s10, 4096")
e("v_and_b32 v8, 15, v0")
e("v_lshlrev_b32 v9, 4, v8")
e("v_lshlrev_b32 v8, 8, v8")
e("v_lshl_add_u32 v8, v3, 4, v8")
e("v_lshl_add_u32 v9, v3, 10, v9")
load_tag(2)
D = OPT["depth"]
seq = []
for kb in range(2):
    for c in range(4):
        r = VK + 16 * kb + 4 * c
        seq.append(f"buffer_load_dwordx4 v[{r}:{r+3}], v8, s[{SRD_K}:{SRD_K+3}], s{10+kb} offen offset:{64*c}{NT}")
for i in range(8):
    r = VV + 4 * i
    so = 10 if i < 4 else 11
    seq.append(f"buffer_load_dwordx4 v[{r}:{r+3}], v9, s[{SRD_V}:{SRD_V+3}], s{so} offen offset:{256*(i&3)}{NT}")
if OPT["k_after"] or OPT["go_pub"]:
    e("s_barrier")
    lds_wait(C_GO, 1, TMP)
for i, l in enumerate(seq):
    if i == D and not (OPT["k_after"] or OPT["go_pub"]):
        e("s_barrier")
    if i >= D:
        e(f"s_waitcnt vmcnt({D-1})")
    if (OPT["jit"] & 1) and i == min(15, OPT["jit_k"] + D):
        lds_signal(C_K, TMP)
    e(l)
finish_tag()
if OPT["vstamp"]:
    e("s_waitcnt vmcnt(0)")
    stamp(7)
lab("L_secA")
lds_wait(C_Q, 4, TMP)
stamp(3)
VQ = TMP
e("v_and_b32 v1, 3, v0")
e("v_lshlrev_b32 v1, 8, v1")
e("v_lshl_add_u32 v1, v3, 4, v1")
for c in range(4):
    e(f"ds_read_b128 v[{VQ+4*c}:{VQ+4*c+3}], v1 offset:{L_QS+64*c}")
with Guard():
    e("s_waitcnt vmcnt(8)")
e("s_waitcnt lgkmcnt(0)")
stamp(4)
VS = VACC
for kb in range(2):
    for c in range(4):
        src2 = "0" if c == 0 else f"v[{VS+4*kb}:{VS+4*kb+3}]"
        e(f"v_mfma_f32_16x16x32_bf16 v[{VS+4*kb}:{VS+4*kb+3}], v[{VK+16*kb+4*c}:{VK+16*kb+4*c+3}], v[{VQ+4*c}:{VQ+4*c+3}], {src2}")
e("s_nop 7")
e("s_nop 1")
SC = TMP + 16
T = TMP + 24
for kb in range(2):
    for h2 in range(2):
        a = VS + 4 * kb + 2 * h2
        d = SC + 4 * kb + 2 * h2
        bf16_round_pair(T, a, a + 1, d, d + 1)
        e(f"v_mul_f32 v{d}, 0x3db504f3, v{d}")
        e(f"v_mul_f32 v{d+1}, 0x3db504f3, v{d+1}")
        bf16_round_pair(T, d, d + 1, d, d + 1)
MX = TMP + 26
LS = TMP + 27
e(f"v_max3_f32 v{MX}, v{SC}, v{SC+1}, v{SC+2}")
e(f"v_max3_f32 v{MX}, v{MX}, v{SC+3}, v{SC+4}")
e(f"v_max3_f32 v{MX}, v{MX}, v{SC+5}, v{SC+6}")
e(f"v_max_f32 v{MX}, v{MX}, v{SC+7}")
swap_reduce("v_max_f32", [MX], [T])
for i in range(8):
    e(f"v_sub_f32 v{SC+i}, v{SC+i}, v{MX}")
    e(f"v_mul_f32 v{SC+i}, 0x3fb8aa3b, v{SC+i}")
    e(f"v_exp_f32 v{SC+i}, v{SC+i}")
e("s_nop 0")
e(f"v_add_f32 v{LS}, v{SC}, v{SC+1}")
for i in range(2, 8):
    e(f"v_add_f32 v{LS}, v{LS}, v{SC+i}")
swap_reduce("v_add_f32", [LS], [T])
VP = TMP + 28
for i in range(4):
    e(f"v_cvt_pk_bf16_f32 v{VP+i}, v{SC+2*i}, v{SC+2*i+1}")
with Guard():
    e("s_waitcnt vmcnt(0)")
stamp(5)
tile_mm(VV, VP, VB, VACC)
e(f"s_lshl_b32 s4, s{S_WAVE}, 11")
e("v_lshlrev_b32 v1, 5, v0")
e("v_add_u32 v1, s4, v1")
e(f"s_lshl_b32 s4, s{S_WAVE}, 5")
e("v_lshlrev_b32 v2, 3, v0")
e("v_add_u32 v2, s4, v2")
e("s_nop 7")
gather_quads(VK)
with Guard():
    set_exec("0xffff", 0)
    for r in range(4):
        for hf in range(2):
            e(f"ds_write_b128 v1, v[{VK+8*r+4*hf}:{VK+8*r+4*hf+3}] offset:{L_OW+512*r+16*hf}")
    e("s_mov_b64 exec, 15")
    e(f"ds_write_b64 v2, v[{MX}:{MX+1}] offset:{L_ML}")
    e("s_mov_b64 exec, -1")
    lds_signal(C_O, TMP)
stamp(1)
e(f"s_lshl_b32 s4, s{S_WAVE}, 3")
e("v_mov_b32 v1, s4")
e(f"s_lshl_b32 s4, s{S_WAVE}, 9")
e("v_and_b32 v2, 31, v0")
e("v_lshlrev_b32 v2, 4, v2")
e("v_add_u32 v2, s4, v2")
e("s_lshr_b32 s4, s2, 3")
e("s_lshl_b32 s4, s4, 2")
e(f"s_add_u32 s4, s4, s{S_WAVE}")
e("s_and_b32 s5, s2, 7")
e("s_lshl_b32 s6, s4, 12")
e("s_lshl_b32 s7, s5, 7")
e("s_add_u32 s6, s6, s7")
e(f"s_add_u32 s6, s6, {WS_APO}")
e("s_lshl_b32 s4, s4, 3")
e("s_add_u32 s4, s4, s5")
e(f"s_lshl_b32 s4, s4, {7 if OPT['apm128'] else 4}")
e(f"s_add_u32 s4, s4, {WS_APM}")
e("v_and_b32 v7, 7, v0")
e("v_lshlrev_b32 v7, 4, v7")
e(f"v_lshrrev_b32 v{TMP+12}, 3, v0")
e(f"v_lshl_add_u32 v7, v{TMP+12}, 10, v7")
lds_wait(C_O, 4, TMP)
stamp(2)
R = VACC
for w in range(4):
    e(f"ds_read_b64 v[{R+2*w}:{R+2*w+1}], v1 offset:{L_ML+32*w}")
for w in range(4):
    e(f"ds_read_b128 v[{R+8+4*w}:{R+11+4*w}], v2 offset:{L_OW+2048*w}")
e("s_waitcnt lgkmcnt(0)")
M_, L_ = R + 24, R + 25
e(f"v_max3_f32 v{M_}, v{R}, v{R+2}, v{R+4}")
e(f"v_max_f32 v{M_}, v{M_}, v{R+6}")
F_ = TMP
for w in range(4):
    e(f"v_sub_f32 v{F_+w}, v{R+2*w}, v{M_}")
    e(f"v_mul_f32 v{F_+w}, 0x3fb8aa3b, v{F_+w}")
    e(f"v_exp_f32 v{F_+w}, v{F_+w}")
e("s_nop 0")
O_ = TMP + 4
e(f"v_mul_f32 v{L_}, v{F_}, v{R+1}")
for i in range(4):
    e(f"v_mul_f32 v{O_+i}, v{F_}, v{R+8+i}")
for w in range(1, 4):
    e(f"v_fmac_f32 v{L_}, v{F_+w}, v{R+2*w+1}")
    for i in range(4):
        e(f"v_fmac_f32 v{O_+i}, v{F_+w}, v{R+8+4*w+i}")
tagq(O_, [O_, O_ + 1, O_ + 2, O_ + 3])
e(f"v_mov_b32 v{R+26}, 0")
e(f"v_mov_b32 v{R+27}, 0")
tagq(TMP + 8, [M_, L_, R + 26, R + 27])
e(f"v_mov_b32 v1, 0")
with Guard():
    set_exec("-1", 0)
    e(f"buffer_store_dwordx4 v[{O_}:{O_+3}], v7, s[{SRD_WS}:{SRD_WS+3}], s6 offen sc1")
    e("s_mov_b64 exec, 1")
    e(f"buffer_store_dwordx4 v[{TMP+8}:{TMP+11}], v1, s[{SRD_WS}:{SRD_WS+3}], s4 offen sc1")
    e("s_mov_b64 exec, -1")
stamp(6)
if_dry_goto("L_dry_done_data")
lab("L_exit_d")
dump_stamps(False)
e("s_endpgm")

lab("L_comm")
e("s_setprio 2")
e(f"s_sub_u32 s{S_WAVE}, s{S_WAVE}, 4")
stamp(6, True)
load_tag(7)
e("s_mov_b32 s8, 0")
e(f"s_cmp_ge_u32 s{S_WAVE}, 2")
e("s_cbranch_scc1 L_p1_noload")
e(f"s_cmp_eq_u32 s{S_WAVE}, 1")
e("s_cbranch_scc1 L_p1_w1")
srd(SRD_W1, 22, 4194304)
e("s_mov_b32 s5, 8192")
e("s_lshr_b32 s6, s2, 6")
e("s_lshl_b32 s6, s6, 7")
e("s_and_b32 s7, s2, 63")
e("s_lshl_b32 s7, s7, 7")
e("s_mov_b32 s8, 1")
e("s_branch L_p1_go")
lab("L_p1_w1")
e("s_cmp_ge_u32 s2, 112")
e("s_cbranch_scc1 L_p1_noload")
srd(SRD_W1, 28, 512 * 1792 * 2)
e("s_mov_b32 s5, 3584")
e("s_and_b32 s6, s2, 3")
e("s_lshl_b32 s6, s6, 7")
e("s_lshr_b32 s7, s2, 2")
e("s_lshl_b32 s7, s7, 7")
e("s_mov_b32 s8, 2")
if OPT["w1_late"]:
    e("s_barrier")
    lds_wait(C_GO, 1, TMP)
lab("L_p1_go")
e("v_mul_lo_u32 v7, s5, v4")
e("v_lshl_add_u32 v7, v1, 4, v7")
e("s_mul_i32 s9, s6, s5")
e("s_add_u32 s9, s9, s7")
e("s_lshl_b32 s12, s6, 1")
e("s_mul_i32 s13, s5, 56")
for i in range(16):
    e(f"buffer_load_dwordx4 v[{VW+4*i}:{VW+4*i+3}], v7, s[{SRD_W1}:{SRD_W1+3}], s9 offen{NT}")
    if i < 15:
        e("s_add_u32 s9, s9, s5")
    if i == 7:
        e("s_add_u32 s9, s9, s13")
XA, XA2, XR = 96, 100, 104
e(f"buffer_load_dwordx4 v[{XA}:{XA+3}], v6, s[{SRD_X}:{SRD_X+3}], s12 offen")
e(f"buffer_load_dwordx4 v[{XA2}:{XA2+3}], v6, s[{SRD_X}:{SRD_X+3}], s12 offen offset:128")
e("v_lshlrev_b32 v1, 4, v0")
for b in range(4):
    e(f"buffer_load_dwordx4 v[{XR+4*b}:{XR+4*b+3}], v1, s[{SRD_X}:{SRD_X+3}], 0 offen offset:{1024*b}")
lab("L_p1_noload")
e(f"s_cmp_lg_u32 s{S_WAVE}, 0")
e("s_cbranch_scc1 L_c_noz")
e("v_mov_b32 v1, 0")
e("v_lshlrev_b32 v7, 2, v0")
e("s_mov_b64 exec, 0xffff")
e(f"ds_write_b32 v7, v1 offset:{L_CNT}")
e("s_mov_b64 exec, -1")
e("s_waitcnt lgkmcnt(0)")
lab("L_c_noz")
if OPT["w1_late"]:
    e("s_cmp_eq_u32 s8, 2")
    e("s_cbranch_scc1 L_skipb0")
e("s_barrier")
lab("L_skipb0")
e(f"s_lshl_b32 s15, s{S_WAVE}, 11")
e(f"s_add_u32 s15, s15, {L_PIECE + 4096}")
if OPT["dry"]:
    e(f"s_mov_b32 s{S_DRY}, 1")
    e("s_cmp_lg_u32 s8, 0")
    e("s_cbranch_scc1 L_secP1")
    e(f"s_cmp_eq_u32 s{S_WAVE}, 2")
    e("s_cbranch_scc1 L_secA")
    e("s_branch L_secQ")
    lab("L_dry_done_data")
    lab("L_dry_done_comm")
    e(f"s_mov_b32 s{S_DRY}, 0")
    lane_setup()
lab("L_real_start")
if OPT["k_after"]:
    e(f"s_cmp_eq_u32 s{S_WAVE}, 0")
    e("s_cbranch_scc0 L_nogo")
    e(f"s_waitcnt vmcnt({22-OPT['k_after']})")
    lds_signal(C_GO, TMP)
    lab("L_nogo")
e("s_waitcnt vmcnt(0) lgkmcnt(0)")
stamp(7, True)
finish_tag()
e("s_cmp_eq_u32 s8, 0")
e("s_cbranch_scc1 L_secQ")
lab("L_secP1")
for d in range(4):
    e(f"v_mov_b32 v{VA+d}, v{XA+d}")
    e(f"v_mov_b32 v{VA2+d}, v{XA2+d}")
e("s_cmp_eq_u32 s8, 1")
e("s_cbranch_scc1 L_p1_mm")
SUM = TMP
T = TMP + 4
for b in range(4):
    e(f"v_lshlrev_b32 v{T}, 16, v{XR+4*b}")
    e(f"v_and_b32 v{T+1}, 0xffff0000, v{XR+4*b}")
    e(f"v_add_f32 v{SUM+b}, v{T}, v{T+1}")
    for d in range(1, 4):
        e(f"v_lshlrev_b32 v{T}, 16, v{XR+4*b+d}")
        e(f"v_and_b32 v{T+1}, 0xffff0000, v{XR+4*b+d}")
        e(f"v_add_f32 v{SUM+b}, v{SUM+b}, v{T}")
        e(f"v_add_f32 v{SUM+b}, v{SUM+b}, v{T+1}")
dpp_reduce("v_add_f32", [SUM + b for b in range(4)], ROW16)
swap_reduce("v_add_f32", [SUM + b for b in range(4)], [T + b for b in range(4)])
for b in range(4):
    e(f"v_mul_f32 v{SUM+b}, 0x3b000000, v{SUM+b}")
SQ = TMP + 12
for b in range(4):
    for d in range(4):
        e(f"v_lshlrev_b32 v{T}, 16, v{XR+4*b+d}")
        e(f"v_and_b32 v{T+1}, 0xffff0000, v{XR+4*b+d}")
        e(f"v_sub_f32 v{T}, v{T}, v{SUM+b}")
        e(f"v_sub_f32 v{T+1}, v{T+1}, v{SUM+b}")
        if d == 0:
            e(f"v_mul_f32 v{SQ+b}, v{T}, v{T}")
        else:
            e(f"v_fmac_f32 v{SQ+b}, v{T}, v{T}")
        e(f"v_fmac_f32 v{SQ+b}, v{T+1}, v{T+1}")
dpp_reduce("v_add_f32", [SQ + b for b in range(4)], ROW16)
swap_reduce("v_add_f32", [SQ + b for b in range(4)], [T + b for b in range(4)])
for b in range(4):
    e(f"v_mul_f32 v{SQ+b}, 0x3b000000, v{SQ+b}")
MEAN, DEN, RCP = TMP + 16, TMP + 17, TMP + 18
e(f"v_mov_b32 v{MEAN}, v{SUM}")
e(f"v_mov_b32 v{DEN}, v{SQ}")
for b in range(1, 4):
    e(f"v_cmp_eq_u32 vcc, {b}, v5")
    e("s_nop 1")
    e(f"v_cndmask_b32 v{MEAN}, v{MEAN}, v{SUM+b}, vcc")
    e(f"v_cndmask_b32 v{DEN}, v{DEN}, v{SQ+b}, vcc")
bf16_round_pair(T, MEAN, DEN, MEAN, DEN)
e(f"v_add_f32 v{DEN}, 0x3727c5ac, v{DEN}")
e(f"v_cvt_pk_bf16_f32 v{T}, v{DEN}, v{DEN}")
e(f"v_lshlrev_b32 v{DEN}, 16, v{T}")
e(f"v_sqrt_f32 v{DEN}, v{DEN}")
e("s_nop 0")
e(f"v_cvt_pk_bf16_f32 v{T}, v{DEN}, v{DEN}")
e(f"v_lshlrev_b32 v{DEN}, 16, v{T}")
e(f"v_rcp_f32 v{RCP}, v{DEN}")
e("s_nop 0")
for AA in (VA, VA2):
    for d in range(4):
        a0, a1 = T + 2, T + 3
        e(f"v_lshlrev_b32 v{a0}, 16, v{AA+d}")
        e(f"v_and_b32 v{a1}, 0xffff0000, v{AA+d}")
        e(f"v_sub_f32 v{a0}, v{a0}, v{MEAN}")
        e(f"v_sub_f32 v{a1}, v{a1}, v{MEAN}")
        bf16_round_pair(T, a0, a1, a0, a1)
        for a in (a0, a1):
            e(f"v_mul_f32 v{T+4}, v{a}, v{RCP}")
            e(f"v_fma_f32 v{T+5}, -v{T+4}, v{DEN}, v{a}")
            e(f"v_fma_f32 v{a}, v{T+5}, v{RCP}, v{T+4}")
        e(f"v_cvt_pk_bf16_f32 v{AA+d}, v{a0}, v{a1}")
lab("L_p1_mm")
tile128(VA, VA2, 15)
e("v_and_b32 v1, 15, v0")
e("s_cmp_eq_u32 s8, 1")
e("s_cbranch_scc1 L_pub_q")
e("s_and_b32 s4, s2, 3")
e("s_mul_i32 s4, s4, 1792")
e("s_lshr_b32 s5, s2, 2")
e("s_lshl_b32 s5, s5, 4")
e("s_add_u32 s4, s4, s5")
e("s_lshl_b32 s4, s4, 4")
e(f"s_add_u32 s4, s4, {WS_HP}")
e(f"v_mul_u32_u24 v2, 448, v{TMP+8}")
e("v_add_u32 v1, v2, v1")
e("s_branch L_pub_go")
lab("L_pub_q")
e("s_lshr_b32 s4, s2, 6")
e("s_lshl_b32 s4, s4, 12")
e("s_and_b32 s5, s2, 63")
e("s_lshl_b32 s5, s5, 4")
e("s_add_u32 s4, s4, s5")
e("s_lshl_b32 s4, s4, 4")
e(f"s_add_u32 s4, s4, {WS_QP}")
e(f"v_lshl_add_u32 v1, v{TMP+8}, 10, v1")
lab("L_pub_go")
e("v_lshlrev_b32 v1, 4, v1")
if_dry_goto("L_dry_done_comm")
e(f"buffer_store_dwordx4 v[{TMP}:{TMP+3}], v1, s[{SRD_WS}:{SRD_WS+3}], s4 offen sc1")
if OPT["go_pub"]:
    e("s_cmp_eq_u32 s8, 1")
    e("s_cbranch_scc0 L_nogo2")
    lds_signal(C_GO, TMP + 10)
    stamp(0, True)
    lab("L_nogo2")
else:
    stamp(0, True)
lab("L_secQ")
e("v_lshlrev_b32 v3, 4, v0")
e("s_lshr_b32 s4, s2, 6")
e("s_lshl_b32 s4, s4, 10")
e("s_lshr_b32 s5, s2, 3")
e("s_and_b32 s5, s5, 7")
e("s_lshl_b32 s5, s5, 7")
e("s_add_u32 s4, s4, s5")
e(f"s_lshl_b32 s5, s{S_WAVE}, 5")
e("s_add_u32 s4, s4, s5")
e("s_lshl_b32 s4, s4, 4")
e(f"s_add_u32 s4, s4, {WS_QP}")
e(f"s_add_u32 s5, s4, {4*1024*16}")
e("v_and_b32 v4, 31, v0")
e("v_lshlrev_b32 v4, 4, v4")
e("v_lshrrev_b32 v5, 5, v0")
e("v_lshl_add_u32 v4, v5, 17, v4")
if OPT["jit"] & 1:
    lds_wait(C_K, 4, 6)
poll("q", [f"buffer_load_dwordx4 @, v4, s[{SRD_WS}:{SRD_WS+3}], s{4+k} offen sc1" for k in range(2)],
     [16, 20], 6, OPT["sleep_q"], altbase=168)
for i in range(4):
    e(f"v_add_f32 v{24+i}, v{16+i}, v{20+i}")
swap_reduce("v_add_f32", [24, 25, 26, 27], [28, 29, 30, 31], ("v_permlane32_swap_b32",))
e("v_cvt_pk_bf16_f32 v24, v24, v25")
e("v_cvt_pk_bf16_f32 v25, v26, v27")
e(f"s_lshl_b32 s4, s{S_WAVE}, 8")
e("v_and_b32 v5, 31, v0")
e("v_lshlrev_b32 v5, 3, v5")
e("v_add_u32 v5, s4, v5")
with Guard():
    e(f"ds_write_b64 v5, v[24:25] offset:{L_QS}")
    lds_signal(C_Q, 6)
stamp(1, True)
W3, B3, ACC3 = 96, 160, 16
e("s_mov_b32 s14, 0")
with Guard():
    e("v_lshrrev_b32 v9, 4, v0")
    e(f"s_cmp_lt_u32 s{S_WAVE}, 2")
    e("s_cbranch_scc1 L_nowo0")
    srd(SRD_W3, 24, 4194304)
    e("s_lshr_b32 s6, s2, 1")
    e("s_lshl_b32 s9, s6, 15")
    e("s_and_b32 s7, s2, 1")
    e("s_lshl_b32 s7, s7, 9")
    e("s_add_u32 s9, s9, s7")
    e(f"s_sub_u32 s7, s{S_WAVE}, 2")
    e("s_lshl_b32 s7, s7, 8")
    e("s_add_u32 s9, s9, s7")
    e("v_and_b32 v7, 15, v0")
    e("v_lshlrev_b32 v7, 4, v7")
    e("v_lshl_add_u32 v7, v9, 13, v7")
    for i in range(8):
        e(f"buffer_load_dwordx4 v[{W3+4*i}:{W3+4*i+3}], v7, s[{SRD_W3}:{SRD_W3+3}], s9 offen offset:{1024*(i&3)}{NT}")
        if i == 3:
            e("s_add_u32 s9, s9, 4096")
    e("s_branch L_now2")
    lab("L_nowo0")
    e(f"s_cmp_eq_u32 s{S_WAVE}, 1")
    e("s_cbranch_scc0 L_now2")
    e("s_cmp_lt_u32 s2, 112")
    e("s_cbranch_scc1 L_now2")
    e("s_cmp_ge_u32 s2, 224")
    e("s_cbranch_scc1 L_now2")
    e("s_mov_b32 s14, 1")
    srd(SRD_W3, 32, 1792 * 512 * 2)
    e("s_sub_u32 s9, s2, 112")
    e("s_lshr_b32 s6, s9, 3")
    e("s_lshl_b32 s6, s6, 17")
    e("s_and_b32 s7, s9, 7")
    e("s_lshl_b32 s7, s7, 7")
    e("s_add_u32 s9, s6, s7")
    e("v_bfe_u32 v7, v0, 3, 1")
    e("v_lshlrev_b32 v7, 5, v7")
    e("v_lshl_add_u32 v9, v9, 3, v7")
    e("v_and_b32 v7, 7, v0")
    e("v_lshlrev_b32 v7, 4, v7")
    e("v_lshl_add_u32 v7, v9, 10, v7")
    for i in range(16):
        e(f"buffer_load_dwordx4 v[{W3+4*i}:{W3+4*i+3}], v7, s[{SRD_W3}:{SRD_W3+3}], s9 offen offset:{1024*(i&3)}{NT}")
        if i == 7:
            e(f"s_add_u32 s9, s9, {4096 + 56*1024}")
        elif i & 3 == 3 and i < 15:
            e("s_add_u32 s9, s9, 4096")
    lab("L_now2")
e("s_lshr_b32 s4, s2, 4")
e("s_lshl_b32 s4, s4, 7")
e("s_and_b32 s5, s2, 15")
e("s_lshl_b32 s5, s5, 3")
e("s_add_u32 s4, s4, s5")
e("s_lshl_b32 s4, s4, 4")
e(f"s_add_u32 s4, s4, {WS_OP}")
e(f"s_lshl_b32 s5, s{S_WAVE}, 18")
e("s_add_u32 s86, s4, s5")
for k in range(1, 4):
    e(f"s_add_u32 s{86+k}, s86, {k*65536}")
e(f"s_lshl_b32 s5, s{S_WAVE}, 15")
e("s_add_u32 s5, s4, s5")
e(f"s_add_u32 s85, s5, {128*8192}")
e("v_and_b32 v60, 7, v0")
e("v_lshlrev_b32 v60, 4, v60")
e("v_lshrrev_b32 v61, 3, v0")
e("v_lshl_add_u32 v60, v61, 13, v60")
e("v_and_b32 v62, 3, v61")
e(f"s_lshl_b32 s5, s{S_WAVE}, 2")
e("s_sub_u32 s5, 13, s5")
e("v_min_u32 v62, s5, v62")
e("v_and_b32 v63, 7, v0")
e("v_lshlrev_b32 v63, 4, v63")
e("v_lshl_add_u32 v62, v62, 13, v63")
o_loads = [f"buffer_load_dwordx4 v[{32+4*k}:{35+4*k}], v60, s[{SRD_WS}:{SRD_WS+3}], s{86+k} offen sc1" for k in range(4)]
o_loads.append(f"buffer_load_dwordx4 v[48:51], v62, s[{SRD_WS}:{SRD_WS+3}], s85 offen sc1")
e("s_cmp_ge_u32 s2, 64")
e("s_cbranch_scc1 L_c_nowarm")
with Guard():
    if not (OPT["jit"] & 4):
        for l in o_loads:
            e(l)
    srd(SRD_M, 36, 1024)
    e(f"buffer_load_dwordx4 v[64:67], v3, s[{SRD_M}:{SRD_M+3}], 0 offen")
    e("s_lshr_b32 s4, s2, 4")
    e("s_lshl_b32 s4, s4, 10")
    e(f"buffer_load_dwordx4 v[68:71], v3, s[{SRD_X}:{SRD_X+3}], s4 offen")
    srd(SRD_OUT, 34, 1024)
    e("v_and_b32 v6, 31, v0")
    e("v_lshlrev_b32 v6, 1, v6")
    e("s_and_b32 s4, s2, 15")
    e("s_lshl_b32 s4, s4, 6")
    e(f"buffer_load_ushort v72, v6, s[{SRD_OUT}:{SRD_OUT+3}], s4 offen")
lab("L_c_nowarm")
if_dry_goto("L_secAG")
e("s_cmp_lt_u32 s2, 112")
e("s_cbranch_scc1 L_secAG")
e("s_cmp_ge_u32 s2, 224")
e("s_cbranch_scc1 L_secAG")
lab("L_secH")
e("s_sub_u32 s9, s2, 112")
e("s_lshr_b32 s9, s9, 3")
e("s_min_u32 s9, s9, 13")
e(f"s_mul_i32 s4, s{S_WAVE}, 448")
e("s_lshl_b32 s5, s9, 5")
e("s_add_u32 s4, s4, s5")
e("s_lshl_b32 s4, s4, 4")
e(f"s_add_u32 s4, s4, {WS_HP}")
e(f"s_add_u32 s5, s4, {4*448*16}")
srd(SRD_M, 30, 3584)
e("s_lshl_b32 s9, s9, 8")
e("v_and_b32 v6, 31, v0")
e("v_lshlrev_b32 v4, 4, v6")
e("v_lshlrev_b32 v6, 3, v6")
e(f"buffer_load_dwordx2 v[80:81], v6, s[{SRD_M}:{SRD_M+3}], s9 offen")
e("v_lshrrev_b32 v7, 5, v0")
e(f"s_mov_b32 s6, {2*4*448*16}")
e("v_mul_lo_u32 v7, s6, v7")
e("v_add_u32 v4, v7, v4")
poll("h", [f"buffer_load_dwordx4 @, v4, s[{SRD_WS}:{SRD_WS+3}], s{4+k} offen sc1" for k in range(2)],
     [16, 20], 6, OPT["sleep_q"])
for i in range(4):
    e(f"v_add_f32 v{24+i}, v{16+i}, v{20+i}")
swap_reduce("v_add_f32", [24, 25, 26, 27], [28, 29, 30, 31], ("v_permlane32_swap_b32",))
for p in range(2):
    a, b_ = 24 + 2 * p, 25 + 2 * p
    bf16_round_pair(28, a, b_, a, b_)
    e(f"v_lshlrev_b32 v28, 16, v{80+p}")
    e(f"v_and_b32 v29, 0xffff0000, v{80+p}")
    e(f"v_add_f32 v{a}, v{a}, v28")
    e(f"v_add_f32 v{b_}, v{b_}, v29")
    bf16_round_pair(28, a, b_, a, b_)
e("v_mov_b32 v31, 0x3d372713")
for r in (24, 25, 26, 27):
    e(f"v_mul_f32 v30, v{r}, v{r}")
    e(f"v_mul_f32 v30, v30, v{r}")
    e(f"v_fma_f32 v30, v30, v31, v{r}")
    e(f"v_mul_f32 v30, 0x40135761, v30")
    e(f"v_exp_f32 v30, v30")
    e("s_nop 0")
    e(f"v_add_f32 v30, 1.0, v30")
    e(f"v_rcp_f32 v30, v30")
    e("s_nop 0")
    e(f"v_fma_f32 v30, v30, -2.0, 2.0")
    e(f"v_mul_f32 v30, 0.5, v30")
    e(f"v_mul_f32 v{r}, v{r}, v30")
e("v_cvt_pk_bf16_f32 v24, v24, v25")
e("v_cvt_pk_bf16_f32 v25, v26, v27")
with Guard():
    e(f"ds_write_b64 v5, v[24:25] offset:{L_HA}")
    lds_signal(C_H, 6)
    e("s_cmp_eq_u32 s14, 1")
    e("s_cbranch_scc0 L_secAG")
lds_wait(C_H, 4, 6)
e(f"ds_read_b128 v[{VA}:{VA+3}], v11 offset:{L_HA}")
e(f"ds_read_b128 v[{VA2}:{VA2+3}], v11 offset:{L_HA+128}")
with Guard():
    e("s_waitcnt vmcnt(0)")
e("s_waitcnt lgkmcnt(0)")
tile128(VA, VA2, 15, W=W3, B=B3, ACC=ACC3, G=W3)
e("s_sub_u32 s5, s2, 112")
e("s_lshr_b32 s4, s5, 3")
e("s_add_u32 s4, s4, 128")
e("s_lshl_b32 s4, s4, 9")
e("s_and_b32 s5, s5, 7")
e("s_lshl_b32 s5, s5, 4")
e("s_add_u32 s4, s4, s5")
e("s_lshl_b32 s4, s4, 4")
e(f"s_add_u32 s4, s4, {WS_OP}")
e("v_and_b32 v1, 15, v0")
e(f"v_lshl_add_u32 v1, v{TMP+8}, 7, v1")
e("v_lshlrev_b32 v1, 4, v1")
if_dry_goto("L_dry_done_comm")
e(f"buffer_store_dwordx4 v[{TMP}:{TMP+3}], v1, s[{SRD_WS}:{SRD_WS+3}], s4 offen sc1")
lab("L_secAG")
e(f"s_lshl_b32 s4, s{S_WAVE}, 5")
e("s_lshr_b32 s5, s2, 3")
e("s_add_u32 s4, s4, s5")
e("s_lshl_b32 s6, s4, 2")
e("s_bfe_u32 s5, s2, 0x20001")
e("s_add_u32 s6, s6, s5")
e("s_lshl_b32 s6, s6, 10")
e(f"s_add_u32 s6, s6, {WS_APO}")
e(f"s_lshl_b32 s4, s4, {10 if OPT['apm128'] else 7}")
e(f"s_add_u32 s4, s4, {WS_APM}")
e(f"v_lshlrev_b32 v4, {7 if OPT['apm128'] else 4}, v61")
if OPT["jit"] & 2:
    lds_wait(C_O, 4, 6)
poll("a", [f"buffer_load_dwordx4 @, v3, s[{SRD_WS}:{SRD_WS+3}], s6 offen sc1",
           f"buffer_load_dwordx4 @, v4, s[{SRD_WS}:{SRD_WS+3}], s4 offen sc1"], [16, 20], 6, OPT["sleep_t"], altbase=168)
stamp(3, True)
e("v_mov_b32 v24, v20")
dpp_reduce("v_max_f32", [24], ["row_ror:8"])
swap_reduce("v_max_f32", [24], [25])
e("v_sub_f32 v25, v20, v24")
e("v_mul_f32 v25, 0x3fb8aa3b, v25")
e("v_exp_f32 v25, v25")
e("s_nop 0")
e("v_mul_f32 v26, v25, v21")
for i in range(4):
    e(f"v_mul_f32 v{84+i}, v25, v{16+i}")
dpp_reduce("v_add_f32", [26, 84, 85, 86, 87], ["row_ror:8"])
swap_reduce("v_add_f32", [26, 84, 85, 86, 87], [27, 28, 29, 30, 31])
e("v_rcp_f32 v27, v26")
e("s_nop 0")
e("v_fma_f32 v28, -v26, v27, 2.0")
e("v_mul_f32 v27, v27, v28")
for i in range(4):
    e(f"v_mul_f32 v{84+i}, v27, v{84+i}")
e("v_cvt_pk_bf16_f32 v84, v84, v85")
e("v_cvt_pk_bf16_f32 v85, v86, v87")
e(f"s_lshl_b32 s4, s{S_WAVE}, 6")
e("v_lshlrev_b32 v4, 3, v0")
e("v_add_u32 v4, s4, v4")
with Guard():
    e("s_mov_b64 exec, 0xff")
    e(f"ds_write_b64 v4, v[84:85] offset:{L_OA}")
    e("s_mov_b64 exec, -1")
    lds_signal(C_A, 6)
stamp(4, True)
if_dry_goto("L_secC")
e(f"s_cmp_lt_u32 s{S_WAVE}, 2")
e("s_cbranch_scc1 L_secC_done")
lab("L_secC")
e("s_lshr_b32 s4, s2, 1")
e("s_lshl_b32 s4, s4, 9")
e("s_and_b32 s5, s2, 1")
e("s_lshl_b32 s5, s5, 6")
e("s_add_u32 s4, s4, s5")
e(f"s_sub_u32 s5, s{S_WAVE}, 2")
e("s_lshl_b32 s5, s5, 5")
e("s_add_u32 s4, s4, s5")
e("s_lshl_b32 s4, s4, 4")
e(f"s_add_u32 s4, s4, {WS_OP}")
e("s_add_u32 s5, s4, 4096")
e("v_lshlrev_b32 v2, 5, v0")
e("v_and_b32 v1, 3, v0")
e("v_lshlrev_b32 v1, 6, v1")
e("v_lshrrev_b32 v9, 4, v0")
e("v_lshl_add_u32 v1, v9, 4, v1")
lds_wait(C_A, 4, 6)
e(f"ds_read_b128 v[{VA}:{VA+3}], v1 offset:{L_OA}")
with Guard():
    e("s_waitcnt vmcnt(0)")
e("s_waitcnt lgkmcnt(0)")
tile_mm(W3, VA, B3, ACC3)
e("s_nop 7")
e("s_nop 1")
if not OPT["opfull"]:
    for b in range(4):
        for hf in range(2):
            d = TMP + 8 * b + 4 * hf
            tagq(d, [ACC3 + 4 * (4 * hf + i) + b for i in range(4)])
    with Guard():
        set_exec("0xffff", 0)
        for b in range(4):
            for hf in range(2):
                d = TMP + 8 * b + 4 * hf
                e(f"buffer_store_dwordx4 v[{d}:{d+3}], v2, s[{SRD_WS}:{SRD_WS+3}], s{4+(b>>1)} offen offset:{2048*(b&1)+16*hf} sc1")
        e("s_mov_b64 exec, -1")
else:
    e("v_and_b32 v6, 16, v0")
    e("v_cmp_ne_u32 s[90:91], 0, v6")
    e("v_cmp_lt_u32 s[92:93], 31, v0")
    e("s_nop 1")
    for k in range(2):
        for i in range(4):
            t0, t1 = TMP + 16, TMP + 17
            e(f"v_cndmask_b32 v{t0}, v{ACC3+4*i+k}, v{ACC3+4*(4+i)+k}, s[90:91]")
            e(f"v_cndmask_b32 v{t1}, v{ACC3+4*i+2+k}, v{ACC3+4*(4+i)+2+k}, s[90:91]")
            e(f"v_cndmask_b32 v{TMP+8+4*k+i}, v{t0}, v{t1}, s[92:93]")
        tagq(TMP + 4 * k, [TMP + 8 + 4 * k + i for i in range(4)])
    e("v_and_b32 v2, 15, v0")
    e("v_lshlrev_b32 v2, 5, v2")
    e("v_add_u32 v2, v6, v2")
    e("v_lshrrev_b32 v6, 5, v0")
    e("v_lshl_add_u32 v2, v6, 12, v2")
    with Guard():
        for k in range(2):
            e(f"buffer_store_dwordx4 v[{TMP+4*k}:{TMP+4*k+3}], v2, s[{SRD_WS}:{SRD_WS+3}], s4 offen offset:{2048*k} sc1")
stamp(2, True)
lab("L_secC_done")
e("s_cmp_lt_u32 s2, 64")
e("s_cbranch_scc1 L_secF")
if_dry_goto("L_secH")
e("s_branch L_exit_c")
lab("L_secF")
GS = 74
for d in range(4):
    e(f"v_lshlrev_b32 v76, 16, v{68+d}")
    e(f"v_and_b32 v77, 0xffff0000, v{68+d}")
    e(f"v_lshlrev_b32 v78, 16, v{64+d}")
    e(f"v_and_b32 v79, 0xffff0000, v{64+d}")
    e("v_mul_f32 v76, v76, v78")
    e("v_mul_f32 v77, v77, v79")
    bf16_round_pair(78, 76, 77, 76, 77)
    if d == 0:
        e(f"v_add_f32 v{GS}, v76, v77")
    else:
        e(f"v_add_f32 v{GS}, v{GS}, v76")
        e(f"v_add_f32 v{GS}, v{GS}, v77")
dpp_reduce("v_add_f32", [GS], ROW16)
swap_reduce("v_add_f32", [GS], [76])
e(f"v_cvt_pk_bf16_f32 v75, v{GS}, v{GS}")
e("v_lshlrev_b32 v75, 16, v75")
e("v_mul_f32 v75, 0xbfb8aa3b, v75")
e("v_exp_f32 v75, v75")
e("s_nop 0")
e("v_add_f32 v75, 1.0, v75")
e("v_rcp_f32 v76, v75")
e("s_nop 0")
e("v_fma_f32 v77, -v75, v76, 2.0")
e("v_mul_f32 v76, v76, v77")
e("v_cvt_pk_bf16_f32 v76, v76, v76")
e("v_lshlrev_b32 v75, 16, v76")
e("v_sub_f32 v76, 1.0, v75")
e("v_cvt_pk_bf16_f32 v76, v76, v76")
e("v_lshlrev_b32 v76, 16, v76")
e("v_lshlrev_b32 v73, 16, v72")
poll("o", [re.sub(r"v\[\d+:\d+\]", "@", l, count=1) for l in o_loads], [32, 36, 40, 44, 48], 1, OPT["sleep_t"], altbase=128)
stamp(5, True)
e(f"s_lshl_b32 s5, s{S_WAVE}, 5")
e("s_sub_u32 s5, 112, s5")
e("s_min_u32 s5, s5, 32")
e("v_cmp_gt_u32 vcc, s5, v0")
e("s_nop 1")
for i in range(4):
    e(f"v_cndmask_b32 v{92+i}, 0, v{48+i}, vcc")
    e(f"v_add_f32 v{88+i}, v{32+i}, v{36+i}")
    e(f"v_add_f32 v{52+i}, v{40+i}, v{44+i}")
for i in range(4):
    e(f"v_add_f32 v{88+i}, v{88+i}, v{52+i}")
regs = [88 + i for i in range(8)]
dpp_reduce("v_add_f32", regs, ["row_ror:8"])
swap_reduce("v_add_f32", regs, [52 + i for i in range(8)])
e(f"s_lshl_b32 s4, s{S_WAVE}, 7")
e("v_add_u32 v4, s4, v3")
with Guard():
    e("s_mov_b64 exec, 0xff")
    e(f"ds_write_b128 v4, v[88:91] offset:{L_F}")
    e(f"ds_write_b128 v4, v[92:95] offset:{L_F+512}")
    e("s_mov_b64 exec, -1")
    lds_signal(C_F, 6)
    e(f"s_cmp_lg_u32 s{S_WAVE}, 0")
    e("s_cbranch_scc1 L_exit_c")
lds_wait(C_F, 4, 6)
e("v_and_b32 v6, 31, v0")
e("v_lshlrev_b32 v4, 2, v6")
for w in range(8):
    e(f"ds_read_b32 v{52+w}, v4 offset:{L_F+128*w}")
e("s_waitcnt lgkmcnt(0)")
e("v_add_f32 v52, v52, v53")
e("v_add_f32 v54, v54, v55")
e("v_add_f32 v56, v56, v57")
e("v_add_f32 v58, v58, v59")
e("v_add_f32 v52, v52, v54")
e("v_add_f32 v56, v56, v58")
bf16_round_pair(54, 52, 56, 52, 56)
e("v_add_f32 v56, v56, v73")
e("v_cvt_pk_bf16_f32 v54, v56, v56")
e("v_lshlrev_b32 v56, 16, v54")
e("v_mul_f32 v52, v75, v52")
e("v_mul_f32 v56, v76, v56")
bf16_round_pair(54, 52, 56, 52, 56)
e("v_add_f32 v52, v52, v56")
e("v_cvt_pk_bf16_f32 v52, v52, v52")
e("v_lshlrev_b32 v6, 1, v6")
e("s_lshl_b32 s4, s2, 6")
if_dry_goto("L_secH")
srd(SRD_OUT, 38, 4096)
set_exec("-1", 0)
e(f"buffer_store_short v52, v6, s[{SRD_OUT}:{SRD_OUT+3}], s4 offen")
e("s_cmp_lg_u32 s2, 0")
e("s_cbranch_scc1 L_exit_c")
e("s_mov_b64 exec, 1")
e(f"v_mov_b32 v1, 0")
e(f"v_mov_b32 v4, s{S_TAG}")
e(f"v_mov_b32 v5, s{S_TAG+1}")
e(f"buffer_store_dwordx2 v[4:5], v1, s[{SRD_WS}:{SRD_WS+3}], 0 offen offset:{WS_GEN} sc1")
lab("L_exit_c")
dump_stamps(True)
lab("L_exit")
e("s_endpgm")
if not OPT["dry"]:
    lab("L_dry_done_data")
    lab("L_dry_done_comm")
    e("s_endpgm")

out.append('.section .rodata,"a"')
out.append(".p2align 6")
out.append(f".amdhsa_kernel {NAME}_kernel")
out.append("  .amdhsa_next_free_vgpr 240")
out.append("  .amdhsa_next_free_sgpr 102")
out.append("  .amdhsa_accum_offset 240")
out.append("  .amdhsa_group_segment_fixed_size 0")
out.append("  .amdhsa_kernarg_size 112")
out.append("  .amdhsa_user_sgpr_count 2")
out.append("  .amdhsa_user_sgpr_kernarg_segment_ptr 1")
out.append("  .amdhsa_system_sgpr_workgroup_id_x 1")
out.append(".end_amdhsa_kernel")

dst = sys.argv[1] if len(sys.argv) > 1 else f"cdna_kernels/{NAME}.s"
open(dst, "w").write("\n".join(out) + "\n")
print("wrote", dst, len(out), "lines")
```

```python
import sys
import re

NAME = "gated_mix__sliding_block_cached__mixer_channel_mlp__decode"

OPT = dict(
    stamps=0,
    nt=1,
    depth=6,
    sleep_l=1,
    sleep_q=1,
    sleep_t=0,
    dry=1,
    k_after=0,
    pp=0,
    kdma=1,
    jit=0,
    jit_k=7,
    vstamp=0,
    w1_late=0,
    go_pub=0,
    opfull=1,
    apm128=1,
)
for a in sys.argv[2:]:
    k, v = a.split("=")
    OPT[k] = int(v)

WS_GEN = 0
WS_QP = 0x10000
WS_HP = WS_QP + 4 * 4 * 1024 * 16
WS_APO = WS_HP + 4 * 4 * 448 * 16
WS_APM = WS_APO + 4 * 32 * 4 * 8 * 8 * 16
WS_OP = WS_APM + 4 * 32 * 8 * 128
WS_ST = WS_OP + 142 * 4 * 128 * 16
WS_END = WS_ST + 256 * 8 * 16 * 8
open("gen_layout.py", "w").write(f"WS_ST = {WS_ST}\n")

L_PIECE = 0
L_QS = 8192
L_OW = 9216
L_ML = 17408
L_OA = 17536
L_HA = 17792
L_F = 18816
L_CNT = 19840
L_K = 20480
L_END = L_K + 32768
LDS_BYTES = 53248
assert L_END <= LDS_BYTES
C_Q, C_O, C_H, C_A, C_F, C_GO, C_K = 0, 4, 8, 12, 16, 20, 24

out = []


def e(s):
    out.append("    " + s)


def lab(s):
    out.append(s + ":")


NT = " nt" if OPT["nt"] else ""
S_WAVE = 3
SRD_X, SRD_K, SRD_V, SRD_W1, SRD_W3, SRD_WS, SRD_OUT, SRD_M = 44, 48, 52, 56, 60, 64, 68, 72
S_TAG = 76
S_SELLO, S_SELHI = 78, 79
S_T0 = 80
S_MASK = 96
S_DRY = 97
S_STAMP = 100
V_ST = 236
uid = [0]


def nid():
    uid[0] += 1
    return uid[0]


class Guard:
    def __enter__(self):
        self.n = nid()
        e(f"s_cmp_lg_u32 s{S_DRY}, 0")
        e(f"s_cbranch_scc1 L_g{self.n}")

    def __exit__(self, *a):
        lab(f"L_g{self.n}")


def if_dry_goto(label):
    e(f"s_cmp_lg_u32 s{S_DRY}, 0")
    e(f"s_cbranch_scc1 {label}")


def srd(dst, ptr, nbytes):
    e(f"s_mov_b32 s{dst}, s{ptr}")
    e(f"s_and_b32 s{dst+1}, s{ptr+1}, 0xffff")
    e(f"s_mov_b32 s{dst+2}, {nbytes}")
    e(f"s_mov_b32 s{dst+3}, 0x00020000")


def stamp_raw(i, comm):
    va, vt = V_ST, V_ST + 2
    e(f"s_lshl_b32 s98, s2, 3")
    e(f"s_add_u32 s98, s98, s{S_WAVE}")
    if comm:
        e("s_add_u32 s98, s98, 4")
    e(f"s_lshl_b32 s98, s98, 7")
    e(f"s_add_u32 s98, s98, {WS_ST + 8 * i}")
    e(f"v_mov_b32 v{va}, s98")
    e(f"v_mov_b32 v{vt}, s{S_STAMP}")
    e(f"v_mov_b32 v{vt+1}, s{S_STAMP+1}")
    e(f"s_mov_b64 s[98:99], exec")
    e(f"s_mov_b64 exec, 1")
    e(f"buffer_store_dwordx2 v[{vt}:{vt+1}], v{va}, s[{SRD_WS}:{SRD_WS+3}], 0 offen")
    e(f"s_mov_b64 exec, s[98:99]")


STAMP_MAP_D = {0: 0, 3: 1, 5: 2, 2: 3, 6: 4, 7: 5, 8: 6}
STAMP_MAP_C = {0: 0, 1: 1, 3: 2, 2: 3, 5: 4, 7: 6, 6: 5}


def stamp(i, comm=False):
    if not OPT["stamps"]:
        return
    m = STAMP_MAP_C if comm else STAMP_MAP_D
    if i not in m:
        return
    k = m[i]
    with Guard():
        e(f"s_memrealtime s[{16+2*k}:{17+2*k}]")


def dump_stamps(comm):
    if not OPT["stamps"]:
        return
    m = STAMP_MAP_C if comm else STAMP_MAP_D
    e("s_waitcnt lgkmcnt(0)")
    e("s_mov_b64 exec, -1")
    if OPT["stamps"] == 2:
        srd(SRD_M, 40, 256)
        e("s_mov_b64 exec, 1")
        for i, k in m.items():
            if comm and i in (6,):
                continue
            slot = i if not comm else {0: 9, 1: 10, 3: 11, 4: 12, 5: 13, 7: 14}[i]
            n_ = nid()
            if (not comm) and i in (7, 8):
                e(f"s_cmp_lt_u32 s{S_WAVE}, 2")
                e(f"s_cbranch_scc1 L_ds{n_}")
            if comm and i == 0:
                e("s_cmp_eq_u32 s8, 0")
                e(f"s_cbranch_scc1 L_ds{n_}")
            if comm and i == 5:
                e("s_cmp_ge_u32 s2, 64")
                e(f"s_cbranch_scc1 L_ds{n_}")
            e(f"v_mov_b32 v{V_ST}, {4*slot}")
            if (not comm) and i == 0:
                e(f"s_not_b32 s{S_STAMP}, s{16+2*k}")
                e(f"v_mov_b32 v{V_ST+1}, s{S_STAMP}")
            else:
                e(f"v_mov_b32 v{V_ST+1}, s{16+2*k}")
            e(f"buffer_atomic_umax v{V_ST+1}, v{V_ST}, s[{SRD_M}:{SRD_M+3}], 0 offen")
            e("s_nop 1")
            lab(f"L_ds{n_}")
        return
    for i, k in m.items():
        e(f"s_mov_b32 s{S_STAMP}, s{16+2*k}")
        e(f"s_mov_b32 s{S_STAMP+1}, s{17+2*k}")
        stamp_raw(i, comm)
        e("s_nop 1")


def tile_mm(W, A, B, ACC, acc_in=False):
    for q in range(4):
        for i in range(4):
            e(f"v_perm_b32 v{B+i}, v{W+4*(2*i+1)+q}, v{W+4*(2*i)+q}, s{S_SELLO}")
        for i in range(4):
            e(f"v_perm_b32 v{B+4+i}, v{W+4*(2*i+1)+q}, v{W+4*(2*i)+q}, s{S_SELHI}")
        e("s_nop 1")
        for jj in range(2):
            j = 2 * q + jj
            c = f"v[{ACC+4*j}:{ACC+4*j+3}]" if acc_in else "0"
            e(f"v_mfma_f32_16x16x32_bf16 v[{ACC+4*j}:{ACC+4*j+3}], v[{A}:{A+3}], v[{B+4*jj}:{B+4*jj+3}], {c}")


VT = 188
VTRAW = 186


def load_tag(vtmp):
    e(f"v_mov_b32 v{vtmp}, 0")
    e(f"buffer_load_dwordx2 v[{VTRAW}:{VTRAW+1}], v{vtmp}, s[{SRD_WS}:{SRD_WS+3}], 0 offen offset:{WS_GEN} sc1")


def finish_tag():
    e(f"v_readfirstlane_b32 s{S_TAG}, v{VTRAW}")
    e(f"v_readfirstlane_b32 s{S_TAG+1}, v{VTRAW+1}")
    e("s_nop 3")
    e(f"s_add_u32 s{S_TAG}, s{S_TAG}, 1")
    e(f"s_addc_u32 s{S_TAG+1}, s{S_TAG+1}, 0")
    e(f"s_and_b32 s{S_T0}, s{S_TAG}, 0x3ff")
    e(f"s_bfe_u32 s{S_T0+1}, s{S_TAG}, 0xa000a")
    e(f"s_bfe_u32 s{S_T0+2}, s{S_TAG}, 0xa0014")
    e(f"s_lshr_b64 s[{S_T0+4}:{S_T0+5}], s[{S_TAG}:{S_TAG+1}], 30")
    e(f"s_and_b32 s{S_T0+3}, s{S_T0+4}, 0x3ff")
    for i in range(4):
        e(f"v_mov_b32 v{VT+i}, s{S_T0+i}")


def tagq(dst, srcs):
    for i in range(4):
        e(f"v_bfi_b32 v{dst+i}, s{S_MASK}, v{VT+i}, v{srcs[i]}")


def poll(name, loads, quads, vx, sleep, maxit=100000, altbase=None):
    n = len(loads)

    def issue(base_map):
        for l, q in zip(loads, quads):
            r = base_map(q)
            e(l.replace("@", f"v[{r}:{r+3}]"))

    def check(base_map):
        first = True
        for q in quads:
            r = base_map(q)
            for i in range(4):
                if first:
                    e(f"v_xor_b32 v{vx}, v{r+i}, v{VT+i}")
                    first = False
                else:
                    e(f"v_xor_b32 v{vx+1}, v{r+i}, v{VT+i}")
                    e(f"v_or_b32 v{vx}, v{vx}, v{vx+1}")
        e(f"v_and_b32 v{vx}, 0x3ff, v{vx}")
        e(f"v_cmp_ne_u32 vcc, 0, v{vx}")

    A = lambda q: q
    e(f"s_mov_b32 s{S_T0+10}, {maxit}")
    if not OPT["pp"] or altbase is None:
        lab(f"L_poll_{name}")
        issue(A)
        with Guard():
            e("s_waitcnt vmcnt(0)")
        check(A)
        if_dry_goto(f"L_pdone_{name}")
        e(f"s_cmp_eq_u64 vcc, 0")
        e(f"s_cbranch_scc1 L_pdone_{name}")
        e(f"s_sub_u32 s{S_T0+10}, s{S_T0+10}, 1")
        e(f"s_cmp_eq_u32 s{S_T0+10}, 0")
        e(f"s_cbranch_scc1 L_pdone_{name}")
        if sleep:
            e(f"s_sleep {sleep}")
        e(f"s_branch L_poll_{name}")
        lab(f"L_pdone_{name}")
        return
    B = lambda q: altbase + (q - quads[0])
    issue(A)
    lab(f"L_poll_{name}")
    e(f"s_sleep {OPT['pp']}")
    issue(B)
    with Guard():
        e(f"s_waitcnt vmcnt({n})")
    check(A)
    if_dry_goto(f"L_pB_{name}")
    e(f"s_cmp_eq_u64 vcc, 0")
    e(f"s_cbranch_scc1 L_pdone_{name}")
    e(f"s_sleep {OPT['pp']}")
    issue(A)
    e(f"s_waitcnt vmcnt({n})")
    check(B)
    e(f"s_cmp_eq_u64 vcc, 0")
    e(f"s_cbranch_scc1 L_pB_{name}")
    e(f"s_sub_u32 s{S_T0+10}, s{S_T0+10}, 1")
    e(f"s_cmp_eq_u32 s{S_T0+10}, 0")
    e(f"s_cbranch_scc0 L_poll_{name}")
    lab(f"L_pB_{name}")
    for q in quads:
        for i in range(4):
            e(f"v_mov_b32 v{q+i}, v{B(q)+i}")
    lab(f"L_pdone_{name}")


def lds_signal(cnt, vtmp):
    e("s_waitcnt lgkmcnt(0)")
    e(f"v_mov_b32 v{vtmp}, {L_CNT+cnt}")
    e(f"v_mov_b32 v{vtmp+1}, 1")
    e("s_mov_b64 exec, 1")
    e(f"ds_add_u32 v{vtmp}, v{vtmp+1}")
    e("s_mov_b64 exec, -1")


def lds_wait(cnt, target, vtmp):
    n = nid()
    e(f"v_mov_b32 v{vtmp}, {L_CNT+cnt}")
    e(f"s_mov_b32 s{S_T0+11}, 4000000")
    lab(f"L_lw{n}")
    e(f"ds_read_b32 v{vtmp+1}, v{vtmp}")
    e("s_waitcnt lgkmcnt(0)")
    e(f"v_readfirstlane_b32 s{S_T0+12}, v{vtmp+1}")
    if_dry_goto(f"L_lwd{n}")
    e("s_nop 1")
    e(f"s_cmp_ge_u32 s{S_T0+12}, {target}")
    e(f"s_cbranch_scc1 L_lwd{n}")
    e(f"s_sub_u32 s{S_T0+11}, s{S_T0+11}, 1")
    e(f"s_cmp_eq_u32 s{S_T0+11}, 0")
    e(f"s_cbranch_scc1 L_lwd{n}")
    if OPT["sleep_l"]:
        e(f"s_sleep {OPT['sleep_l']}")
    e(f"s_branch L_lw{n}")
    lab(f"L_lwd{n}")


def bf16_round_pair(dst_pk, a, b, lo, hi):
    e(f"v_cvt_pk_bf16_f32 v{dst_pk}, v{a}, v{b}")
    e(f"v_lshlrev_b32 v{lo}, 16, v{dst_pk}")
    e(f"v_and_b32 v{hi}, 0xffff0000, v{dst_pk}")


def dpp_reduce(op, regs, ctls):
    for ctl in ctls:
        e("s_nop 1")
        for r in regs:
            e(f"{op}_dpp v{r}, v{r}, v{r} {ctl} row_mask:0xf bank_mask:0xf")


ROW16 = ["quad_perm:[1,0,3,2]", "quad_perm:[2,3,0,1]", "row_half_mirror", "row_mirror"]


def swap_reduce(op, regs, tmps, sws=("v_permlane16_swap_b32", "v_permlane32_swap_b32")):
    for sw in sws:
        for r, t in zip(regs, tmps):
            e(f"v_mov_b32 v{t}, v{r}")
        e("s_nop 1")
        for r, t in zip(regs, tmps):
            e(f"{sw} v{r}, v{t}")
        e("s_nop 1")
        for r, t in zip(regs, tmps):
            e(f"{op} v{r}, v{r}, v{t}")


def set_exec(lo, hi):
    e(f"s_mov_b32 exec_lo, {lo}")
    e(f"s_mov_b32 exec_hi, {hi}")


VW, VK, VV, VB, VACC = 16, 80, 112, 144, 152
VA, VA2 = 12, 224
VX = 152
TMP = 192


def lane_setup():
    e("v_and_b32 v1, 7, v0")
    e("v_bfe_u32 v2, v0, 3, 1")
    e("v_lshrrev_b32 v3, 4, v0")
    e("v_lshlrev_b32 v4, 5, v2")
    e("v_lshl_add_u32 v4, v3, 3, v4")
    e("v_and_b32 v5, 3, v0")
    e("v_bfe_u32 v6, v0, 2, 1")
    e("v_lshlrev_b32 v6, 5, v6")
    e("v_lshl_add_u32 v6, v3, 3, v6")
    e("v_lshlrev_b32 v11, 1, v6")
    e("v_lshl_add_u32 v6, v5, 10, v11")
    e("v_lshl_add_u32 v11, v5, 8, v11")
    e("v_lshlrev_b32 v10, 5, v1")
    e("v_lshl_add_u32 v10, v2, 10, v10")


def gather_quads(G, ACC=None):
    ACC = VACC if ACC is None else ACC
    for b in range(4):
        for hf in range(2):
            for i in range(4):
                e(f"v_mov_b32 v{G+8*b+4*hf+i}, v{ACC+4*(4*hf+i)+b}")


def tile128(A1, A2, piece_off_sreg, W=None, B=None, ACC=None, G=120):
    W = VW if W is None else W
    B = VB if B is None else B
    ACC = VACC if ACC is None else ACC
    tile_mm(W, A1, B, ACC)
    tile_mm(W + 32, A2, B, ACC, acc_in=True)
    e("v_lshlrev_b32 v1, 4, v0")
    e(f"v_lshrrev_b32 v{TMP+8}, 4, v0")
    e(f"v_add_u32 v1, s{piece_off_sreg}, v1")
    e(f"v_add_u32 v2, s{piece_off_sreg}, v10")
    e("s_nop 7")
    gather_quads(G, ACC)
    with Guard():
        set_exec("0xff0000ff", 0)
        for b in range(4):
            for hf in range(2):
                e(f"ds_write_b128 v2, v[{G+8*b+4*hf}:{G+8*b+4*hf+3}] offset:{256*b+16*hf}")
        e("s_mov_b64 exec, -1")
    e("s_waitcnt lgkmcnt(0)")
    e(f"ds_read_b128 v[{TMP}:{TMP+3}], v1")
    e(f"ds_read_b128 v[{TMP+4}:{TMP+7}], v1 offset:1024")
    e("s_waitcnt lgkmcnt(0)")
    for i in range(4):
        e(f"v_add_f32 v{TMP+i}, v{TMP+i}, v{TMP+4+i}")
    tagq(TMP, [TMP, TMP + 1, TMP + 2, TMP + 3])


hdr = open(f"cdna_kernels/{NAME}.s.ref").read().split("\n")
top = [l for l in hdr if l.startswith(";") and "@launch" not in l]
out.extend(top)
out.append(f"; @launch grid=(256,1,1) block=(512,1,1) lds={LDS_BYTES}")
out.append('.amdgcn_target "amdgcn-amd-amdhsa--gfx950"')
out.append(".text")
out.append(f".globl {NAME}_kernel")
out.append(".p2align 8")
out.append(f".type {NAME}_kernel,@function")
lab(f"{NAME}_kernel")

e("s_cmp_ge_u32 s2, 256")
e("s_cbranch_scc1 L_exit")
e("s_load_dwordx16 s[16:31], s[0:1], 0")
e("s_load_dwordx8 s[32:39], s[0:1], 64")
e("s_load_dwordx4 s[40:43], s[0:1], 96")
e("v_lshrrev_b32 v1, 6, v0")
e("v_and_b32 v0, 63, v0")
e(f"s_mov_b32 s{S_SELLO}, 0x05040100")
e(f"s_mov_b32 s{S_SELHI}, 0x07060302")
e(f"s_mov_b32 s{S_MASK}, 0x3ff")
e(f"s_mov_b32 s{S_DRY}, 0")
e(f"v_readfirstlane_b32 s{S_WAVE}, v1")
lane_setup()
e("s_waitcnt lgkmcnt(0)")
srd(SRD_X, 16, 4096)
srd(SRD_WS, 42, WS_END)
e(f"s_cmp_ge_u32 s{S_WAVE}, 4")
e("s_cbranch_scc1 L_comm")

srd(SRD_K, 18, 33554432)
srd(SRD_V, 20, 33554432)
stamp(0)
e("s_lshr_b32 s10, s2, 3")
e("s_lshl_b32 s10, s10, 12")
e("s_and_b32 s11, s2, 7")
e("s_lshl_b32 s11, s11, 7")
e("s_add_u32 s10, s10, s11")
e(f"s_lshl_b32 s11, s{S_WAVE}, 5")
e("s_add_u32 s10, s10, s11")
e("s_add_u32 s10, s10, 3072")
e("s_lshl_b32 s10, s10, 8")
e("s_add_u32 s11, s10, 4096")
e("v_and_b32 v8, 15, v0")
e("v_lshlrev_b32 v9, 4, v8")
e("v_lshlrev_b32 v8, 8, v8")
e("v_lshl_add_u32 v8, v3, 4, v8")
e("v_lshl_add_u32 v9, v3, 10, v9")
load_tag(2)
D = OPT["depth"]
seq = []
if OPT["kdma"]:
    e("v_and_b32 v12, 15, v0")
    for i4 in range(4):
        e(f"v_add_u32 v13, {4*i4}, v3")
        e(f"v_xor_b32 v14, v12, v13")
        e(f"v_lshlrev_b32 v14, 4, v14")
        e(f"v_lshl_add_u32 v{TMP+20+i4}, v13, 8, v14")
    e(f"s_lshl_b32 s12, s{S_WAVE}, 13")
    e(f"s_add_u32 s12, s12, {L_K}")
    for i in range(8):
        seq.append([f"s_add_u32 m0, s12, {1024*i}", "s_nop 0",
                    f"buffer_load_dwordx4 v{TMP+20+(i&3)}, s[{SRD_K}:{SRD_K+3}], s{10+(i>>2)} offen{NT} lds"])
    for c in range(4):
        e(f"v_add_u32 v13, {4*c}, v3")
        e(f"v_xor_b32 v13, v13, v12")
        e(f"v_lshlrev_b32 v13, 4, v13")
        e(f"v_lshl_add_u32 v13, v12, 8, v13")
        e(f"v_add_u32 v{228+c}, s12, v13")
else:
  for kb in range(2):
    for c in range(4):
        r = VK + 16 * kb + 4 * c
        seq.append(f"buffer_load_dwordx4 v[{r}:{r+3}], v8, s[{SRD_K}:{SRD_K+3}], s{10+kb} offen offset:{64*c}{NT}")
for i in range(8):
    r = VV + 4 * i
    so = 10 if i < 4 else 11
    seq.append(f"buffer_load_dwordx4 v[{r}:{r+3}], v9, s[{SRD_V}:{SRD_V+3}], s{so} offen offset:{256*(i&3)}{NT}")
if OPT["k_after"] or OPT["go_pub"]:
    e("s_barrier")
    lds_wait(C_GO, 1, TMP)
for i, l in enumerate(seq):
    if i == D and not (OPT["k_after"] or OPT["go_pub"]):
        e("s_barrier")
    if i >= D:
        e(f"s_waitcnt vmcnt({D-1})")
    if (OPT["jit"] & 1) and i == min(15, OPT["jit_k"] + D):
        lds_signal(C_K, TMP)
    for l_ in (l if isinstance(l, list) else [l]):
        e(l_)
finish_tag()
if OPT["vstamp"]:
    e("s_waitcnt vmcnt(0)")
    stamp(7)
lab("L_secA")
lds_wait(C_Q, 4, TMP)
stamp(3)
VQ = TMP
e("v_and_b32 v1, 3, v0")
e("v_lshlrev_b32 v1, 8, v1")
e("v_lshl_add_u32 v1, v3, 4, v1")
for c in range(4):
    e(f"ds_read_b128 v[{VQ+4*c}:{VQ+4*c+3}], v1 offset:{L_QS+64*c}")
with Guard():
    e("s_waitcnt vmcnt(8)")
if OPT["kdma"]:
    for kb in range(2):
        for c in range(4):
            r = VK + 16 * kb + 4 * c
            e(f"ds_read_b128 v[{r}:{r+3}], v{228+c} offset:{4096*kb}")
e("s_waitcnt lgkmcnt(0)")
stamp(4)
VS = VACC
for kb in range(2):
    for c in range(4):
        src2 = "0" if c == 0 else f"v[{VS+4*kb}:{VS+4*kb+3}]"
        e(f"v_mfma_f32_16x16x32_bf16 v[{VS+4*kb}:{VS+4*kb+3}], v[{VK+16*kb+4*c}:{VK+16*kb+4*c+3}], v[{VQ+4*c}:{VQ+4*c+3}], {src2}")
e("s_nop 7")
e("s_nop 1")
SC = TMP + 16
T = TMP + 24
for kb in range(2):
    for h2 in range(2):
        a = VS + 4 * kb + 2 * h2
        d = SC + 4 * kb + 2 * h2
        bf16_round_pair(T, a, a + 1, d, d + 1)
        e(f"v_mul_f32 v{d}, 0x3db504f3, v{d}")
        e(f"v_mul_f32 v{d+1}, 0x3db504f3, v{d+1}")
        bf16_round_pair(T, d, d + 1, d, d + 1)
MX = TMP + 26
LS = TMP + 27
e(f"v_max3_f32 v{MX}, v{SC}, v{SC+1}, v{SC+2}")
e(f"v_max3_f32 v{MX}, v{MX}, v{SC+3}, v{SC+4}")
e(f"v_max3_f32 v{MX}, v{MX}, v{SC+5}, v{SC+6}")
e(f"v_max_f32 v{MX}, v{MX}, v{SC+7}")
swap_reduce("v_max_f32", [MX], [T])
for i in range(8):
    e(f"v_sub_f32 v{SC+i}, v{SC+i}, v{MX}")
    e(f"v_mul_f32 v{SC+i}, 0x3fb8aa3b, v{SC+i}")
    e(f"v_exp_f32 v{SC+i}, v{SC+i}")
e("s_nop 0")
e(f"v_add_f32 v{LS}, v{SC}, v{SC+1}")
for i in range(2, 8):
    e(f"v_add_f32 v{LS}, v{LS}, v{SC+i}")
swap_reduce("v_add_f32", [LS], [T])
VP = TMP + 28
for i in range(4):
    e(f"v_cvt_pk_bf16_f32 v{VP+i}, v{SC+2*i}, v{SC+2*i+1}")
with Guard():
    e("s_waitcnt vmcnt(0)")
stamp(5)
tile_mm(VV, VP, VB, VACC)
e(f"s_lshl_b32 s4, s{S_WAVE}, 11")
e("v_lshlrev_b32 v1, 5, v0")
e("v_add_u32 v1, s4, v1")
e(f"s_lshl_b32 s4, s{S_WAVE}, 5")
e("v_lshlrev_b32 v2, 3, v0")
e("v_add_u32 v2, s4, v2")
e("s_nop 7")
gather_quads(VK)
with Guard():
    set_exec("0xffff", 0)
    for r in range(4):
        for hf in range(2):
            e(f"ds_write_b128 v1, v[{VK+8*r+4*hf}:{VK+8*r+4*hf+3}] offset:{L_OW+512*r+16*hf}")
    e("s_mov_b64 exec, 15")
    e(f"ds_write_b64 v2, v[{MX}:{MX+1}] offset:{L_ML}")
    e("s_mov_b64 exec, -1")
    lds_signal(C_O, TMP)
stamp(1)
e(f"s_lshl_b32 s4, s{S_WAVE}, 3")
e("v_mov_b32 v1, s4")
e(f"s_lshl_b32 s4, s{S_WAVE}, 9")
e("v_and_b32 v2, 31, v0")
e("v_lshlrev_b32 v2, 4, v2")
e("v_add_u32 v2, s4, v2")
e("s_lshr_b32 s4, s2, 3")
e("s_lshl_b32 s4, s4, 2")
e(f"s_add_u32 s4, s4, s{S_WAVE}")
e("s_and_b32 s5, s2, 7")
e("s_lshl_b32 s6, s4, 12")
e("s_lshl_b32 s7, s5, 7")
e("s_add_u32 s6, s6, s7")
e(f"s_add_u32 s6, s6, {WS_APO}")
e("s_lshl_b32 s4, s4, 3")
e("s_add_u32 s4, s4, s5")
e(f"s_lshl_b32 s4, s4, {7 if OPT['apm128'] else 4}")
e(f"s_add_u32 s4, s4, {WS_APM}")
e("v_and_b32 v7, 7, v0")
e("v_lshlrev_b32 v7, 4, v7")
e(f"v_lshrrev_b32 v{TMP+12}, 3, v0")
e(f"v_lshl_add_u32 v7, v{TMP+12}, 10, v7")
lds_wait(C_O, 4, TMP)
stamp(2)
R = VACC
for w in range(4):
    e(f"ds_read_b64 v[{R+2*w}:{R+2*w+1}], v1 offset:{L_ML+32*w}")
for w in range(4):
    e(f"ds_read_b128 v[{R+8+4*w}:{R+11+4*w}], v2 offset:{L_OW+2048*w}")
e("s_waitcnt lgkmcnt(0)")
M_, L_ = R + 24, R + 25
e(f"v_max3_f32 v{M_}, v{R}, v{R+2}, v{R+4}")
e(f"v_max_f32 v{M_}, v{M_}, v{R+6}")
F_ = TMP
for w in range(4):
    e(f"v_sub_f32 v{F_+w}, v{R+2*w}, v{M_}")
    e(f"v_mul_f32 v{F_+w}, 0x3fb8aa3b, v{F_+w}")
    e(f"v_exp_f32 v{F_+w}, v{F_+w}")
e("s_nop 0")
O_ = TMP + 4
e(f"v_mul_f32 v{L_}, v{F_}, v{R+1}")
for i in range(4):
    e(f"v_mul_f32 v{O_+i}, v{F_}, v{R+8+i}")
for w in range(1, 4):
    e(f"v_fmac_f32 v{L_}, v{F_+w}, v{R+2*w+1}")
    for i in range(4):
        e(f"v_fmac_f32 v{O_+i}, v{F_+w}, v{R+8+4*w+i}")
tagq(O_, [O_, O_ + 1, O_ + 2, O_ + 3])
e(f"v_mov_b32 v{R+26}, 0")
e(f"v_mov_b32 v{R+27}, 0")
tagq(TMP + 8, [M_, L_, R + 26, R + 27])
e(f"v_mov_b32 v1, 0")
with Guard():
    set_exec("-1", 0)
    e(f"buffer_store_dwordx4 v[{O_}:{O_+3}], v7, s[{SRD_WS}:{SRD_WS+3}], s6 offen sc1")
    e("s_mov_b64 exec, 1")
    e(f"buffer_store_dwordx4 v[{TMP+8}:{TMP+11}], v1, s[{SRD_WS}:{SRD_WS+3}], s4 offen sc1")
    e("s_mov_b64 exec, -1")
stamp(6)
if_dry_goto("L_dry_done_data")
lab("L_exit_d")
dump_stamps(False)
e("s_endpgm")

lab("L_comm")
e("s_setprio 2")
e(f"s_sub_u32 s{S_WAVE}, s{S_WAVE}, 4")
stamp(6, True)
load_tag(7)
e("s_mov_b32 s8, 0")
e(f"s_cmp_ge_u32 s{S_WAVE}, 2")
e("s_cbranch_scc1 L_p1_noload")
e(f"s_cmp_eq_u32 s{S_WAVE}, 1")
e("s_cbranch_scc1 L_p1_w1")
srd(SRD_W1, 22, 4194304)
e("s_mov_b32 s5, 8192")
e("s_lshr_b32 s6, s2, 6")
e("s_lshl_b32 s6, s6, 7")
e("s_and_b32 s7, s2, 63")
e("s_lshl_b32 s7, s7, 7")
e("s_mov_b32 s8, 1")
e("s_branch L_p1_go")
lab("L_p1_w1")
e("s_cmp_ge_u32 s2, 112")
e("s_cbranch_scc1 L_p1_noload")
srd(SRD_W1, 28, 512 * 1792 * 2)
e("s_mov_b32 s5, 3584")
e("s_and_b32 s6, s2, 3")
e("s_lshl_b32 s6, s6, 7")
e("s_lshr_b32 s7, s2, 2")
e("s_lshl_b32 s7, s7, 7")
e("s_mov_b32 s8, 2")
if OPT["w1_late"]:
    e("s_barrier")
    lds_wait(C_GO, 1, TMP)
lab("L_p1_go")
e("v_mul_lo_u32 v7, s5, v4")
e("v_lshl_add_u32 v7, v1, 4, v7")
e("s_mul_i32 s9, s6, s5")
e("s_add_u32 s9, s9, s7")
e("s_lshl_b32 s12, s6, 1")
e("s_mul_i32 s13, s5, 56")
for i in range(16):
    e(f"buffer_load_dwordx4 v[{VW+4*i}:{VW+4*i+3}], v7, s[{SRD_W1}:{SRD_W1+3}], s9 offen{NT}")
    if i < 15:
        e("s_add_u32 s9, s9, s5")
    if i == 7:
        e("s_add_u32 s9, s9, s13")
XA, XA2, XR = 96, 100, 104
e(f"buffer_load_dwordx4 v[{XA}:{XA+3}], v6, s[{SRD_X}:{SRD_X+3}], s12 offen")
e(f"buffer_load_dwordx4 v[{XA2}:{XA2+3}], v6, s[{SRD_X}:{SRD_X+3}], s12 offen offset:128")
e("v_lshlrev_b32 v1, 4, v0")
for b in range(4):
    e(f"buffer_load_dwordx4 v[{XR+4*b}:{XR+4*b+3}], v1, s[{SRD_X}:{SRD_X+3}], 0 offen offset:{1024*b}")
lab("L_p1_noload")
e(f"s_cmp_lg_u32 s{S_WAVE}, 0")
e("s_cbranch_scc1 L_c_noz")
e("v_mov_b32 v1, 0")
e("v_lshlrev_b32 v7, 2, v0")
e("s_mov_b64 exec, 0xffff")
e(f"ds_write_b32 v7, v1 offset:{L_CNT}")
e("s_mov_b64 exec, -1")
e("s_waitcnt lgkmcnt(0)")
lab("L_c_noz")
if OPT["w1_late"]:
    e("s_cmp_eq_u32 s8, 2")
    e("s_cbranch_scc1 L_skipb0")
e("s_barrier")
lab("L_skipb0")
e(f"s_lshl_b32 s15, s{S_WAVE}, 11")
e(f"s_add_u32 s15, s15, {L_PIECE + 4096}")
if OPT["dry"]:
    e(f"s_mov_b32 s{S_DRY}, 1")
    e("s_cmp_lg_u32 s8, 0")
    e("s_cbranch_scc1 L_secP1")
    e(f"s_cmp_eq_u32 s{S_WAVE}, 2")
    e("s_cbranch_scc1 L_secA")
    e("s_branch L_secQ")
    lab("L_dry_done_data")
    lab("L_dry_done_comm")
    e(f"s_mov_b32 s{S_DRY}, 0")
    lane_setup()
lab("L_real_start")
if OPT["k_after"]:
    e(f"s_cmp_eq_u32 s{S_WAVE}, 0")
    e("s_cbranch_scc0 L_nogo")
    e(f"s_waitcnt vmcnt({22-OPT['k_after']})")
    lds_signal(C_GO, TMP)
    lab("L_nogo")
e("s_waitcnt vmcnt(0) lgkmcnt(0)")
stamp(7, True)
finish_tag()
e("s_cmp_eq_u32 s8, 0")
e("s_cbranch_scc1 L_secQ")
lab("L_secP1")
for d in range(4):
    e(f"v_mov_b32 v{VA+d}, v{XA+d}")
    e(f"v_mov_b32 v{VA2+d}, v{XA2+d}")
e("s_cmp_eq_u32 s8, 1")
e("s_cbranch_scc1 L_p1_mm")
SUM = TMP
T = TMP + 4
for b in range(4):
    e(f"v_lshlrev_b32 v{T}, 16, v{XR+4*b}")
    e(f"v_and_b32 v{T+1}, 0xffff0000, v{XR+4*b}")
    e(f"v_add_f32 v{SUM+b}, v{T}, v{T+1}")
    for d in range(1, 4):
        e(f"v_lshlrev_b32 v{T}, 16, v{XR+4*b+d}")
        e(f"v_and_b32 v{T+1}, 0xffff0000, v{XR+4*b+d}")
        e(f"v_add_f32 v{SUM+b}, v{SUM+b}, v{T}")
        e(f"v_add_f32 v{SUM+b}, v{SUM+b}, v{T+1}")
dpp_reduce("v_add_f32", [SUM + b for b in range(4)], ROW16)
swap_reduce("v_add_f32", [SUM + b for b in range(4)], [T + b for b in range(4)])
for b in range(4):
    e(f"v_mul_f32 v{SUM+b}, 0x3b000000, v{SUM+b}")
SQ = TMP + 12
for b in range(4):
    for d in range(4):
        e(f"v_lshlrev_b32 v{T}, 16, v{XR+4*b+d}")
        e(f"v_and_b32 v{T+1}, 0xffff0000, v{XR+4*b+d}")
        e(f"v_sub_f32 v{T}, v{T}, v{SUM+b}")
        e(f"v_sub_f32 v{T+1}, v{T+1}, v{SUM+b}")
        if d == 0:
            e(f"v_mul_f32 v{SQ+b}, v{T}, v{T}")
        else:
            e(f"v_fmac_f32 v{SQ+b}, v{T}, v{T}")
        e(f"v_fmac_f32 v{SQ+b}, v{T+1}, v{T+1}")
dpp_reduce("v_add_f32", [SQ + b for b in range(4)], ROW16)
swap_reduce("v_add_f32", [SQ + b for b in range(4)], [T + b for b in range(4)])
for b in range(4):
    e(f"v_mul_f32 v{SQ+b}, 0x3b000000, v{SQ+b}")
MEAN, DEN, RCP = TMP + 16, TMP + 17, TMP + 18
e(f"v_mov_b32 v{MEAN}, v{SUM}")
e(f"v_mov_b32 v{DEN}, v{SQ}")
for b in range(1, 4):
    e(f"v_cmp_eq_u32 vcc, {b}, v5")
    e("s_nop 1")
    e(f"v_cndmask_b32 v{MEAN}, v{MEAN}, v{SUM+b}, vcc")
    e(f"v_cndmask_b32 v{DEN}, v{DEN}, v{SQ+b}, vcc")
bf16_round_pair(T, MEAN, DEN, MEAN, DEN)
e(f"v_add_f32 v{DEN}, 0x3727c5ac, v{DEN}")
e(f"v_cvt_pk_bf16_f32 v{T}, v{DEN}, v{DEN}")
e(f"v_lshlrev_b32 v{DEN}, 16, v{T}")
e(f"v_sqrt_f32 v{DEN}, v{DEN}")
e("s_nop 0")
e(f"v_cvt_pk_bf16_f32 v{T}, v{DEN}, v{DEN}")
e(f"v_lshlrev_b32 v{DEN}, 16, v{T}")
e(f"v_rcp_f32 v{RCP}, v{DEN}")
e("s_nop 0")
for AA in (VA, VA2):
    for d in range(4):
        a0, a1 = T + 2, T + 3
        e(f"v_lshlrev_b32 v{a0}, 16, v{AA+d}")
        e(f"v_and_b32 v{a1}, 0xffff0000, v{AA+d}")
        e(f"v_sub_f32 v{a0}, v{a0}, v{MEAN}")
        e(f"v_sub_f32 v{a1}, v{a1}, v{MEAN}")
        bf16_round_pair(T, a0, a1, a0, a1)
        for a in (a0, a1):
            e(f"v_mul_f32 v{T+4}, v{a}, v{RCP}")
            e(f"v_fma_f32 v{T+5}, -v{T+4}, v{DEN}, v{a}")
            e(f"v_fma_f32 v{a}, v{T+5}, v{RCP}, v{T+4}")
        e(f"v_cvt_pk_bf16_f32 v{AA+d}, v{a0}, v{a1}")
lab("L_p1_mm")
tile128(VA, VA2, 15)
e("v_and_b32 v1, 15, v0")
e("s_cmp_eq_u32 s8, 1")
e("s_cbranch_scc1 L_pub_q")
e("s_and_b32 s4, s2, 3")
e("s_mul_i32 s4, s4, 1792")
e("s_lshr_b32 s5, s2, 2")
e("s_lshl_b32 s5, s5, 4")
e("s_add_u32 s4, s4, s5")
e("s_lshl_b32 s4, s4, 4")
e(f"s_add_u32 s4, s4, {WS_HP}")
e(f"v_mul_u32_u24 v2, 448, v{TMP+8}")
e("v_add_u32 v1, v2, v1")
e("s_branch L_pub_go")
lab("L_pub_q")
e("s_lshr_b32 s4, s2, 6")
e("s_lshl_b32 s4, s4, 12")
e("s_and_b32 s5, s2, 63")
e("s_lshl_b32 s5, s5, 4")
e("s_add_u32 s4, s4, s5")
e("s_lshl_b32 s4, s4, 4")
e(f"s_add_u32 s4, s4, {WS_QP}")
e(f"v_lshl_add_u32 v1, v{TMP+8}, 10, v1")
lab("L_pub_go")
e("v_lshlrev_b32 v1, 4, v1")
if_dry_goto("L_dry_done_comm")
e(f"buffer_store_dwordx4 v[{TMP}:{TMP+3}], v1, s[{SRD_WS}:{SRD_WS+3}], s4 offen sc1")
if OPT["go_pub"]:
    e("s_cmp_eq_u32 s8, 1")
    e("s_cbranch_scc0 L_nogo2")
    lds_signal(C_GO, TMP + 10)
    stamp(0, True)
    lab("L_nogo2")
else:
    stamp(0, True)
lab("L_secQ")
e("v_lshlrev_b32 v3, 4, v0")
e("s_lshr_b32 s4, s2, 6")
e("s_lshl_b32 s4, s4, 10")
e("s_lshr_b32 s5, s2, 3")
e("s_and_b32 s5, s5, 7")
e("s_lshl_b32 s5, s5, 7")
e("s_add_u32 s4, s4, s5")
e(f"s_lshl_b32 s5, s{S_WAVE}, 5")
e("s_add_u32 s4, s4, s5")
e("s_lshl_b32 s4, s4, 4")
e(f"s_add_u32 s4, s4, {WS_QP}")
e(f"s_add_u32 s5, s4, {4*1024*16}")
e("v_and_b32 v4, 31, v0")
e("v_lshlrev_b32 v4, 4, v4")
e("v_lshrrev_b32 v5, 5, v0")
e("v_lshl_add_u32 v4, v5, 17, v4")
if OPT["jit"] & 1:
    lds_wait(C_K, 4, 6)
poll("q", [f"buffer_load_dwordx4 @, v4, s[{SRD_WS}:{SRD_WS+3}], s{4+k} offen sc1" for k in range(2)],
     [16, 20], 6, OPT["sleep_q"], altbase=168)
for i in range(4):
    e(f"v_add_f32 v{24+i}, v{16+i}, v{20+i}")
swap_reduce("v_add_f32", [24, 25, 26, 27], [28, 29, 30, 31], ("v_permlane32_swap_b32",))
e("v_cvt_pk_bf16_f32 v24, v24, v25")
e("v_cvt_pk_bf16_f32 v25, v26, v27")
e(f"s_lshl_b32 s4, s{S_WAVE}, 8")
e("v_and_b32 v5, 31, v0")
e("v_lshlrev_b32 v5, 3, v5")
e("v_add_u32 v5, s4, v5")
with Guard():
    e(f"ds_write_b64 v5, v[24:25] offset:{L_QS}")
    lds_signal(C_Q, 6)
stamp(1, True)
W3, B3, ACC3 = 96, 160, 16
e("s_mov_b32 s14, 0")
with Guard():
    e("v_lshrrev_b32 v9, 4, v0")
    e(f"s_cmp_lt_u32 s{S_WAVE}, 2")
    e("s_cbranch_scc1 L_nowo0")
    srd(SRD_W3, 24, 4194304)
    e("s_lshr_b32 s6, s2, 1")
    e("s_lshl_b32 s9, s6, 15")
    e("s_and_b32 s7, s2, 1")
    e("s_lshl_b32 s7, s7, 9")
    e("s_add_u32 s9, s9, s7")
    e(f"s_sub_u32 s7, s{S_WAVE}, 2")
    e("s_lshl_b32 s7, s7, 8")
    e("s_add_u32 s9, s9, s7")
    e("v_and_b32 v7, 15, v0")
    e("v_lshlrev_b32 v7, 4, v7")
    e("v_lshl_add_u32 v7, v9, 13, v7")
    for i in range(8):
        e(f"buffer_load_dwordx4 v[{W3+4*i}:{W3+4*i+3}], v7, s[{SRD_W3}:{SRD_W3+3}], s9 offen offset:{1024*(i&3)}{NT}")
        if i == 3:
            e("s_add_u32 s9, s9, 4096")
    e("s_branch L_now2")
    lab("L_nowo0")
    e(f"s_cmp_eq_u32 s{S_WAVE}, 1")
    e("s_cbranch_scc0 L_now2")
    e("s_cmp_lt_u32 s2, 112")
    e("s_cbranch_scc1 L_now2")
    e("s_cmp_ge_u32 s2, 224")
    e("s_cbranch_scc1 L_now2")
    e("s_mov_b32 s14, 1")
    srd(SRD_W3, 32, 1792 * 512 * 2)
    e("s_sub_u32 s9, s2, 112")
    e("s_lshr_b32 s6, s9, 3")
    e("s_lshl_b32 s6, s6, 17")
    e("s_and_b32 s7, s9, 7")
    e("s_lshl_b32 s7, s7, 7")
    e("s_add_u32 s9, s6, s7")
    e("v_bfe_u32 v7, v0, 3, 1")
    e("v_lshlrev_b32 v7, 5, v7")
    e("v_lshl_add_u32 v9, v9, 3, v7")
    e("v_and_b32 v7, 7, v0")
    e("v_lshlrev_b32 v7, 4, v7")
    e("v_lshl_add_u32 v7, v9, 10, v7")
    for i in range(16):
        e(f"buffer_load_dwordx4 v[{W3+4*i}:{W3+4*i+3}], v7, s[{SRD_W3}:{SRD_W3+3}], s9 offen offset:{1024*(i&3)}{NT}")
        if i == 7:
            e(f"s_add_u32 s9, s9, {4096 + 56*1024}")
        elif i & 3 == 3 and i < 15:
            e("s_add_u32 s9, s9, 4096")
    lab("L_now2")
e("s_lshr_b32 s4, s2, 4")
e("s_lshl_b32 s4, s4, 7")
e("s_and_b32 s5, s2, 15")
e("s_lshl_b32 s5, s5, 3")
e("s_add_u32 s4, s4, s5")
e("s_lshl_b32 s4, s4, 4")
e(f"s_add_u32 s4, s4, {WS_OP}")
e(f"s_lshl_b32 s5, s{S_WAVE}, 18")
e("s_add_u32 s86, s4, s5")
for k in range(1, 4):
    e(f"s_add_u32 s{86+k}, s86, {k*65536}")
e(f"s_lshl_b32 s5, s{S_WAVE}, 15")
e("s_add_u32 s5, s4, s5")
e(f"s_add_u32 s85, s5, {128*8192}")
e("v_and_b32 v60, 7, v0")
e("v_lshlrev_b32 v60, 4, v60")
e("v_lshrrev_b32 v61, 3, v0")
e("v_lshl_add_u32 v60, v61, 13, v60")
e("v_and_b32 v62, 3, v61")
e(f"s_lshl_b32 s5, s{S_WAVE}, 2")
e("s_sub_u32 s5, 13, s5")
e("v_min_u32 v62, s5, v62")
e("v_and_b32 v63, 7, v0")
e("v_lshlrev_b32 v63, 4, v63")
e("v_lshl_add_u32 v62, v62, 13, v63")
o_loads = [f"buffer_load_dwordx4 v[{32+4*k}:{35+4*k}], v60, s[{SRD_WS}:{SRD_WS+3}], s{86+k} offen sc1" for k in range(4)]
o_loads.append(f"buffer_load_dwordx4 v[48:51], v62, s[{SRD_WS}:{SRD_WS+3}], s85 offen sc1")
e("s_cmp_ge_u32 s2, 64")
e("s_cbranch_scc1 L_c_nowarm")
with Guard():
    if not (OPT["jit"] & 4):
        for l in o_loads:
            e(l)
    srd(SRD_M, 36, 1024)
    e(f"buffer_load_dwordx4 v[64:67], v3, s[{SRD_M}:{SRD_M+3}], 0 offen")
    e("s_lshr_b32 s4, s2, 4")
    e("s_lshl_b32 s4, s4, 10")
    e(f"buffer_load_dwordx4 v[68:71], v3, s[{SRD_X}:{SRD_X+3}], s4 offen")
    srd(SRD_OUT, 34, 1024)
    e("v_and_b32 v6, 31, v0")
    e("v_lshlrev_b32 v6, 1, v6")
    e("s_and_b32 s4, s2, 15")
    e("s_lshl_b32 s4, s4, 6")
    e(f"buffer_load_ushort v72, v6, s[{SRD_OUT}:{SRD_OUT+3}], s4 offen")
lab("L_c_nowarm")
if_dry_goto("L_secAG")
e("s_cmp_lt_u32 s2, 112")
e("s_cbranch_scc1 L_secAG")
e("s_cmp_ge_u32 s2, 224")
e("s_cbranch_scc1 L_secAG")
lab("L_secH")
e("s_sub_u32 s9, s2, 112")
e("s_lshr_b32 s9, s9, 3")
e("s_min_u32 s9, s9, 13")
e(f"s_mul_i32 s4, s{S_WAVE}, 448")
e("s_lshl_b32 s5, s9, 5")
e("s_add_u32 s4, s4, s5")
e("s_lshl_b32 s4, s4, 4")
e(f"s_add_u32 s4, s4, {WS_HP}")
e(f"s_add_u32 s5, s4, {4*448*16}")
srd(SRD_M, 30, 3584)
e("s_lshl_b32 s9, s9, 8")
e("v_and_b32 v6, 31, v0")
e("v_lshlrev_b32 v4, 4, v6")
e("v_lshlrev_b32 v6, 3, v6")
e(f"buffer_load_dwordx2 v[80:81], v6, s[{SRD_M}:{SRD_M+3}], s9 offen")
e("v_lshrrev_b32 v7, 5, v0")
e(f"s_mov_b32 s6, {2*4*448*16}")
e("v_mul_lo_u32 v7, s6, v7")
e("v_add_u32 v4, v7, v4")
poll("h", [f"buffer_load_dwordx4 @, v4, s[{SRD_WS}:{SRD_WS+3}], s{4+k} offen sc1" for k in range(2)],
     [16, 20], 6, OPT["sleep_q"])
for i in range(4):
    e(f"v_add_f32 v{24+i}, v{16+i}, v{20+i}")
swap_reduce("v_add_f32", [24, 25, 26, 27], [28, 29, 30, 31], ("v_permlane32_swap_b32",))
for p in range(2):
    a, b_ = 24 + 2 * p, 25 + 2 * p
    bf16_round_pair(28, a, b_, a, b_)
    e(f"v_lshlrev_b32 v28, 16, v{80+p}")
    e(f"v_and_b32 v29, 0xffff0000, v{80+p}")
    e(f"v_add_f32 v{a}, v{a}, v28")
    e(f"v_add_f32 v{b_}, v{b_}, v29")
    bf16_round_pair(28, a, b_, a, b_)
e("v_mov_b32 v31, 0x3d372713")
for r in (24, 25, 26, 27):
    e(f"v_mul_f32 v30, v{r}, v{r}")
    e(f"v_mul_f32 v30, v30, v{r}")
    e(f"v_fma_f32 v30, v30, v31, v{r}")
    e(f"v_mul_f32 v30, 0x40135761, v30")
    e(f"v_exp_f32 v30, v30")
    e("s_nop 0")
    e(f"v_add_f32 v30, 1.0, v30")
    e(f"v_rcp_f32 v30, v30")
    e("s_nop 0")
    e(f"v_fma_f32 v30, v30, -2.0, 2.0")
    e(f"v_mul_f32 v30, 0.5, v30")
    e(f"v_mul_f32 v{r}, v{r}, v30")
e("v_cvt_pk_bf16_f32 v24, v24, v25")
e("v_cvt_pk_bf16_f32 v25, v26, v27")
with Guard():
    e(f"ds_write_b64 v5, v[24:25] offset:{L_HA}")
    lds_signal(C_H, 6)
    e("s_cmp_eq_u32 s14, 1")
    e("s_cbranch_scc0 L_secAG")
lds_wait(C_H, 4, 6)
e(f"ds_read_b128 v[{VA}:{VA+3}], v11 offset:{L_HA}")
e(f"ds_read_b128 v[{VA2}:{VA2+3}], v11 offset:{L_HA+128}")
with Guard():
    e("s_waitcnt vmcnt(0)")
e("s_waitcnt lgkmcnt(0)")
tile128(VA, VA2, 15, W=W3, B=B3, ACC=ACC3, G=W3)
e("s_sub_u32 s5, s2, 112")
e("s_lshr_b32 s4, s5, 3")
e("s_add_u32 s4, s4, 128")
e("s_lshl_b32 s4, s4, 9")
e("s_and_b32 s5, s5, 7")
e("s_lshl_b32 s5, s5, 4")
e("s_add_u32 s4, s4, s5")
e("s_lshl_b32 s4, s4, 4")
e(f"s_add_u32 s4, s4, {WS_OP}")
e("v_and_b32 v1, 15, v0")
e(f"v_lshl_add_u32 v1, v{TMP+8}, 7, v1")
e("v_lshlrev_b32 v1, 4, v1")
if_dry_goto("L_dry_done_comm")
e(f"buffer_store_dwordx4 v[{TMP}:{TMP+3}], v1, s[{SRD_WS}:{SRD_WS+3}], s4 offen sc1")
lab("L_secAG")
e(f"s_lshl_b32 s4, s{S_WAVE}, 5")
e("s_lshr_b32 s5, s2, 3")
e("s_add_u32 s4, s4, s5")
e("s_lshl_b32 s6, s4, 2")
e("s_bfe_u32 s5, s2, 0x20001")
e("s_add_u32 s6, s6, s5")
e("s_lshl_b32 s6, s6, 10")
e(f"s_add_u32 s6, s6, {WS_APO}")
e(f"s_lshl_b32 s4, s4, {10 if OPT['apm128'] else 7}")
e(f"s_add_u32 s4, s4, {WS_APM}")
e(f"v_lshlrev_b32 v4, {7 if OPT['apm128'] else 4}, v61")
if OPT["jit"] & 2:
    lds_wait(C_O, 4, 6)
poll("a", [f"buffer_load_dwordx4 @, v3, s[{SRD_WS}:{SRD_WS+3}], s6 offen sc1",
           f"buffer_load_dwordx4 @, v4, s[{SRD_WS}:{SRD_WS+3}], s4 offen sc1"], [16, 20], 6, OPT["sleep_t"], altbase=168)
stamp(3, True)
e("v_mov_b32 v24, v20")
dpp_reduce("v_max_f32", [24], ["row_ror:8"])
swap_reduce("v_max_f32", [24], [25])
e("v_sub_f32 v25, v20, v24")
e("v_mul_f32 v25, 0x3fb8aa3b, v25")
e("v_exp_f32 v25, v25")
e("s_nop 0")
e("v_mul_f32 v26, v25, v21")
for i in range(4):
    e(f"v_mul_f32 v{84+i}, v25, v{16+i}")
dpp_reduce("v_add_f32", [26, 84, 85, 86, 87], ["row_ror:8"])
swap_reduce("v_add_f32", [26, 84, 85, 86, 87], [27, 28, 29, 30, 31])
e("v_rcp_f32 v27, v26")
e("s_nop 0")
e("v_fma_f32 v28, -v26, v27, 2.0")
e("v_mul_f32 v27, v27, v28")
for i in range(4):
    e(f"v_mul_f32 v{84+i}, v27, v{84+i}")
e("v_cvt_pk_bf16_f32 v84, v84, v85")
e("v_cvt_pk_bf16_f32 v85, v86, v87")
e(f"s_lshl_b32 s4, s{S_WAVE}, 6")
e("v_lshlrev_b32 v4, 3, v0")
e("v_add_u32 v4, s4, v4")
with Guard():
    e("s_mov_b64 exec, 0xff")
    e(f"ds_write_b64 v4, v[84:85] offset:{L_OA}")
    e("s_mov_b64 exec, -1")
    lds_signal(C_A, 6)
stamp(4, True)
if_dry_goto("L_secC")
e(f"s_cmp_lt_u32 s{S_WAVE}, 2")
e("s_cbranch_scc1 L_secC_done")
lab("L_secC")
e("s_lshr_b32 s4, s2, 1")
e("s_lshl_b32 s4, s4, 9")
e("s_and_b32 s5, s2, 1")
e("s_lshl_b32 s5, s5, 6")
e("s_add_u32 s4, s4, s5")
e(f"s_sub_u32 s5, s{S_WAVE}, 2")
e("s_lshl_b32 s5, s5, 5")
e("s_add_u32 s4, s4, s5")
e("s_lshl_b32 s4, s4, 4")
e(f"s_add_u32 s4, s4, {WS_OP}")
e("s_add_u32 s5, s4, 4096")
e("v_lshlrev_b32 v2, 5, v0")
e("v_and_b32 v1, 3, v0")
e("v_lshlrev_b32 v1, 6, v1")
e("v_lshrrev_b32 v9, 4, v0")
e("v_lshl_add_u32 v1, v9, 4, v1")
lds_wait(C_A, 4, 6)
e(f"ds_read_b128 v[{VA}:{VA+3}], v1 offset:{L_OA}")
with Guard():
    e("s_waitcnt vmcnt(0)")
e("s_waitcnt lgkmcnt(0)")
tile_mm(W3, VA, B3, ACC3)
e("s_nop 7")
e("s_nop 1")
if not OPT["opfull"]:
    for b in range(4):
        for hf in range(2):
            d = TMP + 8 * b + 4 * hf
            tagq(d, [ACC3 + 4 * (4 * hf + i) + b for i in range(4)])
    with Guard():
        set_exec("0xffff", 0)
        for b in range(4):
            for hf in range(2):
                d = TMP + 8 * b + 4 * hf
                e(f"buffer_store_dwordx4 v[{d}:{d+3}], v2, s[{SRD_WS}:{SRD_WS+3}], s{4+(b>>1)} offen offset:{2048*(b&1)+16*hf} sc1")
        e("s_mov_b64 exec, -1")
else:
    e("v_and_b32 v6, 16, v0")
    e("v_cmp_ne_u32 s[90:91], 0, v6")
    e("v_cmp_lt_u32 s[92:93], 31, v0")
    e("s_nop 1")
    for k in range(2):
        for i in range(4):
            t0, t1 = TMP + 16, TMP + 17
            e(f"v_cndmask_b32 v{t0}, v{ACC3+4*i+k}, v{ACC3+4*(4+i)+k}, s[90:91]")
            e(f"v_cndmask_b32 v{t1}, v{ACC3+4*i+2+k}, v{ACC3+4*(4+i)+2+k}, s[90:91]")
            e(f"v_cndmask_b32 v{TMP+8+4*k+i}, v{t0}, v{t1}, s[92:93]")
        tagq(TMP + 4 * k, [TMP + 8 + 4 * k + i for i in range(4)])
    e("v_and_b32 v2, 15, v0")
    e("v_lshlrev_b32 v2, 5, v2")
    e("v_add_u32 v2, v6, v2")
    e("v_lshrrev_b32 v6, 5, v0")
    e("v_lshl_add_u32 v2, v6, 12, v2")
    with Guard():
        for k in range(2):
            e(f"buffer_store_dwordx4 v[{TMP+4*k}:{TMP+4*k+3}], v2, s[{SRD_WS}:{SRD_WS+3}], s4 offen offset:{2048*k} sc1")
stamp(2, True)
lab("L_secC_done")
e("s_cmp_lt_u32 s2, 64")
e("s_cbranch_scc1 L_secF")
if_dry_goto("L_secH")
e("s_branch L_exit_c")
lab("L_secF")
GS = 74
for d in range(4):
    e(f"v_lshlrev_b32 v76, 16, v{68+d}")
    e(f"v_and_b32 v77, 0xffff0000, v{68+d}")
    e(f"v_lshlrev_b32 v78, 16, v{64+d}")
    e(f"v_and_b32 v79, 0xffff0000, v{64+d}")
    e("v_mul_f32 v76, v76, v78")
    e("v_mul_f32 v77, v77, v79")
    bf16_round_pair(78, 76, 77, 76, 77)
    if d == 0:
        e(f"v_add_f32 v{GS}, v76, v77")
    else:
        e(f"v_add_f32 v{GS}, v{GS}, v76")
        e(f"v_add_f32 v{GS}, v{GS}, v77")
dpp_reduce("v_add_f32", [GS], ROW16)
swap_reduce("v_add_f32", [GS], [76])
e(f"v_cvt_pk_bf16_f32 v75, v{GS}, v{GS}")
e("v_lshlrev_b32 v75, 16, v75")
e("v_mul_f32 v75, 0xbfb8aa3b, v75")
e("v_exp_f32 v75, v75")
e("s_nop 0")
e("v_add_f32 v75, 1.0, v75")
e("v_rcp_f32 v76, v75")
e("s_nop 0")
e("v_fma_f32 v77, -v75, v76, 2.0")
e("v_mul_f32 v76, v76, v77")
e("v_cvt_pk_bf16_f32 v76, v76, v76")
e("v_lshlrev_b32 v75, 16, v76")
e("v_sub_f32 v76, 1.0, v75")
e("v_cvt_pk_bf16_f32 v76, v76, v76")
e("v_lshlrev_b32 v76, 16, v76")
e("v_lshlrev_b32 v73, 16, v72")
poll("o", [re.sub(r"v\[\d+:\d+\]", "@", l, count=1) for l in o_loads], [32, 36, 40, 44, 48], 1, OPT["sleep_t"], altbase=128)
stamp(5, True)
e(f"s_lshl_b32 s5, s{S_WAVE}, 5")
e("s_sub_u32 s5, 112, s5")
e("s_min_u32 s5, s5, 32")
e("v_cmp_gt_u32 vcc, s5, v0")
e("s_nop 1")
for i in range(4):
    e(f"v_cndmask_b32 v{92+i}, 0, v{48+i}, vcc")
    e(f"v_add_f32 v{88+i}, v{32+i}, v{36+i}")
    e(f"v_add_f32 v{52+i}, v{40+i}, v{44+i}")
for i in range(4):
    e(f"v_add_f32 v{88+i}, v{88+i}, v{52+i}")
regs = [88 + i for i in range(8)]
dpp_reduce("v_add_f32", regs, ["row_ror:8"])
swap_reduce("v_add_f32", regs, [52 + i for i in range(8)])
e(f"s_lshl_b32 s4, s{S_WAVE}, 7")
e("v_add_u32 v4, s4, v3")
with Guard():
    e("s_mov_b64 exec, 0xff")
    e(f"ds_write_b128 v4, v[88:91] offset:{L_F}")
    e(f"ds_write_b128 v4, v[92:95] offset:{L_F+512}")
    e("s_mov_b64 exec, -1")
    lds_signal(C_F, 6)
    e(f"s_cmp_lg_u32 s{S_WAVE}, 0")
    e("s_cbranch_scc1 L_exit_c")
lds_wait(C_F, 4, 6)
e("v_and_b32 v6, 31, v0")
e("v_lshlrev_b32 v4, 2, v6")
for w in range(8):
    e(f"ds_read_b32 v{52+w}, v4 offset:{L_F+128*w}")
e("s_waitcnt lgkmcnt(0)")
e("v_add_f32 v52, v52, v53")
e("v_add_f32 v54, v54, v55")
e("v_add_f32 v56, v56, v57")
e("v_add_f32 v58, v58, v59")
e("v_add_f32 v52, v52, v54")
e("v_add_f32 v56, v56, v58")
bf16_round_pair(54, 52, 56, 52, 56)
e("v_add_f32 v56, v56, v73")
e("v_cvt_pk_bf16_f32 v54, v56, v56")
e("v_lshlrev_b32 v56, 16, v54")
e("v_mul_f32 v52, v75, v52")
e("v_mul_f32 v56, v76, v56")
bf16_round_pair(54, 52, 56, 52, 56)
e("v_add_f32 v52, v52, v56")
e("v_cvt_pk_bf16_f32 v52, v52, v52")
e("v_lshlrev_b32 v6, 1, v6")
e("s_lshl_b32 s4, s2, 6")
if_dry_goto("L_secH")
srd(SRD_OUT, 38, 4096)
set_exec("-1", 0)
e(f"buffer_store_short v52, v6, s[{SRD_OUT}:{SRD_OUT+3}], s4 offen")
e("s_cmp_lg_u32 s2, 0")
e("s_cbranch_scc1 L_exit_c")
e("s_mov_b64 exec, 1")
e(f"v_mov_b32 v1, 0")
e(f"v_mov_b32 v4, s{S_TAG}")
e(f"v_mov_b32 v5, s{S_TAG+1}")
e(f"buffer_store_dwordx2 v[4:5], v1, s[{SRD_WS}:{SRD_WS+3}], 0 offen offset:{WS_GEN} sc1")
lab("L_exit_c")
dump_stamps(True)
lab("L_exit")
e("s_endpgm")
if not OPT["dry"]:
    lab("L_dry_done_data")
    lab("L_dry_done_comm")
    e("s_endpgm")

out.append('.section .rodata,"a"')
out.append(".p2align 6")
out.append(f".amdhsa_kernel {NAME}_kernel")
out.append("  .amdhsa_next_free_vgpr 240")
out.append("  .amdhsa_next_free_sgpr 102")
out.append("  .amdhsa_accum_offset 240")
out.append("  .amdhsa_group_segment_fixed_size 0")
out.append("  .amdhsa_kernarg_size 112")
out.append("  .amdhsa_user_sgpr_count 2")
out.append("  .amdhsa_user_sgpr_kernarg_segment_ptr 1")
out.append("  .amdhsa_system_sgpr_workgroup_id_x 1")
out.append(".end_amdhsa_kernel")

dst = sys.argv[1] if len(sys.argv) > 1 else f"cdna_kernels/{NAME}.s"
open(dst, "w").write("\n".join(out) + "\n")
print("wrote", dst, len(out), "lines")
```

```python
import sys
import re

NAME = "gated_mix__sliding_block_cached__mixer_channel_mlp__decode"

OPT = dict(
    stamps=0,
    nt=1,
    depth=6,
    sleep_l=1,
    sleep_q=1,
    sleep_t=0,
    dry=1,
    k_after=0,
    pp=0,
    q2=0,
    kdma=1,
    jit=0,
    jit_k=7,
    vstamp=0,
    w1_late=0,
    go_pub=0,
    opfull=1,
    apm128=1,
)
for a in sys.argv[2:]:
    k, v = a.split("=")
    OPT[k] = int(v)

WS_GEN = 0
WS_QP = 0x10000
WS_HP = WS_QP + 4 * 4 * 1024 * 16
WS_APO = WS_HP + 4 * 4 * 448 * 16
WS_APM = WS_APO + 4 * 32 * 4 * 8 * 8 * 16
WS_OP = WS_APM + 4 * 32 * 8 * 128
WS_ST = WS_OP + 142 * 4 * 128 * 16
WS_END = WS_ST + 256 * 8 * 16 * 8
open("gen_layout.py", "w").write(f"WS_ST = {WS_ST}\n")

L_PIECE = 0
L_QS = 8192
L_OW = 9216
L_ML = 17408
L_OA = 17536
L_HA = 17792
L_F = 18816
L_CNT = 19840
L_K = 20480
L_END = L_K + 32768
LDS_BYTES = 53248
assert L_END <= LDS_BYTES
C_Q, C_O, C_H, C_A, C_F, C_GO, C_K = 0, 4, 8, 12, 16, 20, 24

out = []


def e(s):
    out.append("    " + s)


def lab(s):
    out.append(s + ":")


NT = " nt" if OPT["nt"] else ""
S_WAVE = 3
SRD_X, SRD_K, SRD_V, SRD_W1, SRD_W3, SRD_WS, SRD_OUT, SRD_M = 44, 48, 52, 56, 60, 64, 68, 72
S_TAG = 76
S_SELLO, S_SELHI = 78, 79
S_T0 = 80
S_MASK = 96
S_DRY = 97
S_STAMP = 100
V_ST = 236
uid = [0]


def nid():
    uid[0] += 1
    return uid[0]


class Guard:
    def __enter__(self):
        self.n = nid()
        e(f"s_cmp_lg_u32 s{S_DRY}, 0")
        e(f"s_cbranch_scc1 L_g{self.n}")

    def __exit__(self, *a):
        lab(f"L_g{self.n}")


def if_dry_goto(label):
    e(f"s_cmp_lg_u32 s{S_DRY}, 0")
    e(f"s_cbranch_scc1 {label}")


def srd(dst, ptr, nbytes):
    e(f"s_mov_b32 s{dst}, s{ptr}")
    e(f"s_and_b32 s{dst+1}, s{ptr+1}, 0xffff")
    e(f"s_mov_b32 s{dst+2}, {nbytes}")
    e(f"s_mov_b32 s{dst+3}, 0x00020000")


def stamp_raw(i, comm):
    va, vt = V_ST, V_ST + 2
    e(f"s_lshl_b32 s98, s2, 3")
    e(f"s_add_u32 s98, s98, s{S_WAVE}")
    if comm:
        e("s_add_u32 s98, s98, 4")
    e(f"s_lshl_b32 s98, s98, 7")
    e(f"s_add_u32 s98, s98, {WS_ST + 8 * i}")
    e(f"v_mov_b32 v{va}, s98")
    e(f"v_mov_b32 v{vt}, s{S_STAMP}")
    e(f"v_mov_b32 v{vt+1}, s{S_STAMP+1}")
    e(f"s_mov_b64 s[98:99], exec")
    e(f"s_mov_b64 exec, 1")
    e(f"buffer_store_dwordx2 v[{vt}:{vt+1}], v{va}, s[{SRD_WS}:{SRD_WS+3}], 0 offen")
    e(f"s_mov_b64 exec, s[98:99]")


STAMP_MAP_D = {0: 0, 3: 1, 5: 2, 2: 3, 6: 4, 7: 5, 8: 6}
STAMP_MAP_C = {0: 0, 1: 1, 3: 2, 2: 3, 5: 4, 7: 6, 6: 5}


def stamp(i, comm=False):
    if not OPT["stamps"]:
        return
    m = STAMP_MAP_C if comm else STAMP_MAP_D
    if i not in m:
        return
    k = m[i]
    with Guard():
        e(f"s_memrealtime s[{16+2*k}:{17+2*k}]")


def dump_stamps(comm):
    if not OPT["stamps"]:
        return
    m = STAMP_MAP_C if comm else STAMP_MAP_D
    e("s_waitcnt lgkmcnt(0)")
    e("s_mov_b64 exec, -1")
    if OPT["stamps"] == 2:
        srd(SRD_M, 40, 256)
        e("s_mov_b64 exec, 1")
        for i, k in m.items():
            if comm and i in (6,):
                continue
            slot = i if not comm else {0: 9, 1: 10, 3: 11, 4: 12, 5: 13, 7: 14}[i]
            n_ = nid()
            if (not comm) and i in (7, 8):
                e(f"s_cmp_lt_u32 s{S_WAVE}, 2")
                e(f"s_cbranch_scc1 L_ds{n_}")
            if comm and i == 0:
                e("s_cmp_eq_u32 s8, 0")
                e(f"s_cbranch_scc1 L_ds{n_}")
            if comm and i == 5:
                e("s_cmp_ge_u32 s2, 64")
                e(f"s_cbranch_scc1 L_ds{n_}")
            e(f"v_mov_b32 v{V_ST}, {4*slot}")
            if (not comm) and i == 0:
                e(f"s_not_b32 s{S_STAMP}, s{16+2*k}")
                e(f"v_mov_b32 v{V_ST+1}, s{S_STAMP}")
            else:
                e(f"v_mov_b32 v{V_ST+1}, s{16+2*k}")
            e(f"buffer_atomic_umax v{V_ST+1}, v{V_ST}, s[{SRD_M}:{SRD_M+3}], 0 offen")
            e("s_nop 1")
            lab(f"L_ds{n_}")
        return
    for i, k in m.items():
        e(f"s_mov_b32 s{S_STAMP}, s{16+2*k}")
        e(f"s_mov_b32 s{S_STAMP+1}, s{17+2*k}")
        stamp_raw(i, comm)
        e("s_nop 1")


def tile_mm(W, A, B, ACC, acc_in=False):
    for q in range(4):
        for i in range(4):
            e(f"v_perm_b32 v{B+i}, v{W+4*(2*i+1)+q}, v{W+4*(2*i)+q}, s{S_SELLO}")
        for i in range(4):
            e(f"v_perm_b32 v{B+4+i}, v{W+4*(2*i+1)+q}, v{W+4*(2*i)+q}, s{S_SELHI}")
        e("s_nop 1")
        for jj in range(2):
            j = 2 * q + jj
            c = f"v[{ACC+4*j}:{ACC+4*j+3}]" if acc_in else "0"
            e(f"v_mfma_f32_16x16x32_bf16 v[{ACC+4*j}:{ACC+4*j+3}], v[{A}:{A+3}], v[{B+4*jj}:{B+4*jj+3}], {c}")


VT = 188
VTRAW = 186


def load_tag(vtmp):
    e(f"v_mov_b32 v{vtmp}, 0")
    e(f"buffer_load_dwordx2 v[{VTRAW}:{VTRAW+1}], v{vtmp}, s[{SRD_WS}:{SRD_WS+3}], 0 offen offset:{WS_GEN} sc1")


def finish_tag():
    e(f"v_readfirstlane_b32 s{S_TAG}, v{VTRAW}")
    e(f"v_readfirstlane_b32 s{S_TAG+1}, v{VTRAW+1}")
    e("s_nop 3")
    e(f"s_add_u32 s{S_TAG}, s{S_TAG}, 1")
    e(f"s_addc_u32 s{S_TAG+1}, s{S_TAG+1}, 0")
    e(f"s_and_b32 s{S_T0}, s{S_TAG}, 0x3ff")
    e(f"s_bfe_u32 s{S_T0+1}, s{S_TAG}, 0xa000a")
    e(f"s_bfe_u32 s{S_T0+2}, s{S_TAG}, 0xa0014")
    e(f"s_lshr_b64 s[{S_T0+4}:{S_T0+5}], s[{S_TAG}:{S_TAG+1}], 30")
    e(f"s_and_b32 s{S_T0+3}, s{S_T0+4}, 0x3ff")
    for i in range(4):
        e(f"v_mov_b32 v{VT+i}, s{S_T0+i}")


def tagq(dst, srcs):
    for i in range(4):
        e(f"v_bfi_b32 v{dst+i}, s{S_MASK}, v{VT+i}, v{srcs[i]}")


def poll(name, loads, quads, vx, sleep, maxit=100000, altbase=None):
    n = len(loads)

    def issue(base_map):
        for l, q in zip(loads, quads):
            r = base_map(q)
            e(l.replace("@", f"v[{r}:{r+3}]"))

    def check(base_map):
        first = True
        for q in quads:
            r = base_map(q)
            for i in range(4):
                if first:
                    e(f"v_xor_b32 v{vx}, v{r+i}, v{VT+i}")
                    first = False
                else:
                    e(f"v_xor_b32 v{vx+1}, v{r+i}, v{VT+i}")
                    e(f"v_or_b32 v{vx}, v{vx}, v{vx+1}")
        e(f"v_and_b32 v{vx}, 0x3ff, v{vx}")
        e(f"v_cmp_ne_u32 vcc, 0, v{vx}")

    A = lambda q: q
    e(f"s_mov_b32 s{S_T0+10}, {maxit}")
    if not OPT["pp"] or altbase is None:
        lab(f"L_poll_{name}")
        issue(A)
        with Guard():
            e("s_waitcnt vmcnt(0)")
        check(A)
        if_dry_goto(f"L_pdone_{name}")
        e(f"s_cmp_eq_u64 vcc, 0")
        e(f"s_cbranch_scc1 L_pdone_{name}")
        e(f"s_sub_u32 s{S_T0+10}, s{S_T0+10}, 1")
        e(f"s_cmp_eq_u32 s{S_T0+10}, 0")
        e(f"s_cbranch_scc1 L_pdone_{name}")
        if sleep:
            e(f"s_sleep {sleep}")
        e(f"s_branch L_poll_{name}")
        lab(f"L_pdone_{name}")
        return
    B = lambda q: altbase + (q - quads[0])
    issue(A)
    lab(f"L_poll_{name}")
    e(f"s_sleep {OPT['pp']}")
    issue(B)
    with Guard():
        e(f"s_waitcnt vmcnt({n})")
    check(A)
    if_dry_goto(f"L_pB_{name}")
    e(f"s_cmp_eq_u64 vcc, 0")
    e(f"s_cbranch_scc1 L_pdone_{name}")
    e(f"s_sleep {OPT['pp']}")
    issue(A)
    e(f"s_waitcnt vmcnt({n})")
    check(B)
    e(f"s_cmp_eq_u64 vcc, 0")
    e(f"s_cbranch_scc1 L_pB_{name}")
    e(f"s_sub_u32 s{S_T0+10}, s{S_T0+10}, 1")
    e(f"s_cmp_eq_u32 s{S_T0+10}, 0")
    e(f"s_cbranch_scc0 L_poll_{name}")
    lab(f"L_pB_{name}")
    for q in quads:
        for i in range(4):
            e(f"v_mov_b32 v{q+i}, v{B(q)+i}")
    lab(f"L_pdone_{name}")


def lds_signal(cnt, vtmp):
    e("s_waitcnt lgkmcnt(0)")
    e(f"v_mov_b32 v{vtmp}, {L_CNT+cnt}")
    e(f"v_mov_b32 v{vtmp+1}, 1")
    e("s_mov_b64 exec, 1")
    e(f"ds_add_u32 v{vtmp}, v{vtmp+1}")
    e("s_mov_b64 exec, -1")


def lds_wait(cnt, target, vtmp):
    n = nid()
    e(f"v_mov_b32 v{vtmp}, {L_CNT+cnt}")
    e(f"s_mov_b32 s{S_T0+11}, 4000000")
    lab(f"L_lw{n}")
    e(f"ds_read_b32 v{vtmp+1}, v{vtmp}")
    e("s_waitcnt lgkmcnt(0)")
    e(f"v_readfirstlane_b32 s{S_T0+12}, v{vtmp+1}")
    if_dry_goto(f"L_lwd{n}")
    e("s_nop 1")
    e(f"s_cmp_ge_u32 s{S_T0+12}, {target}")
    e(f"s_cbranch_scc1 L_lwd{n}")
    e(f"s_sub_u32 s{S_T0+11}, s{S_T0+11}, 1")
    e(f"s_cmp_eq_u32 s{S_T0+11}, 0")
    e(f"s_cbranch_scc1 L_lwd{n}")
    if OPT["sleep_l"]:
        e(f"s_sleep {OPT['sleep_l']}")
    e(f"s_branch L_lw{n}")
    lab(f"L_lwd{n}")


def bf16_round_pair(dst_pk, a, b, lo, hi):
    e(f"v_cvt_pk_bf16_f32 v{dst_pk}, v{a}, v{b}")
    e(f"v_lshlrev_b32 v{lo}, 16, v{dst_pk}")
    e(f"v_and_b32 v{hi}, 0xffff0000, v{dst_pk}")


def dpp_reduce(op, regs, ctls):
    for ctl in ctls:
        e("s_nop 1")
        for r in regs:
            e(f"{op}_dpp v{r}, v{r}, v{r} {ctl} row_mask:0xf bank_mask:0xf")


ROW16 = ["quad_perm:[1,0,3,2]", "quad_perm:[2,3,0,1]", "row_half_mirror", "row_mirror"]


def swap_reduce(op, regs, tmps, sws=("v_permlane16_swap_b32", "v_permlane32_swap_b32")):
    for sw in sws:
        for r, t in zip(regs, tmps):
            e(f"v_mov_b32 v{t}, v{r}")
        e("s_nop 1")
        for r, t in zip(regs, tmps):
            e(f"{sw} v{r}, v{t}")
        e("s_nop 1")
        for r, t in zip(regs, tmps):
            e(f"{op} v{r}, v{r}, v{t}")


def set_exec(lo, hi):
    e(f"s_mov_b32 exec_lo, {lo}")
    e(f"s_mov_b32 exec_hi, {hi}")


VW, VK, VV, VB, VACC = 16, 80, 112, 144, 152
VA, VA2 = 12, 224
VX = 152
TMP = 192


def lane_setup():
    e("v_and_b32 v1, 7, v0")
    e("v_bfe_u32 v2, v0, 3, 1")
    e("v_lshrrev_b32 v3, 4, v0")
    e("v_lshlrev_b32 v4, 5, v2")
    e("v_lshl_add_u32 v4, v3, 3, v4")
    e("v_and_b32 v5, 3, v0")
    e("v_bfe_u32 v6, v0, 2, 1")
    e("v_lshlrev_b32 v6, 5, v6")
    e("v_lshl_add_u32 v6, v3, 3, v6")
    e("v_lshlrev_b32 v11, 1, v6")
    e("v_lshl_add_u32 v6, v5, 10, v11")
    e("v_lshl_add_u32 v11, v5, 8, v11")
    e("v_lshlrev_b32 v10, 5, v1")
    e("v_lshl_add_u32 v10, v2, 10, v10")


def gather_quads(G, ACC=None):
    ACC = VACC if ACC is None else ACC
    for b in range(4):
        for hf in range(2):
            for i in range(4):
                e(f"v_mov_b32 v{G+8*b+4*hf+i}, v{ACC+4*(4*hf+i)+b}")


def tile128(A1, A2, piece_off_sreg, W=None, B=None, ACC=None, G=120):
    W = VW if W is None else W
    B = VB if B is None else B
    ACC = VACC if ACC is None else ACC
    tile_mm(W, A1, B, ACC)
    tile_mm(W + 32, A2, B, ACC, acc_in=True)
    e("v_lshlrev_b32 v1, 4, v0")
    e(f"v_lshrrev_b32 v{TMP+8}, 4, v0")
    e(f"v_add_u32 v1, s{piece_off_sreg}, v1")
    e(f"v_add_u32 v2, s{piece_off_sreg}, v10")
    e("s_nop 7")
    gather_quads(G, ACC)
    with Guard():
        set_exec("0xff0000ff", 0)
        for b in range(4):
            for hf in range(2):
                e(f"ds_write_b128 v2, v[{G+8*b+4*hf}:{G+8*b+4*hf+3}] offset:{256*b+16*hf}")
        e("s_mov_b64 exec, -1")
    e("s_waitcnt lgkmcnt(0)")
    e(f"ds_read_b128 v[{TMP}:{TMP+3}], v1")
    e(f"ds_read_b128 v[{TMP+4}:{TMP+7}], v1 offset:1024")
    e("s_waitcnt lgkmcnt(0)")
    for i in range(4):
        e(f"v_add_f32 v{TMP+i}, v{TMP+i}, v{TMP+4+i}")
    tagq(TMP, [TMP, TMP + 1, TMP + 2, TMP + 3])


hdr = open(f"cdna_kernels/{NAME}.s.ref").read().split("\n")
top = [l for l in hdr if l.startswith(";") and "@launch" not in l]
out.extend(top)
out.append(f"; @launch grid=(256,1,1) block=(512,1,1) lds={LDS_BYTES}")
out.append('.amdgcn_target "amdgcn-amd-amdhsa--gfx950"')
out.append(".text")
out.append(f".globl {NAME}_kernel")
out.append(".p2align 8")
out.append(f".type {NAME}_kernel,@function")
lab(f"{NAME}_kernel")

e("s_cmp_ge_u32 s2, 256")
e("s_cbranch_scc1 L_exit")
e("s_load_dwordx16 s[16:31], s[0:1], 0")
e("s_load_dwordx8 s[32:39], s[0:1], 64")
e("s_load_dwordx4 s[40:43], s[0:1], 96")
e("v_lshrrev_b32 v1, 6, v0")
e("v_and_b32 v0, 63, v0")
e(f"s_mov_b32 s{S_SELLO}, 0x05040100")
e(f"s_mov_b32 s{S_SELHI}, 0x07060302")
e(f"s_mov_b32 s{S_MASK}, 0x3ff")
e(f"s_mov_b32 s{S_DRY}, 0")
e(f"v_readfirstlane_b32 s{S_WAVE}, v1")
lane_setup()
e("s_waitcnt lgkmcnt(0)")
srd(SRD_X, 16, 4096)
srd(SRD_WS, 42, WS_END)
e(f"s_cmp_ge_u32 s{S_WAVE}, 4")
e("s_cbranch_scc1 L_comm")

srd(SRD_K, 18, 33554432)
srd(SRD_V, 20, 33554432)
stamp(0)
e("s_lshr_b32 s10, s2, 3")
e("s_lshl_b32 s10, s10, 12")
e("s_and_b32 s11, s2, 7")
e("s_lshl_b32 s11, s11, 7")
e("s_add_u32 s10, s10, s11")
e(f"s_lshl_b32 s11, s{S_WAVE}, 5")
e("s_add_u32 s10, s10, s11")
e("s_add_u32 s10, s10, 3072")
e("s_lshl_b32 s10, s10, 8")
e("s_add_u32 s11, s10, 4096")
e("v_and_b32 v8, 15, v0")
e("v_lshlrev_b32 v9, 4, v8")
e("v_lshlrev_b32 v8, 8, v8")
e("v_lshl_add_u32 v8, v3, 4, v8")
e("v_lshl_add_u32 v9, v3, 10, v9")
load_tag(2)
D = OPT["depth"]
seq = []
if OPT["kdma"]:
    e("v_and_b32 v12, 15, v0")
    for i4 in range(4):
        e(f"v_add_u32 v13, {4*i4}, v3")
        e(f"v_xor_b32 v14, v12, v13")
        e(f"v_lshlrev_b32 v14, 4, v14")
        e(f"v_lshl_add_u32 v{TMP+20+i4}, v13, 8, v14")
    e(f"s_lshl_b32 s12, s{S_WAVE}, 13")
    e(f"s_add_u32 s12, s12, {L_K}")
    for i in range(8):
        seq.append([f"s_add_u32 m0, s12, {1024*i}", "s_nop 0",
                    f"buffer_load_dwordx4 v{TMP+20+(i&3)}, s[{SRD_K}:{SRD_K+3}], s{10+(i>>2)} offen{NT} lds"])
    for c in range(4):
        e(f"v_add_u32 v13, {4*c}, v3")
        e(f"v_xor_b32 v13, v13, v12")
        e(f"v_lshlrev_b32 v13, 4, v13")
        e(f"v_lshl_add_u32 v13, v12, 8, v13")
        e(f"v_add_u32 v{228+c}, s12, v13")
else:
  for kb in range(2):
    for c in range(4):
        r = VK + 16 * kb + 4 * c
        seq.append(f"buffer_load_dwordx4 v[{r}:{r+3}], v8, s[{SRD_K}:{SRD_K+3}], s{10+kb} offen offset:{64*c}{NT}")
for i in range(8):
    r = VV + 4 * i
    so = 10 if i < 4 else 11
    seq.append(f"buffer_load_dwordx4 v[{r}:{r+3}], v9, s[{SRD_V}:{SRD_V+3}], s{so} offen offset:{256*(i&3)}{NT}")
if OPT["k_after"] or OPT["go_pub"]:
    e("s_barrier")
    lds_wait(C_GO, 1, TMP)
for i, l in enumerate(seq):
    if i == D and not (OPT["k_after"] or OPT["go_pub"]):
        e("s_barrier")
    if i >= D:
        e(f"s_waitcnt vmcnt({D-1})")
    if (OPT["jit"] & 1) and i == min(15, OPT["jit_k"] + D):
        lds_signal(C_K, TMP)
    for l_ in (l if isinstance(l, list) else [l]):
        e(l_)
finish_tag()
if OPT["vstamp"]:
    e("s_waitcnt vmcnt(0)")
    stamp(7)
lab("L_secA")
lds_wait(C_Q, 2 if OPT["q2"] else 4, TMP)
stamp(3)
VQ = TMP
e("v_and_b32 v1, 3, v0")
e("v_lshlrev_b32 v1, 8, v1")
e("v_lshl_add_u32 v1, v3, 4, v1")
for c in range(4):
    e(f"ds_read_b128 v[{VQ+4*c}:{VQ+4*c+3}], v1 offset:{L_QS+64*c}")
with Guard():
    e("s_waitcnt vmcnt(8)")
if OPT["kdma"]:
    for kb in range(2):
        for c in range(4):
            r = VK + 16 * kb + 4 * c
            e(f"ds_read_b128 v[{r}:{r+3}], v{228+c} offset:{4096*kb}")
e("s_waitcnt lgkmcnt(0)")
stamp(4)
VS = VACC
for kb in range(2):
    for c in range(4):
        src2 = "0" if c == 0 else f"v[{VS+4*kb}:{VS+4*kb+3}]"
        e(f"v_mfma_f32_16x16x32_bf16 v[{VS+4*kb}:{VS+4*kb+3}], v[{VK+16*kb+4*c}:{VK+16*kb+4*c+3}], v[{VQ+4*c}:{VQ+4*c+3}], {src2}")
e("s_nop 7")
e("s_nop 1")
SC = TMP + 16
T = TMP + 24
for kb in range(2):
    for h2 in range(2):
        a = VS + 4 * kb + 2 * h2
        d = SC + 4 * kb + 2 * h2
        bf16_round_pair(T, a, a + 1, d, d + 1)
        e(f"v_mul_f32 v{d}, 0x3db504f3, v{d}")
        e(f"v_mul_f32 v{d+1}, 0x3db504f3, v{d+1}")
        bf16_round_pair(T, d, d + 1, d, d + 1)
MX = TMP + 26
LS = TMP + 27
e(f"v_max3_f32 v{MX}, v{SC}, v{SC+1}, v{SC+2}")
e(f"v_max3_f32 v{MX}, v{MX}, v{SC+3}, v{SC+4}")
e(f"v_max3_f32 v{MX}, v{MX}, v{SC+5}, v{SC+6}")
e(f"v_max_f32 v{MX}, v{MX}, v{SC+7}")
swap_reduce("v_max_f32", [MX], [T])
for i in range(8):
    e(f"v_sub_f32 v{SC+i}, v{SC+i}, v{MX}")
    e(f"v_mul_f32 v{SC+i}, 0x3fb8aa3b, v{SC+i}")
    e(f"v_exp_f32 v{SC+i}, v{SC+i}")
e("s_nop 0")
e(f"v_add_f32 v{LS}, v{SC}, v{SC+1}")
for i in range(2, 8):
    e(f"v_add_f32 v{LS}, v{LS}, v{SC+i}")
swap_reduce("v_add_f32", [LS], [T])
VP = TMP + 28
for i in range(4):
    e(f"v_cvt_pk_bf16_f32 v{VP+i}, v{SC+2*i}, v{SC+2*i+1}")
with Guard():
    e("s_waitcnt vmcnt(0)")
stamp(5)
tile_mm(VV, VP, VB, VACC)
e(f"s_lshl_b32 s4, s{S_WAVE}, 11")
e("v_lshlrev_b32 v1, 5, v0")
e("v_add_u32 v1, s4, v1")
e(f"s_lshl_b32 s4, s{S_WAVE}, 5")
e("v_lshlrev_b32 v2, 3, v0")
e("v_add_u32 v2, s4, v2")
e("s_nop 7")
gather_quads(VK)
with Guard():
    set_exec("0xffff", 0)
    for r in range(4):
        for hf in range(2):
            e(f"ds_write_b128 v1, v[{VK+8*r+4*hf}:{VK+8*r+4*hf+3}] offset:{L_OW+512*r+16*hf}")
    e("s_mov_b64 exec, 15")
    e(f"ds_write_b64 v2, v[{MX}:{MX+1}] offset:{L_ML}")
    e("s_mov_b64 exec, -1")
    lds_signal(C_O, TMP)
stamp(1)
e(f"s_lshl_b32 s4, s{S_WAVE}, 3")
e("v_mov_b32 v1, s4")
e(f"s_lshl_b32 s4, s{S_WAVE}, 9")
e("v_and_b32 v2, 31, v0")
e("v_lshlrev_b32 v2, 4, v2")
e("v_add_u32 v2, s4, v2")
e("s_lshr_b32 s4, s2, 3")
e("s_lshl_b32 s4, s4, 2")
e(f"s_add_u32 s4, s4, s{S_WAVE}")
e("s_and_b32 s5, s2, 7")
e("s_lshl_b32 s6, s4, 12")
e("s_lshl_b32 s7, s5, 7")
e("s_add_u32 s6, s6, s7")
e(f"s_add_u32 s6, s6, {WS_APO}")
e("s_lshl_b32 s4, s4, 3")
e("s_add_u32 s4, s4, s5")
e(f"s_lshl_b32 s4, s4, {7 if OPT['apm128'] else 4}")
e(f"s_add_u32 s4, s4, {WS_APM}")
e("v_and_b32 v7, 7, v0")
e("v_lshlrev_b32 v7, 4, v7")
e(f"v_lshrrev_b32 v{TMP+12}, 3, v0")
e(f"v_lshl_add_u32 v7, v{TMP+12}, 10, v7")
lds_wait(C_O, 4, TMP)
stamp(2)
R = VACC
for w in range(4):
    e(f"ds_read_b64 v[{R+2*w}:{R+2*w+1}], v1 offset:{L_ML+32*w}")
for w in range(4):
    e(f"ds_read_b128 v[{R+8+4*w}:{R+11+4*w}], v2 offset:{L_OW+2048*w}")
e("s_waitcnt lgkmcnt(0)")
M_, L_ = R + 24, R + 25
e(f"v_max3_f32 v{M_}, v{R}, v{R+2}, v{R+4}")
e(f"v_max_f32 v{M_}, v{M_}, v{R+6}")
F_ = TMP
for w in range(4):
    e(f"v_sub_f32 v{F_+w}, v{R+2*w}, v{M_}")
    e(f"v_mul_f32 v{F_+w}, 0x3fb8aa3b, v{F_+w}")
    e(f"v_exp_f32 v{F_+w}, v{F_+w}")
e("s_nop 0")
O_ = TMP + 4
e(f"v_mul_f32 v{L_}, v{F_}, v{R+1}")
for i in range(4):
    e(f"v_mul_f32 v{O_+i}, v{F_}, v{R+8+i}")
for w in range(1, 4):
    e(f"v_fmac_f32 v{L_}, v{F_+w}, v{R+2*w+1}")
    for i in range(4):
        e(f"v_fmac_f32 v{O_+i}, v{F_+w}, v{R+8+4*w+i}")
tagq(O_, [O_, O_ + 1, O_ + 2, O_ + 3])
e(f"v_mov_b32 v{R+26}, 0")
e(f"v_mov_b32 v{R+27}, 0")
tagq(TMP + 8, [M_, L_, R + 26, R + 27])
e(f"v_mov_b32 v1, 0")
with Guard():
    set_exec("-1", 0)
    e(f"buffer_store_dwordx4 v[{O_}:{O_+3}], v7, s[{SRD_WS}:{SRD_WS+3}], s6 offen sc1")
    e("s_mov_b64 exec, 1")
    e(f"buffer_store_dwordx4 v[{TMP+8}:{TMP+11}], v1, s[{SRD_WS}:{SRD_WS+3}], s4 offen sc1")
    e("s_mov_b64 exec, -1")
stamp(6)
if_dry_goto("L_dry_done_data")
lab("L_exit_d")
dump_stamps(False)
e("s_endpgm")

lab("L_comm")
e("s_setprio 2")
e(f"s_sub_u32 s{S_WAVE}, s{S_WAVE}, 4")
stamp(6, True)
load_tag(7)
e("s_mov_b32 s8, 0")
e(f"s_cmp_ge_u32 s{S_WAVE}, 2")
e("s_cbranch_scc1 L_p1_noload")
e(f"s_cmp_eq_u32 s{S_WAVE}, 1")
e("s_cbranch_scc1 L_p1_w1")
srd(SRD_W1, 22, 4194304)
e("s_mov_b32 s5, 8192")
e("s_lshr_b32 s6, s2, 6")
e("s_lshl_b32 s6, s6, 7")
e("s_and_b32 s7, s2, 63")
e("s_lshl_b32 s7, s7, 7")
e("s_mov_b32 s8, 1")
e("s_branch L_p1_go")
lab("L_p1_w1")
e("s_cmp_ge_u32 s2, 112")
e("s_cbranch_scc1 L_p1_noload")
srd(SRD_W1, 28, 512 * 1792 * 2)
e("s_mov_b32 s5, 3584")
e("s_and_b32 s6, s2, 3")
e("s_lshl_b32 s6, s6, 7")
e("s_lshr_b32 s7, s2, 2")
e("s_lshl_b32 s7, s7, 7")
e("s_mov_b32 s8, 2")
if OPT["w1_late"]:
    e("s_barrier")
    lds_wait(C_GO, 1, TMP)
lab("L_p1_go")
e("v_mul_lo_u32 v7, s5, v4")
e("v_lshl_add_u32 v7, v1, 4, v7")
e("s_mul_i32 s9, s6, s5")
e("s_add_u32 s9, s9, s7")
e("s_lshl_b32 s12, s6, 1")
e("s_mul_i32 s13, s5, 56")
for i in range(16):
    e(f"buffer_load_dwordx4 v[{VW+4*i}:{VW+4*i+3}], v7, s[{SRD_W1}:{SRD_W1+3}], s9 offen{NT}")
    if i < 15:
        e("s_add_u32 s9, s9, s5")
    if i == 7:
        e("s_add_u32 s9, s9, s13")
XA, XA2, XR = 96, 100, 104
e(f"buffer_load_dwordx4 v[{XA}:{XA+3}], v6, s[{SRD_X}:{SRD_X+3}], s12 offen")
e(f"buffer_load_dwordx4 v[{XA2}:{XA2+3}], v6, s[{SRD_X}:{SRD_X+3}], s12 offen offset:128")
e("v_lshlrev_b32 v1, 4, v0")
for b in range(4):
    e(f"buffer_load_dwordx4 v[{XR+4*b}:{XR+4*b+3}], v1, s[{SRD_X}:{SRD_X+3}], 0 offen offset:{1024*b}")
lab("L_p1_noload")
e(f"s_cmp_lg_u32 s{S_WAVE}, 0")
e("s_cbranch_scc1 L_c_noz")
e("v_mov_b32 v1, 0")
e("v_lshlrev_b32 v7, 2, v0")
e("s_mov_b64 exec, 0xffff")
e(f"ds_write_b32 v7, v1 offset:{L_CNT}")
e("s_mov_b64 exec, -1")
e("s_waitcnt lgkmcnt(0)")
lab("L_c_noz")
if OPT["w1_late"]:
    e("s_cmp_eq_u32 s8, 2")
    e("s_cbranch_scc1 L_skipb0")
e("s_barrier")
lab("L_skipb0")
e(f"s_lshl_b32 s15, s{S_WAVE}, 11")
e(f"s_add_u32 s15, s15, {L_PIECE + 4096}")
if OPT["dry"]:
    e(f"s_mov_b32 s{S_DRY}, 1")
    e("s_cmp_lg_u32 s8, 0")
    e("s_cbranch_scc1 L_secP1")
    e(f"s_cmp_eq_u32 s{S_WAVE}, 2")
    e("s_cbranch_scc1 L_secA")
    e("s_branch L_secQ")
    lab("L_dry_done_data")
    lab("L_dry_done_comm")
    e(f"s_mov_b32 s{S_DRY}, 0")
    lane_setup()
lab("L_real_start")
if OPT["k_after"]:
    e(f"s_cmp_eq_u32 s{S_WAVE}, 0")
    e("s_cbranch_scc0 L_nogo")
    e(f"s_waitcnt vmcnt({22-OPT['k_after']})")
    lds_signal(C_GO, TMP)
    lab("L_nogo")
e("s_waitcnt vmcnt(0) lgkmcnt(0)")
stamp(7, True)
finish_tag()
e("s_cmp_eq_u32 s8, 0")
e("s_cbranch_scc1 L_secQ")
lab("L_secP1")
for d in range(4):
    e(f"v_mov_b32 v{VA+d}, v{XA+d}")
    e(f"v_mov_b32 v{VA2+d}, v{XA2+d}")
e("s_cmp_eq_u32 s8, 1")
e("s_cbranch_scc1 L_p1_mm")
SUM = TMP
T = TMP + 4
for b in range(4):
    e(f"v_lshlrev_b32 v{T}, 16, v{XR+4*b}")
    e(f"v_and_b32 v{T+1}, 0xffff0000, v{XR+4*b}")
    e(f"v_add_f32 v{SUM+b}, v{T}, v{T+1}")
    for d in range(1, 4):
        e(f"v_lshlrev_b32 v{T}, 16, v{XR+4*b+d}")
        e(f"v_and_b32 v{T+1}, 0xffff0000, v{XR+4*b+d}")
        e(f"v_add_f32 v{SUM+b}, v{SUM+b}, v{T}")
        e(f"v_add_f32 v{SUM+b}, v{SUM+b}, v{T+1}")
dpp_reduce("v_add_f32", [SUM + b for b in range(4)], ROW16)
swap_reduce("v_add_f32", [SUM + b for b in range(4)], [T + b for b in range(4)])
for b in range(4):
    e(f"v_mul_f32 v{SUM+b}, 0x3b000000, v{SUM+b}")
SQ = TMP + 12
for b in range(4):
    for d in range(4):
        e(f"v_lshlrev_b32 v{T}, 16, v{XR+4*b+d}")
        e(f"v_and_b32 v{T+1}, 0xffff0000, v{XR+4*b+d}")
        e(f"v_sub_f32 v{T}, v{T}, v{SUM+b}")
        e(f"v_sub_f32 v{T+1}, v{T+1}, v{SUM+b}")
        if d == 0:
            e(f"v_mul_f32 v{SQ+b}, v{T}, v{T}")
        else:
            e(f"v_fmac_f32 v{SQ+b}, v{T}, v{T}")
        e(f"v_fmac_f32 v{SQ+b}, v{T+1}, v{T+1}")
dpp_reduce("v_add_f32", [SQ + b for b in range(4)], ROW16)
swap_reduce("v_add_f32", [SQ + b for b in range(4)], [T + b for b in range(4)])
for b in range(4):
    e(f"v_mul_f32 v{SQ+b}, 0x3b000000, v{SQ+b}")
MEAN, DEN, RCP = TMP + 16, TMP + 17, TMP + 18
e(f"v_mov_b32 v{MEAN}, v{SUM}")
e(f"v_mov_b32 v{DEN}, v{SQ}")
for b in range(1, 4):
    e(f"v_cmp_eq_u32 vcc, {b}, v5")
    e("s_nop 1")
    e(f"v_cndmask_b32 v{MEAN}, v{MEAN}, v{SUM+b}, vcc")
    e(f"v_cndmask_b32 v{DEN}, v{DEN}, v{SQ+b}, vcc")
bf16_round_pair(T, MEAN, DEN, MEAN, DEN)
e(f"v_add_f32 v{DEN}, 0x3727c5ac, v{DEN}")
e(f"v_cvt_pk_bf16_f32 v{T}, v{DEN}, v{DEN}")
e(f"v_lshlrev_b32 v{DEN}, 16, v{T}")
e(f"v_sqrt_f32 v{DEN}, v{DEN}")
e("s_nop 0")
e(f"v_cvt_pk_bf16_f32 v{T}, v{DEN}, v{DEN}")
e(f"v_lshlrev_b32 v{DEN}, 16, v{T}")
e(f"v_rcp_f32 v{RCP}, v{DEN}")
e("s_nop 0")
for AA in (VA, VA2):
    for d in range(4):
        a0, a1 = T + 2, T + 3
        e(f"v_lshlrev_b32 v{a0}, 16, v{AA+d}")
        e(f"v_and_b32 v{a1}, 0xffff0000, v{AA+d}")
        e(f"v_sub_f32 v{a0}, v{a0}, v{MEAN}")
        e(f"v_sub_f32 v{a1}, v{a1}, v{MEAN}")
        bf16_round_pair(T, a0, a1, a0, a1)
        for a in (a0, a1):
            e(f"v_mul_f32 v{T+4}, v{a}, v{RCP}")
            e(f"v_fma_f32 v{T+5}, -v{T+4}, v{DEN}, v{a}")
            e(f"v_fma_f32 v{a}, v{T+5}, v{RCP}, v{T+4}")
        e(f"v_cvt_pk_bf16_f32 v{AA+d}, v{a0}, v{a1}")
lab("L_p1_mm")
tile128(VA, VA2, 15)
e("v_and_b32 v1, 15, v0")
e("s_cmp_eq_u32 s8, 1")
e("s_cbranch_scc1 L_pub_q")
e("s_and_b32 s4, s2, 3")
e("s_mul_i32 s4, s4, 1792")
e("s_lshr_b32 s5, s2, 2")
e("s_lshl_b32 s5, s5, 4")
e("s_add_u32 s4, s4, s5")
e("s_lshl_b32 s4, s4, 4")
e(f"s_add_u32 s4, s4, {WS_HP}")
e(f"v_mul_u32_u24 v2, 448, v{TMP+8}")
e("v_add_u32 v1, v2, v1")
e("s_branch L_pub_go")
lab("L_pub_q")
e("s_lshr_b32 s4, s2, 6")
e("s_lshl_b32 s4, s4, 12")
e("s_and_b32 s5, s2, 63")
e("s_lshl_b32 s5, s5, 4")
e("s_add_u32 s4, s4, s5")
e("s_lshl_b32 s4, s4, 4")
e(f"s_add_u32 s4, s4, {WS_QP}")
e(f"v_lshl_add_u32 v1, v{TMP+8}, 10, v1")
lab("L_pub_go")
e("v_lshlrev_b32 v1, 4, v1")
if_dry_goto("L_dry_done_comm")
e(f"buffer_store_dwordx4 v[{TMP}:{TMP+3}], v1, s[{SRD_WS}:{SRD_WS+3}], s4 offen sc1")
if OPT["go_pub"]:
    e("s_cmp_eq_u32 s8, 1")
    e("s_cbranch_scc0 L_nogo2")
    lds_signal(C_GO, TMP + 10)
    stamp(0, True)
    lab("L_nogo2")
else:
    stamp(0, True)
lab("L_secQ")
e("v_lshlrev_b32 v3, 4, v0")
if OPT["q2"]:
    assert not OPT["dry"]
    e(f"s_lshl_b32 s4, s{S_WAVE}, 8")
    e("v_and_b32 v5, 31, v0")
    e("v_lshlrev_b32 v5, 3, v5")
    e("v_add_u32 v5, s4, v5")
    e(f"s_cmp_lt_u32 s{S_WAVE}, 2")
    e("s_cbranch_scc1 L_q_skip")
    e("s_lshr_b32 s4, s2, 6")
    e("s_lshl_b32 s4, s4, 10")
    e("s_lshr_b32 s5, s2, 3")
    e("s_and_b32 s5, s5, 7")
    e("s_lshl_b32 s5, s5, 7")
    e("s_add_u32 s4, s4, s5")
    e(f"s_sub_u32 s5, s{S_WAVE}, 2")
    e("s_lshl_b32 s5, s5, 6")
    e("s_add_u32 s4, s4, s5")
    e("s_lshl_b32 s4, s4, 4")
    e(f"s_add_u32 s4, s4, {WS_QP}")
    for k in range(1, 4):
        e(f"s_add_u32 s{4+k}, s4, {k*4*1024*16}")
    poll("q", [f"buffer_load_dwordx4 @, v3, s[{SRD_WS}:{SRD_WS+3}], s{4+k} offen sc1" for k in range(4)],
         [16, 20, 24, 28], 6, OPT["sleep_q"])
    for i in range(4):
        e(f"v_add_f32 v{32+i}, v{16+i}, v{20+i}")
        e(f"v_add_f32 v{36+i}, v{24+i}, v{28+i}")
    for i in range(4):
        e(f"v_add_f32 v{32+i}, v{32+i}, v{36+i}")
    e("v_cvt_pk_bf16_f32 v32, v32, v33")
    e("v_cvt_pk_bf16_f32 v33, v34, v35")
    e(f"s_sub_u32 s4, s{S_WAVE}, 2")
    e("s_lshl_b32 s4, s4, 9")
    e("v_lshlrev_b32 v4, 3, v0")
    e("v_add_u32 v4, s4, v4")
    e(f"ds_write_b64 v4, v[32:33] offset:{L_QS}")
    lds_signal(C_Q, 6)
    lab("L_q_skip")
else:
    e("s_lshr_b32 s4, s2, 6")
    e("s_lshl_b32 s4, s4, 10")
    e("s_lshr_b32 s5, s2, 3")
    e("s_and_b32 s5, s5, 7")
    e("s_lshl_b32 s5, s5, 7")
    e("s_add_u32 s4, s4, s5")
    e(f"s_lshl_b32 s5, s{S_WAVE}, 5")
    e("s_add_u32 s4, s4, s5")
    e("s_lshl_b32 s4, s4, 4")
    e(f"s_add_u32 s4, s4, {WS_QP}")
    e(f"s_add_u32 s5, s4, {4*1024*16}")
    e("v_and_b32 v4, 31, v0")
    e("v_lshlrev_b32 v4, 4, v4")
    e("v_lshrrev_b32 v5, 5, v0")
    e("v_lshl_add_u32 v4, v5, 17, v4")
    if OPT["jit"] & 1:
        lds_wait(C_K, 4, 6)
    poll("q", [f"buffer_load_dwordx4 @, v4, s[{SRD_WS}:{SRD_WS+3}], s{4+k} offen sc1" for k in range(2)],
         [16, 20], 6, OPT["sleep_q"], altbase=168)
    for i in range(4):
        e(f"v_add_f32 v{24+i}, v{16+i}, v{20+i}")
    swap_reduce("v_add_f32", [24, 25, 26, 27], [28, 29, 30, 31], ("v_permlane32_swap_b32",))
    e("v_cvt_pk_bf16_f32 v24, v24, v25")
    e("v_cvt_pk_bf16_f32 v25, v26, v27")
    e(f"s_lshl_b32 s4, s{S_WAVE}, 8")
    e("v_and_b32 v5, 31, v0")
    e("v_lshlrev_b32 v5, 3, v5")
    e("v_add_u32 v5, s4, v5")
    with Guard():
        e(f"ds_write_b64 v5, v[24:25] offset:{L_QS}")
        lds_signal(C_Q, 6)

stamp(1, True)
W3, B3, ACC3 = 96, 160, 16
e("s_mov_b32 s14, 0")
with Guard():
    e("v_lshrrev_b32 v9, 4, v0")
    e(f"s_cmp_lt_u32 s{S_WAVE}, 2")
    e("s_cbranch_scc1 L_nowo0")
    srd(SRD_W3, 24, 4194304)
    e("s_lshr_b32 s6, s2, 1")
    e("s_lshl_b32 s9, s6, 15")
    e("s_and_b32 s7, s2, 1")
    e("s_lshl_b32 s7, s7, 9")
    e("s_add_u32 s9, s9, s7")
    e(f"s_sub_u32 s7, s{S_WAVE}, 2")
    e("s_lshl_b32 s7, s7, 8")
    e("s_add_u32 s9, s9, s7")
    e("v_and_b32 v7, 15, v0")
    e("v_lshlrev_b32 v7, 4, v7")
    e("v_lshl_add_u32 v7, v9, 13, v7")
    for i in range(8):
        e(f"buffer_load_dwordx4 v[{W3+4*i}:{W3+4*i+3}], v7, s[{SRD_W3}:{SRD_W3+3}], s9 offen offset:{1024*(i&3)}{NT}")
        if i == 3:
            e("s_add_u32 s9, s9, 4096")
    e("s_branch L_now2")
    lab("L_nowo0")
    e(f"s_cmp_eq_u32 s{S_WAVE}, 1")
    e("s_cbranch_scc0 L_now2")
    e("s_cmp_lt_u32 s2, 112")
    e("s_cbranch_scc1 L_now2")
    e("s_cmp_ge_u32 s2, 224")
    e("s_cbranch_scc1 L_now2")
    e("s_mov_b32 s14, 1")
    srd(SRD_W3, 32, 1792 * 512 * 2)
    e("s_sub_u32 s9, s2, 112")
    e("s_lshr_b32 s6, s9, 3")
    e("s_lshl_b32 s6, s6, 17")
    e("s_and_b32 s7, s9, 7")
    e("s_lshl_b32 s7, s7, 7")
    e("s_add_u32 s9, s6, s7")
    e("v_bfe_u32 v7, v0, 3, 1")
    e("v_lshlrev_b32 v7, 5, v7")
    e("v_lshl_add_u32 v9, v9, 3, v7")
    e("v_and_b32 v7, 7, v0")
    e("v_lshlrev_b32 v7, 4, v7")
    e("v_lshl_add_u32 v7, v9, 10, v7")
    for i in range(16):
        e(f"buffer_load_dwordx4 v[{W3+4*i}:{W3+4*i+3}], v7, s[{SRD_W3}:{SRD_W3+3}], s9 offen offset:{1024*(i&3)}{NT}")
        if i == 7:
            e(f"s_add_u32 s9, s9, {4096 + 56*1024}")
        elif i & 3 == 3 and i < 15:
            e("s_add_u32 s9, s9, 4096")
    lab("L_now2")
e("s_lshr_b32 s4, s2, 4")
e("s_lshl_b32 s4, s4, 7")
e("s_and_b32 s5, s2, 15")
e("s_lshl_b32 s5, s5, 3")
e("s_add_u32 s4, s4, s5")
e("s_lshl_b32 s4, s4, 4")
e(f"s_add_u32 s4, s4, {WS_OP}")
e(f"s_lshl_b32 s5, s{S_WAVE}, 18")
e("s_add_u32 s86, s4, s5")
for k in range(1, 4):
    e(f"s_add_u32 s{86+k}, s86, {k*65536}")
e(f"s_lshl_b32 s5, s{S_WAVE}, 15")
e("s_add_u32 s5, s4, s5")
e(f"s_add_u32 s85, s5, {128*8192}")
e("v_and_b32 v60, 7, v0")
e("v_lshlrev_b32 v60, 4, v60")
e("v_lshrrev_b32 v61, 3, v0")
e("v_lshl_add_u32 v60, v61, 13, v60")
e("v_and_b32 v62, 3, v61")
e(f"s_lshl_b32 s5, s{S_WAVE}, 2")
e("s_sub_u32 s5, 13, s5")
e("v_min_u32 v62, s5, v62")
e("v_and_b32 v63, 7, v0")
e("v_lshlrev_b32 v63, 4, v63")
e("v_lshl_add_u32 v62, v62, 13, v63")
o_loads = [f"buffer_load_dwordx4 v[{32+4*k}:{35+4*k}], v60, s[{SRD_WS}:{SRD_WS+3}], s{86+k} offen sc1" for k in range(4)]
o_loads.append(f"buffer_load_dwordx4 v[48:51], v62, s[{SRD_WS}:{SRD_WS+3}], s85 offen sc1")
e("s_cmp_ge_u32 s2, 64")
e("s_cbranch_scc1 L_c_nowarm")
with Guard():
    if not (OPT["jit"] & 4):
        for l in o_loads:
            e(l)
    srd(SRD_M, 36, 1024)
    e(f"buffer_load_dwordx4 v[64:67], v3, s[{SRD_M}:{SRD_M+3}], 0 offen")
    e("s_lshr_b32 s4, s2, 4")
    e("s_lshl_b32 s4, s4, 10")
    e(f"buffer_load_dwordx4 v[68:71], v3, s[{SRD_X}:{SRD_X+3}], s4 offen")
    srd(SRD_OUT, 34, 1024)
    e("v_and_b32 v6, 31, v0")
    e("v_lshlrev_b32 v6, 1, v6")
    e("s_and_b32 s4, s2, 15")
    e("s_lshl_b32 s4, s4, 6")
    e(f"buffer_load_ushort v72, v6, s[{SRD_OUT}:{SRD_OUT+3}], s4 offen")
lab("L_c_nowarm")
if_dry_goto("L_secAG")
e("s_cmp_lt_u32 s2, 112")
e("s_cbranch_scc1 L_secAG")
e("s_cmp_ge_u32 s2, 224")
e("s_cbranch_scc1 L_secAG")
lab("L_secH")
e("s_sub_u32 s9, s2, 112")
e("s_lshr_b32 s9, s9, 3")
e("s_min_u32 s9, s9, 13")
e(f"s_mul_i32 s4, s{S_WAVE}, 448")
e("s_lshl_b32 s5, s9, 5")
e("s_add_u32 s4, s4, s5")
e("s_lshl_b32 s4, s4, 4")
e(f"s_add_u32 s4, s4, {WS_HP}")
e(f"s_add_u32 s5, s4, {4*448*16}")
srd(SRD_M, 30, 3584)
e("s_lshl_b32 s9, s9, 8")
e("v_and_b32 v6, 31, v0")
e("v_lshlrev_b32 v4, 4, v6")
e("v_lshlrev_b32 v6, 3, v6")
e(f"buffer_load_dwordx2 v[80:81], v6, s[{SRD_M}:{SRD_M+3}], s9 offen")
e("v_lshrrev_b32 v7, 5, v0")
e(f"s_mov_b32 s6, {2*4*448*16}")
e("v_mul_lo_u32 v7, s6, v7")
e("v_add_u32 v4, v7, v4")
poll("h", [f"buffer_load_dwordx4 @, v4, s[{SRD_WS}:{SRD_WS+3}], s{4+k} offen sc1" for k in range(2)],
     [16, 20], 6, OPT["sleep_q"])
for i in range(4):
    e(f"v_add_f32 v{24+i}, v{16+i}, v{20+i}")
swap_reduce("v_add_f32", [24, 25, 26, 27], [28, 29, 30, 31], ("v_permlane32_swap_b32",))
for p in range(2):
    a, b_ = 24 + 2 * p, 25 + 2 * p
    bf16_round_pair(28, a, b_, a, b_)
    e(f"v_lshlrev_b32 v28, 16, v{80+p}")
    e(f"v_and_b32 v29, 0xffff0000, v{80+p}")
    e(f"v_add_f32 v{a}, v{a}, v28")
    e(f"v_add_f32 v{b_}, v{b_}, v29")
    bf16_round_pair(28, a, b_, a, b_)
e("v_mov_b32 v31, 0x3d372713")
for r in (24, 25, 26, 27):
    e(f"v_mul_f32 v30, v{r}, v{r}")
    e(f"v_mul_f32 v30, v30, v{r}")
    e(f"v_fma_f32 v30, v30, v31, v{r}")
    e(f"v_mul_f32 v30, 0x40135761, v30")
    e(f"v_exp_f32 v30, v30")
    e("s_nop 0")
    e(f"v_add_f32 v30, 1.0, v30")
    e(f"v_rcp_f32 v30, v30")
    e("s_nop 0")
    e(f"v_fma_f32 v30, v30, -2.0, 2.0")
    e(f"v_mul_f32 v30, 0.5, v30")
    e(f"v_mul_f32 v{r}, v{r}, v30")
e("v_cvt_pk_bf16_f32 v24, v24, v25")
e("v_cvt_pk_bf16_f32 v25, v26, v27")
with Guard():
    e(f"ds_write_b64 v5, v[24:25] offset:{L_HA}")
    lds_signal(C_H, 6)
    e("s_cmp_eq_u32 s14, 1")
    e("s_cbranch_scc0 L_secAG")
lds_wait(C_H, 4, 6)
e(f"ds_read_b128 v[{VA}:{VA+3}], v11 offset:{L_HA}")
e(f"ds_read_b128 v[{VA2}:{VA2+3}], v11 offset:{L_HA+128}")
with Guard():
    e("s_waitcnt vmcnt(0)")
e("s_waitcnt lgkmcnt(0)")
tile128(VA, VA2, 15, W=W3, B=B3, ACC=ACC3, G=W3)
e("s_sub_u32 s5, s2, 112")
e("s_lshr_b32 s4, s5, 3")
e("s_add_u32 s4, s4, 128")
e("s_lshl_b32 s4, s4, 9")
e("s_and_b32 s5, s5, 7")
e("s_lshl_b32 s5, s5, 4")
e("s_add_u32 s4, s4, s5")
e("s_lshl_b32 s4, s4, 4")
e(f"s_add_u32 s4, s4, {WS_OP}")
e("v_and_b32 v1, 15, v0")
e(f"v_lshl_add_u32 v1, v{TMP+8}, 7, v1")
e("v_lshlrev_b32 v1, 4, v1")
if_dry_goto("L_dry_done_comm")
e(f"buffer_store_dwordx4 v[{TMP}:{TMP+3}], v1, s[{SRD_WS}:{SRD_WS+3}], s4 offen sc1")
lab("L_secAG")
e(f"s_lshl_b32 s4, s{S_WAVE}, 5")
e("s_lshr_b32 s5, s2, 3")
e("s_add_u32 s4, s4, s5")
e("s_lshl_b32 s6, s4, 2")
e("s_bfe_u32 s5, s2, 0x20001")
e("s_add_u32 s6, s6, s5")
e("s_lshl_b32 s6, s6, 10")
e(f"s_add_u32 s6, s6, {WS_APO}")
e(f"s_lshl_b32 s4, s4, {10 if OPT['apm128'] else 7}")
e(f"s_add_u32 s4, s4, {WS_APM}")
e(f"v_lshlrev_b32 v4, {7 if OPT['apm128'] else 4}, v61")
if OPT["jit"] & 2:
    lds_wait(C_O, 4, 6)
poll("a", [f"buffer_load_dwordx4 @, v3, s[{SRD_WS}:{SRD_WS+3}], s6 offen sc1",
           f"buffer_load_dwordx4 @, v4, s[{SRD_WS}:{SRD_WS+3}], s4 offen sc1"], [16, 20], 6, OPT["sleep_t"], altbase=168)
stamp(3, True)
e("v_mov_b32 v24, v20")
dpp_reduce("v_max_f32", [24], ["row_ror:8"])
swap_reduce("v_max_f32", [24], [25])
e("v_sub_f32 v25, v20, v24")
e("v_mul_f32 v25, 0x3fb8aa3b, v25")
e("v_exp_f32 v25, v25")
e("s_nop 0")
e("v_mul_f32 v26, v25, v21")
for i in range(4):
    e(f"v_mul_f32 v{84+i}, v25, v{16+i}")
dpp_reduce("v_add_f32", [26, 84, 85, 86, 87], ["row_ror:8"])
swap_reduce("v_add_f32", [26, 84, 85, 86, 87], [27, 28, 29, 30, 31])
e("v_rcp_f32 v27, v26")
e("s_nop 0")
e("v_fma_f32 v28, -v26, v27, 2.0")
e("v_mul_f32 v27, v27, v28")
for i in range(4):
    e(f"v_mul_f32 v{84+i}, v27, v{84+i}")
e("v_cvt_pk_bf16_f32 v84, v84, v85")
e("v_cvt_pk_bf16_f32 v85, v86, v87")
e(f"s_lshl_b32 s4, s{S_WAVE}, 6")
e("v_lshlrev_b32 v4, 3, v0")
e("v_add_u32 v4, s4, v4")
with Guard():
    e("s_mov_b64 exec, 0xff")
    e(f"ds_write_b64 v4, v[84:85] offset:{L_OA}")
    e("s_mov_b64 exec, -1")
    lds_signal(C_A, 6)
stamp(4, True)
if_dry_goto("L_secC")
e(f"s_cmp_lt_u32 s{S_WAVE}, 2")
e("s_cbranch_scc1 L_secC_done")
lab("L_secC")
e("s_lshr_b32 s4, s2, 1")
e("s_lshl_b32 s4, s4, 9")
e("s_and_b32 s5, s2, 1")
e("s_lshl_b32 s5, s5, 6")
e("s_add_u32 s4, s4, s5")
e(f"s_sub_u32 s5, s{S_WAVE}, 2")
e("s_lshl_b32 s5, s5, 5")
e("s_add_u32 s4, s4, s5")
e("s_lshl_b32 s4, s4, 4")
e(f"s_add_u32 s4, s4, {WS_OP}")
e("s_add_u32 s5, s4, 4096")
e("v_lshlrev_b32 v2, 5, v0")
e("v_and_b32 v1, 3, v0")
e("v_lshlrev_b32 v1, 6, v1")
e("v_lshrrev_b32 v9, 4, v0")
e("v_lshl_add_u32 v1, v9, 4, v1")
lds_wait(C_A, 4, 6)
e(f"ds_read_b128 v[{VA}:{VA+3}], v1 offset:{L_OA}")
with Guard():
    e("s_waitcnt vmcnt(0)")
e("s_waitcnt lgkmcnt(0)")
tile_mm(W3, VA, B3, ACC3)
e("s_nop 7")
e("s_nop 1")
if not OPT["opfull"]:
    for b in range(4):
        for hf in range(2):
            d = TMP + 8 * b + 4 * hf
            tagq(d, [ACC3 + 4 * (4 * hf + i) + b for i in range(4)])
    with Guard():
        set_exec("0xffff", 0)
        for b in range(4):
            for hf in range(2):
                d = TMP + 8 * b + 4 * hf
                e(f"buffer_store_dwordx4 v[{d}:{d+3}], v2, s[{SRD_WS}:{SRD_WS+3}], s{4+(b>>1)} offen offset:{2048*(b&1)+16*hf} sc1")
        e("s_mov_b64 exec, -1")
else:
    e("v_and_b32 v6, 16, v0")
    e("v_cmp_ne_u32 s[90:91], 0, v6")
    e("v_cmp_lt_u32 s[92:93], 31, v0")
    e("s_nop 1")
    for k in range(2):
        for i in range(4):
            t0, t1 = TMP + 16, TMP + 17
            e(f"v_cndmask_b32 v{t0}, v{ACC3+4*i+k}, v{ACC3+4*(4+i)+k}, s[90:91]")
            e(f"v_cndmask_b32 v{t1}, v{ACC3+4*i+2+k}, v{ACC3+4*(4+i)+2+k}, s[90:91]")
            e(f"v_cndmask_b32 v{TMP+8+4*k+i}, v{t0}, v{t1}, s[92:93]")
        tagq(TMP + 4 * k, [TMP + 8 + 4 * k + i for i in range(4)])
    e("v_and_b32 v2, 15, v0")
    e("v_lshlrev_b32 v2, 5, v2")
    e("v_add_u32 v2, v6, v2")
    e("v_lshrrev_b32 v6, 5, v0")
    e("v_lshl_add_u32 v2, v6, 12, v2")
    with Guard():
        for k in range(2):
            e(f"buffer_store_dwordx4 v[{TMP+4*k}:{TMP+4*k+3}], v2, s[{SRD_WS}:{SRD_WS+3}], s4 offen offset:{2048*k} sc1")
stamp(2, True)
lab("L_secC_done")
e("s_cmp_lt_u32 s2, 64")
e("s_cbranch_scc1 L_secF")
if_dry_goto("L_secH")
e("s_branch L_exit_c")
lab("L_secF")
GS = 74
for d in range(4):
    e(f"v_lshlrev_b32 v76, 16, v{68+d}")
    e(f"v_and_b32 v77, 0xffff0000, v{68+d}")
    e(f"v_lshlrev_b32 v78, 16, v{64+d}")
    e(f"v_and_b32 v79, 0xffff0000, v{64+d}")
    e("v_mul_f32 v76, v76, v78")
    e("v_mul_f32 v77, v77, v79")
    bf16_round_pair(78, 76, 77, 76, 77)
    if d == 0:
        e(f"v_add_f32 v{GS}, v76, v77")
    else:
        e(f"v_add_f32 v{GS}, v{GS}, v76")
        e(f"v_add_f32 v{GS}, v{GS}, v77")
dpp_reduce("v_add_f32", [GS], ROW16)
swap_reduce("v_add_f32", [GS], [76])
e(f"v_cvt_pk_bf16_f32 v75, v{GS}, v{GS}")
e("v_lshlrev_b32 v75, 16, v75")
e("v_mul_f32 v75, 0xbfb8aa3b, v75")
e("v_exp_f32 v75, v75")
e("s_nop 0")
e("v_add_f32 v75, 1.0, v75")
e("v_rcp_f32 v76, v75")
e("s_nop 0")
e("v_fma_f32 v77, -v75, v76, 2.0")
e("v_mul_f32 v76, v76, v77")
e("v_cvt_pk_bf16_f32 v76, v76, v76")
e("v_lshlrev_b32 v75, 16, v76")
e("v_sub_f32 v76, 1.0, v75")
e("v_cvt_pk_bf16_f32 v76, v76, v76")
e("v_lshlrev_b32 v76, 16, v76")
e("v_lshlrev_b32 v73, 16, v72")
poll("o", [re.sub(r"v\[\d+:\d+\]", "@", l, count=1) for l in o_loads], [32, 36, 40, 44, 48], 1, OPT["sleep_t"], altbase=128)
stamp(5, True)
e(f"s_lshl_b32 s5, s{S_WAVE}, 5")
e("s_sub_u32 s5, 112, s5")
e("s_min_u32 s5, s5, 32")
e("v_cmp_gt_u32 vcc, s5, v0")
e("s_nop 1")
for i in range(4):
    e(f"v_cndmask_b32 v{92+i}, 0, v{48+i}, vcc")
    e(f"v_add_f32 v{88+i}, v{32+i}, v{36+i}")
    e(f"v_add_f32 v{52+i}, v{40+i}, v{44+i}")
for i in range(4):
    e(f"v_add_f32 v{88+i}, v{88+i}, v{52+i}")
regs = [88 + i for i in range(8)]
dpp_reduce("v_add_f32", regs, ["row_ror:8"])
swap_reduce("v_add_f32", regs, [52 + i for i in range(8)])
e(f"s_lshl_b32 s4, s{S_WAVE}, 7")
e("v_add_u32 v4, s4, v3")
with Guard():
    e("s_mov_b64 exec, 0xff")
    e(f"ds_write_b128 v4, v[88:91] offset:{L_F}")
    e(f"ds_write_b128 v4, v[92:95] offset:{L_F+512}")
    e("s_mov_b64 exec, -1")
    lds_signal(C_F, 6)
    e(f"s_cmp_lg_u32 s{S_WAVE}, 0")
    e("s_cbranch_scc1 L_exit_c")
lds_wait(C_F, 4, 6)
e("v_and_b32 v6, 31, v0")
e("v_lshlrev_b32 v4, 2, v6")
for w in range(8):
    e(f"ds_read_b32 v{52+w}, v4 offset:{L_F+128*w}")
e("s_waitcnt lgkmcnt(0)")
e("v_add_f32 v52, v52, v53")
e("v_add_f32 v54, v54, v55")
e("v_add_f32 v56, v56, v57")
e("v_add_f32 v58, v58, v59")
e("v_add_f32 v52, v52, v54")
e("v_add_f32 v56, v56, v58")
bf16_round_pair(54, 52, 56, 52, 56)
e("v_add_f32 v56, v56, v73")
e("v_cvt_pk_bf16_f32 v54, v56, v56")
e("v_lshlrev_b32 v56, 16, v54")
e("v_mul_f32 v52, v75, v52")
e("v_mul_f32 v56, v76, v56")
bf16_round_pair(54, 52, 56, 52, 56)
e("v_add_f32 v52, v52, v56")
e("v_cvt_pk_bf16_f32 v52, v52, v52")
e("v_lshlrev_b32 v6, 1, v6")
e("s_lshl_b32 s4, s2, 6")
if_dry_goto("L_secH")
srd(SRD_OUT, 38, 4096)
set_exec("-1", 0)
e(f"buffer_store_short v52, v6, s[{SRD_OUT}:{SRD_OUT+3}], s4 offen")
e("s_cmp_lg_u32 s2, 0")
e("s_cbranch_scc1 L_exit_c")
e("s_mov_b64 exec, 1")
e(f"v_mov_b32 v1, 0")
e(f"v_mov_b32 v4, s{S_TAG}")
e(f"v_mov_b32 v5, s{S_TAG+1}")
e(f"buffer_store_dwordx2 v[4:5], v1, s[{SRD_WS}:{SRD_WS+3}], 0 offen offset:{WS_GEN} sc1")
lab("L_exit_c")
dump_stamps(True)
lab("L_exit")
e("s_endpgm")
if not OPT["dry"]:
    lab("L_dry_done_data")
    lab("L_dry_done_comm")
    e("s_endpgm")

out.append('.section .rodata,"a"')
out.append(".p2align 6")
out.append(f".amdhsa_kernel {NAME}_kernel")
out.append("  .amdhsa_next_free_vgpr 240")
out.append("  .amdhsa_next_free_sgpr 102")
out.append("  .amdhsa_accum_offset 240")
out.append("  .amdhsa_group_segment_fixed_size 0")
out.append("  .amdhsa_kernarg_size 112")
out.append("  .amdhsa_user_sgpr_count 2")
out.append("  .amdhsa_user_sgpr_kernarg_segment_ptr 1")
out.append("  .amdhsa_system_sgpr_workgroup_id_x 1")
out.append(".end_amdhsa_kernel")

dst = sys.argv[1] if len(sys.argv) > 1 else f"cdna_kernels/{NAME}.s"
open(dst, "w").write("\n".join(out) + "\n")
print("wrote", dst, len(out), "lines")
```

```python
import sys
import re

NAME = "gated_mix__sliding_block_cached__mixer_channel_mlp__decode"

OPT = dict(
    stamps=0,
    nt=1,
    depth=4,
    sleep_l=1,
    sleep_q=1,
    sleep_t=0,
    dry=0,
    k_after=0,
    pp=0,
    q2=0,
    kdma=1,
    jit=0,
    jit_k=7,
    vstamp=0,
    w1_late=0,
    go_pub=0,
    opfull=1,
    apm128=1,
)
for a in sys.argv[2:]:
    k, v = a.split("=")
    OPT[k] = int(v)

WS_GEN = 0
WS_QP = 0x10000
WS_HP = WS_QP + 4 * 4 * 1024 * 16
WS_APO = WS_HP + 4 * 4 * 448 * 16
WS_APM = WS_APO + 4 * 32 * 4 * 8 * 8 * 16
WS_OP = WS_APM + 4 * 32 * 8 * 128
WS_ST = WS_OP + 142 * 4 * 128 * 16
WS_END = WS_ST + 256 * 8 * 16 * 8
open("gen_layout.py", "w").write(f"WS_ST = {WS_ST}\n")

L_PIECE = 0
L_QS = 8192
L_OW = 9216
L_ML = 17408
L_OA = 17536
L_HA = 17792
L_F = 18816
L_CNT = 19840
L_K = 20480
L_END = L_K + 32768
LDS_BYTES = 53248
assert L_END <= LDS_BYTES
C_Q, C_O, C_H, C_A, C_F, C_GO, C_K = 0, 4, 8, 12, 16, 20, 24

out = []


def e(s):
    out.append("    " + s)


def lab(s):
    out.append(s + ":")


NT = " nt" if OPT["nt"] else ""
S_WAVE = 3
SRD_X, SRD_K, SRD_V, SRD_W1, SRD_W3, SRD_WS, SRD_OUT, SRD_M = 44, 48, 52, 56, 60, 64, 68, 72
S_TAG = 76
S_SELLO, S_SELHI = 78, 79
S_T0 = 80
S_MASK = 96
S_DRY = 97
S_STAMP = 100
V_ST = 236
uid = [0]


def nid():
    uid[0] += 1
    return uid[0]


class Guard:
    def __enter__(self):
        if not OPT["dry"]:
            return
        self.n = nid()
        e(f"s_cmp_lg_u32 s{S_DRY}, 0")
        e(f"s_cbranch_scc1 L_g{self.n}")

    def __exit__(self, *a):
        if not OPT["dry"]:
            return
        lab(f"L_g{self.n}")


def if_dry_goto(label):
    if not OPT["dry"]:
        e("s_nop 1")
        return
    e(f"s_cmp_lg_u32 s{S_DRY}, 0")
    e(f"s_cbranch_scc1 {label}")


def srd(dst, ptr, nbytes):
    e(f"s_mov_b32 s{dst}, s{ptr}")
    e(f"s_and_b32 s{dst+1}, s{ptr+1}, 0xffff")
    e(f"s_mov_b32 s{dst+2}, {nbytes}")
    e(f"s_mov_b32 s{dst+3}, 0x00020000")


def stamp_raw(i, comm):
    va, vt = V_ST, V_ST + 2
    e(f"s_lshl_b32 s98, s2, 3")
    e(f"s_add_u32 s98, s98, s{S_WAVE}")
    if comm:
        e("s_add_u32 s98, s98, 4")
    e(f"s_lshl_b32 s98, s98, 7")
    e(f"s_add_u32 s98, s98, {WS_ST + 8 * i}")
    e(f"v_mov_b32 v{va}, s98")
    e(f"v_mov_b32 v{vt}, s{S_STAMP}")
    e(f"v_mov_b32 v{vt+1}, s{S_STAMP+1}")
    e(f"s_mov_b64 s[98:99], exec")
    e(f"s_mov_b64 exec, 1")
    e(f"buffer_store_dwordx2 v[{vt}:{vt+1}], v{va}, s[{SRD_WS}:{SRD_WS+3}], 0 offen")
    e(f"s_mov_b64 exec, s[98:99]")


STAMP_MAP_D = {0: 0, 3: 1, 5: 2, 2: 3, 6: 4, 7: 5, 8: 6}
STAMP_MAP_C = {0: 0, 1: 1, 3: 2, 2: 3, 5: 4, 7: 6, 6: 5}


def stamp(i, comm=False):
    if not OPT["stamps"]:
        return
    m = STAMP_MAP_C if comm else STAMP_MAP_D
    if i not in m:
        return
    k = m[i]
    with Guard():
        e(f"s_memrealtime s[{16+2*k}:{17+2*k}]")


def dump_stamps(comm):
    if not OPT["stamps"]:
        return
    m = STAMP_MAP_C if comm else STAMP_MAP_D
    e("s_waitcnt lgkmcnt(0)")
    e("s_mov_b64 exec, -1")
    if OPT["stamps"] == 2:
        srd(SRD_M, 40, 256)
        e("s_mov_b64 exec, 1")
        for i, k in m.items():
            if comm and i in (6,):
                continue
            slot = i if not comm else {0: 9, 1: 10, 3: 11, 4: 12, 5: 13, 7: 14}[i]
            n_ = nid()
            if (not comm) and i in (7, 8):
                e(f"s_cmp_lt_u32 s{S_WAVE}, 2")
                e(f"s_cbranch_scc1 L_ds{n_}")
            if comm and i == 0:
                e("s_cmp_eq_u32 s8, 0")
                e(f"s_cbranch_scc1 L_ds{n_}")
            if comm and i == 5:
                e("s_cmp_ge_u32 s2, 64")
                e(f"s_cbranch_scc1 L_ds{n_}")
            e(f"v_mov_b32 v{V_ST}, {4*slot}")
            if (not comm) and i == 0:
                e(f"s_not_b32 s{S_STAMP}, s{16+2*k}")
                e(f"v_mov_b32 v{V_ST+1}, s{S_STAMP}")
            else:
                e(f"v_mov_b32 v{V_ST+1}, s{16+2*k}")
            e(f"buffer_atomic_umax v{V_ST+1}, v{V_ST}, s[{SRD_M}:{SRD_M+3}], 0 offen")
            e("s_nop 1")
            lab(f"L_ds{n_}")
        return
    for i, k in m.items():
        e(f"s_mov_b32 s{S_STAMP}, s{16+2*k}")
        e(f"s_mov_b32 s{S_STAMP+1}, s{17+2*k}")
        stamp_raw(i, comm)
        e("s_nop 1")


def tile_mm(W, A, B, ACC, acc_in=False):
    for q in range(4):
        for i in range(4):
            e(f"v_perm_b32 v{B+i}, v{W+4*(2*i+1)+q}, v{W+4*(2*i)+q}, s{S_SELLO}")
        for i in range(4):
            e(f"v_perm_b32 v{B+4+i}, v{W+4*(2*i+1)+q}, v{W+4*(2*i)+q}, s{S_SELHI}")
        e("s_nop 1")
        for jj in range(2):
            j = 2 * q + jj
            c = f"v[{ACC+4*j}:{ACC+4*j+3}]" if acc_in else "0"
            e(f"v_mfma_f32_16x16x32_bf16 v[{ACC+4*j}:{ACC+4*j+3}], v[{A}:{A+3}], v[{B+4*jj}:{B+4*jj+3}], {c}")


VT = 188
VTRAW = 186


def load_tag(vtmp):
    e(f"v_mov_b32 v{vtmp}, 0")
    e(f"buffer_load_dwordx2 v[{VTRAW}:{VTRAW+1}], v{vtmp}, s[{SRD_WS}:{SRD_WS+3}], 0 offen offset:{WS_GEN} sc1")


def finish_tag():
    e(f"v_readfirstlane_b32 s{S_TAG}, v{VTRAW}")
    e(f"v_readfirstlane_b32 s{S_TAG+1}, v{VTRAW+1}")
    e("s_nop 3")
    e(f"s_add_u32 s{S_TAG}, s{S_TAG}, 1")
    e(f"s_addc_u32 s{S_TAG+1}, s{S_TAG+1}, 0")
    e(f"s_and_b32 s{S_T0}, s{S_TAG}, 0x3ff")
    e(f"s_bfe_u32 s{S_T0+1}, s{S_TAG}, 0xa000a")
    e(f"s_bfe_u32 s{S_T0+2}, s{S_TAG}, 0xa0014")
    e(f"s_lshr_b64 s[{S_T0+4}:{S_T0+5}], s[{S_TAG}:{S_TAG+1}], 30")
    e(f"s_and_b32 s{S_T0+3}, s{S_T0+4}, 0x3ff")
    for i in range(4):
        e(f"v_mov_b32 v{VT+i}, s{S_T0+i}")


def tagq(dst, srcs):
    for i in range(4):
        e(f"v_bfi_b32 v{dst+i}, s{S_MASK}, v{VT+i}, v{srcs[i]}")


def poll(name, loads, quads, vx, sleep, maxit=100000, altbase=None):
    n = len(loads)

    def issue(base_map):
        for l, q in zip(loads, quads):
            r = base_map(q)
            e(l.replace("@", f"v[{r}:{r+3}]"))

    def check(base_map):
        first = True
        for q in quads:
            r = base_map(q)
            for i in range(4):
                if first:
                    e(f"v_xor_b32 v{vx}, v{r+i}, v{VT+i}")
                    first = False
                else:
                    e(f"v_xor_b32 v{vx+1}, v{r+i}, v{VT+i}")
                    e(f"v_or_b32 v{vx}, v{vx}, v{vx+1}")
        e(f"v_and_b32 v{vx}, 0x3ff, v{vx}")
        e(f"v_cmp_ne_u32 vcc, 0, v{vx}")

    A = lambda q: q
    e(f"s_mov_b32 s{S_T0+10}, {maxit}")
    if not OPT["pp"] or altbase is None:
        lab(f"L_poll_{name}")
        issue(A)
        with Guard():
            e("s_waitcnt vmcnt(0)")
        check(A)
        if_dry_goto(f"L_pdone_{name}")
        e(f"s_cmp_eq_u64 vcc, 0")
        e(f"s_cbranch_scc1 L_pdone_{name}")
        e(f"s_sub_u32 s{S_T0+10}, s{S_T0+10}, 1")
        e(f"s_cmp_eq_u32 s{S_T0+10}, 0")
        e(f"s_cbranch_scc1 L_pdone_{name}")
        if sleep:
            e(f"s_sleep {sleep}")
        e(f"s_branch L_poll_{name}")
        lab(f"L_pdone_{name}")
        return
    B = lambda q: altbase + (q - quads[0])
    issue(A)
    lab(f"L_poll_{name}")
    e(f"s_sleep {OPT['pp']}")
    issue(B)
    with Guard():
        e(f"s_waitcnt vmcnt({n})")
    check(A)
    if_dry_goto(f"L_pB_{name}")
    e(f"s_cmp_eq_u64 vcc, 0")
    e(f"s_cbranch_scc1 L_pdone_{name}")
    e(f"s_sleep {OPT['pp']}")
    issue(A)
    e(f"s_waitcnt vmcnt({n})")
    check(B)
    e(f"s_cmp_eq_u64 vcc, 0")
    e(f"s_cbranch_scc1 L_pB_{name}")
    e(f"s_sub_u32 s{S_T0+10}, s{S_T0+10}, 1")
    e(f"s_cmp_eq_u32 s{S_T0+10}, 0")
    e(f"s_cbranch_scc0 L_poll_{name}")
    lab(f"L_pB_{name}")
    for q in quads:
        for i in range(4):
            e(f"v_mov_b32 v{q+i}, v{B(q)+i}")
    lab(f"L_pdone_{name}")


def lds_signal(cnt, vtmp):
    e("s_waitcnt lgkmcnt(0)")
    e(f"v_mov_b32 v{vtmp}, {L_CNT+cnt}")
    e(f"v_mov_b32 v{vtmp+1}, 1")
    e("s_mov_b64 exec, 1")
    e(f"ds_add_u32 v{vtmp}, v{vtmp+1}")
    e("s_mov_b64 exec, -1")


def lds_wait(cnt, target, vtmp):
    n = nid()
    e(f"v_mov_b32 v{vtmp}, {L_CNT+cnt}")
    e(f"s_mov_b32 s{S_T0+11}, 4000000")
    lab(f"L_lw{n}")
    e(f"ds_read_b32 v{vtmp+1}, v{vtmp}")
    e("s_waitcnt lgkmcnt(0)")
    e(f"v_readfirstlane_b32 s{S_T0+12}, v{vtmp+1}")
    if_dry_goto(f"L_lwd{n}")
    e("s_nop 1")
    e(f"s_cmp_ge_u32 s{S_T0+12}, {target}")
    e(f"s_cbranch_scc1 L_lwd{n}")
    e(f"s_sub_u32 s{S_T0+11}, s{S_T0+11}, 1")
    e(f"s_cmp_eq_u32 s{S_T0+11}, 0")
    e(f"s_cbranch_scc1 L_lwd{n}")
    if OPT["sleep_l"]:
        e(f"s_sleep {OPT['sleep_l']}")
    e(f"s_branch L_lw{n}")
    lab(f"L_lwd{n}")


def bf16_round_pair(dst_pk, a, b, lo, hi):
    e(f"v_cvt_pk_bf16_f32 v{dst_pk}, v{a}, v{b}")
    e(f"v_lshlrev_b32 v{lo}, 16, v{dst_pk}")
    e(f"v_and_b32 v{hi}, 0xffff0000, v{dst_pk}")


def dpp_reduce(op, regs, ctls):
    for ctl in ctls:
        e("s_nop 1")
        for r in regs:
            e(f"{op}_dpp v{r}, v{r}, v{r} {ctl} row_mask:0xf bank_mask:0xf")


ROW16 = ["quad_perm:[1,0,3,2]", "quad_perm:[2,3,0,1]", "row_half_mirror", "row_mirror"]


def swap_reduce(op, regs, tmps, sws=("v_permlane16_swap_b32", "v_permlane32_swap_b32")):
    for sw in sws:
        for r, t in zip(regs, tmps):
            e(f"v_mov_b32 v{t}, v{r}")
        e("s_nop 1")
        for r, t in zip(regs, tmps):
            e(f"{sw} v{r}, v{t}")
        e("s_nop 1")
        for r, t in zip(regs, tmps):
            e(f"{op} v{r}, v{r}, v{t}")


def set_exec(lo, hi):
    e(f"s_mov_b32 exec_lo, {lo}")
    e(f"s_mov_b32 exec_hi, {hi}")


VW, VK, VV, VB, VACC = 16, 80, 112, 144, 152
VA, VA2 = 12, 224
VX = 152
TMP = 192


def lane_setup():
    e("v_and_b32 v1, 7, v0")
    e("v_bfe_u32 v2, v0, 3, 1")
    e("v_lshrrev_b32 v3, 4, v0")
    e("v_lshlrev_b32 v4, 5, v2")
    e("v_lshl_add_u32 v4, v3, 3, v4")
    e("v_and_b32 v5, 3, v0")
    e("v_bfe_u32 v6, v0, 2, 1")
    e("v_lshlrev_b32 v6, 5, v6")
    e("v_lshl_add_u32 v6, v3, 3, v6")
    e("v_lshlrev_b32 v11, 1, v6")
    e("v_lshl_add_u32 v6, v5, 10, v11")
    e("v_lshl_add_u32 v11, v5, 8, v11")
    e("v_lshlrev_b32 v10, 5, v1")
    e("v_lshl_add_u32 v10, v2, 10, v10")


def gather_quads(G, ACC=None):
    ACC = VACC if ACC is None else ACC
    for b in range(4):
        for hf in range(2):
            for i in range(4):
                e(f"v_mov_b32 v{G+8*b+4*hf+i}, v{ACC+4*(4*hf+i)+b}")


def tile128(A1, A2, piece_off_sreg, W=None, B=None, ACC=None, G=120):
    W = VW if W is None else W
    B = VB if B is None else B
    ACC = VACC if ACC is None else ACC
    tile_mm(W, A1, B, ACC)
    tile_mm(W + 32, A2, B, ACC, acc_in=True)
    e("v_lshlrev_b32 v1, 4, v0")
    e(f"v_lshrrev_b32 v{TMP+8}, 4, v0")
    e(f"v_add_u32 v1, s{piece_off_sreg}, v1")
    e(f"v_add_u32 v2, s{piece_off_sreg}, v10")
    e("s_nop 7")
    gather_quads(G, ACC)
    with Guard():
        set_exec("0xff0000ff", 0)
        for b in range(4):
            for hf in range(2):
                e(f"ds_write_b128 v2, v[{G+8*b+4*hf}:{G+8*b+4*hf+3}] offset:{256*b+16*hf}")
        e("s_mov_b64 exec, -1")
    e("s_waitcnt lgkmcnt(0)")
    e(f"ds_read_b128 v[{TMP}:{TMP+3}], v1")
    e(f"ds_read_b128 v[{TMP+4}:{TMP+7}], v1 offset:1024")
    e("s_waitcnt lgkmcnt(0)")
    for i in range(4):
        e(f"v_add_f32 v{TMP+i}, v{TMP+i}, v{TMP+4+i}")
    tagq(TMP, [TMP, TMP + 1, TMP + 2, TMP + 3])


hdr = open(f"cdna_kernels/{NAME}.s.ref").read().split("\n")
top = [l for l in hdr if l.startswith(";") and "@launch" not in l]
out.extend(top)
out.append(f"; @launch grid=(256,1,1) block=(512,1,1) lds={LDS_BYTES}")
out.append('.amdgcn_target "amdgcn-amd-amdhsa--gfx950"')
out.append(".text")
out.append(f".globl {NAME}_kernel")
out.append(".p2align 8")
out.append(f".type {NAME}_kernel,@function")
lab(f"{NAME}_kernel")

e("s_cmp_ge_u32 s2, 256")
e("s_cbranch_scc1 L_exit")
e("s_load_dwordx16 s[16:31], s[0:1], 0")
e("s_load_dwordx8 s[32:39], s[0:1], 64")
e("s_load_dwordx4 s[40:43], s[0:1], 96")
e("v_lshrrev_b32 v1, 6, v0")
e("v_and_b32 v0, 63, v0")
e(f"s_mov_b32 s{S_SELLO}, 0x05040100")
e(f"s_mov_b32 s{S_SELHI}, 0x07060302")
e(f"s_mov_b32 s{S_MASK}, 0x3ff")
e(f"s_mov_b32 s{S_DRY}, 0")
e(f"v_readfirstlane_b32 s{S_WAVE}, v1")
lane_setup()
e("s_waitcnt lgkmcnt(0)")
srd(SRD_X, 16, 4096)
srd(SRD_WS, 42, WS_END)
e(f"s_cmp_ge_u32 s{S_WAVE}, 4")
e("s_cbranch_scc1 L_comm")

srd(SRD_K, 18, 33554432)
srd(SRD_V, 20, 33554432)
stamp(0)
e("s_lshr_b32 s10, s2, 3")
e("s_lshl_b32 s10, s10, 12")
e("s_and_b32 s11, s2, 7")
e("s_lshl_b32 s11, s11, 7")
e("s_add_u32 s10, s10, s11")
e(f"s_lshl_b32 s11, s{S_WAVE}, 5")
e("s_add_u32 s10, s10, s11")
e("s_add_u32 s10, s10, 3072")
e("s_lshl_b32 s10, s10, 8")
e("s_add_u32 s11, s10, 4096")
e("v_and_b32 v8, 15, v0")
e("v_lshlrev_b32 v9, 4, v8")
e("v_lshlrev_b32 v8, 8, v8")
e("v_lshl_add_u32 v8, v3, 4, v8")
e("v_lshl_add_u32 v9, v3, 10, v9")
load_tag(2)
D = OPT["depth"]
seq = []
if OPT["kdma"]:
    e("v_and_b32 v12, 15, v0")
    for i4 in range(4):
        e(f"v_add_u32 v13, {4*i4}, v3")
        e(f"v_xor_b32 v14, v12, v13")
        e(f"v_lshlrev_b32 v14, 4, v14")
        e(f"v_lshl_add_u32 v{TMP+20+i4}, v13, 8, v14")
    e(f"s_lshl_b32 s12, s{S_WAVE}, 13")
    e(f"s_add_u32 s12, s12, {L_K}")
    for i in range(8):
        seq.append([f"s_add_u32 m0, s12, {1024*i}", "s_nop 0",
                    f"buffer_load_dwordx4 v{TMP+20+(i&3)}, s[{SRD_K}:{SRD_K+3}], s{10+(i>>2)} offen{NT} lds"])
    for c in range(4):
        e(f"v_add_u32 v13, {4*c}, v3")
        e(f"v_xor_b32 v13, v13, v12")
        e(f"v_lshlrev_b32 v13, 4, v13")
        e(f"v_lshl_add_u32 v13, v12, 8, v13")
        e(f"v_add_u32 v{228+c}, s12, v13")
else:
  for kb in range(2):
    for c in range(4):
        r = VK + 16 * kb + 4 * c
        seq.append(f"buffer_load_dwordx4 v[{r}:{r+3}], v8, s[{SRD_K}:{SRD_K+3}], s{10+kb} offen offset:{64*c}{NT}")
for i in range(8):
    r = VV + 4 * i
    so = 10 if i < 4 else 11
    seq.append(f"buffer_load_dwordx4 v[{r}:{r+3}], v9, s[{SRD_V}:{SRD_V+3}], s{so} offen offset:{256*(i&3)}{NT}")
if OPT["k_after"] or OPT["go_pub"]:
    e("s_barrier")
    lds_wait(C_GO, 1, TMP)
for i, l in enumerate(seq):
    if i == D and not (OPT["k_after"] or OPT["go_pub"]):
        e("s_barrier")
    if i >= D:
        e(f"s_waitcnt vmcnt({D-1})")
    if (OPT["jit"] & 1) and i == min(15, OPT["jit_k"] + D):
        lds_signal(C_K, TMP)
    for l_ in (l if isinstance(l, list) else [l]):
        e(l_)
finish_tag()
if OPT["vstamp"]:
    e("s_waitcnt vmcnt(0)")
    stamp(7)
lab("L_secA")
lds_wait(C_Q, 2 if OPT["q2"] else 4, TMP)
stamp(3)
VQ = TMP
e("v_and_b32 v1, 3, v0")
e("v_lshlrev_b32 v1, 8, v1")
e("v_lshl_add_u32 v1, v3, 4, v1")
for c in range(4):
    e(f"ds_read_b128 v[{VQ+4*c}:{VQ+4*c+3}], v1 offset:{L_QS+64*c}")
with Guard():
    e("s_waitcnt vmcnt(8)")
if OPT["kdma"]:
    for kb in range(2):
        for c in range(4):
            r = VK + 16 * kb + 4 * c
            e(f"ds_read_b128 v[{r}:{r+3}], v{228+c} offset:{4096*kb}")
e("s_waitcnt lgkmcnt(0)")
stamp(4)
VS = VACC
for kb in range(2):
    for c in range(4):
        src2 = "0" if c == 0 else f"v[{VS+4*kb}:{VS+4*kb+3}]"
        e(f"v_mfma_f32_16x16x32_bf16 v[{VS+4*kb}:{VS+4*kb+3}], v[{VK+16*kb+4*c}:{VK+16*kb+4*c+3}], v[{VQ+4*c}:{VQ+4*c+3}], {src2}")
e("s_nop 7")
e("s_nop 1")
SC = TMP + 16
T = TMP + 24
for kb in range(2):
    for h2 in range(2):
        a = VS + 4 * kb + 2 * h2
        d = SC + 4 * kb + 2 * h2
        bf16_round_pair(T, a, a + 1, d, d + 1)
        e(f"v_mul_f32 v{d}, 0x3db504f3, v{d}")
        e(f"v_mul_f32 v{d+1}, 0x3db504f3, v{d+1}")
        bf16_round_pair(T, d, d + 1, d, d + 1)
MX = TMP + 26
LS = TMP + 27
e(f"v_max3_f32 v{MX}, v{SC}, v{SC+1}, v{SC+2}")
e(f"v_max3_f32 v{MX}, v{MX}, v{SC+3}, v{SC+4}")
e(f"v_max3_f32 v{MX}, v{MX}, v{SC+5}, v{SC+6}")
e(f"v_max_f32 v{MX}, v{MX}, v{SC+7}")
swap_reduce("v_max_f32", [MX], [T])
for i in range(8):
    e(f"v_sub_f32 v{SC+i}, v{SC+i}, v{MX}")
    e(f"v_mul_f32 v{SC+i}, 0x3fb8aa3b, v{SC+i}")
    e(f"v_exp_f32 v{SC+i}, v{SC+i}")
e("s_nop 0")
e(f"v_add_f32 v{LS}, v{SC}, v{SC+1}")
for i in range(2, 8):
    e(f"v_add_f32 v{LS}, v{LS}, v{SC+i}")
swap_reduce("v_add_f32", [LS], [T])
VP = TMP + 28
for i in range(4):
    e(f"v_cvt_pk_bf16_f32 v{VP+i}, v{SC+2*i}, v{SC+2*i+1}")
with Guard():
    e("s_waitcnt vmcnt(0)")
stamp(5)
tile_mm(VV, VP, VB, VACC)
e(f"s_lshl_b32 s4, s{S_WAVE}, 11")
e("v_lshlrev_b32 v1, 5, v0")
e("v_add_u32 v1, s4, v1")
e(f"s_lshl_b32 s4, s{S_WAVE}, 5")
e("v_lshlrev_b32 v2, 3, v0")
e("v_add_u32 v2, s4, v2")
e("s_nop 7")
gather_quads(VK)
with Guard():
    set_exec("0xffff", 0)
    for r in range(4):
        for hf in range(2):
            e(f"ds_write_b128 v1, v[{VK+8*r+4*hf}:{VK+8*r+4*hf+3}] offset:{L_OW+512*r+16*hf}")
    e("s_mov_b64 exec, 15")
    e(f"ds_write_b64 v2, v[{MX}:{MX+1}] offset:{L_ML}")
    e("s_mov_b64 exec, -1")
    lds_signal(C_O, TMP)
stamp(1)
e(f"s_lshl_b32 s4, s{S_WAVE}, 3")
e("v_mov_b32 v1, s4")
e(f"s_lshl_b32 s4, s{S_WAVE}, 9")
e("v_and_b32 v2, 31, v0")
e("v_lshlrev_b32 v2, 4, v2")
e("v_add_u32 v2, s4, v2")
e("s_lshr_b32 s4, s2, 3")
e("s_lshl_b32 s4, s4, 2")
e(f"s_add_u32 s4, s4, s{S_WAVE}")
e("s_and_b32 s5, s2, 7")
e("s_lshl_b32 s6, s4, 12")
e("s_lshl_b32 s7, s5, 7")
e("s_add_u32 s6, s6, s7")
e(f"s_add_u32 s6, s6, {WS_APO}")
e("s_lshl_b32 s4, s4, 3")
e("s_add_u32 s4, s4, s5")
e(f"s_lshl_b32 s4, s4, {7 if OPT['apm128'] else 4}")
e(f"s_add_u32 s4, s4, {WS_APM}")
e("v_and_b32 v7, 7, v0")
e("v_lshlrev_b32 v7, 4, v7")
e(f"v_lshrrev_b32 v{TMP+12}, 3, v0")
e(f"v_lshl_add_u32 v7, v{TMP+12}, 10, v7")
lds_wait(C_O, 4, TMP)
stamp(2)
R = VACC
for w in range(4):
    e(f"ds_read_b64 v[{R+2*w}:{R+2*w+1}], v1 offset:{L_ML+32*w}")
for w in range(4):
    e(f"ds_read_b128 v[{R+8+4*w}:{R+11+4*w}], v2 offset:{L_OW+2048*w}")
e("s_waitcnt lgkmcnt(0)")
M_, L_ = R + 24, R + 25
e(f"v_max3_f32 v{M_}, v{R}, v{R+2}, v{R+4}")
e(f"v_max_f32 v{M_}, v{M_}, v{R+6}")
F_ = TMP
for w in range(4):
    e(f"v_sub_f32 v{F_+w}, v{R+2*w}, v{M_}")
    e(f"v_mul_f32 v{F_+w}, 0x3fb8aa3b, v{F_+w}")
    e(f"v_exp_f32 v{F_+w}, v{F_+w}")
e("s_nop 0")
O_ = TMP + 4
e(f"v_mul_f32 v{L_}, v{F_}, v{R+1}")
for i in range(4):
    e(f"v_mul_f32 v{O_+i}, v{F_}, v{R+8+i}")
for w in range(1, 4):
    e(f"v_fmac_f32 v{L_}, v{F_+w}, v{R+2*w+1}")
    for i in range(4):
        e(f"v_fmac_f32 v{O_+i}, v{F_+w}, v{R+8+4*w+i}")
tagq(O_, [O_, O_ + 1, O_ + 2, O_ + 3])
e(f"v_mov_b32 v{R+26}, 0")
e(f"v_mov_b32 v{R+27}, 0")
tagq(TMP + 8, [M_, L_, R + 26, R + 27])
e(f"v_mov_b32 v1, 0")
with Guard():
    set_exec("-1", 0)
    e(f"buffer_store_dwordx4 v[{O_}:{O_+3}], v7, s[{SRD_WS}:{SRD_WS+3}], s6 offen sc1")
    e("s_mov_b64 exec, 1")
    e(f"buffer_store_dwordx4 v[{TMP+8}:{TMP+11}], v1, s[{SRD_WS}:{SRD_WS+3}], s4 offen sc1")
    e("s_mov_b64 exec, -1")
stamp(6)
if_dry_goto("L_dry_done_data")
lab("L_exit_d")
dump_stamps(False)
e("s_endpgm")

lab("L_comm")
e("s_setprio 2")
e(f"s_sub_u32 s{S_WAVE}, s{S_WAVE}, 4")
stamp(6, True)
load_tag(7)
e("s_mov_b32 s8, 0")
e(f"s_cmp_ge_u32 s{S_WAVE}, 2")
e("s_cbranch_scc1 L_p1_noload")
e(f"s_cmp_eq_u32 s{S_WAVE}, 1")
e("s_cbranch_scc1 L_p1_w1")
srd(SRD_W1, 22, 4194304)
e("s_mov_b32 s5, 8192")
e("s_lshr_b32 s6, s2, 6")
e("s_lshl_b32 s6, s6, 7")
e("s_and_b32 s7, s2, 63")
e("s_lshl_b32 s7, s7, 7")
e("s_mov_b32 s8, 1")
e("s_branch L_p1_go")
lab("L_p1_w1")
e("s_cmp_ge_u32 s2, 112")
e("s_cbranch_scc1 L_p1_noload")
srd(SRD_W1, 28, 512 * 1792 * 2)
e("s_mov_b32 s5, 3584")
e("s_and_b32 s6, s2, 3")
e("s_lshl_b32 s6, s6, 7")
e("s_lshr_b32 s7, s2, 2")
e("s_lshl_b32 s7, s7, 7")
e("s_mov_b32 s8, 2")
if OPT["w1_late"]:
    e("s_barrier")
    lds_wait(C_GO, 1, TMP)
lab("L_p1_go")
e("v_mul_lo_u32 v7, s5, v4")
e("v_lshl_add_u32 v7, v1, 4, v7")
e("s_mul_i32 s9, s6, s5")
e("s_add_u32 s9, s9, s7")
e("s_lshl_b32 s12, s6, 1")
e("s_mul_i32 s13, s5, 56")
for i in range(16):
    e(f"buffer_load_dwordx4 v[{VW+4*i}:{VW+4*i+3}], v7, s[{SRD_W1}:{SRD_W1+3}], s9 offen{NT}")
    if i < 15:
        e("s_add_u32 s9, s9, s5")
    if i == 7:
        e("s_add_u32 s9, s9, s13")
XA, XA2, XR = 96, 100, 104
e(f"buffer_load_dwordx4 v[{XA}:{XA+3}], v6, s[{SRD_X}:{SRD_X+3}], s12 offen")
e(f"buffer_load_dwordx4 v[{XA2}:{XA2+3}], v6, s[{SRD_X}:{SRD_X+3}], s12 offen offset:128")
e("v_lshlrev_b32 v1, 4, v0")
for b in range(4):
    e(f"buffer_load_dwordx4 v[{XR+4*b}:{XR+4*b+3}], v1, s[{SRD_X}:{SRD_X+3}], 0 offen offset:{1024*b}")
lab("L_p1_noload")
e(f"s_cmp_lg_u32 s{S_WAVE}, 0")
e("s_cbranch_scc1 L_c_noz")
e("v_mov_b32 v1, 0")
e("v_lshlrev_b32 v7, 2, v0")
e("s_mov_b64 exec, 0xffff")
e(f"ds_write_b32 v7, v1 offset:{L_CNT}")
e("s_mov_b64 exec, -1")
e("s_waitcnt lgkmcnt(0)")
lab("L_c_noz")
if OPT["w1_late"]:
    e("s_cmp_eq_u32 s8, 2")
    e("s_cbranch_scc1 L_skipb0")
e("s_barrier")
lab("L_skipb0")
e(f"s_lshl_b32 s15, s{S_WAVE}, 11")
e(f"s_add_u32 s15, s15, {L_PIECE + 4096}")
if OPT["dry"]:
    e(f"s_mov_b32 s{S_DRY}, 1")
    e("s_cmp_lg_u32 s8, 0")
    e("s_cbranch_scc1 L_secP1")
    e(f"s_cmp_eq_u32 s{S_WAVE}, 2")
    e("s_cbranch_scc1 L_secA")
    e("s_branch L_secQ")
    lab("L_dry_done_data")
    lab("L_dry_done_comm")
    e(f"s_mov_b32 s{S_DRY}, 0")
    lane_setup()
lab("L_real_start")
if OPT["k_after"]:
    e(f"s_cmp_eq_u32 s{S_WAVE}, 0")
    e("s_cbranch_scc0 L_nogo")
    e(f"s_waitcnt vmcnt({22-OPT['k_after']})")
    lds_signal(C_GO, TMP)
    lab("L_nogo")
e("s_waitcnt vmcnt(0) lgkmcnt(0)")
stamp(7, True)
finish_tag()
e("s_cmp_eq_u32 s8, 0")
e("s_cbranch_scc1 L_secQ")
lab("L_secP1")
for d in range(4):
    e(f"v_mov_b32 v{VA+d}, v{XA+d}")
    e(f"v_mov_b32 v{VA2+d}, v{XA2+d}")
e("s_cmp_eq_u32 s8, 1")
e("s_cbranch_scc1 L_p1_mm")
SUM = TMP
T = TMP + 4
for b in range(4):
    e(f"v_lshlrev_b32 v{T}, 16, v{XR+4*b}")
    e(f"v_and_b32 v{T+1}, 0xffff0000, v{XR+4*b}")
    e(f"v_add_f32 v{SUM+b}, v{T}, v{T+1}")
    for d in range(1, 4):
        e(f"v_lshlrev_b32 v{T}, 16, v{XR+4*b+d}")
        e(f"v_and_b32 v{T+1}, 0xffff0000, v{XR+4*b+d}")
        e(f"v_add_f32 v{SUM+b}, v{SUM+b}, v{T}")
        e(f"v_add_f32 v{SUM+b}, v{SUM+b}, v{T+1}")
dpp_reduce("v_add_f32", [SUM + b for b in range(4)], ROW16)
swap_reduce("v_add_f32", [SUM + b for b in range(4)], [T + b for b in range(4)])
for b in range(4):
    e(f"v_mul_f32 v{SUM+b}, 0x3b000000, v{SUM+b}")
SQ = TMP + 12
for b in range(4):
    for d in range(4):
        e(f"v_lshlrev_b32 v{T}, 16, v{XR+4*b+d}")
        e(f"v_and_b32 v{T+1}, 0xffff0000, v{XR+4*b+d}")
        e(f"v_sub_f32 v{T}, v{T}, v{SUM+b}")
        e(f"v_sub_f32 v{T+1}, v{T+1}, v{SUM+b}")
        if d == 0:
            e(f"v_mul_f32 v{SQ+b}, v{T}, v{T}")
        else:
            e(f"v_fmac_f32 v{SQ+b}, v{T}, v{T}")
        e(f"v_fmac_f32 v{SQ+b}, v{T+1}, v{T+1}")
dpp_reduce("v_add_f32", [SQ + b for b in range(4)], ROW16)
swap_reduce("v_add_f32", [SQ + b for b in range(4)], [T + b for b in range(4)])
for b in range(4):
    e(f"v_mul_f32 v{SQ+b}, 0x3b000000, v{SQ+b}")
MEAN, DEN, RCP = TMP + 16, TMP + 17, TMP + 18
e(f"v_mov_b32 v{MEAN}, v{SUM}")
e(f"v_mov_b32 v{DEN}, v{SQ}")
for b in range(1, 4):
    e(f"v_cmp_eq_u32 vcc, {b}, v5")
    e("s_nop 1")
    e(f"v_cndmask_b32 v{MEAN}, v{MEAN}, v{SUM+b}, vcc")
    e(f"v_cndmask_b32 v{DEN}, v{DEN}, v{SQ+b}, vcc")
bf16_round_pair(T, MEAN, DEN, MEAN, DEN)
e(f"v_add_f32 v{DEN}, 0x3727c5ac, v{DEN}")
e(f"v_cvt_pk_bf16_f32 v{T}, v{DEN}, v{DEN}")
e(f"v_lshlrev_b32 v{DEN}, 16, v{T}")
e(f"v_sqrt_f32 v{DEN}, v{DEN}")
e("s_nop 0")
e(f"v_cvt_pk_bf16_f32 v{T}, v{DEN}, v{DEN}")
e(f"v_lshlrev_b32 v{DEN}, 16, v{T}")
e(f"v_rcp_f32 v{RCP}, v{DEN}")
e("s_nop 0")
for AA in (VA, VA2):
    for d in range(4):
        a0, a1 = T + 2, T + 3
        e(f"v_lshlrev_b32 v{a0}, 16, v{AA+d}")
        e(f"v_and_b32 v{a1}, 0xffff0000, v{AA+d}")
        e(f"v_sub_f32 v{a0}, v{a0}, v{MEAN}")
        e(f"v_sub_f32 v{a1}, v{a1}, v{MEAN}")
        bf16_round_pair(T, a0, a1, a0, a1)
        for a in (a0, a1):
            e(f"v_mul_f32 v{T+4}, v{a}, v{RCP}")
            e(f"v_fma_f32 v{T+5}, -v{T+4}, v{DEN}, v{a}")
            e(f"v_fma_f32 v{a}, v{T+5}, v{RCP}, v{T+4}")
        e(f"v_cvt_pk_bf16_f32 v{AA+d}, v{a0}, v{a1}")
lab("L_p1_mm")
tile128(VA, VA2, 15)
e("v_and_b32 v1, 15, v0")
e("s_cmp_eq_u32 s8, 1")
e("s_cbranch_scc1 L_pub_q")
e("s_and_b32 s4, s2, 3")
e("s_mul_i32 s4, s4, 1792")
e("s_lshr_b32 s5, s2, 2")
e("s_lshl_b32 s5, s5, 4")
e("s_add_u32 s4, s4, s5")
e("s_lshl_b32 s4, s4, 4")
e(f"s_add_u32 s4, s4, {WS_HP}")
e(f"v_mul_u32_u24 v2, 448, v{TMP+8}")
e("v_add_u32 v1, v2, v1")
e("s_branch L_pub_go")
lab("L_pub_q")
e("s_lshr_b32 s4, s2, 6")
e("s_lshl_b32 s4, s4, 12")
e("s_and_b32 s5, s2, 63")
e("s_lshl_b32 s5, s5, 4")
e("s_add_u32 s4, s4, s5")
e("s_lshl_b32 s4, s4, 4")
e(f"s_add_u32 s4, s4, {WS_QP}")
e(f"v_lshl_add_u32 v1, v{TMP+8}, 10, v1")
lab("L_pub_go")
e("v_lshlrev_b32 v1, 4, v1")
if_dry_goto("L_dry_done_comm")
e(f"buffer_store_dwordx4 v[{TMP}:{TMP+3}], v1, s[{SRD_WS}:{SRD_WS+3}], s4 offen sc1")
if OPT["go_pub"]:
    e("s_cmp_eq_u32 s8, 1")
    e("s_cbranch_scc0 L_nogo2")
    lds_signal(C_GO, TMP + 10)
    stamp(0, True)
    lab("L_nogo2")
else:
    stamp(0, True)
lab("L_secQ")
e("v_lshlrev_b32 v3, 4, v0")
if OPT["q2"]:
    assert not OPT["dry"]
    e(f"s_lshl_b32 s4, s{S_WAVE}, 8")
    e("v_and_b32 v5, 31, v0")
    e("v_lshlrev_b32 v5, 3, v5")
    e("v_add_u32 v5, s4, v5")
    e(f"s_cmp_lt_u32 s{S_WAVE}, 2")
    e("s_cbranch_scc1 L_q_skip")
    e("s_lshr_b32 s4, s2, 6")
    e("s_lshl_b32 s4, s4, 10")
    e("s_lshr_b32 s5, s2, 3")
    e("s_and_b32 s5, s5, 7")
    e("s_lshl_b32 s5, s5, 7")
    e("s_add_u32 s4, s4, s5")
    e(f"s_sub_u32 s5, s{S_WAVE}, 2")
    e("s_lshl_b32 s5, s5, 6")
    e("s_add_u32 s4, s4, s5")
    e("s_lshl_b32 s4, s4, 4")
    e(f"s_add_u32 s4, s4, {WS_QP}")
    for k in range(1, 4):
        e(f"s_add_u32 s{4+k}, s4, {k*4*1024*16}")
    poll("q", [f"buffer_load_dwordx4 @, v3, s[{SRD_WS}:{SRD_WS+3}], s{4+k} offen sc1" for k in range(4)],
         [16, 20, 24, 28], 6, OPT["sleep_q"])
    for i in range(4):
        e(f"v_add_f32 v{32+i}, v{16+i}, v{20+i}")
        e(f"v_add_f32 v{36+i}, v{24+i}, v{28+i}")
    for i in range(4):
        e(f"v_add_f32 v{32+i}, v{32+i}, v{36+i}")
    e("v_cvt_pk_bf16_f32 v32, v32, v33")
    e("v_cvt_pk_bf16_f32 v33, v34, v35")
    e(f"s_sub_u32 s4, s{S_WAVE}, 2")
    e("s_lshl_b32 s4, s4, 9")
    e("v_lshlrev_b32 v4, 3, v0")
    e("v_add_u32 v4, s4, v4")
    e(f"ds_write_b64 v4, v[32:33] offset:{L_QS}")
    lds_signal(C_Q, 6)
    lab("L_q_skip")
else:
    e("s_lshr_b32 s4, s2, 6")
    e("s_lshl_b32 s4, s4, 10")
    e("s_lshr_b32 s5, s2, 3")
    e("s_and_b32 s5, s5, 7")
    e("s_lshl_b32 s5, s5, 7")
    e("s_add_u32 s4, s4, s5")
    e(f"s_lshl_b32 s5, s{S_WAVE}, 5")
    e("s_add_u32 s4, s4, s5")
    e("s_lshl_b32 s4, s4, 4")
    e(f"s_add_u32 s4, s4, {WS_QP}")
    e(f"s_add_u32 s5, s4, {4*1024*16}")
    e("v_and_b32 v4, 31, v0")
    e("v_lshlrev_b32 v4, 4, v4")
    e("v_lshrrev_b32 v5, 5, v0")
    e("v_lshl_add_u32 v4, v5, 17, v4")
    if OPT["jit"] & 1:
        lds_wait(C_K, 4, 6)
    poll("q", [f"buffer_load_dwordx4 @, v4, s[{SRD_WS}:{SRD_WS+3}], s{4+k} offen sc1" for k in range(2)],
         [16, 20], 6, OPT["sleep_q"], altbase=168)
    for i in range(4):
        e(f"v_add_f32 v{24+i}, v{16+i}, v{20+i}")
    swap_reduce("v_add_f32", [24, 25, 26, 27], [28, 29, 30, 31], ("v_permlane32_swap_b32",))
    e("v_cvt_pk_bf16_f32 v24, v24, v25")
    e("v_cvt_pk_bf16_f32 v25, v26, v27")
    e(f"s_lshl_b32 s4, s{S_WAVE}, 8")
    e("v_and_b32 v5, 31, v0")
    e("v_lshlrev_b32 v5, 3, v5")
    e("v_add_u32 v5, s4, v5")
    with Guard():
        e(f"ds_write_b64 v5, v[24:25] offset:{L_QS}")
        lds_signal(C_Q, 6)

stamp(1, True)
W3, B3, ACC3 = 96, 160, 16
e("s_mov_b32 s14, 0")
with Guard():
    e("v_lshrrev_b32 v9, 4, v0")
    e(f"s_cmp_lt_u32 s{S_WAVE}, 2")
    e("s_cbranch_scc1 L_nowo0")
    srd(SRD_W3, 24, 4194304)
    e("s_lshr_b32 s6, s2, 1")
    e("s_lshl_b32 s9, s6, 15")
    e("s_and_b32 s7, s2, 1")
    e("s_lshl_b32 s7, s7, 9")
    e("s_add_u32 s9, s9, s7")
    e(f"s_sub_u32 s7, s{S_WAVE}, 2")
    e("s_lshl_b32 s7, s7, 8")
    e("s_add_u32 s9, s9, s7")
    e("v_and_b32 v7, 15, v0")
    e("v_lshlrev_b32 v7, 4, v7")
    e("v_lshl_add_u32 v7, v9, 13, v7")
    for i in range(8):
        e(f"buffer_load_dwordx4 v[{W3+4*i}:{W3+4*i+3}], v7, s[{SRD_W3}:{SRD_W3+3}], s9 offen offset:{1024*(i&3)}{NT}")
        if i == 3:
            e("s_add_u32 s9, s9, 4096")
    e("s_branch L_now2")
    lab("L_nowo0")
    e(f"s_cmp_eq_u32 s{S_WAVE}, 1")
    e("s_cbranch_scc0 L_now2")
    e("s_cmp_lt_u32 s2, 112")
    e("s_cbranch_scc1 L_now2")
    e("s_cmp_ge_u32 s2, 224")
    e("s_cbranch_scc1 L_now2")
    e("s_mov_b32 s14, 1")
    srd(SRD_W3, 32, 1792 * 512 * 2)
    e("s_sub_u32 s9, s2, 112")
    e("s_lshr_b32 s6, s9, 3")
    e("s_lshl_b32 s6, s6, 17")
    e("s_and_b32 s7, s9, 7")
    e("s_lshl_b32 s7, s7, 7")
    e("s_add_u32 s9, s6, s7")
    e("v_bfe_u32 v7, v0, 3, 1")
    e("v_lshlrev_b32 v7, 5, v7")
    e("v_lshl_add_u32 v9, v9, 3, v7")
    e("v_and_b32 v7, 7, v0")
    e("v_lshlrev_b32 v7, 4, v7")
    e("v_lshl_add_u32 v7, v9, 10, v7")
    for i in range(16):
        e(f"buffer_load_dwordx4 v[{W3+4*i}:{W3+4*i+3}], v7, s[{SRD_W3}:{SRD_W3+3}], s9 offen offset:{1024*(i&3)}{NT}")
        if i == 7:
            e(f"s_add_u32 s9, s9, {4096 + 56*1024}")
        elif i & 3 == 3 and i < 15:
            e("s_add_u32 s9, s9, 4096")
    lab("L_now2")
e("s_lshr_b32 s4, s2, 4")
e("s_lshl_b32 s4, s4, 7")
e("s_and_b32 s5, s2, 15")
e("s_lshl_b32 s5, s5, 3")
e("s_add_u32 s4, s4, s5")
e("s_lshl_b32 s4, s4, 4")
e(f"s_add_u32 s4, s4, {WS_OP}")
e(f"s_lshl_b32 s5, s{S_WAVE}, 18")
e("s_add_u32 s86, s4, s5")
for k in range(1, 4):
    e(f"s_add_u32 s{86+k}, s86, {k*65536}")
e(f"s_lshl_b32 s5, s{S_WAVE}, 15")
e("s_add_u32 s5, s4, s5")
e(f"s_add_u32 s85, s5, {128*8192}")
e("v_and_b32 v60, 7, v0")
e("v_lshlrev_b32 v60, 4, v60")
e("v_lshrrev_b32 v61, 3, v0")
e("v_lshl_add_u32 v60, v61, 13, v60")
e("v_and_b32 v62, 3, v61")
e(f"s_lshl_b32 s5, s{S_WAVE}, 2")
e("s_sub_u32 s5, 13, s5")
e("v_min_u32 v62, s5, v62")
e("v_and_b32 v63, 7, v0")
e("v_lshlrev_b32 v63, 4, v63")
e("v_lshl_add_u32 v62, v62, 13, v63")
o_loads = [f"buffer_load_dwordx4 v[{32+4*k}:{35+4*k}], v60, s[{SRD_WS}:{SRD_WS+3}], s{86+k} offen sc1" for k in range(4)]
o_loads.append(f"buffer_load_dwordx4 v[48:51], v62, s[{SRD_WS}:{SRD_WS+3}], s85 offen sc1")
e("s_cmp_ge_u32 s2, 64")
e("s_cbranch_scc1 L_c_nowarm")
with Guard():
    if not (OPT["jit"] & 4):
        for l in o_loads:
            e(l)
    srd(SRD_M, 36, 1024)
    e(f"buffer_load_dwordx4 v[64:67], v3, s[{SRD_M}:{SRD_M+3}], 0 offen")
    e("s_lshr_b32 s4, s2, 4")
    e("s_lshl_b32 s4, s4, 10")
    e(f"buffer_load_dwordx4 v[68:71], v3, s[{SRD_X}:{SRD_X+3}], s4 offen")
    srd(SRD_OUT, 34, 1024)
    e("v_and_b32 v6, 31, v0")
    e("v_lshlrev_b32 v6, 1, v6")
    e("s_and_b32 s4, s2, 15")
    e("s_lshl_b32 s4, s4, 6")
    e(f"buffer_load_ushort v72, v6, s[{SRD_OUT}:{SRD_OUT+3}], s4 offen")
lab("L_c_nowarm")
if_dry_goto("L_secAG")
e("s_cmp_lt_u32 s2, 112")
e("s_cbranch_scc1 L_secAG")
e("s_cmp_ge_u32 s2, 224")
e("s_cbranch_scc1 L_secAG")
lab("L_secH")
e("s_sub_u32 s9, s2, 112")
e("s_lshr_b32 s9, s9, 3")
e("s_min_u32 s9, s9, 13")
e(f"s_mul_i32 s4, s{S_WAVE}, 448")
e("s_lshl_b32 s5, s9, 5")
e("s_add_u32 s4, s4, s5")
e("s_lshl_b32 s4, s4, 4")
e(f"s_add_u32 s4, s4, {WS_HP}")
e(f"s_add_u32 s5, s4, {4*448*16}")
srd(SRD_M, 30, 3584)
e("s_lshl_b32 s9, s9, 8")
e("v_and_b32 v6, 31, v0")
e("v_lshlrev_b32 v4, 4, v6")
e("v_lshlrev_b32 v6, 3, v6")
e(f"buffer_load_dwordx2 v[80:81], v6, s[{SRD_M}:{SRD_M+3}], s9 offen")
e("v_lshrrev_b32 v7, 5, v0")
e(f"s_mov_b32 s6, {2*4*448*16}")
e("v_mul_lo_u32 v7, s6, v7")
e("v_add_u32 v4, v7, v4")
poll("h", [f"buffer_load_dwordx4 @, v4, s[{SRD_WS}:{SRD_WS+3}], s{4+k} offen sc1" for k in range(2)],
     [16, 20], 6, OPT["sleep_q"])
for i in range(4):
    e(f"v_add_f32 v{24+i}, v{16+i}, v{20+i}")
swap_reduce("v_add_f32", [24, 25, 26, 27], [28, 29, 30, 31], ("v_permlane32_swap_b32",))
for p in range(2):
    a, b_ = 24 + 2 * p, 25 + 2 * p
    bf16_round_pair(28, a, b_, a, b_)
    e(f"v_lshlrev_b32 v28, 16, v{80+p}")
    e(f"v_and_b32 v29, 0xffff0000, v{80+p}")
    e(f"v_add_f32 v{a}, v{a}, v28")
    e(f"v_add_f32 v{b_}, v{b_}, v29")
    bf16_round_pair(28, a, b_, a, b_)
e("v_mov_b32 v31, 0x3d372713")
for r in (24, 25, 26, 27):
    e(f"v_mul_f32 v30, v{r}, v{r}")
    e(f"v_mul_f32 v30, v30, v{r}")
    e(f"v_fma_f32 v30, v30, v31, v{r}")
    e(f"v_mul_f32 v30, 0x40135761, v30")
    e(f"v_exp_f32 v30, v30")
    e("s_nop 0")
    e(f"v_add_f32 v30, 1.0, v30")
    e(f"v_rcp_f32 v30, v30")
    e("s_nop 0")
    e(f"v_fma_f32 v30, v30, -2.0, 2.0")
    e(f"v_mul_f32 v30, 0.5, v30")
    e(f"v_mul_f32 v{r}, v{r}, v30")
e("v_cvt_pk_bf16_f32 v24, v24, v25")
e("v_cvt_pk_bf16_f32 v25, v26, v27")
with Guard():
    e(f"ds_write_b64 v5, v[24:25] offset:{L_HA}")
    lds_signal(C_H, 6)
    e("s_cmp_eq_u32 s14, 1")
    e("s_cbranch_scc0 L_secAG")
lds_wait(C_H, 4, 6)
e(f"ds_read_b128 v[{VA}:{VA+3}], v11 offset:{L_HA}")
e(f"ds_read_b128 v[{VA2}:{VA2+3}], v11 offset:{L_HA+128}")
with Guard():
    e("s_waitcnt vmcnt(0)")
e("s_waitcnt lgkmcnt(0)")
tile128(VA, VA2, 15, W=W3, B=B3, ACC=ACC3, G=W3)
e("s_sub_u32 s5, s2, 112")
e("s_lshr_b32 s4, s5, 3")
e("s_add_u32 s4, s4, 128")
e("s_lshl_b32 s4, s4, 9")
e("s_and_b32 s5, s5, 7")
e("s_lshl_b32 s5, s5, 4")
e("s_add_u32 s4, s4, s5")
e("s_lshl_b32 s4, s4, 4")
e(f"s_add_u32 s4, s4, {WS_OP}")
e("v_and_b32 v1, 15, v0")
e(f"v_lshl_add_u32 v1, v{TMP+8}, 7, v1")
e("v_lshlrev_b32 v1, 4, v1")
if_dry_goto("L_dry_done_comm")
e(f"buffer_store_dwordx4 v[{TMP}:{TMP+3}], v1, s[{SRD_WS}:{SRD_WS+3}], s4 offen sc1")
lab("L_secAG")
e(f"s_lshl_b32 s4, s{S_WAVE}, 5")
e("s_lshr_b32 s5, s2, 3")
e("s_add_u32 s4, s4, s5")
e("s_lshl_b32 s6, s4, 2")
e("s_bfe_u32 s5, s2, 0x20001")
e("s_add_u32 s6, s6, s5")
e("s_lshl_b32 s6, s6, 10")
e(f"s_add_u32 s6, s6, {WS_APO}")
e(f"s_lshl_b32 s4, s4, {10 if OPT['apm128'] else 7}")
e(f"s_add_u32 s4, s4, {WS_APM}")
e(f"v_lshlrev_b32 v4, {7 if OPT['apm128'] else 4}, v61")
if OPT["jit"] & 2:
    lds_wait(C_O, 4, 6)
poll("a", [f"buffer_load_dwordx4 @, v3, s[{SRD_WS}:{SRD_WS+3}], s6 offen sc1",
           f"buffer_load_dwordx4 @, v4, s[{SRD_WS}:{SRD_WS+3}], s4 offen sc1"], [16, 20], 6, OPT["sleep_t"], altbase=168)
stamp(3, True)
e("v_mov_b32 v24, v20")
dpp_reduce("v_max_f32", [24], ["row_ror:8"])
swap_reduce("v_max_f32", [24], [25])
e("v_sub_f32 v25, v20, v24")
e("v_mul_f32 v25, 0x3fb8aa3b, v25")
e("v_exp_f32 v25, v25")
e("s_nop 0")
e("v_mul_f32 v26, v25, v21")
for i in range(4):
    e(f"v_mul_f32 v{84+i}, v25, v{16+i}")
dpp_reduce("v_add_f32", [26, 84, 85, 86, 87], ["row_ror:8"])
swap_reduce("v_add_f32", [26, 84, 85, 86, 87], [27, 28, 29, 30, 31])
e("v_rcp_f32 v27, v26")
e("s_nop 0")
e("v_fma_f32 v28, -v26, v27, 2.0")
e("v_mul_f32 v27, v27, v28")
for i in range(4):
    e(f"v_mul_f32 v{84+i}, v27, v{84+i}")
e("v_cvt_pk_bf16_f32 v84, v84, v85")
e("v_cvt_pk_bf16_f32 v85, v86, v87")
e(f"s_lshl_b32 s4, s{S_WAVE}, 6")
e("v_lshlrev_b32 v4, 3, v0")
e("v_add_u32 v4, s4, v4")
with Guard():
    e("s_mov_b64 exec, 0xff")
    e(f"ds_write_b64 v4, v[84:85] offset:{L_OA}")
    e("s_mov_b64 exec, -1")
    lds_signal(C_A, 6)
stamp(4, True)
if_dry_goto("L_secC")
e(f"s_cmp_lt_u32 s{S_WAVE}, 2")
e("s_cbranch_scc1 L_secC_done")
lab("L_secC")
e("s_lshr_b32 s4, s2, 1")
e("s_lshl_b32 s4, s4, 9")
e("s_and_b32 s5, s2, 1")
e("s_lshl_b32 s5, s5, 6")
e("s_add_u32 s4, s4, s5")
e(f"s_sub_u32 s5, s{S_WAVE}, 2")
e("s_lshl_b32 s5, s5, 5")
e("s_add_u32 s4, s4, s5")
e("s_lshl_b32 s4, s4, 4")
e(f"s_add_u32 s4, s4, {WS_OP}")
e("s_add_u32 s5, s4, 4096")
e("v_lshlrev_b32 v2, 5, v0")
e("v_and_b32 v1, 3, v0")
e("v_lshlrev_b32 v1, 6, v1")
e("v_lshrrev_b32 v9, 4, v0")
e("v_lshl_add_u32 v1, v9, 4, v1")
lds_wait(C_A, 4, 6)
e(f"ds_read_b128 v[{VA}:{VA+3}], v1 offset:{L_OA}")
with Guard():
    e("s_waitcnt vmcnt(0)")
e("s_waitcnt lgkmcnt(0)")
tile_mm(W3, VA, B3, ACC3)
e("s_nop 7")
e("s_nop 1")
if not OPT["opfull"]:
    for b in range(4):
        for hf in range(2):
            d = TMP + 8 * b + 4 * hf
            tagq(d, [ACC3 + 4 * (4 * hf + i) + b for i in range(4)])
    with Guard():
        set_exec("0xffff", 0)
        for b in range(4):
            for hf in range(2):
                d = TMP + 8 * b + 4 * hf
                e(f"buffer_store_dwordx4 v[{d}:{d+3}], v2, s[{SRD_WS}:{SRD_WS+3}], s{4+(b>>1)} offen offset:{2048*(b&1)+16*hf} sc1")
        e("s_mov_b64 exec, -1")
else:
    e("v_and_b32 v6, 16, v0")
    e("v_cmp_ne_u32 s[90:91], 0, v6")
    e("v_cmp_lt_u32 s[92:93], 31, v0")
    e("s_nop 1")
    for k in range(2):
        for i in range(4):
            t0, t1 = TMP + 16, TMP + 17
            e(f"v_cndmask_b32 v{t0}, v{ACC3+4*i+k}, v{ACC3+4*(4+i)+k}, s[90:91]")
            e(f"v_cndmask_b32 v{t1}, v{ACC3+4*i+2+k}, v{ACC3+4*(4+i)+2+k}, s[90:91]")
            e(f"v_cndmask_b32 v{TMP+8+4*k+i}, v{t0}, v{t1}, s[92:93]")
        tagq(TMP + 4 * k, [TMP + 8 + 4 * k + i for i in range(4)])
    e("v_and_b32 v2, 15, v0")
    e("v_lshlrev_b32 v2, 5, v2")
    e("v_add_u32 v2, v6, v2")
    e("v_lshrrev_b32 v6, 5, v0")
    e("v_lshl_add_u32 v2, v6, 12, v2")
    with Guard():
        for k in range(2):
            e(f"buffer_store_dwordx4 v[{TMP+4*k}:{TMP+4*k+3}], v2, s[{SRD_WS}:{SRD_WS+3}], s4 offen offset:{2048*k} sc1")
stamp(2, True)
lab("L_secC_done")
e("s_cmp_lt_u32 s2, 64")
e("s_cbranch_scc1 L_secF")
if_dry_goto("L_secH")
e("s_branch L_exit_c")
lab("L_secF")
GS = 74
for d in range(4):
    e(f"v_lshlrev_b32 v76, 16, v{68+d}")
    e(f"v_and_b32 v77, 0xffff0000, v{68+d}")
    e(f"v_lshlrev_b32 v78, 16, v{64+d}")
    e(f"v_and_b32 v79, 0xffff0000, v{64+d}")
    e("v_mul_f32 v76, v76, v78")
    e("v_mul_f32 v77, v77, v79")
    bf16_round_pair(78, 76, 77, 76, 77)
    if d == 0:
        e(f"v_add_f32 v{GS}, v76, v77")
    else:
        e(f"v_add_f32 v{GS}, v{GS}, v76")
        e(f"v_add_f32 v{GS}, v{GS}, v77")
dpp_reduce("v_add_f32", [GS], ROW16)
swap_reduce("v_add_f32", [GS], [76])
e(f"v_cvt_pk_bf16_f32 v75, v{GS}, v{GS}")
e("v_lshlrev_b32 v75, 16, v75")
e("v_mul_f32 v75, 0xbfb8aa3b, v75")
e("v_exp_f32 v75, v75")
e("s_nop 0")
e("v_add_f32 v75, 1.0, v75")
e("v_rcp_f32 v76, v75")
e("s_nop 0")
e("v_fma_f32 v77, -v75, v76, 2.0")
e("v_mul_f32 v76, v76, v77")
e("v_cvt_pk_bf16_f32 v76, v76, v76")
e("v_lshlrev_b32 v75, 16, v76")
e("v_sub_f32 v76, 1.0, v75")
e("v_cvt_pk_bf16_f32 v76, v76, v76")
e("v_lshlrev_b32 v76, 16, v76")
e("v_lshlrev_b32 v73, 16, v72")
poll("o", [re.sub(r"v\[\d+:\d+\]", "@", l, count=1) for l in o_loads], [32, 36, 40, 44, 48], 1, OPT["sleep_t"], altbase=128)
stamp(5, True)
e(f"s_lshl_b32 s5, s{S_WAVE}, 5")
e("s_sub_u32 s5, 112, s5")
e("s_min_u32 s5, s5, 32")
e("v_cmp_gt_u32 vcc, s5, v0")
e("s_nop 1")
for i in range(4):
    e(f"v_cndmask_b32 v{92+i}, 0, v{48+i}, vcc")
    e(f"v_add_f32 v{88+i}, v{32+i}, v{36+i}")
    e(f"v_add_f32 v{52+i}, v{40+i}, v{44+i}")
for i in range(4):
    e(f"v_add_f32 v{88+i}, v{88+i}, v{52+i}")
regs = [88 + i for i in range(8)]
dpp_reduce("v_add_f32", regs, ["row_ror:8"])
swap_reduce("v_add_f32", regs, [52 + i for i in range(8)])
e(f"s_lshl_b32 s4, s{S_WAVE}, 7")
e("v_add_u32 v4, s4, v3")
with Guard():
    e("s_mov_b64 exec, 0xff")
    e(f"ds_write_b128 v4, v[88:91] offset:{L_F}")
    e(f"ds_write_b128 v4, v[92:95] offset:{L_F+512}")
    e("s_mov_b64 exec, -1")
    lds_signal(C_F, 6)
    e(f"s_cmp_lg_u32 s{S_WAVE}, 0")
    e("s_cbranch_scc1 L_exit_c")
lds_wait(C_F, 4, 6)
e("v_and_b32 v6, 31, v0")
e("v_lshlrev_b32 v4, 2, v6")
for w in range(8):
    e(f"ds_read_b32 v{52+w}, v4 offset:{L_F+128*w}")
e("s_waitcnt lgkmcnt(0)")
e("v_add_f32 v52, v52, v53")
e("v_add_f32 v54, v54, v55")
e("v_add_f32 v56, v56, v57")
e("v_add_f32 v58, v58, v59")
e("v_add_f32 v52, v52, v54")
e("v_add_f32 v56, v56, v58")
bf16_round_pair(54, 52, 56, 52, 56)
e("v_add_f32 v56, v56, v73")
e("v_cvt_pk_bf16_f32 v54, v56, v56")
e("v_lshlrev_b32 v56, 16, v54")
e("v_mul_f32 v52, v75, v52")
e("v_mul_f32 v56, v76, v56")
bf16_round_pair(54, 52, 56, 52, 56)
e("v_add_f32 v52, v52, v56")
e("v_cvt_pk_bf16_f32 v52, v52, v52")
e("v_lshlrev_b32 v6, 1, v6")
e("s_lshl_b32 s4, s2, 6")
if_dry_goto("L_secH")
srd(SRD_OUT, 38, 4096)
set_exec("-1", 0)
e(f"buffer_store_short v52, v6, s[{SRD_OUT}:{SRD_OUT+3}], s4 offen")
e("s_cmp_lg_u32 s2, 0")
e("s_cbranch_scc1 L_exit_c")
e("s_mov_b64 exec, 1")
e(f"v_mov_b32 v1, 0")
e(f"v_mov_b32 v4, s{S_TAG}")
e(f"v_mov_b32 v5, s{S_TAG+1}")
e(f"buffer_store_dwordx2 v[4:5], v1, s[{SRD_WS}:{SRD_WS+3}], 0 offen offset:{WS_GEN} sc1")
lab("L_exit_c")
dump_stamps(True)
lab("L_exit")
e("s_endpgm")
if not OPT["dry"]:
    lab("L_dry_done_data")
    lab("L_dry_done_comm")
    e("s_endpgm")

out.append('.section .rodata,"a"')
out.append(".p2align 6")
out.append(f".amdhsa_kernel {NAME}_kernel")
out.append("  .amdhsa_next_free_vgpr 240")
out.append("  .amdhsa_next_free_sgpr 102")
out.append("  .amdhsa_accum_offset 240")
out.append("  .amdhsa_group_segment_fixed_size 0")
out.append("  .amdhsa_kernarg_size 112")
out.append("  .amdhsa_user_sgpr_count 2")
out.append("  .amdhsa_user_sgpr_kernarg_segment_ptr 1")
out.append("  .amdhsa_system_sgpr_workgroup_id_x 1")
out.append(".end_amdhsa_kernel")

dst = sys.argv[1] if len(sys.argv) > 1 else f"cdna_kernels/{NAME}.s"
open(dst, "w").write("\n".join(out) + "\n")
print("wrote", dst, len(out), "lines")
```

```python
import sys
import re

NAME = "gated_mix__sliding_block_cached__mixer_channel_mlp__decode"

OPT = dict(
    stamps=0,
    nt=1,
    depth=4,
    sleep_l=1,
    sleep_q=1,
    sleep_t=0,
    dry=0,
    k_after=0,
    pp=0,
    dbg=0,
    q2=0,
    kdma=1,
    jit=0,
    jit_k=7,
    vstamp=0,
    w1_late=0,
    go_pub=0,
    opfull=1,
    apm128=1,
)
for a in sys.argv[2:]:
    k, v = a.split("=")
    OPT[k] = int(v)

WS_GEN = 0
WS_QP = 0x10000
WS_HP = WS_QP + 4 * 4 * 1024 * 16
WS_APO = WS_HP + 4 * 4 * 448 * 16
WS_APM = WS_APO + 4 * 32 * 4 * 8 * 8 * 16
WS_OP = WS_APM + 4 * 32 * 8 * 128
WS_ST = WS_OP + 142 * 4 * 128 * 16
WS_END = WS_ST + 256 * 8 * 16 * 8
open("gen_layout.py", "w").write(f"WS_ST = {WS_ST}\n")

L_PIECE = 0
L_QS = 8192
L_OW = 9216
L_ML = 17408
L_OA = 17536
L_HA = 17792
L_F = 18816
L_CNT = 19840
L_K = 20480
L_END = L_K + 32768
LDS_BYTES = 53248
assert L_END <= LDS_BYTES
C_Q, C_O, C_H, C_A, C_F, C_GO, C_K = 0, 4, 8, 12, 16, 20, 24

out = []


def e(s):
    out.append("    " + s)


def lab(s):
    out.append(s + ":")


NT = " nt" if OPT["nt"] else ""
S_WAVE = 3
SRD_X, SRD_K, SRD_V, SRD_W1, SRD_W3, SRD_WS, SRD_OUT, SRD_M = 44, 48, 52, 56, 60, 64, 68, 72
S_TAG = 76
S_SELLO, S_SELHI = 78, 79
S_T0 = 80
S_MASK = 96
S_DRY = 97
S_STAMP = 100
V_ST = 236
uid = [0]


def nid():
    uid[0] += 1
    return uid[0]


class Guard:
    def __enter__(self):
        if not OPT["dry"]:
            return
        self.n = nid()
        e(f"s_cmp_lg_u32 s{S_DRY}, 0")
        e(f"s_cbranch_scc1 L_g{self.n}")

    def __exit__(self, *a):
        if not OPT["dry"]:
            return
        lab(f"L_g{self.n}")


def if_dry_goto(label):
    if not OPT["dry"]:
        e("s_nop 1")
        return
    e(f"s_cmp_lg_u32 s{S_DRY}, 0")
    e(f"s_cbranch_scc1 {label}")


def srd(dst, ptr, nbytes):
    e(f"s_mov_b32 s{dst}, s{ptr}")
    e(f"s_and_b32 s{dst+1}, s{ptr+1}, 0xffff")
    e(f"s_mov_b32 s{dst+2}, {nbytes}")
    e(f"s_mov_b32 s{dst+3}, 0x00020000")


def stamp_raw(i, comm):
    va, vt = V_ST, V_ST + 2
    e(f"s_lshl_b32 s98, s2, 3")
    e(f"s_add_u32 s98, s98, s{S_WAVE}")
    if comm:
        e("s_add_u32 s98, s98, 4")
    e(f"s_lshl_b32 s98, s98, 7")
    e(f"s_add_u32 s98, s98, {WS_ST + 8 * i}")
    e(f"v_mov_b32 v{va}, s98")
    e(f"v_mov_b32 v{vt}, s{S_STAMP}")
    e(f"v_mov_b32 v{vt+1}, s{S_STAMP+1}")
    e(f"s_mov_b64 s[98:99], exec")
    e(f"s_mov_b64 exec, 1")
    e(f"buffer_store_dwordx2 v[{vt}:{vt+1}], v{va}, s[{SRD_WS}:{SRD_WS+3}], 0 offen")
    e(f"s_mov_b64 exec, s[98:99]")


STAMP_MAP_D = {0: 0, 3: 1, 5: 2, 2: 3, 6: 4, 7: 5, 8: 6}
STAMP_MAP_C = {0: 0, 1: 1, 3: 2, 2: 3, 5: 4, 7: 6, 6: 5}


def stamp(i, comm=False):
    if not OPT["stamps"]:
        return
    m = STAMP_MAP_C if comm else STAMP_MAP_D
    if i not in m:
        return
    k = m[i]
    with Guard():
        e(f"s_memrealtime s[{16+2*k}:{17+2*k}]")


def dump_stamps(comm):
    if not OPT["stamps"]:
        return
    m = STAMP_MAP_C if comm else STAMP_MAP_D
    e("s_waitcnt lgkmcnt(0)")
    e("s_mov_b64 exec, -1")
    if OPT["stamps"] == 2:
        srd(SRD_M, 40, 256)
        e("s_mov_b64 exec, 1")
        for i, k in m.items():
            if comm and i in (6,):
                continue
            slot = i if not comm else {0: 9, 1: 10, 3: 11, 4: 12, 5: 13, 7: 14}[i]
            n_ = nid()
            if (not comm) and i in (7, 8):
                e(f"s_cmp_lt_u32 s{S_WAVE}, 2")
                e(f"s_cbranch_scc1 L_ds{n_}")
            if comm and i == 0:
                e("s_cmp_eq_u32 s8, 0")
                e(f"s_cbranch_scc1 L_ds{n_}")
            if comm and i == 5:
                e("s_cmp_ge_u32 s2, 64")
                e(f"s_cbranch_scc1 L_ds{n_}")
            e(f"v_mov_b32 v{V_ST}, {4*slot}")
            if (not comm) and i == 0:
                e(f"s_not_b32 s{S_STAMP}, s{16+2*k}")
                e(f"v_mov_b32 v{V_ST+1}, s{S_STAMP}")
            else:
                e(f"v_mov_b32 v{V_ST+1}, s{16+2*k}")
            e(f"buffer_atomic_umax v{V_ST+1}, v{V_ST}, s[{SRD_M}:{SRD_M+3}], 0 offen")
            e("s_nop 1")
            lab(f"L_ds{n_}")
        return
    for i, k in m.items():
        e(f"s_mov_b32 s{S_STAMP}, s{16+2*k}")
        e(f"s_mov_b32 s{S_STAMP+1}, s{17+2*k}")
        stamp_raw(i, comm)
        e("s_nop 1")


def tile_mm(W, A, B, ACC, acc_in=False):
    for q in range(4):
        for i in range(4):
            e(f"v_perm_b32 v{B+i}, v{W+4*(2*i+1)+q}, v{W+4*(2*i)+q}, s{S_SELLO}")
        for i in range(4):
            e(f"v_perm_b32 v{B+4+i}, v{W+4*(2*i+1)+q}, v{W+4*(2*i)+q}, s{S_SELHI}")
        e("s_nop 1")
        for jj in range(2):
            j = 2 * q + jj
            c = f"v[{ACC+4*j}:{ACC+4*j+3}]" if acc_in else "0"
            e(f"v_mfma_f32_16x16x32_bf16 v[{ACC+4*j}:{ACC+4*j+3}], v[{A}:{A+3}], v[{B+4*jj}:{B+4*jj+3}], {c}")


VT = 188
VTRAW = 186


def load_tag(vtmp):
    e(f"v_mov_b32 v{vtmp}, 0")
    e(f"buffer_load_dwordx2 v[{VTRAW}:{VTRAW+1}], v{vtmp}, s[{SRD_WS}:{SRD_WS+3}], 0 offen offset:{WS_GEN} sc1")


def finish_tag():
    e(f"v_readfirstlane_b32 s{S_TAG}, v{VTRAW}")
    e(f"v_readfirstlane_b32 s{S_TAG+1}, v{VTRAW+1}")
    e("s_nop 3")
    e(f"s_add_u32 s{S_TAG}, s{S_TAG}, 1")
    e(f"s_addc_u32 s{S_TAG+1}, s{S_TAG+1}, 0")
    e(f"s_and_b32 s{S_T0}, s{S_TAG}, 0x3ff")
    e(f"s_bfe_u32 s{S_T0+1}, s{S_TAG}, 0xa000a")
    e(f"s_bfe_u32 s{S_T0+2}, s{S_TAG}, 0xa0014")
    e(f"s_lshr_b64 s[{S_T0+4}:{S_T0+5}], s[{S_TAG}:{S_TAG+1}], 30")
    e(f"s_and_b32 s{S_T0+3}, s{S_T0+4}, 0x3ff")
    for i in range(4):
        e(f"v_mov_b32 v{VT+i}, s{S_T0+i}")


def tagq(dst, srcs):
    for i in range(4):
        e(f"v_bfi_b32 v{dst+i}, s{S_MASK}, v{VT+i}, v{srcs[i]}")


def poll(name, loads, quads, vx, sleep, maxit=100000, altbase=None):
    n = len(loads)

    def issue(base_map):
        for l, q in zip(loads, quads):
            r = base_map(q)
            e(l.replace("@", f"v[{r}:{r+3}]"))

    def check(base_map):
        first = True
        for q in quads:
            r = base_map(q)
            for i in range(4):
                if first:
                    e(f"v_xor_b32 v{vx}, v{r+i}, v{VT+i}")
                    first = False
                else:
                    e(f"v_xor_b32 v{vx+1}, v{r+i}, v{VT+i}")
                    e(f"v_or_b32 v{vx}, v{vx}, v{vx+1}")
        e(f"v_and_b32 v{vx}, 0x3ff, v{vx}")
        e(f"v_cmp_ne_u32 vcc, 0, v{vx}")

    A = lambda q: q
    e(f"s_mov_b32 s{S_T0+10}, {maxit}")
    if not OPT["pp"] or altbase is None:
        lab(f"L_poll_{name}")
        issue(A)
        with Guard():
            e("s_waitcnt vmcnt(0)")
        check(A)
        if_dry_goto(f"L_pdone_{name}")
        e(f"s_cmp_eq_u64 vcc, 0")
        e(f"s_cbranch_scc1 L_pdone_{name}")
        e(f"s_sub_u32 s{S_T0+10}, s{S_T0+10}, 1")
        e(f"s_cmp_eq_u32 s{S_T0+10}, 0")
        e(f"s_cbranch_scc1 L_pdone_{name}")
        if sleep:
            e(f"s_sleep {sleep}")
        e(f"s_branch L_poll_{name}")
        lab(f"L_pdone_{name}")
        return
    B = lambda q: altbase + (q - quads[0])
    issue(A)
    lab(f"L_poll_{name}")
    e(f"s_sleep {OPT['pp']}")
    issue(B)
    with Guard():
        e(f"s_waitcnt vmcnt({n})")
    check(A)
    if_dry_goto(f"L_pB_{name}")
    e(f"s_cmp_eq_u64 vcc, 0")
    e(f"s_cbranch_scc1 L_pdone_{name}")
    e(f"s_sleep {OPT['pp']}")
    issue(A)
    e(f"s_waitcnt vmcnt({n})")
    check(B)
    e(f"s_cmp_eq_u64 vcc, 0")
    e(f"s_cbranch_scc1 L_pB_{name}")
    e(f"s_sub_u32 s{S_T0+10}, s{S_T0+10}, 1")
    e(f"s_cmp_eq_u32 s{S_T0+10}, 0")
    e(f"s_cbranch_scc0 L_poll_{name}")
    lab(f"L_pB_{name}")
    for q in quads:
        for i in range(4):
            e(f"v_mov_b32 v{q+i}, v{B(q)+i}")
    lab(f"L_pdone_{name}")


def lds_signal(cnt, vtmp):
    e("s_waitcnt lgkmcnt(0)")
    e(f"v_mov_b32 v{vtmp}, {L_CNT+cnt}")
    e(f"v_mov_b32 v{vtmp+1}, 1")
    e("s_mov_b64 exec, 1")
    e(f"ds_add_u32 v{vtmp}, v{vtmp+1}")
    e("s_mov_b64 exec, -1")


def lds_wait(cnt, target, vtmp):
    n = nid()
    e(f"v_mov_b32 v{vtmp}, {L_CNT+cnt}")
    e(f"s_mov_b32 s{S_T0+11}, 4000000")
    lab(f"L_lw{n}")
    e(f"ds_read_b32 v{vtmp+1}, v{vtmp}")
    e("s_waitcnt lgkmcnt(0)")
    e(f"v_readfirstlane_b32 s{S_T0+12}, v{vtmp+1}")
    if_dry_goto(f"L_lwd{n}")
    e("s_nop 1")
    e(f"s_cmp_ge_u32 s{S_T0+12}, {target}")
    e(f"s_cbranch_scc1 L_lwd{n}")
    e(f"s_sub_u32 s{S_T0+11}, s{S_T0+11}, 1")
    e(f"s_cmp_eq_u32 s{S_T0+11}, 0")
    e(f"s_cbranch_scc1 L_lwd{n}")
    if OPT["sleep_l"]:
        e(f"s_sleep {OPT['sleep_l']}")
    e(f"s_branch L_lw{n}")
    lab(f"L_lwd{n}")


def bf16_round_pair(dst_pk, a, b, lo, hi):
    e(f"v_cvt_pk_bf16_f32 v{dst_pk}, v{a}, v{b}")
    e(f"v_lshlrev_b32 v{lo}, 16, v{dst_pk}")
    e(f"v_and_b32 v{hi}, 0xffff0000, v{dst_pk}")


def dpp_reduce(op, regs, ctls):
    for ctl in ctls:
        e("s_nop 1")
        for r in regs:
            e(f"{op}_dpp v{r}, v{r}, v{r} {ctl} row_mask:0xf bank_mask:0xf")


ROW16 = ["quad_perm:[1,0,3,2]", "quad_perm:[2,3,0,1]", "row_half_mirror", "row_mirror"]


def swap_reduce(op, regs, tmps, sws=("v_permlane16_swap_b32", "v_permlane32_swap_b32")):
    for sw in sws:
        for r, t in zip(regs, tmps):
            e(f"v_mov_b32 v{t}, v{r}")
        e("s_nop 1")
        for r, t in zip(regs, tmps):
            e(f"{sw} v{r}, v{t}")
        e("s_nop 1")
        for r, t in zip(regs, tmps):
            e(f"{op} v{r}, v{r}, v{t}")


def set_exec(lo, hi):
    e(f"s_mov_b32 exec_lo, {lo}")
    e(f"s_mov_b32 exec_hi, {hi}")


VW, VK, VV, VB, VACC = 16, 80, 112, 144, 152
VA, VA2 = 12, 224
VX = 152
TMP = 192


def lane_setup():
    e("v_and_b32 v1, 7, v0")
    e("v_bfe_u32 v2, v0, 3, 1")
    e("v_lshrrev_b32 v3, 4, v0")
    e("v_lshlrev_b32 v4, 5, v2")
    e("v_lshl_add_u32 v4, v3, 3, v4")
    e("v_and_b32 v5, 3, v0")
    e("v_bfe_u32 v6, v0, 2, 1")
    e("v_lshlrev_b32 v6, 5, v6")
    e("v_lshl_add_u32 v6, v3, 3, v6")
    e("v_lshlrev_b32 v11, 1, v6")
    e("v_lshl_add_u32 v6, v5, 10, v11")
    e("v_lshl_add_u32 v11, v5, 8, v11")
    e("v_lshlrev_b32 v10, 5, v1")
    e("v_lshl_add_u32 v10, v2, 10, v10")


def gather_quads(G, ACC=None):
    ACC = VACC if ACC is None else ACC
    for b in range(4):
        for hf in range(2):
            for i in range(4):
                e(f"v_mov_b32 v{G+8*b+4*hf+i}, v{ACC+4*(4*hf+i)+b}")


def tile128(A1, A2, piece_off_sreg, W=None, B=None, ACC=None, G=120):
    W = VW if W is None else W
    B = VB if B is None else B
    ACC = VACC if ACC is None else ACC
    tile_mm(W, A1, B, ACC)
    tile_mm(W + 32, A2, B, ACC, acc_in=True)
    e("v_lshlrev_b32 v1, 4, v0")
    e(f"v_lshrrev_b32 v{TMP+8}, 4, v0")
    e(f"v_add_u32 v1, s{piece_off_sreg}, v1")
    e(f"v_add_u32 v2, s{piece_off_sreg}, v10")
    e("s_nop 7")
    gather_quads(G, ACC)
    with Guard():
        set_exec("0xff0000ff", 0)
        for b in range(4):
            for hf in range(2):
                e(f"ds_write_b128 v2, v[{G+8*b+4*hf}:{G+8*b+4*hf+3}] offset:{256*b+16*hf}")
        e("s_mov_b64 exec, -1")
    e("s_waitcnt lgkmcnt(0)")
    e(f"ds_read_b128 v[{TMP}:{TMP+3}], v1")
    e(f"ds_read_b128 v[{TMP+4}:{TMP+7}], v1 offset:1024")
    e("s_waitcnt lgkmcnt(0)")
    for i in range(4):
        e(f"v_add_f32 v{TMP+i}, v{TMP+i}, v{TMP+4+i}")
    tagq(TMP, [TMP, TMP + 1, TMP + 2, TMP + 3])


hdr = open(f"cdna_kernels/{NAME}.s.ref").read().split("\n")
top = [l for l in hdr if l.startswith(";") and "@launch" not in l]
out.extend(top)
out.append(f"; @launch grid=(256,1,1) block=(512,1,1) lds={LDS_BYTES}")
out.append('.amdgcn_target "amdgcn-amd-amdhsa--gfx950"')
out.append(".text")
out.append(f".globl {NAME}_kernel")
out.append(".p2align 8")
out.append(f".type {NAME}_kernel,@function")
lab(f"{NAME}_kernel")

e("s_cmp_ge_u32 s2, 256")
e("s_cbranch_scc1 L_exit")
e("s_load_dwordx16 s[16:31], s[0:1], 0")
e("s_load_dwordx8 s[32:39], s[0:1], 64")
e("s_load_dwordx4 s[40:43], s[0:1], 96")
e("v_lshrrev_b32 v1, 6, v0")
e("v_and_b32 v0, 63, v0")
e(f"s_mov_b32 s{S_SELLO}, 0x05040100")
e(f"s_mov_b32 s{S_SELHI}, 0x07060302")
e(f"s_mov_b32 s{S_MASK}, 0x3ff")
e(f"s_mov_b32 s{S_DRY}, 0")
e(f"v_readfirstlane_b32 s{S_WAVE}, v1")
lane_setup()
e("s_waitcnt lgkmcnt(0)")
srd(SRD_X, 16, 4096)
srd(SRD_WS, 42, WS_END)
e(f"s_cmp_ge_u32 s{S_WAVE}, 4")
e("s_cbranch_scc1 L_comm")

srd(SRD_K, 18, 33554432)
srd(SRD_V, 20, 33554432)
stamp(0)
if OPT["dbg"]:
    e(f"s_cmp_lg_u32 s{S_WAVE}, 0")
    e("s_cbranch_scc1 L_dbg0")
    e("s_cmp_eq_u32 s2, 0")
    e("s_cselect_b32 s4, 0, 4")
    e("s_cmp_eq_u32 s2, 0")
    e("s_cbranch_scc1 L_dbg0b")
    e("s_cmp_eq_u32 s2, 255")
    e("s_cbranch_scc0 L_dbg0")
    lab("L_dbg0b")
    e("s_memrealtime s[98:99]")
    srd(SRD_M, 40, 256)
    e("s_waitcnt lgkmcnt(0)")
    e("v_mov_b32 v236, s4")
    e("v_mov_b32 v237, s98")
    e("s_mov_b64 exec, 1")
    e(f"buffer_store_dword v237, v236, s[{SRD_M}:{SRD_M+3}], 0 offen")
    e("s_mov_b64 exec, -1")
    lab("L_dbg0")
e("s_lshr_b32 s10, s2, 3")
e("s_lshl_b32 s10, s10, 12")
e("s_and_b32 s11, s2, 7")
e("s_lshl_b32 s11, s11, 7")
e("s_add_u32 s10, s10, s11")
e(f"s_lshl_b32 s11, s{S_WAVE}, 5")
e("s_add_u32 s10, s10, s11")
e("s_add_u32 s10, s10, 3072")
e("s_lshl_b32 s10, s10, 8")
e("s_add_u32 s11, s10, 4096")
e("v_and_b32 v8, 15, v0")
e("v_lshlrev_b32 v9, 4, v8")
e("v_lshlrev_b32 v8, 8, v8")
e("v_lshl_add_u32 v8, v3, 4, v8")
e("v_lshl_add_u32 v9, v3, 10, v9")
load_tag(2)
D = OPT["depth"]
seq = []
if OPT["kdma"]:
    e("v_and_b32 v12, 15, v0")
    for i4 in range(4):
        e(f"v_add_u32 v13, {4*i4}, v3")
        e(f"v_xor_b32 v14, v12, v13")
        e(f"v_lshlrev_b32 v14, 4, v14")
        e(f"v_lshl_add_u32 v{TMP+20+i4}, v13, 8, v14")
    e(f"s_lshl_b32 s12, s{S_WAVE}, 13")
    e(f"s_add_u32 s12, s12, {L_K}")
    for i in range(8):
        seq.append([f"s_add_u32 m0, s12, {1024*i}", "s_nop 0",
                    f"buffer_load_dwordx4 v{TMP+20+(i&3)}, s[{SRD_K}:{SRD_K+3}], s{10+(i>>2)} offen{NT} lds"])
    for c in range(4):
        e(f"v_add_u32 v13, {4*c}, v3")
        e(f"v_xor_b32 v13, v13, v12")
        e(f"v_lshlrev_b32 v13, 4, v13")
        e(f"v_lshl_add_u32 v13, v12, 8, v13")
        e(f"v_add_u32 v{228+c}, s12, v13")
else:
  for kb in range(2):
    for c in range(4):
        r = VK + 16 * kb + 4 * c
        seq.append(f"buffer_load_dwordx4 v[{r}:{r+3}], v8, s[{SRD_K}:{SRD_K+3}], s{10+kb} offen offset:{64*c}{NT}")
for i in range(8):
    r = VV + 4 * i
    so = 10 if i < 4 else 11
    seq.append(f"buffer_load_dwordx4 v[{r}:{r+3}], v9, s[{SRD_V}:{SRD_V+3}], s{so} offen offset:{256*(i&3)}{NT}")
if OPT["k_after"] or OPT["go_pub"]:
    e("s_barrier")
    lds_wait(C_GO, 1, TMP)
for i, l in enumerate(seq):
    if i == D and not (OPT["k_after"] or OPT["go_pub"]):
        e("s_barrier")
    if i >= D:
        e(f"s_waitcnt vmcnt({D-1})")
    if (OPT["jit"] & 1) and i == min(15, OPT["jit_k"] + D):
        lds_signal(C_K, TMP)
    for l_ in (l if isinstance(l, list) else [l]):
        e(l_)
finish_tag()
if OPT["vstamp"]:
    e("s_waitcnt vmcnt(0)")
    stamp(7)
lab("L_secA")
lds_wait(C_Q, 2 if OPT["q2"] else 4, TMP)
stamp(3)
VQ = TMP
e("v_and_b32 v1, 3, v0")
e("v_lshlrev_b32 v1, 8, v1")
e("v_lshl_add_u32 v1, v3, 4, v1")
for c in range(4):
    e(f"ds_read_b128 v[{VQ+4*c}:{VQ+4*c+3}], v1 offset:{L_QS+64*c}")
with Guard():
    e("s_waitcnt vmcnt(8)")
if OPT["kdma"]:
    for kb in range(2):
        for c in range(4):
            r = VK + 16 * kb + 4 * c
            e(f"ds_read_b128 v[{r}:{r+3}], v{228+c} offset:{4096*kb}")
e("s_waitcnt lgkmcnt(0)")
stamp(4)
VS = VACC
for kb in range(2):
    for c in range(4):
        src2 = "0" if c == 0 else f"v[{VS+4*kb}:{VS+4*kb+3}]"
        e(f"v_mfma_f32_16x16x32_bf16 v[{VS+4*kb}:{VS+4*kb+3}], v[{VK+16*kb+4*c}:{VK+16*kb+4*c+3}], v[{VQ+4*c}:{VQ+4*c+3}], {src2}")
e("s_nop 7")
e("s_nop 1")
SC = TMP + 16
T = TMP + 24
for kb in range(2):
    for h2 in range(2):
        a = VS + 4 * kb + 2 * h2
        d = SC + 4 * kb + 2 * h2
        bf16_round_pair(T, a, a + 1, d, d + 1)
        e(f"v_mul_f32 v{d}, 0x3db504f3, v{d}")
        e(f"v_mul_f32 v{d+1}, 0x3db504f3, v{d+1}")
        bf16_round_pair(T, d, d + 1, d, d + 1)
MX = TMP + 26
LS = TMP + 27
e(f"v_max3_f32 v{MX}, v{SC}, v{SC+1}, v{SC+2}")
e(f"v_max3_f32 v{MX}, v{MX}, v{SC+3}, v{SC+4}")
e(f"v_max3_f32 v{MX}, v{MX}, v{SC+5}, v{SC+6}")
e(f"v_max_f32 v{MX}, v{MX}, v{SC+7}")
swap_reduce("v_max_f32", [MX], [T])
for i in range(8):
    e(f"v_sub_f32 v{SC+i}, v{SC+i}, v{MX}")
    e(f"v_mul_f32 v{SC+i}, 0x3fb8aa3b, v{SC+i}")
    e(f"v_exp_f32 v{SC+i}, v{SC+i}")
e("s_nop 0")
e(f"v_add_f32 v{LS}, v{SC}, v{SC+1}")
for i in range(2, 8):
    e(f"v_add_f32 v{LS}, v{LS}, v{SC+i}")
swap_reduce("v_add_f32", [LS], [T])
VP = TMP + 28
for i in range(4):
    e(f"v_cvt_pk_bf16_f32 v{VP+i}, v{SC+2*i}, v{SC+2*i+1}")
with Guard():
    e("s_waitcnt vmcnt(0)")
stamp(5)
tile_mm(VV, VP, VB, VACC)
e(f"s_lshl_b32 s4, s{S_WAVE}, 11")
e("v_lshlrev_b32 v1, 5, v0")
e("v_add_u32 v1, s4, v1")
e(f"s_lshl_b32 s4, s{S_WAVE}, 5")
e("v_lshlrev_b32 v2, 3, v0")
e("v_add_u32 v2, s4, v2")
e("s_nop 7")
gather_quads(VK)
with Guard():
    set_exec("0xffff", 0)
    for r in range(4):
        for hf in range(2):
            e(f"ds_write_b128 v1, v[{VK+8*r+4*hf}:{VK+8*r+4*hf+3}] offset:{L_OW+512*r+16*hf}")
    e("s_mov_b64 exec, 15")
    e(f"ds_write_b64 v2, v[{MX}:{MX+1}] offset:{L_ML}")
    e("s_mov_b64 exec, -1")
    lds_signal(C_O, TMP)
stamp(1)
e(f"s_lshl_b32 s4, s{S_WAVE}, 3")
e("v_mov_b32 v1, s4")
e(f"s_lshl_b32 s4, s{S_WAVE}, 9")
e("v_and_b32 v2, 31, v0")
e("v_lshlrev_b32 v2, 4, v2")
e("v_add_u32 v2, s4, v2")
e("s_lshr_b32 s4, s2, 3")
e("s_lshl_b32 s4, s4, 2")
e(f"s_add_u32 s4, s4, s{S_WAVE}")
e("s_and_b32 s5, s2, 7")
e("s_lshl_b32 s6, s4, 12")
e("s_lshl_b32 s7, s5, 7")
e("s_add_u32 s6, s6, s7")
e(f"s_add_u32 s6, s6, {WS_APO}")
e("s_lshl_b32 s4, s4, 3")
e("s_add_u32 s4, s4, s5")
e(f"s_lshl_b32 s4, s4, {7 if OPT['apm128'] else 4}")
e(f"s_add_u32 s4, s4, {WS_APM}")
e("v_and_b32 v7, 7, v0")
e("v_lshlrev_b32 v7, 4, v7")
e(f"v_lshrrev_b32 v{TMP+12}, 3, v0")
e(f"v_lshl_add_u32 v7, v{TMP+12}, 10, v7")
lds_wait(C_O, 4, TMP)
stamp(2)
R = VACC
for w in range(4):
    e(f"ds_read_b64 v[{R+2*w}:{R+2*w+1}], v1 offset:{L_ML+32*w}")
for w in range(4):
    e(f"ds_read_b128 v[{R+8+4*w}:{R+11+4*w}], v2 offset:{L_OW+2048*w}")
e("s_waitcnt lgkmcnt(0)")
M_, L_ = R + 24, R + 25
e(f"v_max3_f32 v{M_}, v{R}, v{R+2}, v{R+4}")
e(f"v_max_f32 v{M_}, v{M_}, v{R+6}")
F_ = TMP
for w in range(4):
    e(f"v_sub_f32 v{F_+w}, v{R+2*w}, v{M_}")
    e(f"v_mul_f32 v{F_+w}, 0x3fb8aa3b, v{F_+w}")
    e(f"v_exp_f32 v{F_+w}, v{F_+w}")
e("s_nop 0")
O_ = TMP + 4
e(f"v_mul_f32 v{L_}, v{F_}, v{R+1}")
for i in range(4):
    e(f"v_mul_f32 v{O_+i}, v{F_}, v{R+8+i}")
for w in range(1, 4):
    e(f"v_fmac_f32 v{L_}, v{F_+w}, v{R+2*w+1}")
    for i in range(4):
        e(f"v_fmac_f32 v{O_+i}, v{F_+w}, v{R+8+4*w+i}")
tagq(O_, [O_, O_ + 1, O_ + 2, O_ + 3])
e(f"v_mov_b32 v{R+26}, 0")
e(f"v_mov_b32 v{R+27}, 0")
tagq(TMP + 8, [M_, L_, R + 26, R + 27])
e(f"v_mov_b32 v1, 0")
with Guard():
    set_exec("-1", 0)
    e(f"buffer_store_dwordx4 v[{O_}:{O_+3}], v7, s[{SRD_WS}:{SRD_WS+3}], s6 offen sc1")
    e("s_mov_b64 exec, 1")
    e(f"buffer_store_dwordx4 v[{TMP+8}:{TMP+11}], v1, s[{SRD_WS}:{SRD_WS+3}], s4 offen sc1")
    e("s_mov_b64 exec, -1")
stamp(6)
if_dry_goto("L_dry_done_data")
lab("L_exit_d")
dump_stamps(False)
e("s_endpgm")

lab("L_comm")
e("s_setprio 2")
e(f"s_sub_u32 s{S_WAVE}, s{S_WAVE}, 4")
stamp(6, True)
load_tag(7)
e("s_mov_b32 s8, 0")
e(f"s_cmp_ge_u32 s{S_WAVE}, 2")
e("s_cbranch_scc1 L_p1_noload")
e(f"s_cmp_eq_u32 s{S_WAVE}, 1")
e("s_cbranch_scc1 L_p1_w1")
srd(SRD_W1, 22, 4194304)
e("s_mov_b32 s5, 8192")
e("s_lshr_b32 s6, s2, 6")
e("s_lshl_b32 s6, s6, 7")
e("s_and_b32 s7, s2, 63")
e("s_lshl_b32 s7, s7, 7")
e("s_mov_b32 s8, 1")
e("s_branch L_p1_go")
lab("L_p1_w1")
e("s_cmp_ge_u32 s2, 112")
e("s_cbranch_scc1 L_p1_noload")
srd(SRD_W1, 28, 512 * 1792 * 2)
e("s_mov_b32 s5, 3584")
e("s_and_b32 s6, s2, 3")
e("s_lshl_b32 s6, s6, 7")
e("s_lshr_b32 s7, s2, 2")
e("s_lshl_b32 s7, s7, 7")
e("s_mov_b32 s8, 2")
if OPT["w1_late"]:
    e("s_barrier")
    lds_wait(C_GO, 1, TMP)
lab("L_p1_go")
e("v_mul_lo_u32 v7, s5, v4")
e("v_lshl_add_u32 v7, v1, 4, v7")
e("s_mul_i32 s9, s6, s5")
e("s_add_u32 s9, s9, s7")
e("s_lshl_b32 s12, s6, 1")
e("s_mul_i32 s13, s5, 56")
for i in range(16):
    e(f"buffer_load_dwordx4 v[{VW+4*i}:{VW+4*i+3}], v7, s[{SRD_W1}:{SRD_W1+3}], s9 offen{NT}")
    if i < 15:
        e("s_add_u32 s9, s9, s5")
    if i == 7:
        e("s_add_u32 s9, s9, s13")
XA, XA2, XR = 96, 100, 104
e(f"buffer_load_dwordx4 v[{XA}:{XA+3}], v6, s[{SRD_X}:{SRD_X+3}], s12 offen")
e(f"buffer_load_dwordx4 v[{XA2}:{XA2+3}], v6, s[{SRD_X}:{SRD_X+3}], s12 offen offset:128")
e("v_lshlrev_b32 v1, 4, v0")
for b in range(4):
    e(f"buffer_load_dwordx4 v[{XR+4*b}:{XR+4*b+3}], v1, s[{SRD_X}:{SRD_X+3}], 0 offen offset:{1024*b}")
lab("L_p1_noload")
e(f"s_cmp_lg_u32 s{S_WAVE}, 0")
e("s_cbranch_scc1 L_c_noz")
e("v_mov_b32 v1, 0")
e("v_lshlrev_b32 v7, 2, v0")
e("s_mov_b64 exec, 0xffff")
e(f"ds_write_b32 v7, v1 offset:{L_CNT}")
e("s_mov_b64 exec, -1")
e("s_waitcnt lgkmcnt(0)")
lab("L_c_noz")
if OPT["w1_late"]:
    e("s_cmp_eq_u32 s8, 2")
    e("s_cbranch_scc1 L_skipb0")
e("s_barrier")
lab("L_skipb0")
e(f"s_lshl_b32 s15, s{S_WAVE}, 11")
e(f"s_add_u32 s15, s15, {L_PIECE + 4096}")
if OPT["dry"]:
    e(f"s_mov_b32 s{S_DRY}, 1")
    e("s_cmp_lg_u32 s8, 0")
    e("s_cbranch_scc1 L_secP1")
    e(f"s_cmp_eq_u32 s{S_WAVE}, 2")
    e("s_cbranch_scc1 L_secA")
    e("s_branch L_secQ")
    lab("L_dry_done_data")
    lab("L_dry_done_comm")
    e(f"s_mov_b32 s{S_DRY}, 0")
    lane_setup()
lab("L_real_start")
if OPT["k_after"]:
    e(f"s_cmp_eq_u32 s{S_WAVE}, 0")
    e("s_cbranch_scc0 L_nogo")
    e(f"s_waitcnt vmcnt({22-OPT['k_after']})")
    lds_signal(C_GO, TMP)
    lab("L_nogo")
e("s_waitcnt vmcnt(0) lgkmcnt(0)")
stamp(7, True)
finish_tag()
e("s_cmp_eq_u32 s8, 0")
e("s_cbranch_scc1 L_secQ")
lab("L_secP1")
for d in range(4):
    e(f"v_mov_b32 v{VA+d}, v{XA+d}")
    e(f"v_mov_b32 v{VA2+d}, v{XA2+d}")
e("s_cmp_eq_u32 s8, 1")
e("s_cbranch_scc1 L_p1_mm")
SUM = TMP
T = TMP + 4
for b in range(4):
    e(f"v_lshlrev_b32 v{T}, 16, v{XR+4*b}")
    e(f"v_and_b32 v{T+1}, 0xffff0000, v{XR+4*b}")
    e(f"v_add_f32 v{SUM+b}, v{T}, v{T+1}")
    for d in range(1, 4):
        e(f"v_lshlrev_b32 v{T}, 16, v{XR+4*b+d}")
        e(f"v_and_b32 v{T+1}, 0xffff0000, v{XR+4*b+d}")
        e(f"v_add_f32 v{SUM+b}, v{SUM+b}, v{T}")
        e(f"v_add_f32 v{SUM+b}, v{SUM+b}, v{T+1}")
dpp_reduce("v_add_f32", [SUM + b for b in range(4)], ROW16)
swap_reduce("v_add_f32", [SUM + b for b in range(4)], [T + b for b in range(4)])
for b in range(4):
    e(f"v_mul_f32 v{SUM+b}, 0x3b000000, v{SUM+b}")
SQ = TMP + 12
for b in range(4):
    for d in range(4):
        e(f"v_lshlrev_b32 v{T}, 16, v{XR+4*b+d}")
        e(f"v_and_b32 v{T+1}, 0xffff0000, v{XR+4*b+d}")
        e(f"v_sub_f32 v{T}, v{T}, v{SUM+b}")
        e(f"v_sub_f32 v{T+1}, v{T+1}, v{SUM+b}")
        if d == 0:
            e(f"v_mul_f32 v{SQ+b}, v{T}, v{T}")
        else:
            e(f"v_fmac_f32 v{SQ+b}, v{T}, v{T}")
        e(f"v_fmac_f32 v{SQ+b}, v{T+1}, v{T+1}")
dpp_reduce("v_add_f32", [SQ + b for b in range(4)], ROW16)
swap_reduce("v_add_f32", [SQ + b for b in range(4)], [T + b for b in range(4)])
for b in range(4):
    e(f"v_mul_f32 v{SQ+b}, 0x3b000000, v{SQ+b}")
MEAN, DEN, RCP = TMP + 16, TMP + 17, TMP + 18
e(f"v_mov_b32 v{MEAN}, v{SUM}")
e(f"v_mov_b32 v{DEN}, v{SQ}")
for b in range(1, 4):
    e(f"v_cmp_eq_u32 vcc, {b}, v5")
    e("s_nop 1")
    e(f"v_cndmask_b32 v{MEAN}, v{MEAN}, v{SUM+b}, vcc")
    e(f"v_cndmask_b32 v{DEN}, v{DEN}, v{SQ+b}, vcc")
bf16_round_pair(T, MEAN, DEN, MEAN, DEN)
e(f"v_add_f32 v{DEN}, 0x3727c5ac, v{DEN}")
e(f"v_cvt_pk_bf16_f32 v{T}, v{DEN}, v{DEN}")
e(f"v_lshlrev_b32 v{DEN}, 16, v{T}")
e(f"v_sqrt_f32 v{DEN}, v{DEN}")
e("s_nop 0")
e(f"v_cvt_pk_bf16_f32 v{T}, v{DEN}, v{DEN}")
e(f"v_lshlrev_b32 v{DEN}, 16, v{T}")
e(f"v_rcp_f32 v{RCP}, v{DEN}")
e("s_nop 0")
for AA in (VA, VA2):
    for d in range(4):
        a0, a1 = T + 2, T + 3
        e(f"v_lshlrev_b32 v{a0}, 16, v{AA+d}")
        e(f"v_and_b32 v{a1}, 0xffff0000, v{AA+d}")
        e(f"v_sub_f32 v{a0}, v{a0}, v{MEAN}")
        e(f"v_sub_f32 v{a1}, v{a1}, v{MEAN}")
        bf16_round_pair(T, a0, a1, a0, a1)
        for a in (a0, a1):
            e(f"v_mul_f32 v{T+4}, v{a}, v{RCP}")
            e(f"v_fma_f32 v{T+5}, -v{T+4}, v{DEN}, v{a}")
            e(f"v_fma_f32 v{a}, v{T+5}, v{RCP}, v{T+4}")
        e(f"v_cvt_pk_bf16_f32 v{AA+d}, v{a0}, v{a1}")
lab("L_p1_mm")
tile128(VA, VA2, 15)
e("v_and_b32 v1, 15, v0")
e("s_cmp_eq_u32 s8, 1")
e("s_cbranch_scc1 L_pub_q")
e("s_and_b32 s4, s2, 3")
e("s_mul_i32 s4, s4, 1792")
e("s_lshr_b32 s5, s2, 2")
e("s_lshl_b32 s5, s5, 4")
e("s_add_u32 s4, s4, s5")
e("s_lshl_b32 s4, s4, 4")
e(f"s_add_u32 s4, s4, {WS_HP}")
e(f"v_mul_u32_u24 v2, 448, v{TMP+8}")
e("v_add_u32 v1, v2, v1")
e("s_branch L_pub_go")
lab("L_pub_q")
e("s_lshr_b32 s4, s2, 6")
e("s_lshl_b32 s4, s4, 12")
e("s_and_b32 s5, s2, 63")
e("s_lshl_b32 s5, s5, 4")
e("s_add_u32 s4, s4, s5")
e("s_lshl_b32 s4, s4, 4")
e(f"s_add_u32 s4, s4, {WS_QP}")
e(f"v_lshl_add_u32 v1, v{TMP+8}, 10, v1")
lab("L_pub_go")
e("v_lshlrev_b32 v1, 4, v1")
if_dry_goto("L_dry_done_comm")
e(f"buffer_store_dwordx4 v[{TMP}:{TMP+3}], v1, s[{SRD_WS}:{SRD_WS+3}], s4 offen sc1")
if OPT["go_pub"]:
    e("s_cmp_eq_u32 s8, 1")
    e("s_cbranch_scc0 L_nogo2")
    lds_signal(C_GO, TMP + 10)
    stamp(0, True)
    lab("L_nogo2")
else:
    stamp(0, True)
lab("L_secQ")
e("v_lshlrev_b32 v3, 4, v0")
if OPT["q2"]:
    assert not OPT["dry"]
    e(f"s_lshl_b32 s4, s{S_WAVE}, 8")
    e("v_and_b32 v5, 31, v0")
    e("v_lshlrev_b32 v5, 3, v5")
    e("v_add_u32 v5, s4, v5")
    e(f"s_cmp_lt_u32 s{S_WAVE}, 2")
    e("s_cbranch_scc1 L_q_skip")
    e("s_lshr_b32 s4, s2, 6")
    e("s_lshl_b32 s4, s4, 10")
    e("s_lshr_b32 s5, s2, 3")
    e("s_and_b32 s5, s5, 7")
    e("s_lshl_b32 s5, s5, 7")
    e("s_add_u32 s4, s4, s5")
    e(f"s_sub_u32 s5, s{S_WAVE}, 2")
    e("s_lshl_b32 s5, s5, 6")
    e("s_add_u32 s4, s4, s5")
    e("s_lshl_b32 s4, s4, 4")
    e(f"s_add_u32 s4, s4, {WS_QP}")
    for k in range(1, 4):
        e(f"s_add_u32 s{4+k}, s4, {k*4*1024*16}")
    poll("q", [f"buffer_load_dwordx4 @, v3, s[{SRD_WS}:{SRD_WS+3}], s{4+k} offen sc1" for k in range(4)],
         [16, 20, 24, 28], 6, OPT["sleep_q"])
    for i in range(4):
        e(f"v_add_f32 v{32+i}, v{16+i}, v{20+i}")
        e(f"v_add_f32 v{36+i}, v{24+i}, v{28+i}")
    for i in range(4):
        e(f"v_add_f32 v{32+i}, v{32+i}, v{36+i}")
    e("v_cvt_pk_bf16_f32 v32, v32, v33")
    e("v_cvt_pk_bf16_f32 v33, v34, v35")
    e(f"s_sub_u32 s4, s{S_WAVE}, 2")
    e("s_lshl_b32 s4, s4, 9")
    e("v_lshlrev_b32 v4, 3, v0")
    e("v_add_u32 v4, s4, v4")
    e(f"ds_write_b64 v4, v[32:33] offset:{L_QS}")
    lds_signal(C_Q, 6)
    lab("L_q_skip")
else:
    e("s_lshr_b32 s4, s2, 6")
    e("s_lshl_b32 s4, s4, 10")
    e("s_lshr_b32 s5, s2, 3")
    e("s_and_b32 s5, s5, 7")
    e("s_lshl_b32 s5, s5, 7")
    e("s_add_u32 s4, s4, s5")
    e(f"s_lshl_b32 s5, s{S_WAVE}, 5")
    e("s_add_u32 s4, s4, s5")
    e("s_lshl_b32 s4, s4, 4")
    e(f"s_add_u32 s4, s4, {WS_QP}")
    e(f"s_add_u32 s5, s4, {4*1024*16}")
    e("v_and_b32 v4, 31, v0")
    e("v_lshlrev_b32 v4, 4, v4")
    e("v_lshrrev_b32 v5, 5, v0")
    e("v_lshl_add_u32 v4, v5, 17, v4")
    if OPT["jit"] & 1:
        lds_wait(C_K, 4, 6)
    poll("q", [f"buffer_load_dwordx4 @, v4, s[{SRD_WS}:{SRD_WS+3}], s{4+k} offen sc1" for k in range(2)],
         [16, 20], 6, OPT["sleep_q"], altbase=168)
    for i in range(4):
        e(f"v_add_f32 v{24+i}, v{16+i}, v{20+i}")
    swap_reduce("v_add_f32", [24, 25, 26, 27], [28, 29, 30, 31], ("v_permlane32_swap_b32",))
    e("v_cvt_pk_bf16_f32 v24, v24, v25")
    e("v_cvt_pk_bf16_f32 v25, v26, v27")
    e(f"s_lshl_b32 s4, s{S_WAVE}, 8")
    e("v_and_b32 v5, 31, v0")
    e("v_lshlrev_b32 v5, 3, v5")
    e("v_add_u32 v5, s4, v5")
    with Guard():
        e(f"ds_write_b64 v5, v[24:25] offset:{L_QS}")
        lds_signal(C_Q, 6)

stamp(1, True)
W3, B3, ACC3 = 96, 160, 16
e("s_mov_b32 s14, 0")
with Guard():
    e("v_lshrrev_b32 v9, 4, v0")
    e(f"s_cmp_lt_u32 s{S_WAVE}, 2")
    e("s_cbranch_scc1 L_nowo0")
    srd(SRD_W3, 24, 4194304)
    e("s_lshr_b32 s6, s2, 1")
    e("s_lshl_b32 s9, s6, 15")
    e("s_and_b32 s7, s2, 1")
    e("s_lshl_b32 s7, s7, 9")
    e("s_add_u32 s9, s9, s7")
    e(f"s_sub_u32 s7, s{S_WAVE}, 2")
    e("s_lshl_b32 s7, s7, 8")
    e("s_add_u32 s9, s9, s7")
    e("v_and_b32 v7, 15, v0")
    e("v_lshlrev_b32 v7, 4, v7")
    e("v_lshl_add_u32 v7, v9, 13, v7")
    for i in range(8):
        e(f"buffer_load_dwordx4 v[{W3+4*i}:{W3+4*i+3}], v7, s[{SRD_W3}:{SRD_W3+3}], s9 offen offset:{1024*(i&3)}{NT}")
        if i == 3:
            e("s_add_u32 s9, s9, 4096")
    e("s_branch L_now2")
    lab("L_nowo0")
    e(f"s_cmp_eq_u32 s{S_WAVE}, 1")
    e("s_cbranch_scc0 L_now2")
    e("s_cmp_lt_u32 s2, 112")
    e("s_cbranch_scc1 L_now2")
    e("s_cmp_ge_u32 s2, 224")
    e("s_cbranch_scc1 L_now2")
    e("s_mov_b32 s14, 1")
    srd(SRD_W3, 32, 1792 * 512 * 2)
    e("s_sub_u32 s9, s2, 112")
    e("s_lshr_b32 s6, s9, 3")
    e("s_lshl_b32 s6, s6, 17")
    e("s_and_b32 s7, s9, 7")
    e("s_lshl_b32 s7, s7, 7")
    e("s_add_u32 s9, s6, s7")
    e("v_bfe_u32 v7, v0, 3, 1")
    e("v_lshlrev_b32 v7, 5, v7")
    e("v_lshl_add_u32 v9, v9, 3, v7")
    e("v_and_b32 v7, 7, v0")
    e("v_lshlrev_b32 v7, 4, v7")
    e("v_lshl_add_u32 v7, v9, 10, v7")
    for i in range(16):
        e(f"buffer_load_dwordx4 v[{W3+4*i}:{W3+4*i+3}], v7, s[{SRD_W3}:{SRD_W3+3}], s9 offen offset:{1024*(i&3)}{NT}")
        if i == 7:
            e(f"s_add_u32 s9, s9, {4096 + 56*1024}")
        elif i & 3 == 3 and i < 15:
            e("s_add_u32 s9, s9, 4096")
    lab("L_now2")
e("s_lshr_b32 s4, s2, 4")
e("s_lshl_b32 s4, s4, 7")
e("s_and_b32 s5, s2, 15")
e("s_lshl_b32 s5, s5, 3")
e("s_add_u32 s4, s4, s5")
e("s_lshl_b32 s4, s4, 4")
e(f"s_add_u32 s4, s4, {WS_OP}")
e(f"s_lshl_b32 s5, s{S_WAVE}, 18")
e("s_add_u32 s86, s4, s5")
for k in range(1, 4):
    e(f"s_add_u32 s{86+k}, s86, {k*65536}")
e(f"s_lshl_b32 s5, s{S_WAVE}, 15")
e("s_add_u32 s5, s4, s5")
e(f"s_add_u32 s85, s5, {128*8192}")
e("v_and_b32 v60, 7, v0")
e("v_lshlrev_b32 v60, 4, v60")
e("v_lshrrev_b32 v61, 3, v0")
e("v_lshl_add_u32 v60, v61, 13, v60")
e("v_and_b32 v62, 3, v61")
e(f"s_lshl_b32 s5, s{S_WAVE}, 2")
e("s_sub_u32 s5, 13, s5")
e("v_min_u32 v62, s5, v62")
e("v_and_b32 v63, 7, v0")
e("v_lshlrev_b32 v63, 4, v63")
e("v_lshl_add_u32 v62, v62, 13, v63")
o_loads = [f"buffer_load_dwordx4 v[{32+4*k}:{35+4*k}], v60, s[{SRD_WS}:{SRD_WS+3}], s{86+k} offen sc1" for k in range(4)]
o_loads.append(f"buffer_load_dwordx4 v[48:51], v62, s[{SRD_WS}:{SRD_WS+3}], s85 offen sc1")
e("s_cmp_ge_u32 s2, 64")
e("s_cbranch_scc1 L_c_nowarm")
with Guard():
    if not (OPT["jit"] & 4):
        for l in o_loads:
            e(l)
    srd(SRD_M, 36, 1024)
    e(f"buffer_load_dwordx4 v[64:67], v3, s[{SRD_M}:{SRD_M+3}], 0 offen")
    e("s_lshr_b32 s4, s2, 4")
    e("s_lshl_b32 s4, s4, 10")
    e(f"buffer_load_dwordx4 v[68:71], v3, s[{SRD_X}:{SRD_X+3}], s4 offen")
    srd(SRD_OUT, 34, 1024)
    e("v_and_b32 v6, 31, v0")
    e("v_lshlrev_b32 v6, 1, v6")
    e("s_and_b32 s4, s2, 15")
    e("s_lshl_b32 s4, s4, 6")
    e(f"buffer_load_ushort v72, v6, s[{SRD_OUT}:{SRD_OUT+3}], s4 offen")
lab("L_c_nowarm")
if_dry_goto("L_secAG")
e("s_cmp_lt_u32 s2, 112")
e("s_cbranch_scc1 L_secAG")
e("s_cmp_ge_u32 s2, 224")
e("s_cbranch_scc1 L_secAG")
lab("L_secH")
e("s_sub_u32 s9, s2, 112")
e("s_lshr_b32 s9, s9, 3")
e("s_min_u32 s9, s9, 13")
e(f"s_mul_i32 s4, s{S_WAVE}, 448")
e("s_lshl_b32 s5, s9, 5")
e("s_add_u32 s4, s4, s5")
e("s_lshl_b32 s4, s4, 4")
e(f"s_add_u32 s4, s4, {WS_HP}")
e(f"s_add_u32 s5, s4, {4*448*16}")
srd(SRD_M, 30, 3584)
e("s_lshl_b32 s9, s9, 8")
e("v_and_b32 v6, 31, v0")
e("v_lshlrev_b32 v4, 4, v6")
e("v_lshlrev_b32 v6, 3, v6")
e(f"buffer_load_dwordx2 v[80:81], v6, s[{SRD_M}:{SRD_M+3}], s9 offen")
e("v_lshrrev_b32 v7, 5, v0")
e(f"s_mov_b32 s6, {2*4*448*16}")
e("v_mul_lo_u32 v7, s6, v7")
e("v_add_u32 v4, v7, v4")
poll("h", [f"buffer_load_dwordx4 @, v4, s[{SRD_WS}:{SRD_WS+3}], s{4+k} offen sc1" for k in range(2)],
     [16, 20], 6, OPT["sleep_q"])
for i in range(4):
    e(f"v_add_f32 v{24+i}, v{16+i}, v{20+i}")
swap_reduce("v_add_f32", [24, 25, 26, 27], [28, 29, 30, 31], ("v_permlane32_swap_b32",))
for p in range(2):
    a, b_ = 24 + 2 * p, 25 + 2 * p
    bf16_round_pair(28, a, b_, a, b_)
    e(f"v_lshlrev_b32 v28, 16, v{80+p}")
    e(f"v_and_b32 v29, 0xffff0000, v{80+p}")
    e(f"v_add_f32 v{a}, v{a}, v28")
    e(f"v_add_f32 v{b_}, v{b_}, v29")
    bf16_round_pair(28, a, b_, a, b_)
e("v_mov_b32 v31, 0x3d372713")
for r in (24, 25, 26, 27):
    e(f"v_mul_f32 v30, v{r}, v{r}")
    e(f"v_mul_f32 v30, v30, v{r}")
    e(f"v_fma_f32 v30, v30, v31, v{r}")
    e(f"v_mul_f32 v30, 0x40135761, v30")
    e(f"v_exp_f32 v30, v30")
    e("s_nop 0")
    e(f"v_add_f32 v30, 1.0, v30")
    e(f"v_rcp_f32 v30, v30")
    e("s_nop 0")
    e(f"v_fma_f32 v30, v30, -2.0, 2.0")
    e(f"v_mul_f32 v30, 0.5, v30")
    e(f"v_mul_f32 v{r}, v{r}, v30")
e("v_cvt_pk_bf16_f32 v24, v24, v25")
e("v_cvt_pk_bf16_f32 v25, v26, v27")
with Guard():
    e(f"ds_write_b64 v5, v[24:25] offset:{L_HA}")
    lds_signal(C_H, 6)
    e("s_cmp_eq_u32 s14, 1")
    e("s_cbranch_scc0 L_secAG")
lds_wait(C_H, 4, 6)
e(f"ds_read_b128 v[{VA}:{VA+3}], v11 offset:{L_HA}")
e(f"ds_read_b128 v[{VA2}:{VA2+3}], v11 offset:{L_HA+128}")
with Guard():
    e("s_waitcnt vmcnt(0)")
e("s_waitcnt lgkmcnt(0)")
tile128(VA, VA2, 15, W=W3, B=B3, ACC=ACC3, G=W3)
e("s_sub_u32 s5, s2, 112")
e("s_lshr_b32 s4, s5, 3")
e("s_add_u32 s4, s4, 128")
e("s_lshl_b32 s4, s4, 9")
e("s_and_b32 s5, s5, 7")
e("s_lshl_b32 s5, s5, 4")
e("s_add_u32 s4, s4, s5")
e("s_lshl_b32 s4, s4, 4")
e(f"s_add_u32 s4, s4, {WS_OP}")
e("v_and_b32 v1, 15, v0")
e(f"v_lshl_add_u32 v1, v{TMP+8}, 7, v1")
e("v_lshlrev_b32 v1, 4, v1")
if_dry_goto("L_dry_done_comm")
e(f"buffer_store_dwordx4 v[{TMP}:{TMP+3}], v1, s[{SRD_WS}:{SRD_WS+3}], s4 offen sc1")
lab("L_secAG")
e(f"s_lshl_b32 s4, s{S_WAVE}, 5")
e("s_lshr_b32 s5, s2, 3")
e("s_add_u32 s4, s4, s5")
e("s_lshl_b32 s6, s4, 2")
e("s_bfe_u32 s5, s2, 0x20001")
e("s_add_u32 s6, s6, s5")
e("s_lshl_b32 s6, s6, 10")
e(f"s_add_u32 s6, s6, {WS_APO}")
e(f"s_lshl_b32 s4, s4, {10 if OPT['apm128'] else 7}")
e(f"s_add_u32 s4, s4, {WS_APM}")
e(f"v_lshlrev_b32 v4, {7 if OPT['apm128'] else 4}, v61")
if OPT["jit"] & 2:
    lds_wait(C_O, 4, 6)
poll("a", [f"buffer_load_dwordx4 @, v3, s[{SRD_WS}:{SRD_WS+3}], s6 offen sc1",
           f"buffer_load_dwordx4 @, v4, s[{SRD_WS}:{SRD_WS+3}], s4 offen sc1"], [16, 20], 6, OPT["sleep_t"], altbase=168)
stamp(3, True)
e("v_mov_b32 v24, v20")
dpp_reduce("v_max_f32", [24], ["row_ror:8"])
swap_reduce("v_max_f32", [24], [25])
e("v_sub_f32 v25, v20, v24")
e("v_mul_f32 v25, 0x3fb8aa3b, v25")
e("v_exp_f32 v25, v25")
e("s_nop 0")
e("v_mul_f32 v26, v25, v21")
for i in range(4):
    e(f"v_mul_f32 v{84+i}, v25, v{16+i}")
dpp_reduce("v_add_f32", [26, 84, 85, 86, 87], ["row_ror:8"])
swap_reduce("v_add_f32", [26, 84, 85, 86, 87], [27, 28, 29, 30, 31])
e("v_rcp_f32 v27, v26")
e("s_nop 0")
e("v_fma_f32 v28, -v26, v27, 2.0")
e("v_mul_f32 v27, v27, v28")
for i in range(4):
    e(f"v_mul_f32 v{84+i}, v27, v{84+i}")
e("v_cvt_pk_bf16_f32 v84, v84, v85")
e("v_cvt_pk_bf16_f32 v85, v86, v87")
e(f"s_lshl_b32 s4, s{S_WAVE}, 6")
e("v_lshlrev_b32 v4, 3, v0")
e("v_add_u32 v4, s4, v4")
with Guard():
    e("s_mov_b64 exec, 0xff")
    e(f"ds_write_b64 v4, v[84:85] offset:{L_OA}")
    e("s_mov_b64 exec, -1")
    lds_signal(C_A, 6)
stamp(4, True)
if_dry_goto("L_secC")
e(f"s_cmp_lt_u32 s{S_WAVE}, 2")
e("s_cbranch_scc1 L_secC_done")
lab("L_secC")
e("s_lshr_b32 s4, s2, 1")
e("s_lshl_b32 s4, s4, 9")
e("s_and_b32 s5, s2, 1")
e("s_lshl_b32 s5, s5, 6")
e("s_add_u32 s4, s4, s5")
e(f"s_sub_u32 s5, s{S_WAVE}, 2")
e("s_lshl_b32 s5, s5, 5")
e("s_add_u32 s4, s4, s5")
e("s_lshl_b32 s4, s4, 4")
e(f"s_add_u32 s4, s4, {WS_OP}")
e("s_add_u32 s5, s4, 4096")
e("v_lshlrev_b32 v2, 5, v0")
e("v_and_b32 v1, 3, v0")
e("v_lshlrev_b32 v1, 6, v1")
e("v_lshrrev_b32 v9, 4, v0")
e("v_lshl_add_u32 v1, v9, 4, v1")
lds_wait(C_A, 4, 6)
e(f"ds_read_b128 v[{VA}:{VA+3}], v1 offset:{L_OA}")
with Guard():
    e("s_waitcnt vmcnt(0)")
e("s_waitcnt lgkmcnt(0)")
tile_mm(W3, VA, B3, ACC3)
e("s_nop 7")
e("s_nop 1")
if not OPT["opfull"]:
    for b in range(4):
        for hf in range(2):
            d = TMP + 8 * b + 4 * hf
            tagq(d, [ACC3 + 4 * (4 * hf + i) + b for i in range(4)])
    with Guard():
        set_exec("0xffff", 0)
        for b in range(4):
            for hf in range(2):
                d = TMP + 8 * b + 4 * hf
                e(f"buffer_store_dwordx4 v[{d}:{d+3}], v2, s[{SRD_WS}:{SRD_WS+3}], s{4+(b>>1)} offen offset:{2048*(b&1)+16*hf} sc1")
        e("s_mov_b64 exec, -1")
else:
    e("v_and_b32 v6, 16, v0")
    e("v_cmp_ne_u32 s[90:91], 0, v6")
    e("v_cmp_lt_u32 s[92:93], 31, v0")
    e("s_nop 1")
    for k in range(2):
        for i in range(4):
            t0, t1 = TMP + 16, TMP + 17
            e(f"v_cndmask_b32 v{t0}, v{ACC3+4*i+k}, v{ACC3+4*(4+i)+k}, s[90:91]")
            e(f"v_cndmask_b32 v{t1}, v{ACC3+4*i+2+k}, v{ACC3+4*(4+i)+2+k}, s[90:91]")
            e(f"v_cndmask_b32 v{TMP+8+4*k+i}, v{t0}, v{t1}, s[92:93]")
        tagq(TMP + 4 * k, [TMP + 8 + 4 * k + i for i in range(4)])
    e("v_and_b32 v2, 15, v0")
    e("v_lshlrev_b32 v2, 5, v2")
    e("v_add_u32 v2, v6, v2")
    e("v_lshrrev_b32 v6, 5, v0")
    e("v_lshl_add_u32 v2, v6, 12, v2")
    with Guard():
        for k in range(2):
            e(f"buffer_store_dwordx4 v[{TMP+4*k}:{TMP+4*k+3}], v2, s[{SRD_WS}:{SRD_WS+3}], s4 offen offset:{2048*k} sc1")
stamp(2, True)
lab("L_secC_done")
e("s_cmp_lt_u32 s2, 64")
e("s_cbranch_scc1 L_secF")
if_dry_goto("L_secH")
e("s_branch L_exit_c")
lab("L_secF")
GS = 74
for d in range(4):
    e(f"v_lshlrev_b32 v76, 16, v{68+d}")
    e(f"v_and_b32 v77, 0xffff0000, v{68+d}")
    e(f"v_lshlrev_b32 v78, 16, v{64+d}")
    e(f"v_and_b32 v79, 0xffff0000, v{64+d}")
    e("v_mul_f32 v76, v76, v78")
    e("v_mul_f32 v77, v77, v79")
    bf16_round_pair(78, 76, 77, 76, 77)
    if d == 0:
        e(f"v_add_f32 v{GS}, v76, v77")
    else:
        e(f"v_add_f32 v{GS}, v{GS}, v76")
        e(f"v_add_f32 v{GS}, v{GS}, v77")
dpp_reduce("v_add_f32", [GS], ROW16)
swap_reduce("v_add_f32", [GS], [76])
e(f"v_cvt_pk_bf16_f32 v75, v{GS}, v{GS}")
e("v_lshlrev_b32 v75, 16, v75")
e("v_mul_f32 v75, 0xbfb8aa3b, v75")
e("v_exp_f32 v75, v75")
e("s_nop 0")
e("v_add_f32 v75, 1.0, v75")
e("v_rcp_f32 v76, v75")
e("s_nop 0")
e("v_fma_f32 v77, -v75, v76, 2.0")
e("v_mul_f32 v76, v76, v77")
e("v_cvt_pk_bf16_f32 v76, v76, v76")
e("v_lshlrev_b32 v75, 16, v76")
e("v_sub_f32 v76, 1.0, v75")
e("v_cvt_pk_bf16_f32 v76, v76, v76")
e("v_lshlrev_b32 v76, 16, v76")
e("v_lshlrev_b32 v73, 16, v72")
poll("o", [re.sub(r"v\[\d+:\d+\]", "@", l, count=1) for l in o_loads], [32, 36, 40, 44, 48], 1, OPT["sleep_t"], altbase=128)
stamp(5, True)
e(f"s_lshl_b32 s5, s{S_WAVE}, 5")
e("s_sub_u32 s5, 112, s5")
e("s_min_u32 s5, s5, 32")
e("v_cmp_gt_u32 vcc, s5, v0")
e("s_nop 1")
for i in range(4):
    e(f"v_cndmask_b32 v{92+i}, 0, v{48+i}, vcc")
    e(f"v_add_f32 v{88+i}, v{32+i}, v{36+i}")
    e(f"v_add_f32 v{52+i}, v{40+i}, v{44+i}")
for i in range(4):
    e(f"v_add_f32 v{88+i}, v{88+i}, v{52+i}")
regs = [88 + i for i in range(8)]
dpp_reduce("v_add_f32", regs, ["row_ror:8"])
swap_reduce("v_add_f32", regs, [52 + i for i in range(8)])
e(f"s_lshl_b32 s4, s{S_WAVE}, 7")
e("v_add_u32 v4, s4, v3")
with Guard():
    e("s_mov_b64 exec, 0xff")
    e(f"ds_write_b128 v4, v[88:91] offset:{L_F}")
    e(f"ds_write_b128 v4, v[92:95] offset:{L_F+512}")
    e("s_mov_b64 exec, -1")
    lds_signal(C_F, 6)
    e(f"s_cmp_lg_u32 s{S_WAVE}, 0")
    e("s_cbranch_scc1 L_exit_c")
lds_wait(C_F, 4, 6)
e("v_and_b32 v6, 31, v0")
e("v_lshlrev_b32 v4, 2, v6")
for w in range(8):
    e(f"ds_read_b32 v{52+w}, v4 offset:{L_F+128*w}")
e("s_waitcnt lgkmcnt(0)")
e("v_add_f32 v52, v52, v53")
e("v_add_f32 v54, v54, v55")
e("v_add_f32 v56, v56, v57")
e("v_add_f32 v58, v58, v59")
e("v_add_f32 v52, v52, v54")
e("v_add_f32 v56, v56, v58")
bf16_round_pair(54, 52, 56, 52, 56)
e("v_add_f32 v56, v56, v73")
e("v_cvt_pk_bf16_f32 v54, v56, v56")
e("v_lshlrev_b32 v56, 16, v54")
e("v_mul_f32 v52, v75, v52")
e("v_mul_f32 v56, v76, v56")
bf16_round_pair(54, 52, 56, 52, 56)
e("v_add_f32 v52, v52, v56")
e("v_cvt_pk_bf16_f32 v52, v52, v52")
e("v_lshlrev_b32 v6, 1, v6")
e("s_lshl_b32 s4, s2, 6")
if_dry_goto("L_secH")
srd(SRD_OUT, 38, 4096)
set_exec("-1", 0)
e(f"buffer_store_short v52, v6, s[{SRD_OUT}:{SRD_OUT+3}], s4 offen")
if OPT["dbg"]:
    e("s_cmp_ge_u32 s2, 14")
    e("s_cbranch_scc1 L_dbg1")
    e("s_memrealtime s[98:99]")
    srd(SRD_M, 40, 256)
    e("s_lshl_b32 s4, s2, 2")
    e("s_add_u32 s4, s4, 8")
    e("s_waitcnt lgkmcnt(0)")
    e("v_mov_b32 v236, s4")
    e("v_mov_b32 v237, s98")
    e("s_mov_b64 exec, 1")
    e(f"buffer_store_dword v237, v236, s[{SRD_M}:{SRD_M+3}], 0 offen")
    lab("L_dbg1")
e("s_cmp_lg_u32 s2, 0")
e("s_cbranch_scc1 L_exit_c")
e("s_mov_b64 exec, 1")
e(f"v_mov_b32 v1, 0")
e(f"v_mov_b32 v4, s{S_TAG}")
e(f"v_mov_b32 v5, s{S_TAG+1}")
e(f"buffer_store_dwordx2 v[4:5], v1, s[{SRD_WS}:{SRD_WS+3}], 0 offen offset:{WS_GEN} sc1")
lab("L_exit_c")
dump_stamps(True)
lab("L_exit")
e("s_endpgm")
if not OPT["dry"]:
    lab("L_dry_done_data")
    lab("L_dry_done_comm")
    e("s_endpgm")

out.append('.section .rodata,"a"')
out.append(".p2align 6")
out.append(f".amdhsa_kernel {NAME}_kernel")
out.append("  .amdhsa_next_free_vgpr 240")
out.append("  .amdhsa_next_free_sgpr 102")
out.append("  .amdhsa_accum_offset 240")
out.append("  .amdhsa_group_segment_fixed_size 0")
out.append("  .amdhsa_kernarg_size 112")
out.append("  .amdhsa_user_sgpr_count 2")
out.append("  .amdhsa_user_sgpr_kernarg_segment_ptr 1")
out.append("  .amdhsa_system_sgpr_workgroup_id_x 1")
out.append(".end_amdhsa_kernel")

dst = sys.argv[1] if len(sys.argv) > 1 else f"cdna_kernels/{NAME}.s"
open(dst, "w").write("\n".join(out) + "\n")
print("wrote", dst, len(out), "lines")
```

```python
import sys
import re

NAME = "gated_mix__sliding_block_cached__mixer_channel_mlp__decode"

OPT = dict(
    stamps=0,
    nt=1,
    depth=4,
    sleep_l=1,
    sleep_q=1,
    sleep_t=0,
    dry=0,
    k_after=0,
    pp=0,
    qdelay=0,
    pre=0,
    dbg=0,
    q2=0,
    kdma=1,
    jit=0,
    jit_k=7,
    vstamp=0,
    w1_late=0,
    go_pub=0,
    opfull=1,
    apm128=1,
)
for a in sys.argv[2:]:
    k, v = a.split("=")
    OPT[k] = int(v)

WS_GEN = 0
WS_QP = 0x10000
WS_HP = WS_QP + 4 * 4 * 1024 * 16
WS_APO = WS_HP + 4 * 4 * 448 * 16
WS_APM = WS_APO + 4 * 32 * 4 * 8 * 8 * 16
WS_OP = WS_APM + 4 * 32 * 8 * 128
WS_ST = WS_OP + 142 * 4 * 128 * 16
WS_END = WS_ST + 256 * 8 * 16 * 8
open("gen_layout.py", "w").write(f"WS_ST = {WS_ST}\n")

L_PIECE = 0
L_QS = 8192
L_OW = 9216
L_ML = 17408
L_OA = 17536
L_HA = 17792
L_F = 18816
L_CNT = 19840
L_K = 20480
L_END = L_K + 32768
LDS_BYTES = 53248
assert L_END <= LDS_BYTES
C_Q, C_O, C_H, C_A, C_F, C_GO, C_K, C_P = 0, 4, 8, 12, 16, 20, 24, 28

out = []


def e(s):
    out.append("    " + s)


def lab(s):
    out.append(s + ":")


NT = " nt" if OPT["nt"] else ""
S_WAVE = 3
SRD_X, SRD_K, SRD_V, SRD_W1, SRD_W3, SRD_WS, SRD_OUT, SRD_M = 44, 48, 52, 56, 60, 64, 68, 72
S_TAG = 76
S_SELLO, S_SELHI = 78, 79
S_T0 = 80
S_MASK = 96
S_DRY = 97
S_STAMP = 100
V_ST = 236
uid = [0]


def nid():
    uid[0] += 1
    return uid[0]


class Guard:
    def __enter__(self):
        if not OPT["dry"]:
            return
        self.n = nid()
        e(f"s_cmp_lg_u32 s{S_DRY}, 0")
        e(f"s_cbranch_scc1 L_g{self.n}")

    def __exit__(self, *a):
        if not OPT["dry"]:
            return
        lab(f"L_g{self.n}")


def if_dry_goto(label):
    if not OPT["dry"]:
        e("s_nop 1")
        return
    e(f"s_cmp_lg_u32 s{S_DRY}, 0")
    e(f"s_cbranch_scc1 {label}")


def srd(dst, ptr, nbytes):
    e(f"s_mov_b32 s{dst}, s{ptr}")
    e(f"s_and_b32 s{dst+1}, s{ptr+1}, 0xffff")
    e(f"s_mov_b32 s{dst+2}, {nbytes}")
    e(f"s_mov_b32 s{dst+3}, 0x00020000")


def stamp_raw(i, comm):
    va, vt = V_ST, V_ST + 2
    e(f"s_lshl_b32 s98, s2, 3")
    e(f"s_add_u32 s98, s98, s{S_WAVE}")
    if comm:
        e("s_add_u32 s98, s98, 4")
    e(f"s_lshl_b32 s98, s98, 7")
    e(f"s_add_u32 s98, s98, {WS_ST + 8 * i}")
    e(f"v_mov_b32 v{va}, s98")
    e(f"v_mov_b32 v{vt}, s{S_STAMP}")
    e(f"v_mov_b32 v{vt+1}, s{S_STAMP+1}")
    e(f"s_mov_b64 s[98:99], exec")
    e(f"s_mov_b64 exec, 1")
    e(f"buffer_store_dwordx2 v[{vt}:{vt+1}], v{va}, s[{SRD_WS}:{SRD_WS+3}], 0 offen")
    e(f"s_mov_b64 exec, s[98:99]")


STAMP_MAP_D = {0: 0, 3: 1, 5: 2, 2: 3, 6: 4, 7: 5, 8: 6}
STAMP_MAP_C = {0: 0, 1: 1, 3: 2, 2: 3, 5: 4, 7: 6, 6: 5}


def stamp(i, comm=False):
    if not OPT["stamps"]:
        return
    m = STAMP_MAP_C if comm else STAMP_MAP_D
    if i not in m:
        return
    k = m[i]
    with Guard():
        e(f"s_memrealtime s[{16+2*k}:{17+2*k}]")


def dump_stamps(comm):
    if not OPT["stamps"]:
        return
    m = STAMP_MAP_C if comm else STAMP_MAP_D
    e("s_waitcnt lgkmcnt(0)")
    e("s_mov_b64 exec, -1")
    if OPT["stamps"] == 2:
        srd(SRD_M, 40, 256)
        e("s_mov_b64 exec, 1")
        for i, k in m.items():
            if comm and i in (6,):
                continue
            slot = i if not comm else {0: 9, 1: 10, 3: 11, 4: 12, 5: 13, 7: 14}[i]
            n_ = nid()
            if (not comm) and i in (7, 8):
                e(f"s_cmp_lt_u32 s{S_WAVE}, 2")
                e(f"s_cbranch_scc1 L_ds{n_}")
            if comm and i == 0:
                e("s_cmp_eq_u32 s8, 0")
                e(f"s_cbranch_scc1 L_ds{n_}")
            if comm and i == 5:
                e("s_cmp_ge_u32 s2, 64")
                e(f"s_cbranch_scc1 L_ds{n_}")
            e(f"v_mov_b32 v{V_ST}, {4*slot}")
            if (not comm) and i == 0:
                e(f"s_not_b32 s{S_STAMP}, s{16+2*k}")
                e(f"v_mov_b32 v{V_ST+1}, s{S_STAMP}")
            else:
                e(f"v_mov_b32 v{V_ST+1}, s{16+2*k}")
            e(f"buffer_atomic_umax v{V_ST+1}, v{V_ST}, s[{SRD_M}:{SRD_M+3}], 0 offen")
            e("s_nop 1")
            lab(f"L_ds{n_}")
        return
    for i, k in m.items():
        e(f"s_mov_b32 s{S_STAMP}, s{16+2*k}")
        e(f"s_mov_b32 s{S_STAMP+1}, s{17+2*k}")
        stamp_raw(i, comm)
        e("s_nop 1")


def tile_mm(W, A, B, ACC, acc_in=False):
    for q in range(4):
        for i in range(4):
            e(f"v_perm_b32 v{B+i}, v{W+4*(2*i+1)+q}, v{W+4*(2*i)+q}, s{S_SELLO}")
        for i in range(4):
            e(f"v_perm_b32 v{B+4+i}, v{W+4*(2*i+1)+q}, v{W+4*(2*i)+q}, s{S_SELHI}")
        e("s_nop 1")
        for jj in range(2):
            j = 2 * q + jj
            c = f"v[{ACC+4*j}:{ACC+4*j+3}]" if acc_in else "0"
            e(f"v_mfma_f32_16x16x32_bf16 v[{ACC+4*j}:{ACC+4*j+3}], v[{A}:{A+3}], v[{B+4*jj}:{B+4*jj+3}], {c}")


VT = 188
VTRAW = 186


def load_tag(vtmp):
    e(f"v_mov_b32 v{vtmp}, 0")
    e(f"buffer_load_dwordx2 v[{VTRAW}:{VTRAW+1}], v{vtmp}, s[{SRD_WS}:{SRD_WS+3}], 0 offen offset:{WS_GEN} sc1")


def finish_tag():
    e(f"v_readfirstlane_b32 s{S_TAG}, v{VTRAW}")
    e(f"v_readfirstlane_b32 s{S_TAG+1}, v{VTRAW+1}")
    e("s_nop 3")
    e(f"s_add_u32 s{S_TAG}, s{S_TAG}, 1")
    e(f"s_addc_u32 s{S_TAG+1}, s{S_TAG+1}, 0")
    e(f"s_and_b32 s{S_T0}, s{S_TAG}, 0x3ff")
    e(f"s_bfe_u32 s{S_T0+1}, s{S_TAG}, 0xa000a")
    e(f"s_bfe_u32 s{S_T0+2}, s{S_TAG}, 0xa0014")
    e(f"s_lshr_b64 s[{S_T0+4}:{S_T0+5}], s[{S_TAG}:{S_TAG+1}], 30")
    e(f"s_and_b32 s{S_T0+3}, s{S_T0+4}, 0x3ff")
    for i in range(4):
        e(f"v_mov_b32 v{VT+i}, s{S_T0+i}")


def tagq(dst, srcs):
    for i in range(4):
        e(f"v_bfi_b32 v{dst+i}, s{S_MASK}, v{VT+i}, v{srcs[i]}")


def poll(name, loads, quads, vx, sleep, maxit=100000, altbase=None):
    n = len(loads)

    def issue(base_map):
        for l, q in zip(loads, quads):
            r = base_map(q)
            e(l.replace("@", f"v[{r}:{r+3}]"))

    def check(base_map):
        first = True
        for q in quads:
            r = base_map(q)
            for i in range(4):
                if first:
                    e(f"v_xor_b32 v{vx}, v{r+i}, v{VT+i}")
                    first = False
                else:
                    e(f"v_xor_b32 v{vx+1}, v{r+i}, v{VT+i}")
                    e(f"v_or_b32 v{vx}, v{vx}, v{vx+1}")
        e(f"v_and_b32 v{vx}, 0x3ff, v{vx}")
        e(f"v_cmp_ne_u32 vcc, 0, v{vx}")

    A = lambda q: q
    e(f"s_mov_b32 s{S_T0+10}, {maxit}")
    if not OPT["pp"] or altbase is None:
        lab(f"L_poll_{name}")
        issue(A)
        with Guard():
            e("s_waitcnt vmcnt(0)")
        check(A)
        if_dry_goto(f"L_pdone_{name}")
        e(f"s_cmp_eq_u64 vcc, 0")
        e(f"s_cbranch_scc1 L_pdone_{name}")
        e(f"s_sub_u32 s{S_T0+10}, s{S_T0+10}, 1")
        e(f"s_cmp_eq_u32 s{S_T0+10}, 0")
        e(f"s_cbranch_scc1 L_pdone_{name}")
        if sleep:
            e(f"s_sleep {sleep}")
        e(f"s_branch L_poll_{name}")
        lab(f"L_pdone_{name}")
        return
    B = lambda q: altbase + (q - quads[0])
    issue(A)
    lab(f"L_poll_{name}")
    e(f"s_sleep {OPT['pp']}")
    issue(B)
    with Guard():
        e(f"s_waitcnt vmcnt({n})")
    check(A)
    if_dry_goto(f"L_pB_{name}")
    e(f"s_cmp_eq_u64 vcc, 0")
    e(f"s_cbranch_scc1 L_pdone_{name}")
    e(f"s_sleep {OPT['pp']}")
    issue(A)
    e(f"s_waitcnt vmcnt({n})")
    check(B)
    e(f"s_cmp_eq_u64 vcc, 0")
    e(f"s_cbranch_scc1 L_pB_{name}")
    e(f"s_sub_u32 s{S_T0+10}, s{S_T0+10}, 1")
    e(f"s_cmp_eq_u32 s{S_T0+10}, 0")
    e(f"s_cbranch_scc0 L_poll_{name}")
    lab(f"L_pB_{name}")
    for q in quads:
        for i in range(4):
            e(f"v_mov_b32 v{q+i}, v{B(q)+i}")
    lab(f"L_pdone_{name}")


def lds_signal(cnt, vtmp):
    e("s_waitcnt lgkmcnt(0)")
    e(f"v_mov_b32 v{vtmp}, {L_CNT+cnt}")
    e(f"v_mov_b32 v{vtmp+1}, 1")
    e("s_mov_b64 exec, 1")
    e(f"ds_add_u32 v{vtmp}, v{vtmp+1}")
    e("s_mov_b64 exec, -1")


def lds_wait(cnt, target, vtmp):
    n = nid()
    e(f"v_mov_b32 v{vtmp}, {L_CNT+cnt}")
    e(f"s_mov_b32 s{S_T0+11}, 4000000")
    lab(f"L_lw{n}")
    e(f"ds_read_b32 v{vtmp+1}, v{vtmp}")
    e("s_waitcnt lgkmcnt(0)")
    e(f"v_readfirstlane_b32 s{S_T0+12}, v{vtmp+1}")
    if_dry_goto(f"L_lwd{n}")
    e("s_nop 1")
    e(f"s_cmp_ge_u32 s{S_T0+12}, {target}")
    e(f"s_cbranch_scc1 L_lwd{n}")
    e(f"s_sub_u32 s{S_T0+11}, s{S_T0+11}, 1")
    e(f"s_cmp_eq_u32 s{S_T0+11}, 0")
    e(f"s_cbranch_scc1 L_lwd{n}")
    if OPT["sleep_l"]:
        e(f"s_sleep {OPT['sleep_l']}")
    e(f"s_branch L_lw{n}")
    lab(f"L_lwd{n}")


def bf16_round_pair(dst_pk, a, b, lo, hi):
    e(f"v_cvt_pk_bf16_f32 v{dst_pk}, v{a}, v{b}")
    e(f"v_lshlrev_b32 v{lo}, 16, v{dst_pk}")
    e(f"v_and_b32 v{hi}, 0xffff0000, v{dst_pk}")


def dpp_reduce(op, regs, ctls):
    for ctl in ctls:
        e("s_nop 1")
        for r in regs:
            e(f"{op}_dpp v{r}, v{r}, v{r} {ctl} row_mask:0xf bank_mask:0xf")


ROW16 = ["quad_perm:[1,0,3,2]", "quad_perm:[2,3,0,1]", "row_half_mirror", "row_mirror"]


def swap_reduce(op, regs, tmps, sws=("v_permlane16_swap_b32", "v_permlane32_swap_b32")):
    for sw in sws:
        for r, t in zip(regs, tmps):
            e(f"v_mov_b32 v{t}, v{r}")
        e("s_nop 1")
        for r, t in zip(regs, tmps):
            e(f"{sw} v{r}, v{t}")
        e("s_nop 1")
        for r, t in zip(regs, tmps):
            e(f"{op} v{r}, v{r}, v{t}")


def set_exec(lo, hi):
    e(f"s_mov_b32 exec_lo, {lo}")
    e(f"s_mov_b32 exec_hi, {hi}")


VW, VK, VV, VB, VACC = 16, 80, 112, 144, 152
VA, VA2 = 12, 224
VX = 152
TMP = 192


def lane_setup():
    e("v_and_b32 v1, 7, v0")
    e("v_bfe_u32 v2, v0, 3, 1")
    e("v_lshrrev_b32 v3, 4, v0")
    e("v_lshlrev_b32 v4, 5, v2")
    e("v_lshl_add_u32 v4, v3, 3, v4")
    e("v_and_b32 v5, 3, v0")
    e("v_bfe_u32 v6, v0, 2, 1")
    e("v_lshlrev_b32 v6, 5, v6")
    e("v_lshl_add_u32 v6, v3, 3, v6")
    e("v_lshlrev_b32 v11, 1, v6")
    e("v_lshl_add_u32 v6, v5, 10, v11")
    e("v_lshl_add_u32 v11, v5, 8, v11")
    e("v_lshlrev_b32 v10, 5, v1")
    e("v_lshl_add_u32 v10, v2, 10, v10")


def gather_quads(G, ACC=None):
    ACC = VACC if ACC is None else ACC
    for b in range(4):
        for hf in range(2):
            for i in range(4):
                e(f"v_mov_b32 v{G+8*b+4*hf+i}, v{ACC+4*(4*hf+i)+b}")


def tile128(A1, A2, piece_off_sreg, W=None, B=None, ACC=None, G=120):
    W = VW if W is None else W
    B = VB if B is None else B
    ACC = VACC if ACC is None else ACC
    tile_mm(W, A1, B, ACC)
    tile_mm(W + 32, A2, B, ACC, acc_in=True)
    e("v_lshlrev_b32 v1, 4, v0")
    e(f"v_lshrrev_b32 v{TMP+8}, 4, v0")
    e(f"v_add_u32 v1, s{piece_off_sreg}, v1")
    e(f"v_add_u32 v2, s{piece_off_sreg}, v10")
    e("s_nop 7")
    gather_quads(G, ACC)
    with Guard():
        set_exec("0xff0000ff", 0)
        for b in range(4):
            for hf in range(2):
                e(f"ds_write_b128 v2, v[{G+8*b+4*hf}:{G+8*b+4*hf+3}] offset:{256*b+16*hf}")
        e("s_mov_b64 exec, -1")
    e("s_waitcnt lgkmcnt(0)")
    e(f"ds_read_b128 v[{TMP}:{TMP+3}], v1")
    e(f"ds_read_b128 v[{TMP+4}:{TMP+7}], v1 offset:1024")
    e("s_waitcnt lgkmcnt(0)")
    for i in range(4):
        e(f"v_add_f32 v{TMP+i}, v{TMP+i}, v{TMP+4+i}")
    tagq(TMP, [TMP, TMP + 1, TMP + 2, TMP + 3])


hdr = open(f"cdna_kernels/{NAME}.s.ref").read().split("\n")
top = [l for l in hdr if l.startswith(";") and "@launch" not in l]
out.extend(top)
out.append(f"; @launch grid=(256,1,1) block=(512,1,1) lds={LDS_BYTES}")
out.append('.amdgcn_target "amdgcn-amd-amdhsa--gfx950"')
out.append(".text")
out.append(f".globl {NAME}_kernel")
out.append(".p2align 8")
out.append(f".type {NAME}_kernel,@function")
lab(f"{NAME}_kernel")

e("s_cmp_ge_u32 s2, 256")
e("s_cbranch_scc1 L_exit")
e("s_load_dwordx16 s[16:31], s[0:1], 0")
e("s_load_dwordx8 s[32:39], s[0:1], 64")
e("s_load_dwordx4 s[40:43], s[0:1], 96")
e("v_lshrrev_b32 v1, 6, v0")
e("v_and_b32 v0, 63, v0")
e(f"s_mov_b32 s{S_SELLO}, 0x05040100")
e(f"s_mov_b32 s{S_SELHI}, 0x07060302")
e(f"s_mov_b32 s{S_MASK}, 0x3ff")
e(f"s_mov_b32 s{S_DRY}, 0")
e(f"v_readfirstlane_b32 s{S_WAVE}, v1")
lane_setup()
e("s_waitcnt lgkmcnt(0)")
srd(SRD_X, 16, 4096)
srd(SRD_WS, 42, WS_END)
e(f"s_cmp_ge_u32 s{S_WAVE}, 4")
e("s_cbranch_scc1 L_comm")

srd(SRD_K, 18, 33554432)
srd(SRD_V, 20, 33554432)
stamp(0)
if OPT["dbg"]:
    e(f"s_cmp_lg_u32 s{S_WAVE}, 0")
    e("s_cbranch_scc1 L_dbg0")
    e("s_cmp_eq_u32 s2, 0")
    e("s_cselect_b32 s4, 0, 4")
    e("s_cmp_eq_u32 s2, 0")
    e("s_cbranch_scc1 L_dbg0b")
    e("s_cmp_eq_u32 s2, 255")
    e("s_cbranch_scc0 L_dbg0")
    lab("L_dbg0b")
    e("s_memrealtime s[98:99]")
    srd(SRD_M, 40, 256)
    e("s_waitcnt lgkmcnt(0)")
    e("v_mov_b32 v236, s4")
    e("v_mov_b32 v237, s98")
    e("s_mov_b64 exec, 1")
    e(f"buffer_store_dword v237, v236, s[{SRD_M}:{SRD_M+3}], 0 offen")
    e("s_mov_b64 exec, -1")
    lab("L_dbg0")
e("s_lshr_b32 s10, s2, 3")
e("s_lshl_b32 s10, s10, 12")
e("s_and_b32 s11, s2, 7")
e("s_lshl_b32 s11, s11, 7")
e("s_add_u32 s10, s10, s11")
e(f"s_lshl_b32 s11, s{S_WAVE}, 5")
e("s_add_u32 s10, s10, s11")
e("s_add_u32 s10, s10, 3072")
e("s_lshl_b32 s10, s10, 8")
e("s_add_u32 s11, s10, 4096")
e("v_and_b32 v8, 15, v0")
e("v_lshlrev_b32 v9, 4, v8")
e("v_lshlrev_b32 v8, 8, v8")
e("v_lshl_add_u32 v8, v3, 4, v8")
e("v_lshl_add_u32 v9, v3, 10, v9")
load_tag(2)
D = OPT["depth"]
seq = []
if OPT["kdma"]:
    e("v_and_b32 v12, 15, v0")
    for i4 in range(4):
        e(f"v_add_u32 v13, {4*i4}, v3")
        e(f"v_xor_b32 v14, v12, v13")
        e(f"v_lshlrev_b32 v14, 4, v14")
        e(f"v_lshl_add_u32 v{TMP+20+i4}, v13, 8, v14")
    e(f"s_lshl_b32 s12, s{S_WAVE}, 13")
    e(f"s_add_u32 s12, s12, {L_K}")
    for i in range(8):
        seq.append([f"s_add_u32 m0, s12, {1024*i}", "s_nop 0",
                    f"buffer_load_dwordx4 v{TMP+20+(i&3)}, s[{SRD_K}:{SRD_K+3}], s{10+(i>>2)} offen{NT} lds"])
    for c in range(4):
        e(f"v_add_u32 v13, {4*c}, v3")
        e(f"v_xor_b32 v13, v13, v12")
        e(f"v_lshlrev_b32 v13, 4, v13")
        e(f"v_lshl_add_u32 v13, v12, 8, v13")
        e(f"v_add_u32 v{228+c}, s12, v13")
else:
  for kb in range(2):
    for c in range(4):
        r = VK + 16 * kb + 4 * c
        seq.append(f"buffer_load_dwordx4 v[{r}:{r+3}], v8, s[{SRD_K}:{SRD_K+3}], s{10+kb} offen offset:{64*c}{NT}")
for i in range(8):
    r = VV + 4 * i
    so = 10 if i < 4 else 11
    seq.append(f"buffer_load_dwordx4 v[{r}:{r+3}], v9, s[{SRD_V}:{SRD_V+3}], s{so} offen offset:{256*(i&3)}{NT}")
gated = OPT["k_after"] or OPT["go_pub"]
for i, l in enumerate(seq):
    if gated and i == OPT["pre"]:
        e("s_barrier")
        lds_wait(C_GO, 1, TMP)
    if i == D and not gated:
        e("s_barrier")
    if i >= D:
        e(f"s_waitcnt vmcnt({D-1})")
    if (OPT["jit"] & 1) and i == min(15, OPT["jit_k"] + D):
        lds_signal(C_K, TMP)
    for l_ in (l if isinstance(l, list) else [l]):
        e(l_)
finish_tag()
if OPT["vstamp"]:
    e("s_waitcnt vmcnt(0)")
    stamp(7)
lab("L_secA")
lds_wait(C_Q, 2 if OPT["q2"] else 4, TMP)
stamp(3)
VQ = TMP
e("v_and_b32 v1, 3, v0")
e("v_lshlrev_b32 v1, 8, v1")
e("v_lshl_add_u32 v1, v3, 4, v1")
for c in range(4):
    e(f"ds_read_b128 v[{VQ+4*c}:{VQ+4*c+3}], v1 offset:{L_QS+64*c}")
with Guard():
    e("s_waitcnt vmcnt(8)")
if OPT["kdma"]:
    for kb in range(2):
        for c in range(4):
            r = VK + 16 * kb + 4 * c
            e(f"ds_read_b128 v[{r}:{r+3}], v{228+c} offset:{4096*kb}")
e("s_waitcnt lgkmcnt(0)")
stamp(4)
VS = VACC
for kb in range(2):
    for c in range(4):
        src2 = "0" if c == 0 else f"v[{VS+4*kb}:{VS+4*kb+3}]"
        e(f"v_mfma_f32_16x16x32_bf16 v[{VS+4*kb}:{VS+4*kb+3}], v[{VK+16*kb+4*c}:{VK+16*kb+4*c+3}], v[{VQ+4*c}:{VQ+4*c+3}], {src2}")
e("s_nop 7")
e("s_nop 1")
SC = TMP + 16
T = TMP + 24
for kb in range(2):
    for h2 in range(2):
        a = VS + 4 * kb + 2 * h2
        d = SC + 4 * kb + 2 * h2
        bf16_round_pair(T, a, a + 1, d, d + 1)
        e(f"v_mul_f32 v{d}, 0x3db504f3, v{d}")
        e(f"v_mul_f32 v{d+1}, 0x3db504f3, v{d+1}")
        bf16_round_pair(T, d, d + 1, d, d + 1)
MX = TMP + 26
LS = TMP + 27
e(f"v_max3_f32 v{MX}, v{SC}, v{SC+1}, v{SC+2}")
e(f"v_max3_f32 v{MX}, v{MX}, v{SC+3}, v{SC+4}")
e(f"v_max3_f32 v{MX}, v{MX}, v{SC+5}, v{SC+6}")
e(f"v_max_f32 v{MX}, v{MX}, v{SC+7}")
swap_reduce("v_max_f32", [MX], [T])
for i in range(8):
    e(f"v_sub_f32 v{SC+i}, v{SC+i}, v{MX}")
    e(f"v_mul_f32 v{SC+i}, 0x3fb8aa3b, v{SC+i}")
    e(f"v_exp_f32 v{SC+i}, v{SC+i}")
e("s_nop 0")
e(f"v_add_f32 v{LS}, v{SC}, v{SC+1}")
for i in range(2, 8):
    e(f"v_add_f32 v{LS}, v{LS}, v{SC+i}")
swap_reduce("v_add_f32", [LS], [T])
VP = TMP + 28
for i in range(4):
    e(f"v_cvt_pk_bf16_f32 v{VP+i}, v{SC+2*i}, v{SC+2*i+1}")
with Guard():
    e("s_waitcnt vmcnt(0)")
stamp(5)
tile_mm(VV, VP, VB, VACC)
e(f"s_lshl_b32 s4, s{S_WAVE}, 11")
e("v_lshlrev_b32 v1, 5, v0")
e("v_add_u32 v1, s4, v1")
e(f"s_lshl_b32 s4, s{S_WAVE}, 5")
e("v_lshlrev_b32 v2, 3, v0")
e("v_add_u32 v2, s4, v2")
e("s_nop 7")
gather_quads(VK)
with Guard():
    set_exec("0xffff", 0)
    for r in range(4):
        for hf in range(2):
            e(f"ds_write_b128 v1, v[{VK+8*r+4*hf}:{VK+8*r+4*hf+3}] offset:{L_OW+512*r+16*hf}")
    e("s_mov_b64 exec, 15")
    e(f"ds_write_b64 v2, v[{MX}:{MX+1}] offset:{L_ML}")
    e("s_mov_b64 exec, -1")
    lds_signal(C_O, TMP)
stamp(1)
e(f"s_lshl_b32 s4, s{S_WAVE}, 3")
e("v_mov_b32 v1, s4")
e(f"s_lshl_b32 s4, s{S_WAVE}, 9")
e("v_and_b32 v2, 31, v0")
e("v_lshlrev_b32 v2, 4, v2")
e("v_add_u32 v2, s4, v2")
e("s_lshr_b32 s4, s2, 3")
e("s_lshl_b32 s4, s4, 2")
e(f"s_add_u32 s4, s4, s{S_WAVE}")
e("s_and_b32 s5, s2, 7")
e("s_lshl_b32 s6, s4, 12")
e("s_lshl_b32 s7, s5, 7")
e("s_add_u32 s6, s6, s7")
e(f"s_add_u32 s6, s6, {WS_APO}")
e("s_lshl_b32 s4, s4, 3")
e("s_add_u32 s4, s4, s5")
e(f"s_lshl_b32 s4, s4, {7 if OPT['apm128'] else 4}")
e(f"s_add_u32 s4, s4, {WS_APM}")
e("v_and_b32 v7, 7, v0")
e("v_lshlrev_b32 v7, 4, v7")
e(f"v_lshrrev_b32 v{TMP+12}, 3, v0")
e(f"v_lshl_add_u32 v7, v{TMP+12}, 10, v7")
lds_wait(C_O, 4, TMP)
stamp(2)
R = VACC
for w in range(4):
    e(f"ds_read_b64 v[{R+2*w}:{R+2*w+1}], v1 offset:{L_ML+32*w}")
for w in range(4):
    e(f"ds_read_b128 v[{R+8+4*w}:{R+11+4*w}], v2 offset:{L_OW+2048*w}")
e("s_waitcnt lgkmcnt(0)")
M_, L_ = R + 24, R + 25
e(f"v_max3_f32 v{M_}, v{R}, v{R+2}, v{R+4}")
e(f"v_max_f32 v{M_}, v{M_}, v{R+6}")
F_ = TMP
for w in range(4):
    e(f"v_sub_f32 v{F_+w}, v{R+2*w}, v{M_}")
    e(f"v_mul_f32 v{F_+w}, 0x3fb8aa3b, v{F_+w}")
    e(f"v_exp_f32 v{F_+w}, v{F_+w}")
e("s_nop 0")
O_ = TMP + 4
e(f"v_mul_f32 v{L_}, v{F_}, v{R+1}")
for i in range(4):
    e(f"v_mul_f32 v{O_+i}, v{F_}, v{R+8+i}")
for w in range(1, 4):
    e(f"v_fmac_f32 v{L_}, v{F_+w}, v{R+2*w+1}")
    for i in range(4):
        e(f"v_fmac_f32 v{O_+i}, v{F_+w}, v{R+8+4*w+i}")
tagq(O_, [O_, O_ + 1, O_ + 2, O_ + 3])
e(f"v_mov_b32 v{R+26}, 0")
e(f"v_mov_b32 v{R+27}, 0")
tagq(TMP + 8, [M_, L_, R + 26, R + 27])
e(f"v_mov_b32 v1, 0")
with Guard():
    set_exec("-1", 0)
    e(f"buffer_store_dwordx4 v[{O_}:{O_+3}], v7, s[{SRD_WS}:{SRD_WS+3}], s6 offen sc1")
    e("s_mov_b64 exec, 1")
    e(f"buffer_store_dwordx4 v[{TMP+8}:{TMP+11}], v1, s[{SRD_WS}:{SRD_WS+3}], s4 offen sc1")
    e("s_mov_b64 exec, -1")
stamp(6)
if_dry_goto("L_dry_done_data")
lab("L_exit_d")
dump_stamps(False)
e("s_endpgm")

lab("L_comm")
e("s_setprio 2")
e(f"s_sub_u32 s{S_WAVE}, s{S_WAVE}, 4")
stamp(6, True)
load_tag(7)
e("s_mov_b32 s8, 0")
e(f"s_cmp_ge_u32 s{S_WAVE}, 2")
e("s_cbranch_scc1 L_p1_noload")
e(f"s_cmp_eq_u32 s{S_WAVE}, 1")
e("s_cbranch_scc1 L_p1_w1")
srd(SRD_W1, 22, 4194304)
e("s_mov_b32 s5, 8192")
e("s_lshr_b32 s6, s2, 6")
e("s_lshl_b32 s6, s6, 7")
e("s_and_b32 s7, s2, 63")
e("s_lshl_b32 s7, s7, 7")
e("s_mov_b32 s8, 1")
e("s_branch L_p1_go")
lab("L_p1_w1")
e("s_cmp_ge_u32 s2, 112")
e("s_cbranch_scc1 L_p1_noload")
srd(SRD_W1, 28, 512 * 1792 * 2)
e("s_mov_b32 s5, 3584")
e("s_and_b32 s6, s2, 3")
e("s_lshl_b32 s6, s6, 7")
e("s_lshr_b32 s7, s2, 2")
e("s_lshl_b32 s7, s7, 7")
e("s_mov_b32 s8, 2")
if OPT["w1_late"]:
    e("s_barrier")
    lds_wait(C_GO, 1, TMP)
lab("L_p1_go")
e("v_mul_lo_u32 v7, s5, v4")
e("v_lshl_add_u32 v7, v1, 4, v7")
e("s_mul_i32 s9, s6, s5")
e("s_add_u32 s9, s9, s7")
e("s_lshl_b32 s12, s6, 1")
e("s_mul_i32 s13, s5, 56")
for i in range(16):
    e(f"buffer_load_dwordx4 v[{VW+4*i}:{VW+4*i+3}], v7, s[{SRD_W1}:{SRD_W1+3}], s9 offen{NT}")
    if i < 15:
        e("s_add_u32 s9, s9, s5")
    if i == 7:
        e("s_add_u32 s9, s9, s13")
XA, XA2, XR = 96, 100, 104
e(f"buffer_load_dwordx4 v[{XA}:{XA+3}], v6, s[{SRD_X}:{SRD_X+3}], s12 offen")
e(f"buffer_load_dwordx4 v[{XA2}:{XA2+3}], v6, s[{SRD_X}:{SRD_X+3}], s12 offen offset:128")
e("v_lshlrev_b32 v1, 4, v0")
for b in range(4):
    e(f"buffer_load_dwordx4 v[{XR+4*b}:{XR+4*b+3}], v1, s[{SRD_X}:{SRD_X+3}], 0 offen offset:{1024*b}")
lab("L_p1_noload")
e(f"s_cmp_lg_u32 s{S_WAVE}, 0")
e("s_cbranch_scc1 L_c_noz")
e("v_mov_b32 v1, 0")
e("v_lshlrev_b32 v7, 2, v0")
e("s_mov_b64 exec, 0xffff")
e(f"ds_write_b32 v7, v1 offset:{L_CNT}")
e("s_mov_b64 exec, -1")
e("s_waitcnt lgkmcnt(0)")
lab("L_c_noz")
if OPT["w1_late"]:
    e("s_cmp_eq_u32 s8, 2")
    e("s_cbranch_scc1 L_skipb0")
e("s_barrier")
lab("L_skipb0")
e(f"s_lshl_b32 s15, s{S_WAVE}, 11")
e(f"s_add_u32 s15, s15, {L_PIECE + 4096}")
if OPT["dry"]:
    e(f"s_mov_b32 s{S_DRY}, 1")
    e("s_cmp_lg_u32 s8, 0")
    e("s_cbranch_scc1 L_secP1")
    e(f"s_cmp_eq_u32 s{S_WAVE}, 2")
    e("s_cbranch_scc1 L_secA")
    e("s_branch L_secQ")
    lab("L_dry_done_data")
    lab("L_dry_done_comm")
    e(f"s_mov_b32 s{S_DRY}, 0")
    lane_setup()
lab("L_real_start")
if OPT["k_after"]:
    e(f"s_cmp_eq_u32 s{S_WAVE}, 0")
    e("s_cbranch_scc0 L_nogo")
    e(f"s_waitcnt vmcnt({22-OPT['k_after']})")
    lds_signal(C_GO, TMP)
    lab("L_nogo")
e("s_waitcnt vmcnt(0) lgkmcnt(0)")
stamp(7, True)
finish_tag()
e("s_cmp_eq_u32 s8, 0")
e("s_cbranch_scc1 L_secQ")
lab("L_secP1")
for d in range(4):
    e(f"v_mov_b32 v{VA+d}, v{XA+d}")
    e(f"v_mov_b32 v{VA2+d}, v{XA2+d}")
e("s_cmp_eq_u32 s8, 1")
e("s_cbranch_scc1 L_p1_mm")
SUM = TMP
T = TMP + 4
for b in range(4):
    e(f"v_lshlrev_b32 v{T}, 16, v{XR+4*b}")
    e(f"v_and_b32 v{T+1}, 0xffff0000, v{XR+4*b}")
    e(f"v_add_f32 v{SUM+b}, v{T}, v{T+1}")
    for d in range(1, 4):
        e(f"v_lshlrev_b32 v{T}, 16, v{XR+4*b+d}")
        e(f"v_and_b32 v{T+1}, 0xffff0000, v{XR+4*b+d}")
        e(f"v_add_f32 v{SUM+b}, v{SUM+b}, v{T}")
        e(f"v_add_f32 v{SUM+b}, v{SUM+b}, v{T+1}")
dpp_reduce("v_add_f32", [SUM + b for b in range(4)], ROW16)
swap_reduce("v_add_f32", [SUM + b for b in range(4)], [T + b for b in range(4)])
for b in range(4):
    e(f"v_mul_f32 v{SUM+b}, 0x3b000000, v{SUM+b}")
SQ = TMP + 12
for b in range(4):
    for d in range(4):
        e(f"v_lshlrev_b32 v{T}, 16, v{XR+4*b+d}")
        e(f"v_and_b32 v{T+1}, 0xffff0000, v{XR+4*b+d}")
        e(f"v_sub_f32 v{T}, v{T}, v{SUM+b}")
        e(f"v_sub_f32 v{T+1}, v{T+1}, v{SUM+b}")
        if d == 0:
            e(f"v_mul_f32 v{SQ+b}, v{T}, v{T}")
        else:
            e(f"v_fmac_f32 v{SQ+b}, v{T}, v{T}")
        e(f"v_fmac_f32 v{SQ+b}, v{T+1}, v{T+1}")
dpp_reduce("v_add_f32", [SQ + b for b in range(4)], ROW16)
swap_reduce("v_add_f32", [SQ + b for b in range(4)], [T + b for b in range(4)])
for b in range(4):
    e(f"v_mul_f32 v{SQ+b}, 0x3b000000, v{SQ+b}")
MEAN, DEN, RCP = TMP + 16, TMP + 17, TMP + 18
e(f"v_mov_b32 v{MEAN}, v{SUM}")
e(f"v_mov_b32 v{DEN}, v{SQ}")
for b in range(1, 4):
    e(f"v_cmp_eq_u32 vcc, {b}, v5")
    e("s_nop 1")
    e(f"v_cndmask_b32 v{MEAN}, v{MEAN}, v{SUM+b}, vcc")
    e(f"v_cndmask_b32 v{DEN}, v{DEN}, v{SQ+b}, vcc")
bf16_round_pair(T, MEAN, DEN, MEAN, DEN)
e(f"v_add_f32 v{DEN}, 0x3727c5ac, v{DEN}")
e(f"v_cvt_pk_bf16_f32 v{T}, v{DEN}, v{DEN}")
e(f"v_lshlrev_b32 v{DEN}, 16, v{T}")
e(f"v_sqrt_f32 v{DEN}, v{DEN}")
e("s_nop 0")
e(f"v_cvt_pk_bf16_f32 v{T}, v{DEN}, v{DEN}")
e(f"v_lshlrev_b32 v{DEN}, 16, v{T}")
e(f"v_rcp_f32 v{RCP}, v{DEN}")
e("s_nop 0")
for AA in (VA, VA2):
    for d in range(4):
        a0, a1 = T + 2, T + 3
        e(f"v_lshlrev_b32 v{a0}, 16, v{AA+d}")
        e(f"v_and_b32 v{a1}, 0xffff0000, v{AA+d}")
        e(f"v_sub_f32 v{a0}, v{a0}, v{MEAN}")
        e(f"v_sub_f32 v{a1}, v{a1}, v{MEAN}")
        bf16_round_pair(T, a0, a1, a0, a1)
        for a in (a0, a1):
            e(f"v_mul_f32 v{T+4}, v{a}, v{RCP}")
            e(f"v_fma_f32 v{T+5}, -v{T+4}, v{DEN}, v{a}")
            e(f"v_fma_f32 v{a}, v{T+5}, v{RCP}, v{T+4}")
        e(f"v_cvt_pk_bf16_f32 v{AA+d}, v{a0}, v{a1}")
lab("L_p1_mm")
tile128(VA, VA2, 15)
e("v_and_b32 v1, 15, v0")
e("s_cmp_eq_u32 s8, 1")
e("s_cbranch_scc1 L_pub_q")
e("s_and_b32 s4, s2, 3")
e("s_mul_i32 s4, s4, 1792")
e("s_lshr_b32 s5, s2, 2")
e("s_lshl_b32 s5, s5, 4")
e("s_add_u32 s4, s4, s5")
e("s_lshl_b32 s4, s4, 4")
e(f"s_add_u32 s4, s4, {WS_HP}")
e(f"v_mul_u32_u24 v2, 448, v{TMP+8}")
e("v_add_u32 v1, v2, v1")
e("s_branch L_pub_go")
lab("L_pub_q")
e("s_lshr_b32 s4, s2, 6")
e("s_lshl_b32 s4, s4, 12")
e("s_and_b32 s5, s2, 63")
e("s_lshl_b32 s5, s5, 4")
e("s_add_u32 s4, s4, s5")
e("s_lshl_b32 s4, s4, 4")
e(f"s_add_u32 s4, s4, {WS_QP}")
e(f"v_lshl_add_u32 v1, v{TMP+8}, 10, v1")
lab("L_pub_go")
e("v_lshlrev_b32 v1, 4, v1")
if_dry_goto("L_dry_done_comm")
e(f"buffer_store_dwordx4 v[{TMP}:{TMP+3}], v1, s[{SRD_WS}:{SRD_WS+3}], s4 offen sc1")
if OPT["go_pub"]:
    e("s_cmp_eq_u32 s8, 1")
    e("s_cbranch_scc0 L_nogo2")
    lds_signal(C_GO, TMP + 10)
    stamp(0, True)
    lab("L_nogo2")
else:
    stamp(0, True)
if OPT["qdelay"]:
    e("s_cmp_eq_u32 s8, 1")
    e("s_cbranch_scc0 L_nop2")
    lds_signal(C_P, TMP + 10)
    lab("L_nop2")
lab("L_secQ")
e("v_lshlrev_b32 v3, 4, v0")
if OPT["q2"]:
    assert not OPT["dry"]
    e(f"s_lshl_b32 s4, s{S_WAVE}, 8")
    e("v_and_b32 v5, 31, v0")
    e("v_lshlrev_b32 v5, 3, v5")
    e("v_add_u32 v5, s4, v5")
    e(f"s_cmp_lt_u32 s{S_WAVE}, 2")
    e("s_cbranch_scc1 L_q_skip")
    e("s_lshr_b32 s4, s2, 6")
    e("s_lshl_b32 s4, s4, 10")
    e("s_lshr_b32 s5, s2, 3")
    e("s_and_b32 s5, s5, 7")
    e("s_lshl_b32 s5, s5, 7")
    e("s_add_u32 s4, s4, s5")
    e(f"s_sub_u32 s5, s{S_WAVE}, 2")
    e("s_lshl_b32 s5, s5, 6")
    e("s_add_u32 s4, s4, s5")
    e("s_lshl_b32 s4, s4, 4")
    e(f"s_add_u32 s4, s4, {WS_QP}")
    for k in range(1, 4):
        e(f"s_add_u32 s{4+k}, s4, {k*4*1024*16}")
    poll("q", [f"buffer_load_dwordx4 @, v3, s[{SRD_WS}:{SRD_WS+3}], s{4+k} offen sc1" for k in range(4)],
         [16, 20, 24, 28], 6, OPT["sleep_q"])
    for i in range(4):
        e(f"v_add_f32 v{32+i}, v{16+i}, v{20+i}")
        e(f"v_add_f32 v{36+i}, v{24+i}, v{28+i}")
    for i in range(4):
        e(f"v_add_f32 v{32+i}, v{32+i}, v{36+i}")
    e("v_cvt_pk_bf16_f32 v32, v32, v33")
    e("v_cvt_pk_bf16_f32 v33, v34, v35")
    e(f"s_sub_u32 s4, s{S_WAVE}, 2")
    e("s_lshl_b32 s4, s4, 9")
    e("v_lshlrev_b32 v4, 3, v0")
    e("v_add_u32 v4, s4, v4")
    e(f"ds_write_b64 v4, v[32:33] offset:{L_QS}")
    lds_signal(C_Q, 6)
    lab("L_q_skip")
else:
    e("s_lshr_b32 s4, s2, 6")
    e("s_lshl_b32 s4, s4, 10")
    e("s_lshr_b32 s5, s2, 3")
    e("s_and_b32 s5, s5, 7")
    e("s_lshl_b32 s5, s5, 7")
    e("s_add_u32 s4, s4, s5")
    e(f"s_lshl_b32 s5, s{S_WAVE}, 5")
    e("s_add_u32 s4, s4, s5")
    e("s_lshl_b32 s4, s4, 4")
    e(f"s_add_u32 s4, s4, {WS_QP}")
    e(f"s_add_u32 s5, s4, {4*1024*16}")
    e("v_and_b32 v4, 31, v0")
    e("v_lshlrev_b32 v4, 4, v4")
    e("v_lshrrev_b32 v5, 5, v0")
    e("v_lshl_add_u32 v4, v5, 17, v4")
    if OPT["qdelay"]:
        lds_wait(C_P, 1, 6)
        if OPT["qdelay"] > 1:
            e(f"s_sleep {OPT['qdelay']}")
    if OPT["jit"] & 1:
        lds_wait(C_K, 4, 6)
    poll("q", [f"buffer_load_dwordx4 @, v4, s[{SRD_WS}:{SRD_WS+3}], s{4+k} offen sc1" for k in range(2)],
         [16, 20], 6, OPT["sleep_q"], altbase=168)
    for i in range(4):
        e(f"v_add_f32 v{24+i}, v{16+i}, v{20+i}")
    swap_reduce("v_add_f32", [24, 25, 26, 27], [28, 29, 30, 31], ("v_permlane32_swap_b32",))
    e("v_cvt_pk_bf16_f32 v24, v24, v25")
    e("v_cvt_pk_bf16_f32 v25, v26, v27")
    e(f"s_lshl_b32 s4, s{S_WAVE}, 8")
    e("v_and_b32 v5, 31, v0")
    e("v_lshlrev_b32 v5, 3, v5")
    e("v_add_u32 v5, s4, v5")
    with Guard():
        e(f"ds_write_b64 v5, v[24:25] offset:{L_QS}")
        lds_signal(C_Q, 6)

stamp(1, True)
W3, B3, ACC3 = 96, 160, 16
e("s_mov_b32 s14, 0")
with Guard():
    e("v_lshrrev_b32 v9, 4, v0")
    e(f"s_cmp_lt_u32 s{S_WAVE}, 2")
    e("s_cbranch_scc1 L_nowo0")
    srd(SRD_W3, 24, 4194304)
    e("s_lshr_b32 s6, s2, 1")
    e("s_lshl_b32 s9, s6, 15")
    e("s_and_b32 s7, s2, 1")
    e("s_lshl_b32 s7, s7, 9")
    e("s_add_u32 s9, s9, s7")
    e(f"s_sub_u32 s7, s{S_WAVE}, 2")
    e("s_lshl_b32 s7, s7, 8")
    e("s_add_u32 s9, s9, s7")
    e("v_and_b32 v7, 15, v0")
    e("v_lshlrev_b32 v7, 4, v7")
    e("v_lshl_add_u32 v7, v9, 13, v7")
    for i in range(8):
        e(f"buffer_load_dwordx4 v[{W3+4*i}:{W3+4*i+3}], v7, s[{SRD_W3}:{SRD_W3+3}], s9 offen offset:{1024*(i&3)}{NT}")
        if i == 3:
            e("s_add_u32 s9, s9, 4096")
    e("s_branch L_now2")
    lab("L_nowo0")
    e(f"s_cmp_eq_u32 s{S_WAVE}, 1")
    e("s_cbranch_scc0 L_now2")
    e("s_cmp_lt_u32 s2, 112")
    e("s_cbranch_scc1 L_now2")
    e("s_cmp_ge_u32 s2, 224")
    e("s_cbranch_scc1 L_now2")
    e("s_mov_b32 s14, 1")
    srd(SRD_W3, 32, 1792 * 512 * 2)
    e("s_sub_u32 s9, s2, 112")
    e("s_lshr_b32 s6, s9, 3")
    e("s_lshl_b32 s6, s6, 17")
    e("s_and_b32 s7, s9, 7")
    e("s_lshl_b32 s7, s7, 7")
    e("s_add_u32 s9, s6, s7")
    e("v_bfe_u32 v7, v0, 3, 1")
    e("v_lshlrev_b32 v7, 5, v7")
    e("v_lshl_add_u32 v9, v9, 3, v7")
    e("v_and_b32 v7, 7, v0")
    e("v_lshlrev_b32 v7, 4, v7")
    e("v_lshl_add_u32 v7, v9, 10, v7")
    for i in range(16):
        e(f"buffer_load_dwordx4 v[{W3+4*i}:{W3+4*i+3}], v7, s[{SRD_W3}:{SRD_W3+3}], s9 offen offset:{1024*(i&3)}{NT}")
        if i == 7:
            e(f"s_add_u32 s9, s9, {4096 + 56*1024}")
        elif i & 3 == 3 and i < 15:
            e("s_add_u32 s9, s9, 4096")
    lab("L_now2")
e("s_lshr_b32 s4, s2, 4")
e("s_lshl_b32 s4, s4, 7")
e("s_and_b32 s5, s2, 15")
e("s_lshl_b32 s5, s5, 3")
e("s_add_u32 s4, s4, s5")
e("s_lshl_b32 s4, s4, 4")
e(f"s_add_u32 s4, s4, {WS_OP}")
e(f"s_lshl_b32 s5, s{S_WAVE}, 18")
e("s_add_u32 s86, s4, s5")
for k in range(1, 4):
    e(f"s_add_u32 s{86+k}, s86, {k*65536}")
e(f"s_lshl_b32 s5, s{S_WAVE}, 15")
e("s_add_u32 s5, s4, s5")
e(f"s_add_u32 s85, s5, {128*8192}")
e("v_and_b32 v60, 7, v0")
e("v_lshlrev_b32 v60, 4, v60")
e("v_lshrrev_b32 v61, 3, v0")
e("v_lshl_add_u32 v60, v61, 13, v60")
e("v_and_b32 v62, 3, v61")
e(f"s_lshl_b32 s5, s{S_WAVE}, 2")
e("s_sub_u32 s5, 13, s5")
e("v_min_u32 v62, s5, v62")
e("v_and_b32 v63, 7, v0")
e("v_lshlrev_b32 v63, 4, v63")
e("v_lshl_add_u32 v62, v62, 13, v63")
o_loads = [f"buffer_load_dwordx4 v[{32+4*k}:{35+4*k}], v60, s[{SRD_WS}:{SRD_WS+3}], s{86+k} offen sc1" for k in range(4)]
o_loads.append(f"buffer_load_dwordx4 v[48:51], v62, s[{SRD_WS}:{SRD_WS+3}], s85 offen sc1")
e("s_cmp_ge_u32 s2, 64")
e("s_cbranch_scc1 L_c_nowarm")
with Guard():
    if not (OPT["jit"] & 4):
        for l in o_loads:
            e(l)
    srd(SRD_M, 36, 1024)
    e(f"buffer_load_dwordx4 v[64:67], v3, s[{SRD_M}:{SRD_M+3}], 0 offen")
    e("s_lshr_b32 s4, s2, 4")
    e("s_lshl_b32 s4, s4, 10")
    e(f"buffer_load_dwordx4 v[68:71], v3, s[{SRD_X}:{SRD_X+3}], s4 offen")
    srd(SRD_OUT, 34, 1024)
    e("v_and_b32 v6, 31, v0")
    e("v_lshlrev_b32 v6, 1, v6")
    e("s_and_b32 s4, s2, 15")
    e("s_lshl_b32 s4, s4, 6")
    e(f"buffer_load_ushort v72, v6, s[{SRD_OUT}:{SRD_OUT+3}], s4 offen")
lab("L_c_nowarm")
if_dry_goto("L_secAG")
e("s_cmp_lt_u32 s2, 112")
e("s_cbranch_scc1 L_secAG")
e("s_cmp_ge_u32 s2, 224")
e("s_cbranch_scc1 L_secAG")
lab("L_secH")
e("s_sub_u32 s9, s2, 112")
e("s_lshr_b32 s9, s9, 3")
e("s_min_u32 s9, s9, 13")
e(f"s_mul_i32 s4, s{S_WAVE}, 448")
e("s_lshl_b32 s5, s9, 5")
e("s_add_u32 s4, s4, s5")
e("s_lshl_b32 s4, s4, 4")
e(f"s_add_u32 s4, s4, {WS_HP}")
e(f"s_add_u32 s5, s4, {4*448*16}")
srd(SRD_M, 30, 3584)
e("s_lshl_b32 s9, s9, 8")
e("v_and_b32 v6, 31, v0")
e("v_lshlrev_b32 v4, 4, v6")
e("v_lshlrev_b32 v6, 3, v6")
e(f"buffer_load_dwordx2 v[80:81], v6, s[{SRD_M}:{SRD_M+3}], s9 offen")
e("v_lshrrev_b32 v7, 5, v0")
e(f"s_mov_b32 s6, {2*4*448*16}")
e("v_mul_lo_u32 v7, s6, v7")
e("v_add_u32 v4, v7, v4")
poll("h", [f"buffer_load_dwordx4 @, v4, s[{SRD_WS}:{SRD_WS+3}], s{4+k} offen sc1" for k in range(2)],
     [16, 20], 6, OPT["sleep_q"])
for i in range(4):
    e(f"v_add_f32 v{24+i}, v{16+i}, v{20+i}")
swap_reduce("v_add_f32", [24, 25, 26, 27], [28, 29, 30, 31], ("v_permlane32_swap_b32",))
for p in range(2):
    a, b_ = 24 + 2 * p, 25 + 2 * p
    bf16_round_pair(28, a, b_, a, b_)
    e(f"v_lshlrev_b32 v28, 16, v{80+p}")
    e(f"v_and_b32 v29, 0xffff0000, v{80+p}")
    e(f"v_add_f32 v{a}, v{a}, v28")
    e(f"v_add_f32 v{b_}, v{b_}, v29")
    bf16_round_pair(28, a, b_, a, b_)
e("v_mov_b32 v31, 0x3d372713")
for r in (24, 25, 26, 27):
    e(f"v_mul_f32 v30, v{r}, v{r}")
    e(f"v_mul_f32 v30, v30, v{r}")
    e(f"v_fma_f32 v30, v30, v31, v{r}")
    e(f"v_mul_f32 v30, 0x40135761, v30")
    e(f"v_exp_f32 v30, v30")
    e("s_nop 0")
    e(f"v_add_f32 v30, 1.0, v30")
    e(f"v_rcp_f32 v30, v30")
    e("s_nop 0")
    e(f"v_fma_f32 v30, v30, -2.0, 2.0")
    e(f"v_mul_f32 v30, 0.5, v30")
    e(f"v_mul_f32 v{r}, v{r}, v30")
e("v_cvt_pk_bf16_f32 v24, v24, v25")
e("v_cvt_pk_bf16_f32 v25, v26, v27")
with Guard():
    e(f"ds_write_b64 v5, v[24:25] offset:{L_HA}")
    lds_signal(C_H, 6)
    e("s_cmp_eq_u32 s14, 1")
    e("s_cbranch_scc0 L_secAG")
lds_wait(C_H, 4, 6)
e(f"ds_read_b128 v[{VA}:{VA+3}], v11 offset:{L_HA}")
e(f"ds_read_b128 v[{VA2}:{VA2+3}], v11 offset:{L_HA+128}")
with Guard():
    e("s_waitcnt vmcnt(0)")
e("s_waitcnt lgkmcnt(0)")
tile128(VA, VA2, 15, W=W3, B=B3, ACC=ACC3, G=W3)
e("s_sub_u32 s5, s2, 112")
e("s_lshr_b32 s4, s5, 3")
e("s_add_u32 s4, s4, 128")
e("s_lshl_b32 s4, s4, 9")
e("s_and_b32 s5, s5, 7")
e("s_lshl_b32 s5, s5, 4")
e("s_add_u32 s4, s4, s5")
e("s_lshl_b32 s4, s4, 4")
e(f"s_add_u32 s4, s4, {WS_OP}")
e("v_and_b32 v1, 15, v0")
e(f"v_lshl_add_u32 v1, v{TMP+8}, 7, v1")
e("v_lshlrev_b32 v1, 4, v1")
if_dry_goto("L_dry_done_comm")
e(f"buffer_store_dwordx4 v[{TMP}:{TMP+3}], v1, s[{SRD_WS}:{SRD_WS+3}], s4 offen sc1")
lab("L_secAG")
e(f"s_lshl_b32 s4, s{S_WAVE}, 5")
e("s_lshr_b32 s5, s2, 3")
e("s_add_u32 s4, s4, s5")
e("s_lshl_b32 s6, s4, 2")
e("s_bfe_u32 s5, s2, 0x20001")
e("s_add_u32 s6, s6, s5")
e("s_lshl_b32 s6, s6, 10")
e(f"s_add_u32 s6, s6, {WS_APO}")
e(f"s_lshl_b32 s4, s4, {10 if OPT['apm128'] else 7}")
e(f"s_add_u32 s4, s4, {WS_APM}")
e(f"v_lshlrev_b32 v4, {7 if OPT['apm128'] else 4}, v61")
if OPT["jit"] & 2:
    lds_wait(C_O, 4, 6)
poll("a", [f"buffer_load_dwordx4 @, v3, s[{SRD_WS}:{SRD_WS+3}], s6 offen sc1",
           f"buffer_load_dwordx4 @, v4, s[{SRD_WS}:{SRD_WS+3}], s4 offen sc1"], [16, 20], 6, OPT["sleep_t"], altbase=168)
stamp(3, True)
e("v_mov_b32 v24, v20")
dpp_reduce("v_max_f32", [24], ["row_ror:8"])
swap_reduce("v_max_f32", [24], [25])
e("v_sub_f32 v25, v20, v24")
e("v_mul_f32 v25, 0x3fb8aa3b, v25")
e("v_exp_f32 v25, v25")
e("s_nop 0")
e("v_mul_f32 v26, v25, v21")
for i in range(4):
    e(f"v_mul_f32 v{84+i}, v25, v{16+i}")
dpp_reduce("v_add_f32", [26, 84, 85, 86, 87], ["row_ror:8"])
swap_reduce("v_add_f32", [26, 84, 85, 86, 87], [27, 28, 29, 30, 31])
e("v_rcp_f32 v27, v26")
e("s_nop 0")
e("v_fma_f32 v28, -v26, v27, 2.0")
e("v_mul_f32 v27, v27, v28")
for i in range(4):
    e(f"v_mul_f32 v{84+i}, v27, v{84+i}")
e("v_cvt_pk_bf16_f32 v84, v84, v85")
e("v_cvt_pk_bf16_f32 v85, v86, v87")
e(f"s_lshl_b32 s4, s{S_WAVE}, 6")
e("v_lshlrev_b32 v4, 3, v0")
e("v_add_u32 v4, s4, v4")
with Guard():
    e("s_mov_b64 exec, 0xff")
    e(f"ds_write_b64 v4, v[84:85] offset:{L_OA}")
    e("s_mov_b64 exec, -1")
    lds_signal(C_A, 6)
stamp(4, True)
if_dry_goto("L_secC")
e(f"s_cmp_lt_u32 s{S_WAVE}, 2")
e("s_cbranch_scc1 L_secC_done")
lab("L_secC")
e("s_lshr_b32 s4, s2, 1")
e("s_lshl_b32 s4, s4, 9")
e("s_and_b32 s5, s2, 1")
e("s_lshl_b32 s5, s5, 6")
e("s_add_u32 s4, s4, s5")
e(f"s_sub_u32 s5, s{S_WAVE}, 2")
e("s_lshl_b32 s5, s5, 5")
e("s_add_u32 s4, s4, s5")
e("s_lshl_b32 s4, s4, 4")
e(f"s_add_u32 s4, s4, {WS_OP}")
e("s_add_u32 s5, s4, 4096")
e("v_lshlrev_b32 v2, 5, v0")
e("v_and_b32 v1, 3, v0")
e("v_lshlrev_b32 v1, 6, v1")
e("v_lshrrev_b32 v9, 4, v0")
e("v_lshl_add_u32 v1, v9, 4, v1")
lds_wait(C_A, 4, 6)
e(f"ds_read_b128 v[{VA}:{VA+3}], v1 offset:{L_OA}")
with Guard():
    e("s_waitcnt vmcnt(0)")
e("s_waitcnt lgkmcnt(0)")
tile_mm(W3, VA, B3, ACC3)
e("s_nop 7")
e("s_nop 1")
if not OPT["opfull"]:
    for b in range(4):
        for hf in range(2):
            d = TMP + 8 * b + 4 * hf
            tagq(d, [ACC3 + 4 * (4 * hf + i) + b for i in range(4)])
    with Guard():
        set_exec("0xffff", 0)
        for b in range(4):
            for hf in range(2):
                d = TMP + 8 * b + 4 * hf
                e(f"buffer_store_dwordx4 v[{d}:{d+3}], v2, s[{SRD_WS}:{SRD_WS+3}], s{4+(b>>1)} offen offset:{2048*(b&1)+16*hf} sc1")
        e("s_mov_b64 exec, -1")
else:
    e("v_and_b32 v6, 16, v0")
    e("v_cmp_ne_u32 s[90:91], 0, v6")
    e("v_cmp_lt_u32 s[92:93], 31, v0")
    e("s_nop 1")
    for k in range(2):
        for i in range(4):
            t0, t1 = TMP + 16, TMP + 17
            e(f"v_cndmask_b32 v{t0}, v{ACC3+4*i+k}, v{ACC3+4*(4+i)+k}, s[90:91]")
            e(f"v_cndmask_b32 v{t1}, v{ACC3+4*i+2+k}, v{ACC3+4*(4+i)+2+k}, s[90:91]")
            e(f"v_cndmask_b32 v{TMP+8+4*k+i}, v{t0}, v{t1}, s[92:93]")
        tagq(TMP + 4 * k, [TMP + 8 + 4 * k + i for i in range(4)])
    e("v_and_b32 v2, 15, v0")
    e("v_lshlrev_b32 v2, 5, v2")
    e("v_add_u32 v2, v6, v2")
    e("v_lshrrev_b32 v6, 5, v0")
    e("v_lshl_add_u32 v2, v6, 12, v2")
    with Guard():
        for k in range(2):
            e(f"buffer_store_dwordx4 v[{TMP+4*k}:{TMP+4*k+3}], v2, s[{SRD_WS}:{SRD_WS+3}], s4 offen offset:{2048*k} sc1")
stamp(2, True)
lab("L_secC_done")
e("s_cmp_lt_u32 s2, 64")
e("s_cbranch_scc1 L_secF")
if_dry_goto("L_secH")
e("s_branch L_exit_c")
lab("L_secF")
GS = 74
for d in range(4):
    e(f"v_lshlrev_b32 v76, 16, v{68+d}")
    e(f"v_and_b32 v77, 0xffff0000, v{68+d}")
    e(f"v_lshlrev_b32 v78, 16, v{64+d}")
    e(f"v_and_b32 v79, 0xffff0000, v{64+d}")
    e("v_mul_f32 v76, v76, v78")
    e("v_mul_f32 v77, v77, v79")
    bf16_round_pair(78, 76, 77, 76, 77)
    if d == 0:
        e(f"v_add_f32 v{GS}, v76, v77")
    else:
        e(f"v_add_f32 v{GS}, v{GS}, v76")
        e(f"v_add_f32 v{GS}, v{GS}, v77")
dpp_reduce("v_add_f32", [GS], ROW16)
swap_reduce("v_add_f32", [GS], [76])
e(f"v_cvt_pk_bf16_f32 v75, v{GS}, v{GS}")
e("v_lshlrev_b32 v75, 16, v75")
e("v_mul_f32 v75, 0xbfb8aa3b, v75")
e("v_exp_f32 v75, v75")
e("s_nop 0")
e("v_add_f32 v75, 1.0, v75")
e("v_rcp_f32 v76, v75")
e("s_nop 0")
e("v_fma_f32 v77, -v75, v76, 2.0")
e("v_mul_f32 v76, v76, v77")
e("v_cvt_pk_bf16_f32 v76, v76, v76")
e("v_lshlrev_b32 v75, 16, v76")
e("v_sub_f32 v76, 1.0, v75")
e("v_cvt_pk_bf16_f32 v76, v76, v76")
e("v_lshlrev_b32 v76, 16, v76")
e("v_lshlrev_b32 v73, 16, v72")
poll("o", [re.sub(r"v\[\d+:\d+\]", "@", l, count=1) for l in o_loads], [32, 36, 40, 44, 48], 1, OPT["sleep_t"], altbase=128)
stamp(5, True)
e(f"s_lshl_b32 s5, s{S_WAVE}, 5")
e("s_sub_u32 s5, 112, s5")
e("s_min_u32 s5, s5, 32")
e("v_cmp_gt_u32 vcc, s5, v0")
e("s_nop 1")
for i in range(4):
    e(f"v_cndmask_b32 v{92+i}, 0, v{48+i}, vcc")
    e(f"v_add_f32 v{88+i}, v{32+i}, v{36+i}")
    e(f"v_add_f32 v{52+i}, v{40+i}, v{44+i}")
for i in range(4):
    e(f"v_add_f32 v{88+i}, v{88+i}, v{52+i}")
regs = [88 + i for i in range(8)]
dpp_reduce("v_add_f32", regs, ["row_ror:8"])
swap_reduce("v_add_f32", regs, [52 + i for i in range(8)])
e(f"s_lshl_b32 s4, s{S_WAVE}, 7")
e("v_add_u32 v4, s4, v3")
with Guard():
    e("s_mov_b64 exec, 0xff")
    e(f"ds_write_b128 v4, v[88:91] offset:{L_F}")
    e(f"ds_write_b128 v4, v[92:95] offset:{L_F+512}")
    e("s_mov_b64 exec, -1")
    lds_signal(C_F, 6)
    e(f"s_cmp_lg_u32 s{S_WAVE}, 0")
    e("s_cbranch_scc1 L_exit_c")
lds_wait(C_F, 4, 6)
e("v_and_b32 v6, 31, v0")
e("v_lshlrev_b32 v4, 2, v6")
for w in range(8):
    e(f"ds_read_b32 v{52+w}, v4 offset:{L_F+128*w}")
e("s_waitcnt lgkmcnt(0)")
e("v_add_f32 v52, v52, v53")
e("v_add_f32 v54, v54, v55")
e("v_add_f32 v56, v56, v57")
e("v_add_f32 v58, v58, v59")
e("v_add_f32 v52, v52, v54")
e("v_add_f32 v56, v56, v58")
bf16_round_pair(54, 52, 56, 52, 56)
e("v_add_f32 v56, v56, v73")
e("v_cvt_pk_bf16_f32 v54, v56, v56")
e("v_lshlrev_b32 v56, 16, v54")
e("v_mul_f32 v52, v75, v52")
e("v_mul_f32 v56, v76, v56")
bf16_round_pair(54, 52, 56, 52, 56)
e("v_add_f32 v52, v52, v56")
e("v_cvt_pk_bf16_f32 v52, v52, v52")
e("v_lshlrev_b32 v6, 1, v6")
e("s_lshl_b32 s4, s2, 6")
if_dry_goto("L_secH")
srd(SRD_OUT, 38, 4096)
set_exec("-1", 0)
e(f"buffer_store_short v52, v6, s[{SRD_OUT}:{SRD_OUT+3}], s4 offen")
if OPT["dbg"]:
    e("s_cmp_ge_u32 s2, 14")
    e("s_cbranch_scc1 L_dbg1")
    e("s_memrealtime s[98:99]")
    srd(SRD_M, 40, 256)
    e("s_lshl_b32 s4, s2, 2")
    e("s_add_u32 s4, s4, 8")
    e("s_waitcnt lgkmcnt(0)")
    e("v_mov_b32 v236, s4")
    e("v_mov_b32 v237, s98")
    e("s_mov_b64 exec, 1")
    e(f"buffer_store_dword v237, v236, s[{SRD_M}:{SRD_M+3}], 0 offen")
    lab("L_dbg1")
e("s_cmp_lg_u32 s2, 0")
e("s_cbranch_scc1 L_exit_c")
e("s_mov_b64 exec, 1")
e(f"v_mov_b32 v1, 0")
e(f"v_mov_b32 v4, s{S_TAG}")
e(f"v_mov_b32 v5, s{S_TAG+1}")
e(f"buffer_store_dwordx2 v[4:5], v1, s[{SRD_WS}:{SRD_WS+3}], 0 offen offset:{WS_GEN} sc1")
lab("L_exit_c")
dump_stamps(True)
lab("L_exit")
e("s_endpgm")
if not OPT["dry"]:
    lab("L_dry_done_data")
    lab("L_dry_done_comm")
    e("s_endpgm")

out.append('.section .rodata,"a"')
out.append(".p2align 6")
out.append(f".amdhsa_kernel {NAME}_kernel")
out.append("  .amdhsa_next_free_vgpr 240")
out.append("  .amdhsa_next_free_sgpr 102")
out.append("  .amdhsa_accum_offset 240")
out.append("  .amdhsa_group_segment_fixed_size 0")
out.append("  .amdhsa_kernarg_size 112")
out.append("  .amdhsa_user_sgpr_count 2")
out.append("  .amdhsa_user_sgpr_kernarg_segment_ptr 1")
out.append("  .amdhsa_system_sgpr_workgroup_id_x 1")
out.append(".end_amdhsa_kernel")

dst = sys.argv[1] if len(sys.argv) > 1 else f"cdna_kernels/{NAME}.s"
open(dst, "w").write("\n".join(out) + "\n")
print("wrote", dst, len(out), "lines")
```

```python
import sys
import re

NAME = "gated_mix__sliding_block_cached__mixer_channel_mlp__decode"

OPT = dict(
    stamps=0,
    nt=1,
    depth=4,
    sleep_l=1,
    sleep_q=1,
    sleep_t=0,
    dry=0,
    k_after=0,
    pp=0,
    adelay=0,
    odelay=0,
    ackw=0,
    ackst=0,
    ppq=0,
    qdelay=0,
    pre=0,
    dbg=0,
    q2=0,
    kdma=1,
    jit=0,
    jit_k=7,
    vstamp=0,
    w1_late=0,
    go_pub=0,
    opfull=1,
    apm128=1,
)
for a in sys.argv[2:]:
    k, v = a.split("=")
    OPT[k] = int(v)

WS_GEN = 0
WS_QP = 0x10000
WS_HP = WS_QP + 4 * 4 * 1024 * 16
WS_APO = WS_HP + 4 * 4 * 448 * 16
WS_APM = WS_APO + 4 * 32 * 4 * 8 * 8 * 16
WS_OP = WS_APM + 4 * 32 * 8 * 128
WS_ST = WS_OP + 142 * 4 * 128 * 16
WS_END = WS_ST + 256 * 8 * 16 * 8
open("gen_layout.py", "w").write(f"WS_ST = {WS_ST}\n")

L_PIECE = 0
L_QS = 8192
L_OW = 9216
L_ML = 17408
L_OA = 17536
L_HA = 17792
L_F = 18816
L_CNT = 19840
L_K = 20480
L_END = L_K + 32768
LDS_BYTES = 53248
assert L_END <= LDS_BYTES
C_Q, C_O, C_H, C_A, C_F, C_GO, C_K, C_P, C_PA, C_PO = 0, 4, 8, 12, 16, 20, 24, 28, 32, 36

out = []


def e(s):
    out.append("    " + s)


def lab(s):
    out.append(s + ":")


NT = " nt" if OPT["nt"] else ""
S_WAVE = 3
SRD_X, SRD_K, SRD_V, SRD_W1, SRD_W3, SRD_WS, SRD_OUT, SRD_M = 44, 48, 52, 56, 60, 64, 68, 72
S_TAG = 76
S_SELLO, S_SELHI = 78, 79
S_T0 = 80
S_MASK = 96
S_DRY = 97
S_STAMP = 100
V_ST = 236
uid = [0]


def nid():
    uid[0] += 1
    return uid[0]


class Guard:
    def __enter__(self):
        if not OPT["dry"]:
            return
        self.n = nid()
        e(f"s_cmp_lg_u32 s{S_DRY}, 0")
        e(f"s_cbranch_scc1 L_g{self.n}")

    def __exit__(self, *a):
        if not OPT["dry"]:
            return
        lab(f"L_g{self.n}")


def if_dry_goto(label):
    if not OPT["dry"]:
        e("s_nop 1")
        return
    e(f"s_cmp_lg_u32 s{S_DRY}, 0")
    e(f"s_cbranch_scc1 {label}")


def srd(dst, ptr, nbytes):
    e(f"s_mov_b32 s{dst}, s{ptr}")
    e(f"s_and_b32 s{dst+1}, s{ptr+1}, 0xffff")
    e(f"s_mov_b32 s{dst+2}, {nbytes}")
    e(f"s_mov_b32 s{dst+3}, 0x00020000")


def stamp_raw(i, comm):
    va, vt = V_ST, V_ST + 2
    e(f"s_lshl_b32 s98, s2, 3")
    e(f"s_add_u32 s98, s98, s{S_WAVE}")
    if comm:
        e("s_add_u32 s98, s98, 4")
    e(f"s_lshl_b32 s98, s98, 7")
    e(f"s_add_u32 s98, s98, {WS_ST + 8 * i}")
    e(f"v_mov_b32 v{va}, s98")
    e(f"v_mov_b32 v{vt}, s{S_STAMP}")
    e(f"v_mov_b32 v{vt+1}, s{S_STAMP+1}")
    e(f"s_mov_b64 s[98:99], exec")
    e(f"s_mov_b64 exec, 1")
    e(f"buffer_store_dwordx2 v[{vt}:{vt+1}], v{va}, s[{SRD_WS}:{SRD_WS+3}], 0 offen")
    e(f"s_mov_b64 exec, s[98:99]")


STAMP_MAP_D = {0: 0, 3: 1, 5: 2, 2: 3, 6: 4, 7: 5, 8: 6}
STAMP_MAP_C = {0: 0, 1: 1, 3: 2, 2: 3, 5: 4, 7: 6, 6: 5}


def stamp(i, comm=False):
    if not OPT["stamps"]:
        return
    m = STAMP_MAP_C if comm else STAMP_MAP_D
    if i not in m:
        return
    k = m[i]
    with Guard():
        e(f"s_memrealtime s[{16+2*k}:{17+2*k}]")


def dump_stamps(comm):
    if not OPT["stamps"]:
        return
    m = STAMP_MAP_C if comm else STAMP_MAP_D
    e("s_waitcnt lgkmcnt(0)")
    e("s_mov_b64 exec, -1")
    if OPT["stamps"] == 2:
        srd(SRD_M, 40, 256)
        e("s_mov_b64 exec, 1")
        for i, k in m.items():
            if comm and i in (6,):
                continue
            slot = i if not comm else {0: 9, 1: 10, 3: 11, 4: 12, 5: 13, 7: 14}[i]
            n_ = nid()
            if (not comm) and i in (7, 8):
                e(f"s_cmp_lt_u32 s{S_WAVE}, 2")
                e(f"s_cbranch_scc1 L_ds{n_}")
            if comm and i == 0:
                e("s_cmp_eq_u32 s8, 0")
                e(f"s_cbranch_scc1 L_ds{n_}")
            if comm and i == 5:
                e("s_cmp_ge_u32 s2, 64")
                e(f"s_cbranch_scc1 L_ds{n_}")
            e(f"v_mov_b32 v{V_ST}, {4*slot}")
            if (not comm) and i == 0:
                e(f"s_not_b32 s{S_STAMP}, s{16+2*k}")
                e(f"v_mov_b32 v{V_ST+1}, s{S_STAMP}")
            else:
                e(f"v_mov_b32 v{V_ST+1}, s{16+2*k}")
            e(f"buffer_atomic_umax v{V_ST+1}, v{V_ST}, s[{SRD_M}:{SRD_M+3}], 0 offen")
            e("s_nop 1")
            lab(f"L_ds{n_}")
        return
    for i, k in m.items():
        e(f"s_mov_b32 s{S_STAMP}, s{16+2*k}")
        e(f"s_mov_b32 s{S_STAMP+1}, s{17+2*k}")
        stamp_raw(i, comm)
        e("s_nop 1")


def tile_mm(W, A, B, ACC, acc_in=False):
    for q in range(4):
        for i in range(4):
            e(f"v_perm_b32 v{B+i}, v{W+4*(2*i+1)+q}, v{W+4*(2*i)+q}, s{S_SELLO}")
        for i in range(4):
            e(f"v_perm_b32 v{B+4+i}, v{W+4*(2*i+1)+q}, v{W+4*(2*i)+q}, s{S_SELHI}")
        e("s_nop 1")
        for jj in range(2):
            j = 2 * q + jj
            c = f"v[{ACC+4*j}:{ACC+4*j+3}]" if acc_in else "0"
            e(f"v_mfma_f32_16x16x32_bf16 v[{ACC+4*j}:{ACC+4*j+3}], v[{A}:{A+3}], v[{B+4*jj}:{B+4*jj+3}], {c}")


VT = 188
VTRAW = 186


def load_tag(vtmp):
    e(f"v_mov_b32 v{vtmp}, 0")
    e(f"buffer_load_dwordx2 v[{VTRAW}:{VTRAW+1}], v{vtmp}, s[{SRD_WS}:{SRD_WS+3}], 0 offen offset:{WS_GEN} sc1")


def finish_tag():
    e(f"v_readfirstlane_b32 s{S_TAG}, v{VTRAW}")
    e(f"v_readfirstlane_b32 s{S_TAG+1}, v{VTRAW+1}")
    e("s_nop 3")
    e(f"s_add_u32 s{S_TAG}, s{S_TAG}, 1")
    e(f"s_addc_u32 s{S_TAG+1}, s{S_TAG+1}, 0")
    e(f"s_and_b32 s{S_T0}, s{S_TAG}, 0x3ff")
    e(f"s_bfe_u32 s{S_T0+1}, s{S_TAG}, 0xa000a")
    e(f"s_bfe_u32 s{S_T0+2}, s{S_TAG}, 0xa0014")
    e(f"s_lshr_b64 s[{S_T0+4}:{S_T0+5}], s[{S_TAG}:{S_TAG+1}], 30")
    e(f"s_and_b32 s{S_T0+3}, s{S_T0+4}, 0x3ff")
    for i in range(4):
        e(f"v_mov_b32 v{VT+i}, s{S_T0+i}")


def tagq(dst, srcs):
    for i in range(4):
        e(f"v_bfi_b32 v{dst+i}, s{S_MASK}, v{VT+i}, v{srcs[i]}")


def poll(name, loads, quads, vx, sleep, maxit=100000, altbase=None):
    n = len(loads)

    def issue(base_map):
        for l, q in zip(loads, quads):
            r = base_map(q)
            e(l.replace("@", f"v[{r}:{r+3}]"))

    def check(base_map):
        first = True
        for q in quads:
            r = base_map(q)
            for i in range(4):
                if first:
                    e(f"v_xor_b32 v{vx}, v{r+i}, v{VT+i}")
                    first = False
                else:
                    e(f"v_xor_b32 v{vx+1}, v{r+i}, v{VT+i}")
                    e(f"v_or_b32 v{vx}, v{vx}, v{vx+1}")
        e(f"v_and_b32 v{vx}, 0x3ff, v{vx}")
        e(f"v_cmp_ne_u32 vcc, 0, v{vx}")

    A = lambda q: q
    e(f"s_mov_b32 s{S_T0+10}, {maxit}")
    usepp = OPT["pp"] or (OPT["ppq"] and name == "q")
    if not usepp or altbase is None:
        lab(f"L_poll_{name}")
        issue(A)
        with Guard():
            e("s_waitcnt vmcnt(0)")
        check(A)
        if_dry_goto(f"L_pdone_{name}")
        e(f"s_cmp_eq_u64 vcc, 0")
        e(f"s_cbranch_scc1 L_pdone_{name}")
        e(f"s_sub_u32 s{S_T0+10}, s{S_T0+10}, 1")
        e(f"s_cmp_eq_u32 s{S_T0+10}, 0")
        e(f"s_cbranch_scc1 L_pdone_{name}")
        if sleep:
            e(f"s_sleep {sleep}")
        e(f"s_branch L_poll_{name}")
        lab(f"L_pdone_{name}")
        return
    B = lambda q: altbase + (q - quads[0])
    issue(A)
    lab(f"L_poll_{name}")
    e(f"s_sleep {max(OPT['pp'], OPT['ppq'])}")
    issue(B)
    with Guard():
        e(f"s_waitcnt vmcnt({n})")
    check(A)
    if_dry_goto(f"L_pB_{name}")
    e(f"s_cmp_eq_u64 vcc, 0")
    e(f"s_cbranch_scc1 L_pdone_{name}")
    e(f"s_sleep {max(OPT['pp'], OPT['ppq'])}")
    issue(A)
    e(f"s_waitcnt vmcnt({n})")
    check(B)
    e(f"s_cmp_eq_u64 vcc, 0")
    e(f"s_cbranch_scc1 L_pB_{name}")
    e(f"s_sub_u32 s{S_T0+10}, s{S_T0+10}, 1")
    e(f"s_cmp_eq_u32 s{S_T0+10}, 0")
    e(f"s_cbranch_scc0 L_poll_{name}")
    lab(f"L_pB_{name}")
    for q in quads:
        for i in range(4):
            e(f"v_mov_b32 v{q+i}, v{B(q)+i}")
    lab(f"L_pdone_{name}")


def lds_signal(cnt, vtmp):
    e("s_waitcnt lgkmcnt(0)")
    e(f"v_mov_b32 v{vtmp}, {L_CNT+cnt}")
    e(f"v_mov_b32 v{vtmp+1}, 1")
    e("s_mov_b64 exec, 1")
    e(f"ds_add_u32 v{vtmp}, v{vtmp+1}")
    e("s_mov_b64 exec, -1")


def lds_wait(cnt, target, vtmp):
    n = nid()
    e(f"v_mov_b32 v{vtmp}, {L_CNT+cnt}")
    e(f"s_mov_b32 s{S_T0+11}, 4000000")
    lab(f"L_lw{n}")
    e(f"ds_read_b32 v{vtmp+1}, v{vtmp}")
    e("s_waitcnt lgkmcnt(0)")
    e(f"v_readfirstlane_b32 s{S_T0+12}, v{vtmp+1}")
    if_dry_goto(f"L_lwd{n}")
    e("s_nop 1")
    e(f"s_cmp_ge_u32 s{S_T0+12}, {target}")
    e(f"s_cbranch_scc1 L_lwd{n}")
    e(f"s_sub_u32 s{S_T0+11}, s{S_T0+11}, 1")
    e(f"s_cmp_eq_u32 s{S_T0+11}, 0")
    e(f"s_cbranch_scc1 L_lwd{n}")
    if OPT["sleep_l"]:
        e(f"s_sleep {OPT['sleep_l']}")
    e(f"s_branch L_lw{n}")
    lab(f"L_lwd{n}")


def bf16_round_pair(dst_pk, a, b, lo, hi):
    e(f"v_cvt_pk_bf16_f32 v{dst_pk}, v{a}, v{b}")
    e(f"v_lshlrev_b32 v{lo}, 16, v{dst_pk}")
    e(f"v_and_b32 v{hi}, 0xffff0000, v{dst_pk}")


def dpp_reduce(op, regs, ctls):
    for ctl in ctls:
        e("s_nop 1")
        for r in regs:
            e(f"{op}_dpp v{r}, v{r}, v{r} {ctl} row_mask:0xf bank_mask:0xf")


ROW16 = ["quad_perm:[1,0,3,2]", "quad_perm:[2,3,0,1]", "row_half_mirror", "row_mirror"]


def swap_reduce(op, regs, tmps, sws=("v_permlane16_swap_b32", "v_permlane32_swap_b32")):
    for sw in sws:
        for r, t in zip(regs, tmps):
            e(f"v_mov_b32 v{t}, v{r}")
        e("s_nop 1")
        for r, t in zip(regs, tmps):
            e(f"{sw} v{r}, v{t}")
        e("s_nop 1")
        for r, t in zip(regs, tmps):
            e(f"{op} v{r}, v{r}, v{t}")


def set_exec(lo, hi):
    e(f"s_mov_b32 exec_lo, {lo}")
    e(f"s_mov_b32 exec_hi, {hi}")


VW, VK, VV, VB, VACC = 16, 80, 112, 144, 152
VA, VA2 = 12, 224
VX = 152
TMP = 192


def lane_setup():
    e("v_and_b32 v1, 7, v0")
    e("v_bfe_u32 v2, v0, 3, 1")
    e("v_lshrrev_b32 v3, 4, v0")
    e("v_lshlrev_b32 v4, 5, v2")
    e("v_lshl_add_u32 v4, v3, 3, v4")
    e("v_and_b32 v5, 3, v0")
    e("v_bfe_u32 v6, v0, 2, 1")
    e("v_lshlrev_b32 v6, 5, v6")
    e("v_lshl_add_u32 v6, v3, 3, v6")
    e("v_lshlrev_b32 v11, 1, v6")
    e("v_lshl_add_u32 v6, v5, 10, v11")
    e("v_lshl_add_u32 v11, v5, 8, v11")
    e("v_lshlrev_b32 v10, 5, v1")
    e("v_lshl_add_u32 v10, v2, 10, v10")


def gather_quads(G, ACC=None):
    ACC = VACC if ACC is None else ACC
    for b in range(4):
        for hf in range(2):
            for i in range(4):
                e(f"v_mov_b32 v{G+8*b+4*hf+i}, v{ACC+4*(4*hf+i)+b}")


def tile128(A1, A2, piece_off_sreg, W=None, B=None, ACC=None, G=120):
    W = VW if W is None else W
    B = VB if B is None else B
    ACC = VACC if ACC is None else ACC
    tile_mm(W, A1, B, ACC)
    tile_mm(W + 32, A2, B, ACC, acc_in=True)
    e("v_lshlrev_b32 v1, 4, v0")
    e(f"v_lshrrev_b32 v{TMP+8}, 4, v0")
    e(f"v_add_u32 v1, s{piece_off_sreg}, v1")
    e(f"v_add_u32 v2, s{piece_off_sreg}, v10")
    e("s_nop 7")
    gather_quads(G, ACC)
    with Guard():
        set_exec("0xff0000ff", 0)
        for b in range(4):
            for hf in range(2):
                e(f"ds_write_b128 v2, v[{G+8*b+4*hf}:{G+8*b+4*hf+3}] offset:{256*b+16*hf}")
        e("s_mov_b64 exec, -1")
    e("s_waitcnt lgkmcnt(0)")
    e(f"ds_read_b128 v[{TMP}:{TMP+3}], v1")
    e(f"ds_read_b128 v[{TMP+4}:{TMP+7}], v1 offset:1024")
    e("s_waitcnt lgkmcnt(0)")
    for i in range(4):
        e(f"v_add_f32 v{TMP+i}, v{TMP+i}, v{TMP+4+i}")
    tagq(TMP, [TMP, TMP + 1, TMP + 2, TMP + 3])


hdr = open(f"cdna_kernels/{NAME}.s.ref").read().split("\n")
top = [l for l in hdr if l.startswith(";") and "@launch" not in l]
out.extend(top)
out.append(f"; @launch grid=(256,1,1) block=(512,1,1) lds={LDS_BYTES}")
out.append('.amdgcn_target "amdgcn-amd-amdhsa--gfx950"')
out.append(".text")
out.append(f".globl {NAME}_kernel")
out.append(".p2align 8")
out.append(f".type {NAME}_kernel,@function")
lab(f"{NAME}_kernel")

e("s_cmp_ge_u32 s2, 256")
e("s_cbranch_scc1 L_exit")
e("s_load_dwordx16 s[16:31], s[0:1], 0")
e("s_load_dwordx8 s[32:39], s[0:1], 64")
e("s_load_dwordx4 s[40:43], s[0:1], 96")
e("v_lshrrev_b32 v1, 6, v0")
e("v_and_b32 v0, 63, v0")
e(f"s_mov_b32 s{S_SELLO}, 0x05040100")
e(f"s_mov_b32 s{S_SELHI}, 0x07060302")
e(f"s_mov_b32 s{S_MASK}, 0x3ff")
e(f"s_mov_b32 s{S_DRY}, 0")
e(f"v_readfirstlane_b32 s{S_WAVE}, v1")
lane_setup()
e("s_waitcnt lgkmcnt(0)")
srd(SRD_X, 16, 4096)
srd(SRD_WS, 42, WS_END)
e(f"s_cmp_ge_u32 s{S_WAVE}, 4")
e("s_cbranch_scc1 L_comm")

srd(SRD_K, 18, 33554432)
srd(SRD_V, 20, 33554432)
stamp(0)
if OPT["dbg"]:
    e(f"s_cmp_lg_u32 s{S_WAVE}, 0")
    e("s_cbranch_scc1 L_dbg0")
    e("s_cmp_eq_u32 s2, 0")
    e("s_cselect_b32 s4, 0, 4")
    e("s_cmp_eq_u32 s2, 0")
    e("s_cbranch_scc1 L_dbg0b")
    e("s_cmp_eq_u32 s2, 255")
    e("s_cbranch_scc0 L_dbg0")
    lab("L_dbg0b")
    e("s_memrealtime s[98:99]")
    srd(SRD_M, 40, 256)
    e("s_waitcnt lgkmcnt(0)")
    e("v_mov_b32 v236, s4")
    e("v_mov_b32 v237, s98")
    e("s_mov_b64 exec, 1")
    e(f"buffer_store_dword v237, v236, s[{SRD_M}:{SRD_M+3}], 0 offen")
    e("s_mov_b64 exec, -1")
    lab("L_dbg0")
e("s_lshr_b32 s10, s2, 3")
e("s_lshl_b32 s10, s10, 12")
e("s_and_b32 s11, s2, 7")
e("s_lshl_b32 s11, s11, 7")
e("s_add_u32 s10, s10, s11")
e(f"s_lshl_b32 s11, s{S_WAVE}, 5")
e("s_add_u32 s10, s10, s11")
e("s_add_u32 s10, s10, 3072")
e("s_lshl_b32 s10, s10, 8")
e("s_add_u32 s11, s10, 4096")
e("v_and_b32 v8, 15, v0")
e("v_lshlrev_b32 v9, 4, v8")
e("v_lshlrev_b32 v8, 8, v8")
e("v_lshl_add_u32 v8, v3, 4, v8")
e("v_lshl_add_u32 v9, v3, 10, v9")
load_tag(2)
D = OPT["depth"]
seq = []
if OPT["kdma"]:
    e("v_and_b32 v12, 15, v0")
    for i4 in range(4):
        e(f"v_add_u32 v13, {4*i4}, v3")
        e(f"v_xor_b32 v14, v12, v13")
        e(f"v_lshlrev_b32 v14, 4, v14")
        e(f"v_lshl_add_u32 v{TMP+20+i4}, v13, 8, v14")
    e(f"s_lshl_b32 s12, s{S_WAVE}, 13")
    e(f"s_add_u32 s12, s12, {L_K}")
    for i in range(8):
        seq.append([f"s_add_u32 m0, s12, {1024*i}", "s_nop 0",
                    f"buffer_load_dwordx4 v{TMP+20+(i&3)}, s[{SRD_K}:{SRD_K+3}], s{10+(i>>2)} offen{NT} lds"])
    for c in range(4):
        e(f"v_add_u32 v13, {4*c}, v3")
        e(f"v_xor_b32 v13, v13, v12")
        e(f"v_lshlrev_b32 v13, 4, v13")
        e(f"v_lshl_add_u32 v13, v12, 8, v13")
        e(f"v_add_u32 v{228+c}, s12, v13")
else:
  for kb in range(2):
    for c in range(4):
        r = VK + 16 * kb + 4 * c
        seq.append(f"buffer_load_dwordx4 v[{r}:{r+3}], v8, s[{SRD_K}:{SRD_K+3}], s{10+kb} offen offset:{64*c}{NT}")
for i in range(8):
    r = VV + 4 * i
    so = 10 if i < 4 else 11
    seq.append(f"buffer_load_dwordx4 v[{r}:{r+3}], v9, s[{SRD_V}:{SRD_V+3}], s{so} offen offset:{256*(i&3)}{NT}")
gated = OPT["k_after"] or OPT["go_pub"]
for i, l in enumerate(seq):
    if gated and i == OPT["pre"]:
        e("s_barrier")
        lds_wait(C_GO, 1, TMP)
    if i == D and not gated:
        e("s_barrier")
    if i >= D:
        e(f"s_waitcnt vmcnt({D-1})")
    if (OPT["jit"] & 1) and i == min(15, OPT["jit_k"] + D):
        lds_signal(C_K, TMP)
    for l_ in (l if isinstance(l, list) else [l]):
        e(l_)
finish_tag()
if OPT["vstamp"]:
    e("s_waitcnt vmcnt(0)")
    stamp(7)
lab("L_secA")
lds_wait(C_Q, 2 if OPT["q2"] else 4, TMP)
stamp(3)
VQ = TMP
e("v_and_b32 v1, 3, v0")
e("v_lshlrev_b32 v1, 8, v1")
e("v_lshl_add_u32 v1, v3, 4, v1")
for c in range(4):
    e(f"ds_read_b128 v[{VQ+4*c}:{VQ+4*c+3}], v1 offset:{L_QS+64*c}")
with Guard():
    e("s_waitcnt vmcnt(8)")
if OPT["kdma"]:
    for kb in range(2):
        for c in range(4):
            r = VK + 16 * kb + 4 * c
            e(f"ds_read_b128 v[{r}:{r+3}], v{228+c} offset:{4096*kb}")
e("s_waitcnt lgkmcnt(0)")
stamp(4)
VS = VACC
for kb in range(2):
    for c in range(4):
        src2 = "0" if c == 0 else f"v[{VS+4*kb}:{VS+4*kb+3}]"
        e(f"v_mfma_f32_16x16x32_bf16 v[{VS+4*kb}:{VS+4*kb+3}], v[{VK+16*kb+4*c}:{VK+16*kb+4*c+3}], v[{VQ+4*c}:{VQ+4*c+3}], {src2}")
e("s_nop 7")
e("s_nop 1")
SC = TMP + 16
T = TMP + 24
for kb in range(2):
    for h2 in range(2):
        a = VS + 4 * kb + 2 * h2
        d = SC + 4 * kb + 2 * h2
        bf16_round_pair(T, a, a + 1, d, d + 1)
        e(f"v_mul_f32 v{d}, 0x3db504f3, v{d}")
        e(f"v_mul_f32 v{d+1}, 0x3db504f3, v{d+1}")
        bf16_round_pair(T, d, d + 1, d, d + 1)
MX = TMP + 26
LS = TMP + 27
e(f"v_max3_f32 v{MX}, v{SC}, v{SC+1}, v{SC+2}")
e(f"v_max3_f32 v{MX}, v{MX}, v{SC+3}, v{SC+4}")
e(f"v_max3_f32 v{MX}, v{MX}, v{SC+5}, v{SC+6}")
e(f"v_max_f32 v{MX}, v{MX}, v{SC+7}")
swap_reduce("v_max_f32", [MX], [T])
for i in range(8):
    e(f"v_sub_f32 v{SC+i}, v{SC+i}, v{MX}")
    e(f"v_mul_f32 v{SC+i}, 0x3fb8aa3b, v{SC+i}")
    e(f"v_exp_f32 v{SC+i}, v{SC+i}")
e("s_nop 0")
e(f"v_add_f32 v{LS}, v{SC}, v{SC+1}")
for i in range(2, 8):
    e(f"v_add_f32 v{LS}, v{LS}, v{SC+i}")
swap_reduce("v_add_f32", [LS], [T])
VP = TMP + 28
for i in range(4):
    e(f"v_cvt_pk_bf16_f32 v{VP+i}, v{SC+2*i}, v{SC+2*i+1}")
with Guard():
    e("s_waitcnt vmcnt(0)")
stamp(5)
tile_mm(VV, VP, VB, VACC)
e(f"s_lshl_b32 s4, s{S_WAVE}, 11")
e("v_lshlrev_b32 v1, 5, v0")
e("v_add_u32 v1, s4, v1")
e(f"s_lshl_b32 s4, s{S_WAVE}, 5")
e("v_lshlrev_b32 v2, 3, v0")
e("v_add_u32 v2, s4, v2")
e("s_nop 7")
gather_quads(VK)
with Guard():
    set_exec("0xffff", 0)
    for r in range(4):
        for hf in range(2):
            e(f"ds_write_b128 v1, v[{VK+8*r+4*hf}:{VK+8*r+4*hf+3}] offset:{L_OW+512*r+16*hf}")
    e("s_mov_b64 exec, 15")
    e(f"ds_write_b64 v2, v[{MX}:{MX+1}] offset:{L_ML}")
    e("s_mov_b64 exec, -1")
    lds_signal(C_O, TMP)
stamp(1)
e(f"s_lshl_b32 s4, s{S_WAVE}, 3")
e("v_mov_b32 v1, s4")
e(f"s_lshl_b32 s4, s{S_WAVE}, 9")
e("v_and_b32 v2, 31, v0")
e("v_lshlrev_b32 v2, 4, v2")
e("v_add_u32 v2, s4, v2")
e("s_lshr_b32 s4, s2, 3")
e("s_lshl_b32 s4, s4, 2")
e(f"s_add_u32 s4, s4, s{S_WAVE}")
e("s_and_b32 s5, s2, 7")
e("s_lshl_b32 s6, s4, 12")
e("s_lshl_b32 s7, s5, 7")
e("s_add_u32 s6, s6, s7")
e(f"s_add_u32 s6, s6, {WS_APO}")
e("s_lshl_b32 s4, s4, 3")
e("s_add_u32 s4, s4, s5")
e(f"s_lshl_b32 s4, s4, {7 if OPT['apm128'] else 4}")
e(f"s_add_u32 s4, s4, {WS_APM}")
e("v_and_b32 v7, 7, v0")
e("v_lshlrev_b32 v7, 4, v7")
e(f"v_lshrrev_b32 v{TMP+12}, 3, v0")
e(f"v_lshl_add_u32 v7, v{TMP+12}, 10, v7")
lds_wait(C_O, 4, TMP)
stamp(2)
R = VACC
for w in range(4):
    e(f"ds_read_b64 v[{R+2*w}:{R+2*w+1}], v1 offset:{L_ML+32*w}")
for w in range(4):
    e(f"ds_read_b128 v[{R+8+4*w}:{R+11+4*w}], v2 offset:{L_OW+2048*w}")
e("s_waitcnt lgkmcnt(0)")
M_, L_ = R + 24, R + 25
e(f"v_max3_f32 v{M_}, v{R}, v{R+2}, v{R+4}")
e(f"v_max_f32 v{M_}, v{M_}, v{R+6}")
F_ = TMP
for w in range(4):
    e(f"v_sub_f32 v{F_+w}, v{R+2*w}, v{M_}")
    e(f"v_mul_f32 v{F_+w}, 0x3fb8aa3b, v{F_+w}")
    e(f"v_exp_f32 v{F_+w}, v{F_+w}")
e("s_nop 0")
O_ = TMP + 4
e(f"v_mul_f32 v{L_}, v{F_}, v{R+1}")
for i in range(4):
    e(f"v_mul_f32 v{O_+i}, v{F_}, v{R+8+i}")
for w in range(1, 4):
    e(f"v_fmac_f32 v{L_}, v{F_+w}, v{R+2*w+1}")
    for i in range(4):
        e(f"v_fmac_f32 v{O_+i}, v{F_+w}, v{R+8+4*w+i}")
tagq(O_, [O_, O_ + 1, O_ + 2, O_ + 3])
e(f"v_mov_b32 v{R+26}, 0")
e(f"v_mov_b32 v{R+27}, 0")
tagq(TMP + 8, [M_, L_, R + 26, R + 27])
e(f"v_mov_b32 v1, 0")
with Guard():
    set_exec("-1", 0)
    e(f"buffer_store_dwordx4 v[{O_}:{O_+3}], v7, s[{SRD_WS}:{SRD_WS+3}], s6 offen sc1")
    e("s_mov_b64 exec, 1")
    e(f"buffer_store_dwordx4 v[{TMP+8}:{TMP+11}], v1, s[{SRD_WS}:{SRD_WS+3}], s4 offen sc1")
    e("s_mov_b64 exec, -1")
stamp(6)
if OPT["adelay"]:
    if OPT["adelay"] == 1:
        e("s_waitcnt vmcnt(0)")
    lds_signal(C_PA, TMP + 16)
if_dry_goto("L_dry_done_data")
lab("L_exit_d")
dump_stamps(False)
e("s_endpgm")

lab("L_comm")
e("s_setprio 2")
e(f"s_sub_u32 s{S_WAVE}, s{S_WAVE}, 4")
stamp(6, True)
load_tag(7)
e("s_mov_b32 s8, 0")
e(f"s_cmp_ge_u32 s{S_WAVE}, 2")
e("s_cbranch_scc1 L_p1_noload")
e(f"s_cmp_eq_u32 s{S_WAVE}, 1")
e("s_cbranch_scc1 L_p1_w1")
srd(SRD_W1, 22, 4194304)
e("s_mov_b32 s5, 8192")
e("s_lshr_b32 s6, s2, 6")
e("s_lshl_b32 s6, s6, 7")
e("s_and_b32 s7, s2, 63")
e("s_lshl_b32 s7, s7, 7")
e("s_mov_b32 s8, 1")
e("s_branch L_p1_go")
lab("L_p1_w1")
e("s_cmp_ge_u32 s2, 112")
e("s_cbranch_scc1 L_p1_noload")
srd(SRD_W1, 28, 512 * 1792 * 2)
e("s_mov_b32 s5, 3584")
e("s_and_b32 s6, s2, 3")
e("s_lshl_b32 s6, s6, 7")
e("s_lshr_b32 s7, s2, 2")
e("s_lshl_b32 s7, s7, 7")
e("s_mov_b32 s8, 2")
if OPT["w1_late"]:
    e("s_barrier")
    lds_wait(C_GO, 1, TMP)
lab("L_p1_go")
e("v_mul_lo_u32 v7, s5, v4")
e("v_lshl_add_u32 v7, v1, 4, v7")
e("s_mul_i32 s9, s6, s5")
e("s_add_u32 s9, s9, s7")
e("s_lshl_b32 s12, s6, 1")
e("s_mul_i32 s13, s5, 56")
for i in range(16):
    e(f"buffer_load_dwordx4 v[{VW+4*i}:{VW+4*i+3}], v7, s[{SRD_W1}:{SRD_W1+3}], s9 offen{NT}")
    if i < 15:
        e("s_add_u32 s9, s9, s5")
    if i == 7:
        e("s_add_u32 s9, s9, s13")
XA, XA2, XR = 96, 100, 104
e(f"buffer_load_dwordx4 v[{XA}:{XA+3}], v6, s[{SRD_X}:{SRD_X+3}], s12 offen")
e(f"buffer_load_dwordx4 v[{XA2}:{XA2+3}], v6, s[{SRD_X}:{SRD_X+3}], s12 offen offset:128")
e("v_lshlrev_b32 v1, 4, v0")
for b in range(4):
    e(f"buffer_load_dwordx4 v[{XR+4*b}:{XR+4*b+3}], v1, s[{SRD_X}:{SRD_X+3}], 0 offen offset:{1024*b}")
lab("L_p1_noload")
e(f"s_cmp_lg_u32 s{S_WAVE}, 0")
e("s_cbranch_scc1 L_c_noz")
e("v_mov_b32 v1, 0")
e("v_lshlrev_b32 v7, 2, v0")
e("s_mov_b64 exec, 0xffff")
e(f"ds_write_b32 v7, v1 offset:{L_CNT}")
e("s_mov_b64 exec, -1")
e("s_waitcnt lgkmcnt(0)")
lab("L_c_noz")
if OPT["w1_late"]:
    e("s_cmp_eq_u32 s8, 2")
    e("s_cbranch_scc1 L_skipb0")
e("s_barrier")
lab("L_skipb0")
e(f"s_lshl_b32 s15, s{S_WAVE}, 11")
e(f"s_add_u32 s15, s15, {L_PIECE + 4096}")
if OPT["dry"]:
    e(f"s_mov_b32 s{S_DRY}, 1")
    e("s_cmp_lg_u32 s8, 0")
    e("s_cbranch_scc1 L_secP1")
    e(f"s_cmp_eq_u32 s{S_WAVE}, 2")
    e("s_cbranch_scc1 L_secA")
    e("s_branch L_secQ")
    lab("L_dry_done_data")
    lab("L_dry_done_comm")
    e(f"s_mov_b32 s{S_DRY}, 0")
    lane_setup()
lab("L_real_start")
if OPT["k_after"]:
    e(f"s_cmp_eq_u32 s{S_WAVE}, 0")
    e("s_cbranch_scc0 L_nogo")
    e(f"s_waitcnt vmcnt({22-OPT['k_after']})")
    lds_signal(C_GO, TMP)
    lab("L_nogo")
e("s_waitcnt vmcnt(0) lgkmcnt(0)")
stamp(7, True)
finish_tag()
e("s_cmp_eq_u32 s8, 0")
e("s_cbranch_scc1 L_secQ")
lab("L_secP1")
for d in range(4):
    e(f"v_mov_b32 v{VA+d}, v{XA+d}")
    e(f"v_mov_b32 v{VA2+d}, v{XA2+d}")
e("s_cmp_eq_u32 s8, 1")
e("s_cbranch_scc1 L_p1_mm")
SUM = TMP
T = TMP + 4
for b in range(4):
    e(f"v_lshlrev_b32 v{T}, 16, v{XR+4*b}")
    e(f"v_and_b32 v{T+1}, 0xffff0000, v{XR+4*b}")
    e(f"v_add_f32 v{SUM+b}, v{T}, v{T+1}")
    for d in range(1, 4):
        e(f"v_lshlrev_b32 v{T}, 16, v{XR+4*b+d}")
        e(f"v_and_b32 v{T+1}, 0xffff0000, v{XR+4*b+d}")
        e(f"v_add_f32 v{SUM+b}, v{SUM+b}, v{T}")
        e(f"v_add_f32 v{SUM+b}, v{SUM+b}, v{T+1}")
dpp_reduce("v_add_f32", [SUM + b for b in range(4)], ROW16)
swap_reduce("v_add_f32", [SUM + b for b in range(4)], [T + b for b in range(4)])
for b in range(4):
    e(f"v_mul_f32 v{SUM+b}, 0x3b000000, v{SUM+b}")
SQ = TMP + 12
for b in range(4):
    for d in range(4):
        e(f"v_lshlrev_b32 v{T}, 16, v{XR+4*b+d}")
        e(f"v_and_b32 v{T+1}, 0xffff0000, v{XR+4*b+d}")
        e(f"v_sub_f32 v{T}, v{T}, v{SUM+b}")
        e(f"v_sub_f32 v{T+1}, v{T+1}, v{SUM+b}")
        if d == 0:
            e(f"v_mul_f32 v{SQ+b}, v{T}, v{T}")
        else:
            e(f"v_fmac_f32 v{SQ+b}, v{T}, v{T}")
        e(f"v_fmac_f32 v{SQ+b}, v{T+1}, v{T+1}")
dpp_reduce("v_add_f32", [SQ + b for b in range(4)], ROW16)
swap_reduce("v_add_f32", [SQ + b for b in range(4)], [T + b for b in range(4)])
for b in range(4):
    e(f"v_mul_f32 v{SQ+b}, 0x3b000000, v{SQ+b}")
MEAN, DEN, RCP = TMP + 16, TMP + 17, TMP + 18
e(f"v_mov_b32 v{MEAN}, v{SUM}")
e(f"v_mov_b32 v{DEN}, v{SQ}")
for b in range(1, 4):
    e(f"v_cmp_eq_u32 vcc, {b}, v5")
    e("s_nop 1")
    e(f"v_cndmask_b32 v{MEAN}, v{MEAN}, v{SUM+b}, vcc")
    e(f"v_cndmask_b32 v{DEN}, v{DEN}, v{SQ+b}, vcc")
bf16_round_pair(T, MEAN, DEN, MEAN, DEN)
e(f"v_add_f32 v{DEN}, 0x3727c5ac, v{DEN}")
e(f"v_cvt_pk_bf16_f32 v{T}, v{DEN}, v{DEN}")
e(f"v_lshlrev_b32 v{DEN}, 16, v{T}")
e(f"v_sqrt_f32 v{DEN}, v{DEN}")
e("s_nop 0")
e(f"v_cvt_pk_bf16_f32 v{T}, v{DEN}, v{DEN}")
e(f"v_lshlrev_b32 v{DEN}, 16, v{T}")
e(f"v_rcp_f32 v{RCP}, v{DEN}")
e("s_nop 0")
for AA in (VA, VA2):
    for d in range(4):
        a0, a1 = T + 2, T + 3
        e(f"v_lshlrev_b32 v{a0}, 16, v{AA+d}")
        e(f"v_and_b32 v{a1}, 0xffff0000, v{AA+d}")
        e(f"v_sub_f32 v{a0}, v{a0}, v{MEAN}")
        e(f"v_sub_f32 v{a1}, v{a1}, v{MEAN}")
        bf16_round_pair(T, a0, a1, a0, a1)
        for a in (a0, a1):
            e(f"v_mul_f32 v{T+4}, v{a}, v{RCP}")
            e(f"v_fma_f32 v{T+5}, -v{T+4}, v{DEN}, v{a}")
            e(f"v_fma_f32 v{a}, v{T+5}, v{RCP}, v{T+4}")
        e(f"v_cvt_pk_bf16_f32 v{AA+d}, v{a0}, v{a1}")
lab("L_p1_mm")
tile128(VA, VA2, 15)
e("v_and_b32 v1, 15, v0")
e("s_cmp_eq_u32 s8, 1")
e("s_cbranch_scc1 L_pub_q")
e("s_and_b32 s4, s2, 3")
e("s_mul_i32 s4, s4, 1792")
e("s_lshr_b32 s5, s2, 2")
e("s_lshl_b32 s5, s5, 4")
e("s_add_u32 s4, s4, s5")
e("s_lshl_b32 s4, s4, 4")
e(f"s_add_u32 s4, s4, {WS_HP}")
e(f"v_mul_u32_u24 v2, 448, v{TMP+8}")
e("v_add_u32 v1, v2, v1")
e("s_branch L_pub_go")
lab("L_pub_q")
e("s_lshr_b32 s4, s2, 6")
e("s_lshl_b32 s4, s4, 12")
e("s_and_b32 s5, s2, 63")
e("s_lshl_b32 s5, s5, 4")
e("s_add_u32 s4, s4, s5")
e("s_lshl_b32 s4, s4, 4")
e(f"s_add_u32 s4, s4, {WS_QP}")
e(f"v_lshl_add_u32 v1, v{TMP+8}, 10, v1")
lab("L_pub_go")
e("v_lshlrev_b32 v1, 4, v1")
if_dry_goto("L_dry_done_comm")
e(f"buffer_store_dwordx4 v[{TMP}:{TMP+3}], v1, s[{SRD_WS}:{SRD_WS+3}], s4 offen sc1")
if OPT["go_pub"]:
    e("s_cmp_eq_u32 s8, 1")
    e("s_cbranch_scc0 L_nogo2")
    lds_signal(C_GO, TMP + 10)
    stamp(0, True)
    lab("L_nogo2")
else:
    stamp(0, True)
if OPT["ackw"]:
    e("s_waitcnt vmcnt(0)")
if OPT["ackst"]:
    e("s_waitcnt vmcnt(0)")
    stamp(7, True)
if OPT["qdelay"]:
    e("s_cmp_eq_u32 s8, 1")
    e("s_cbranch_scc0 L_nop2")
    lds_signal(C_P, TMP + 10)
    lab("L_nop2")
lab("L_secQ")
e("v_lshlrev_b32 v3, 4, v0")
if OPT["q2"]:
    assert not OPT["dry"]
    e(f"s_lshl_b32 s4, s{S_WAVE}, 8")
    e("v_and_b32 v5, 31, v0")
    e("v_lshlrev_b32 v5, 3, v5")
    e("v_add_u32 v5, s4, v5")
    e(f"s_cmp_lt_u32 s{S_WAVE}, 2")
    e("s_cbranch_scc1 L_q_skip")
    e("s_lshr_b32 s4, s2, 6")
    e("s_lshl_b32 s4, s4, 10")
    e("s_lshr_b32 s5, s2, 3")
    e("s_and_b32 s5, s5, 7")
    e("s_lshl_b32 s5, s5, 7")
    e("s_add_u32 s4, s4, s5")
    e(f"s_sub_u32 s5, s{S_WAVE}, 2")
    e("s_lshl_b32 s5, s5, 6")
    e("s_add_u32 s4, s4, s5")
    e("s_lshl_b32 s4, s4, 4")
    e(f"s_add_u32 s4, s4, {WS_QP}")
    for k in range(1, 4):
        e(f"s_add_u32 s{4+k}, s4, {k*4*1024*16}")
    if OPT["qdelay"]:
        lds_wait(C_P, 1, 32)
        if OPT["qdelay"] > 1:
            e(f"s_sleep {OPT['qdelay']}")
    poll("q", [f"buffer_load_dwordx4 @, v3, s[{SRD_WS}:{SRD_WS+3}], s{4+k} offen sc1" for k in range(4)],
         [16, 20, 24, 28], 6, OPT["sleep_q"])
    for i in range(4):
        e(f"v_add_f32 v{32+i}, v{16+i}, v{20+i}")
        e(f"v_add_f32 v{36+i}, v{24+i}, v{28+i}")
    for i in range(4):
        e(f"v_add_f32 v{32+i}, v{32+i}, v{36+i}")
    e("v_cvt_pk_bf16_f32 v32, v32, v33")
    e("v_cvt_pk_bf16_f32 v33, v34, v35")
    e(f"s_sub_u32 s4, s{S_WAVE}, 2")
    e("s_lshl_b32 s4, s4, 9")
    e("v_lshlrev_b32 v4, 3, v0")
    e("v_add_u32 v4, s4, v4")
    e(f"ds_write_b64 v4, v[32:33] offset:{L_QS}")
    lds_signal(C_Q, 6)
    lab("L_q_skip")
else:
    e("s_lshr_b32 s4, s2, 6")
    e("s_lshl_b32 s4, s4, 10")
    e("s_lshr_b32 s5, s2, 3")
    e("s_and_b32 s5, s5, 7")
    e("s_lshl_b32 s5, s5, 7")
    e("s_add_u32 s4, s4, s5")
    e(f"s_lshl_b32 s5, s{S_WAVE}, 5")
    e("s_add_u32 s4, s4, s5")
    e("s_lshl_b32 s4, s4, 4")
    e(f"s_add_u32 s4, s4, {WS_QP}")
    e(f"s_add_u32 s5, s4, {4*1024*16}")
    e("v_and_b32 v4, 31, v0")
    e("v_lshlrev_b32 v4, 4, v4")
    e("v_lshrrev_b32 v5, 5, v0")
    e("v_lshl_add_u32 v4, v5, 17, v4")
    if OPT["qdelay"]:
        lds_wait(C_P, 1, 6)
        if OPT["qdelay"] > 1:
            e(f"s_sleep {OPT['qdelay']}")
    if OPT["jit"] & 1:
        lds_wait(C_K, 4, 6)
    poll("q", [f"buffer_load_dwordx4 @, v4, s[{SRD_WS}:{SRD_WS+3}], s{4+k} offen sc1" for k in range(2)],
         [16, 20], 6, OPT["sleep_q"], altbase=168)
    for i in range(4):
        e(f"v_add_f32 v{24+i}, v{16+i}, v{20+i}")
    swap_reduce("v_add_f32", [24, 25, 26, 27], [28, 29, 30, 31], ("v_permlane32_swap_b32",))
    e("v_cvt_pk_bf16_f32 v24, v24, v25")
    e("v_cvt_pk_bf16_f32 v25, v26, v27")
    e(f"s_lshl_b32 s4, s{S_WAVE}, 8")
    e("v_and_b32 v5, 31, v0")
    e("v_lshlrev_b32 v5, 3, v5")
    e("v_add_u32 v5, s4, v5")
    with Guard():
        e(f"ds_write_b64 v5, v[24:25] offset:{L_QS}")
        lds_signal(C_Q, 6)

stamp(1, True)
W3, B3, ACC3 = 96, 160, 16
e("s_mov_b32 s14, 0")
with Guard():
    e("v_lshrrev_b32 v9, 4, v0")
    e(f"s_cmp_lt_u32 s{S_WAVE}, 2")
    e("s_cbranch_scc1 L_nowo0")
    srd(SRD_W3, 24, 4194304)
    e("s_lshr_b32 s6, s2, 1")
    e("s_lshl_b32 s9, s6, 15")
    e("s_and_b32 s7, s2, 1")
    e("s_lshl_b32 s7, s7, 9")
    e("s_add_u32 s9, s9, s7")
    e(f"s_sub_u32 s7, s{S_WAVE}, 2")
    e("s_lshl_b32 s7, s7, 8")
    e("s_add_u32 s9, s9, s7")
    e("v_and_b32 v7, 15, v0")
    e("v_lshlrev_b32 v7, 4, v7")
    e("v_lshl_add_u32 v7, v9, 13, v7")
    for i in range(8):
        e(f"buffer_load_dwordx4 v[{W3+4*i}:{W3+4*i+3}], v7, s[{SRD_W3}:{SRD_W3+3}], s9 offen offset:{1024*(i&3)}{NT}")
        if i == 3:
            e("s_add_u32 s9, s9, 4096")
    e("s_branch L_now2")
    lab("L_nowo0")
    e(f"s_cmp_eq_u32 s{S_WAVE}, 1")
    e("s_cbranch_scc0 L_now2")
    e("s_cmp_lt_u32 s2, 112")
    e("s_cbranch_scc1 L_now2")
    e("s_cmp_ge_u32 s2, 224")
    e("s_cbranch_scc1 L_now2")
    e("s_mov_b32 s14, 1")
    srd(SRD_W3, 32, 1792 * 512 * 2)
    e("s_sub_u32 s9, s2, 112")
    e("s_lshr_b32 s6, s9, 3")
    e("s_lshl_b32 s6, s6, 17")
    e("s_and_b32 s7, s9, 7")
    e("s_lshl_b32 s7, s7, 7")
    e("s_add_u32 s9, s6, s7")
    e("v_bfe_u32 v7, v0, 3, 1")
    e("v_lshlrev_b32 v7, 5, v7")
    e("v_lshl_add_u32 v9, v9, 3, v7")
    e("v_and_b32 v7, 7, v0")
    e("v_lshlrev_b32 v7, 4, v7")
    e("v_lshl_add_u32 v7, v9, 10, v7")
    for i in range(16):
        e(f"buffer_load_dwordx4 v[{W3+4*i}:{W3+4*i+3}], v7, s[{SRD_W3}:{SRD_W3+3}], s9 offen offset:{1024*(i&3)}{NT}")
        if i == 7:
            e(f"s_add_u32 s9, s9, {4096 + 56*1024}")
        elif i & 3 == 3 and i < 15:
            e("s_add_u32 s9, s9, 4096")
    lab("L_now2")
e("s_lshr_b32 s4, s2, 4")
e("s_lshl_b32 s4, s4, 7")
e("s_and_b32 s5, s2, 15")
e("s_lshl_b32 s5, s5, 3")
e("s_add_u32 s4, s4, s5")
e("s_lshl_b32 s4, s4, 4")
e(f"s_add_u32 s4, s4, {WS_OP}")
e(f"s_lshl_b32 s5, s{S_WAVE}, 18")
e("s_add_u32 s86, s4, s5")
for k in range(1, 4):
    e(f"s_add_u32 s{86+k}, s86, {k*65536}")
e(f"s_lshl_b32 s5, s{S_WAVE}, 15")
e("s_add_u32 s5, s4, s5")
e(f"s_add_u32 s85, s5, {128*8192}")
e("v_and_b32 v60, 7, v0")
e("v_lshlrev_b32 v60, 4, v60")
e("v_lshrrev_b32 v61, 3, v0")
e("v_lshl_add_u32 v60, v61, 13, v60")
e("v_and_b32 v62, 3, v61")
e(f"s_lshl_b32 s5, s{S_WAVE}, 2")
e("s_sub_u32 s5, 13, s5")
e("v_min_u32 v62, s5, v62")
e("v_and_b32 v63, 7, v0")
e("v_lshlrev_b32 v63, 4, v63")
e("v_lshl_add_u32 v62, v62, 13, v63")
o_loads = [f"buffer_load_dwordx4 v[{32+4*k}:{35+4*k}], v60, s[{SRD_WS}:{SRD_WS+3}], s{86+k} offen sc1" for k in range(4)]
o_loads.append(f"buffer_load_dwordx4 v[48:51], v62, s[{SRD_WS}:{SRD_WS+3}], s85 offen sc1")
e("s_cmp_ge_u32 s2, 64")
e("s_cbranch_scc1 L_c_nowarm")
with Guard():
    if not (OPT["jit"] & 4):
        for l in o_loads:
            e(l)
    srd(SRD_M, 36, 1024)
    e(f"buffer_load_dwordx4 v[64:67], v3, s[{SRD_M}:{SRD_M+3}], 0 offen")
    e("s_lshr_b32 s4, s2, 4")
    e("s_lshl_b32 s4, s4, 10")
    e(f"buffer_load_dwordx4 v[68:71], v3, s[{SRD_X}:{SRD_X+3}], s4 offen")
    srd(SRD_OUT, 34, 1024)
    e("v_and_b32 v6, 31, v0")
    e("v_lshlrev_b32 v6, 1, v6")
    e("s_and_b32 s4, s2, 15")
    e("s_lshl_b32 s4, s4, 6")
    e(f"buffer_load_ushort v72, v6, s[{SRD_OUT}:{SRD_OUT+3}], s4 offen")
lab("L_c_nowarm")
if_dry_goto("L_secAG")
e("s_cmp_lt_u32 s2, 112")
e("s_cbranch_scc1 L_secAG")
e("s_cmp_ge_u32 s2, 224")
e("s_cbranch_scc1 L_secAG")
lab("L_secH")
e("s_sub_u32 s9, s2, 112")
e("s_lshr_b32 s9, s9, 3")
e("s_min_u32 s9, s9, 13")
e(f"s_mul_i32 s4, s{S_WAVE}, 448")
e("s_lshl_b32 s5, s9, 5")
e("s_add_u32 s4, s4, s5")
e("s_lshl_b32 s4, s4, 4")
e(f"s_add_u32 s4, s4, {WS_HP}")
e(f"s_add_u32 s5, s4, {4*448*16}")
srd(SRD_M, 30, 3584)
e("s_lshl_b32 s9, s9, 8")
e("v_and_b32 v6, 31, v0")
e("v_lshlrev_b32 v4, 4, v6")
e("v_lshlrev_b32 v6, 3, v6")
e(f"buffer_load_dwordx2 v[80:81], v6, s[{SRD_M}:{SRD_M+3}], s9 offen")
e("v_lshrrev_b32 v7, 5, v0")
e(f"s_mov_b32 s6, {2*4*448*16}")
e("v_mul_lo_u32 v7, s6, v7")
e("v_add_u32 v4, v7, v4")
poll("h", [f"buffer_load_dwordx4 @, v4, s[{SRD_WS}:{SRD_WS+3}], s{4+k} offen sc1" for k in range(2)],
     [16, 20], 6, OPT["sleep_q"])
for i in range(4):
    e(f"v_add_f32 v{24+i}, v{16+i}, v{20+i}")
swap_reduce("v_add_f32", [24, 25, 26, 27], [28, 29, 30, 31], ("v_permlane32_swap_b32",))
for p in range(2):
    a, b_ = 24 + 2 * p, 25 + 2 * p
    bf16_round_pair(28, a, b_, a, b_)
    e(f"v_lshlrev_b32 v28, 16, v{80+p}")
    e(f"v_and_b32 v29, 0xffff0000, v{80+p}")
    e(f"v_add_f32 v{a}, v{a}, v28")
    e(f"v_add_f32 v{b_}, v{b_}, v29")
    bf16_round_pair(28, a, b_, a, b_)
e("v_mov_b32 v31, 0x3d372713")
for r in (24, 25, 26, 27):
    e(f"v_mul_f32 v30, v{r}, v{r}")
    e(f"v_mul_f32 v30, v30, v{r}")
    e(f"v_fma_f32 v30, v30, v31, v{r}")
    e(f"v_mul_f32 v30, 0x40135761, v30")
    e(f"v_exp_f32 v30, v30")
    e("s_nop 0")
    e(f"v_add_f32 v30, 1.0, v30")
    e(f"v_rcp_f32 v30, v30")
    e("s_nop 0")
    e(f"v_fma_f32 v30, v30, -2.0, 2.0")
    e(f"v_mul_f32 v30, 0.5, v30")
    e(f"v_mul_f32 v{r}, v{r}, v30")
e("v_cvt_pk_bf16_f32 v24, v24, v25")
e("v_cvt_pk_bf16_f32 v25, v26, v27")
with Guard():
    e(f"ds_write_b64 v5, v[24:25] offset:{L_HA}")
    lds_signal(C_H, 6)
    e("s_cmp_eq_u32 s14, 1")
    e("s_cbranch_scc0 L_secAG")
lds_wait(C_H, 4, 6)
e(f"ds_read_b128 v[{VA}:{VA+3}], v11 offset:{L_HA}")
e(f"ds_read_b128 v[{VA2}:{VA2+3}], v11 offset:{L_HA+128}")
with Guard():
    e("s_waitcnt vmcnt(0)")
e("s_waitcnt lgkmcnt(0)")
tile128(VA, VA2, 15, W=W3, B=B3, ACC=ACC3, G=W3)
e("s_sub_u32 s5, s2, 112")
e("s_lshr_b32 s4, s5, 3")
e("s_add_u32 s4, s4, 128")
e("s_lshl_b32 s4, s4, 9")
e("s_and_b32 s5, s5, 7")
e("s_lshl_b32 s5, s5, 4")
e("s_add_u32 s4, s4, s5")
e("s_lshl_b32 s4, s4, 4")
e(f"s_add_u32 s4, s4, {WS_OP}")
e("v_and_b32 v1, 15, v0")
e(f"v_lshl_add_u32 v1, v{TMP+8}, 7, v1")
e("v_lshlrev_b32 v1, 4, v1")
if_dry_goto("L_dry_done_comm")
e(f"buffer_store_dwordx4 v[{TMP}:{TMP+3}], v1, s[{SRD_WS}:{SRD_WS+3}], s4 offen sc1")
lab("L_secAG")
e(f"s_lshl_b32 s4, s{S_WAVE}, 5")
e("s_lshr_b32 s5, s2, 3")
e("s_add_u32 s4, s4, s5")
e("s_lshl_b32 s6, s4, 2")
e("s_bfe_u32 s5, s2, 0x20001")
e("s_add_u32 s6, s6, s5")
e("s_lshl_b32 s6, s6, 10")
e(f"s_add_u32 s6, s6, {WS_APO}")
e(f"s_lshl_b32 s4, s4, {10 if OPT['apm128'] else 7}")
e(f"s_add_u32 s4, s4, {WS_APM}")
e(f"v_lshlrev_b32 v4, {7 if OPT['apm128'] else 4}, v61")
if OPT["adelay"]:
    lds_wait(C_PA, 4, 6)
if OPT["jit"] & 2:
    lds_wait(C_O, 4, 6)
poll("a", [f"buffer_load_dwordx4 @, v3, s[{SRD_WS}:{SRD_WS+3}], s6 offen sc1",
           f"buffer_load_dwordx4 @, v4, s[{SRD_WS}:{SRD_WS+3}], s4 offen sc1"], [16, 20], 6, OPT["sleep_t"], altbase=168)
stamp(3, True)
e("v_mov_b32 v24, v20")
dpp_reduce("v_max_f32", [24], ["row_ror:8"])
swap_reduce("v_max_f32", [24], [25])
e("v_sub_f32 v25, v20, v24")
e("v_mul_f32 v25, 0x3fb8aa3b, v25")
e("v_exp_f32 v25, v25")
e("s_nop 0")
e("v_mul_f32 v26, v25, v21")
for i in range(4):
    e(f"v_mul_f32 v{84+i}, v25, v{16+i}")
dpp_reduce("v_add_f32", [26, 84, 85, 86, 87], ["row_ror:8"])
swap_reduce("v_add_f32", [26, 84, 85, 86, 87], [27, 28, 29, 30, 31])
e("v_rcp_f32 v27, v26")
e("s_nop 0")
e("v_fma_f32 v28, -v26, v27, 2.0")
e("v_mul_f32 v27, v27, v28")
for i in range(4):
    e(f"v_mul_f32 v{84+i}, v27, v{84+i}")
e("v_cvt_pk_bf16_f32 v84, v84, v85")
e("v_cvt_pk_bf16_f32 v85, v86, v87")
e(f"s_lshl_b32 s4, s{S_WAVE}, 6")
e("v_lshlrev_b32 v4, 3, v0")
e("v_add_u32 v4, s4, v4")
with Guard():
    e("s_mov_b64 exec, 0xff")
    e(f"ds_write_b64 v4, v[84:85] offset:{L_OA}")
    e("s_mov_b64 exec, -1")
    lds_signal(C_A, 6)
stamp(4, True)
if_dry_goto("L_secC")
e(f"s_cmp_lt_u32 s{S_WAVE}, 2")
e("s_cbranch_scc1 L_secC_done")
lab("L_secC")
e("s_lshr_b32 s4, s2, 1")
e("s_lshl_b32 s4, s4, 9")
e("s_and_b32 s5, s2, 1")
e("s_lshl_b32 s5, s5, 6")
e("s_add_u32 s4, s4, s5")
e(f"s_sub_u32 s5, s{S_WAVE}, 2")
e("s_lshl_b32 s5, s5, 5")
e("s_add_u32 s4, s4, s5")
e("s_lshl_b32 s4, s4, 4")
e(f"s_add_u32 s4, s4, {WS_OP}")
e("s_add_u32 s5, s4, 4096")
e("v_lshlrev_b32 v2, 5, v0")
e("v_and_b32 v1, 3, v0")
e("v_lshlrev_b32 v1, 6, v1")
e("v_lshrrev_b32 v9, 4, v0")
e("v_lshl_add_u32 v1, v9, 4, v1")
lds_wait(C_A, 4, 6)
e(f"ds_read_b128 v[{VA}:{VA+3}], v1 offset:{L_OA}")
with Guard():
    e("s_waitcnt vmcnt(0)")
e("s_waitcnt lgkmcnt(0)")
tile_mm(W3, VA, B3, ACC3)
e("s_nop 7")
e("s_nop 1")
if not OPT["opfull"]:
    for b in range(4):
        for hf in range(2):
            d = TMP + 8 * b + 4 * hf
            tagq(d, [ACC3 + 4 * (4 * hf + i) + b for i in range(4)])
    with Guard():
        set_exec("0xffff", 0)
        for b in range(4):
            for hf in range(2):
                d = TMP + 8 * b + 4 * hf
                e(f"buffer_store_dwordx4 v[{d}:{d+3}], v2, s[{SRD_WS}:{SRD_WS+3}], s{4+(b>>1)} offen offset:{2048*(b&1)+16*hf} sc1")
        e("s_mov_b64 exec, -1")
else:
    e("v_and_b32 v6, 16, v0")
    e("v_cmp_ne_u32 s[90:91], 0, v6")
    e("v_cmp_lt_u32 s[92:93], 31, v0")
    e("s_nop 1")
    for k in range(2):
        for i in range(4):
            t0, t1 = TMP + 16, TMP + 17
            e(f"v_cndmask_b32 v{t0}, v{ACC3+4*i+k}, v{ACC3+4*(4+i)+k}, s[90:91]")
            e(f"v_cndmask_b32 v{t1}, v{ACC3+4*i+2+k}, v{ACC3+4*(4+i)+2+k}, s[90:91]")
            e(f"v_cndmask_b32 v{TMP+8+4*k+i}, v{t0}, v{t1}, s[92:93]")
        tagq(TMP + 4 * k, [TMP + 8 + 4 * k + i for i in range(4)])
    e("v_and_b32 v2, 15, v0")
    e("v_lshlrev_b32 v2, 5, v2")
    e("v_add_u32 v2, v6, v2")
    e("v_lshrrev_b32 v6, 5, v0")
    e("v_lshl_add_u32 v2, v6, 12, v2")
    with Guard():
        for k in range(2):
            e(f"buffer_store_dwordx4 v[{TMP+4*k}:{TMP+4*k+3}], v2, s[{SRD_WS}:{SRD_WS+3}], s4 offen offset:{2048*k} sc1")
stamp(2, True)
if OPT["odelay"]:
    if OPT["odelay"] == 1:
        e("s_waitcnt vmcnt(0)")
    lds_signal(C_PO, 6)
lab("L_secC_done")
e("s_cmp_lt_u32 s2, 64")
e("s_cbranch_scc1 L_secF")
if_dry_goto("L_secH")
e("s_branch L_exit_c")
lab("L_secF")
GS = 74
for d in range(4):
    e(f"v_lshlrev_b32 v76, 16, v{68+d}")
    e(f"v_and_b32 v77, 0xffff0000, v{68+d}")
    e(f"v_lshlrev_b32 v78, 16, v{64+d}")
    e(f"v_and_b32 v79, 0xffff0000, v{64+d}")
    e("v_mul_f32 v76, v76, v78")
    e("v_mul_f32 v77, v77, v79")
    bf16_round_pair(78, 76, 77, 76, 77)
    if d == 0:
        e(f"v_add_f32 v{GS}, v76, v77")
    else:
        e(f"v_add_f32 v{GS}, v{GS}, v76")
        e(f"v_add_f32 v{GS}, v{GS}, v77")
dpp_reduce("v_add_f32", [GS], ROW16)
swap_reduce("v_add_f32", [GS], [76])
e(f"v_cvt_pk_bf16_f32 v75, v{GS}, v{GS}")
e("v_lshlrev_b32 v75, 16, v75")
e("v_mul_f32 v75, 0xbfb8aa3b, v75")
e("v_exp_f32 v75, v75")
e("s_nop 0")
e("v_add_f32 v75, 1.0, v75")
e("v_rcp_f32 v76, v75")
e("s_nop 0")
e("v_fma_f32 v77, -v75, v76, 2.0")
e("v_mul_f32 v76, v76, v77")
e("v_cvt_pk_bf16_f32 v76, v76, v76")
e("v_lshlrev_b32 v75, 16, v76")
e("v_sub_f32 v76, 1.0, v75")
e("v_cvt_pk_bf16_f32 v76, v76, v76")
e("v_lshlrev_b32 v76, 16, v76")
e("v_lshlrev_b32 v73, 16, v72")
if OPT["odelay"]:
    lds_wait(C_PO, 2, 1)
poll("o", [re.sub(r"v\[\d+:\d+\]", "@", l, count=1) for l in o_loads], [32, 36, 40, 44, 48], 1, OPT["sleep_t"], altbase=128)
stamp(5, True)
e(f"s_lshl_b32 s5, s{S_WAVE}, 5")
e("s_sub_u32 s5, 112, s5")
e("s_min_u32 s5, s5, 32")
e("v_cmp_gt_u32 vcc, s5, v0")
e("s_nop 1")
for i in range(4):
    e(f"v_cndmask_b32 v{92+i}, 0, v{48+i}, vcc")
    e(f"v_add_f32 v{88+i}, v{32+i}, v{36+i}")
    e(f"v_add_f32 v{52+i}, v{40+i}, v{44+i}")
for i in range(4):
    e(f"v_add_f32 v{88+i}, v{88+i}, v{52+i}")
regs = [88 + i for i in range(8)]
dpp_reduce("v_add_f32", regs, ["row_ror:8"])
swap_reduce("v_add_f32", regs, [52 + i for i in range(8)])
e(f"s_lshl_b32 s4, s{S_WAVE}, 7")
e("v_add_u32 v4, s4, v3")
with Guard():
    e("s_mov_b64 exec, 0xff")
    e(f"ds_write_b128 v4, v[88:91] offset:{L_F}")
    e(f"ds_write_b128 v4, v[92:95] offset:{L_F+512}")
    e("s_mov_b64 exec, -1")
    lds_signal(C_F, 6)
    e(f"s_cmp_lg_u32 s{S_WAVE}, 0")
    e("s_cbranch_scc1 L_exit_c")
lds_wait(C_F, 4, 6)
e("v_and_b32 v6, 31, v0")
e("v_lshlrev_b32 v4, 2, v6")
for w in range(8):
    e(f"ds_read_b32 v{52+w}, v4 offset:{L_F+128*w}")
e("s_waitcnt lgkmcnt(0)")
e("v_add_f32 v52, v52, v53")
e("v_add_f32 v54, v54, v55")
e("v_add_f32 v56, v56, v57")
e("v_add_f32 v58, v58, v59")
e("v_add_f32 v52, v52, v54")
e("v_add_f32 v56, v56, v58")
bf16_round_pair(54, 52, 56, 52, 56)
e("v_add_f32 v56, v56, v73")
e("v_cvt_pk_bf16_f32 v54, v56, v56")
e("v_lshlrev_b32 v56, 16, v54")
e("v_mul_f32 v52, v75, v52")
e("v_mul_f32 v56, v76, v56")
bf16_round_pair(54, 52, 56, 52, 56)
e("v_add_f32 v52, v52, v56")
e("v_cvt_pk_bf16_f32 v52, v52, v52")
e("v_lshlrev_b32 v6, 1, v6")
e("s_lshl_b32 s4, s2, 6")
if_dry_goto("L_secH")
srd(SRD_OUT, 38, 4096)
set_exec("-1", 0)
e(f"buffer_store_short v52, v6, s[{SRD_OUT}:{SRD_OUT+3}], s4 offen")
if OPT["dbg"]:
    e("s_cmp_ge_u32 s2, 14")
    e("s_cbranch_scc1 L_dbg1")
    e("s_memrealtime s[98:99]")
    srd(SRD_M, 40, 256)
    e("s_lshl_b32 s4, s2, 2")
    e("s_add_u32 s4, s4, 8")
    e("s_waitcnt lgkmcnt(0)")
    e("v_mov_b32 v236, s4")
    e("v_mov_b32 v237, s98")
    e("s_mov_b64 exec, 1")
    e(f"buffer_store_dword v237, v236, s[{SRD_M}:{SRD_M+3}], 0 offen")
    lab("L_dbg1")
e("s_cmp_lg_u32 s2, 0")
e("s_cbranch_scc1 L_exit_c")
e("s_mov_b64 exec, 1")
e(f"v_mov_b32 v1, 0")
e(f"v_mov_b32 v4, s{S_TAG}")
e(f"v_mov_b32 v5, s{S_TAG+1}")
e(f"buffer_store_dwordx2 v[4:5], v1, s[{SRD_WS}:{SRD_WS+3}], 0 offen offset:{WS_GEN} sc1")
lab("L_exit_c")
dump_stamps(True)
lab("L_exit")
e("s_endpgm")
if not OPT["dry"]:
    lab("L_dry_done_data")
    lab("L_dry_done_comm")
    e("s_endpgm")

out.append('.section .rodata,"a"')
out.append(".p2align 6")
out.append(f".amdhsa_kernel {NAME}_kernel")
out.append("  .amdhsa_next_free_vgpr 240")
out.append("  .amdhsa_next_free_sgpr 102")
out.append("  .amdhsa_accum_offset 240")
out.append("  .amdhsa_group_segment_fixed_size 0")
out.append("  .amdhsa_kernarg_size 112")
out.append("  .amdhsa_user_sgpr_count 2")
out.append("  .amdhsa_user_sgpr_kernarg_segment_ptr 1")
out.append("  .amdhsa_system_sgpr_workgroup_id_x 1")
out.append(".end_amdhsa_kernel")

dst = sys.argv[1] if len(sys.argv) > 1 else f"cdna_kernels/{NAME}.s"
open(dst, "w").write("\n".join(out) + "\n")
print("wrote", dst, len(out), "lines")
```

```python
import sys
import re

NAME = "gated_mix__sliding_block_cached__mixer_channel_mlp__decode"

OPT = dict(
    stamps=0,
    nt=1,
    depth=4,
    sleep_l=1,
    sleep_q=1,
    sleep_t=0,
    dry=0,
    k_after=0,
    pp=0,
    padx=0,
    adelay=0,
    odelay=0,
    ackw=0,
    ackst=0,
    ppq=0,
    qdelay=0,
    pre=0,
    dbg=0,
    q2=0,
    kdma=1,
    jit=0,
    jit_k=7,
    vstamp=0,
    w1_late=0,
    go_pub=0,
    opfull=1,
    apm128=1,
)
for a in sys.argv[2:]:
    k, v = a.split("=")
    OPT[k] = int(v)

WS_GEN = 0
WS_QP = 0x10000
WS_HP = WS_QP + 4 * 4 * 1024 * 16
WS_APO = WS_HP + 4 * 4 * 448 * 16
WS_APM = WS_APO + 4 * 32 * 4 * 8 * 8 * 16
WS_OP = WS_APM + 4 * 32 * 8 * 128
WS_ST = WS_OP + 142 * 4 * 128 * 16
WS_END = WS_ST + 256 * 8 * 16 * 8
open("gen_layout.py", "w").write(f"WS_ST = {WS_ST}\n")

L_PIECE = 0
L_QS = 8192
L_OW = 9216
L_ML = 17408
L_OA = 17536
L_HA = 17792
L_F = 18816
L_CNT = 19840
L_K = 20480
L_END = L_K + 32768
LDS_BYTES = 53248
assert L_END <= LDS_BYTES
C_Q, C_O, C_H, C_A, C_F, C_GO, C_K, C_P, C_PA, C_PO = 0, 4, 8, 12, 16, 20, 24, 28, 32, 36

out = []


def e(s):
    out.append("    " + s)


def lab(s):
    out.append(s + ":")


NT = " nt" if OPT["nt"] else ""
S_WAVE = 3
SRD_X, SRD_K, SRD_V, SRD_W1, SRD_W3, SRD_WS, SRD_OUT, SRD_M = 44, 48, 52, 56, 60, 64, 68, 72
S_TAG = 76
S_SELLO, S_SELHI = 78, 79
S_T0 = 80
S_MASK = 96
S_DRY = 97
S_STAMP = 100
V_ST = 236
uid = [0]


def nid():
    uid[0] += 1
    return uid[0]


class Guard:
    def __enter__(self):
        if not OPT["dry"]:
            return
        self.n = nid()
        e(f"s_cmp_lg_u32 s{S_DRY}, 0")
        e(f"s_cbranch_scc1 L_g{self.n}")

    def __exit__(self, *a):
        if not OPT["dry"]:
            return
        lab(f"L_g{self.n}")


def if_dry_goto(label):
    if not OPT["dry"]:
        e("s_nop 1")
        return
    e(f"s_cmp_lg_u32 s{S_DRY}, 0")
    e(f"s_cbranch_scc1 {label}")


def srd(dst, ptr, nbytes):
    e(f"s_mov_b32 s{dst}, s{ptr}")
    e(f"s_and_b32 s{dst+1}, s{ptr+1}, 0xffff")
    e(f"s_mov_b32 s{dst+2}, {nbytes}")
    e(f"s_mov_b32 s{dst+3}, 0x00020000")


def stamp_raw(i, comm):
    va, vt = V_ST, V_ST + 2
    e(f"s_lshl_b32 s98, s2, 3")
    e(f"s_add_u32 s98, s98, s{S_WAVE}")
    if comm:
        e("s_add_u32 s98, s98, 4")
    e(f"s_lshl_b32 s98, s98, 7")
    e(f"s_add_u32 s98, s98, {WS_ST + 8 * i}")
    e(f"v_mov_b32 v{va}, s98")
    e(f"v_mov_b32 v{vt}, s{S_STAMP}")
    e(f"v_mov_b32 v{vt+1}, s{S_STAMP+1}")
    e(f"s_mov_b64 s[98:99], exec")
    e(f"s_mov_b64 exec, 1")
    e(f"buffer_store_dwordx2 v[{vt}:{vt+1}], v{va}, s[{SRD_WS}:{SRD_WS+3}], 0 offen")
    e(f"s_mov_b64 exec, s[98:99]")


STAMP_MAP_D = {0: 0, 3: 1, 5: 2, 2: 3, 6: 4, 7: 5, 8: 6}
STAMP_MAP_C = {0: 0, 1: 1, 3: 2, 2: 3, 5: 4, 7: 6, 6: 5}


def stamp(i, comm=False):
    if not OPT["stamps"]:
        return
    m = STAMP_MAP_C if comm else STAMP_MAP_D
    if i not in m:
        return
    k = m[i]
    with Guard():
        e(f"s_memrealtime s[{16+2*k}:{17+2*k}]")


def dump_stamps(comm):
    if not OPT["stamps"]:
        return
    m = STAMP_MAP_C if comm else STAMP_MAP_D
    e("s_waitcnt lgkmcnt(0)")
    e("s_mov_b64 exec, -1")
    if OPT["stamps"] == 2:
        srd(SRD_M, 40, 256)
        e("s_mov_b64 exec, 1")
        for i, k in m.items():
            if comm and i in (6,):
                continue
            slot = i if not comm else {0: 9, 1: 10, 3: 11, 4: 12, 5: 13, 7: 14}[i]
            n_ = nid()
            if (not comm) and i in (7, 8):
                e(f"s_cmp_lt_u32 s{S_WAVE}, 2")
                e(f"s_cbranch_scc1 L_ds{n_}")
            if comm and i == 0:
                e("s_cmp_eq_u32 s8, 0")
                e(f"s_cbranch_scc1 L_ds{n_}")
            if comm and i == 5:
                e("s_cmp_ge_u32 s2, 64")
                e(f"s_cbranch_scc1 L_ds{n_}")
            e(f"v_mov_b32 v{V_ST}, {4*slot}")
            if (not comm) and i == 0:
                e(f"s_not_b32 s{S_STAMP}, s{16+2*k}")
                e(f"v_mov_b32 v{V_ST+1}, s{S_STAMP}")
            else:
                e(f"v_mov_b32 v{V_ST+1}, s{16+2*k}")
            e(f"buffer_atomic_umax v{V_ST+1}, v{V_ST}, s[{SRD_M}:{SRD_M+3}], 0 offen")
            e("s_nop 1")
            lab(f"L_ds{n_}")
        return
    for i, k in m.items():
        e(f"s_mov_b32 s{S_STAMP}, s{16+2*k}")
        e(f"s_mov_b32 s{S_STAMP+1}, s{17+2*k}")
        stamp_raw(i, comm)
        e("s_nop 1")


def tile_mm(W, A, B, ACC, acc_in=False):
    for q in range(4):
        for i in range(4):
            e(f"v_perm_b32 v{B+i}, v{W+4*(2*i+1)+q}, v{W+4*(2*i)+q}, s{S_SELLO}")
        for i in range(4):
            e(f"v_perm_b32 v{B+4+i}, v{W+4*(2*i+1)+q}, v{W+4*(2*i)+q}, s{S_SELHI}")
        e("s_nop 1")
        for jj in range(2):
            j = 2 * q + jj
            c = f"v[{ACC+4*j}:{ACC+4*j+3}]" if acc_in else "0"
            e(f"v_mfma_f32_16x16x32_bf16 v[{ACC+4*j}:{ACC+4*j+3}], v[{A}:{A+3}], v[{B+4*jj}:{B+4*jj+3}], {c}")


VT = 188
VTRAW = 186


def load_tag(vtmp):
    e(f"v_mov_b32 v{vtmp}, 0")
    e(f"buffer_load_dwordx2 v[{VTRAW}:{VTRAW+1}], v{vtmp}, s[{SRD_WS}:{SRD_WS+3}], 0 offen offset:{WS_GEN} sc1")


def finish_tag():
    e(f"v_readfirstlane_b32 s{S_TAG}, v{VTRAW}")
    e(f"v_readfirstlane_b32 s{S_TAG+1}, v{VTRAW+1}")
    e("s_nop 3")
    e(f"s_add_u32 s{S_TAG}, s{S_TAG}, 1")
    e(f"s_addc_u32 s{S_TAG+1}, s{S_TAG+1}, 0")
    e(f"s_and_b32 s{S_T0}, s{S_TAG}, 0x3ff")
    e(f"s_bfe_u32 s{S_T0+1}, s{S_TAG}, 0xa000a")
    e(f"s_bfe_u32 s{S_T0+2}, s{S_TAG}, 0xa0014")
    e(f"s_lshr_b64 s[{S_T0+4}:{S_T0+5}], s[{S_TAG}:{S_TAG+1}], 30")
    e(f"s_and_b32 s{S_T0+3}, s{S_T0+4}, 0x3ff")
    for i in range(4):
        e(f"v_mov_b32 v{VT+i}, s{S_T0+i}")


def tagq(dst, srcs):
    for i in range(4):
        e(f"v_bfi_b32 v{dst+i}, s{S_MASK}, v{VT+i}, v{srcs[i]}")


def poll(name, loads, quads, vx, sleep, maxit=100000, altbase=None):
    n = len(loads)

    def issue(base_map):
        for l, q in zip(loads, quads):
            r = base_map(q)
            e(l.replace("@", f"v[{r}:{r+3}]"))

    def check(base_map):
        first = True
        for q in quads:
            r = base_map(q)
            for i in range(4):
                if first:
                    e(f"v_xor_b32 v{vx}, v{r+i}, v{VT+i}")
                    first = False
                else:
                    e(f"v_xor_b32 v{vx+1}, v{r+i}, v{VT+i}")
                    e(f"v_or_b32 v{vx}, v{vx}, v{vx+1}")
        e(f"v_and_b32 v{vx}, 0x3ff, v{vx}")
        e(f"v_cmp_ne_u32 vcc, 0, v{vx}")

    A = lambda q: q
    e(f"s_mov_b32 s{S_T0+10}, {maxit}")
    usepp = OPT["pp"] or (OPT["ppq"] and name == "q")
    if not usepp or altbase is None:
        lab(f"L_poll_{name}")
        issue(A)
        with Guard():
            e("s_waitcnt vmcnt(0)")
        check(A)
        if_dry_goto(f"L_pdone_{name}")
        e(f"s_cmp_eq_u64 vcc, 0")
        e(f"s_cbranch_scc1 L_pdone_{name}")
        e(f"s_sub_u32 s{S_T0+10}, s{S_T0+10}, 1")
        e(f"s_cmp_eq_u32 s{S_T0+10}, 0")
        e(f"s_cbranch_scc1 L_pdone_{name}")
        if sleep:
            e(f"s_sleep {sleep}")
        e(f"s_branch L_poll_{name}")
        lab(f"L_pdone_{name}")
        return
    B = lambda q: altbase + (q - quads[0])
    issue(A)
    lab(f"L_poll_{name}")
    e(f"s_sleep {max(OPT['pp'], OPT['ppq'])}")
    issue(B)
    with Guard():
        e(f"s_waitcnt vmcnt({n})")
    check(A)
    if_dry_goto(f"L_pB_{name}")
    e(f"s_cmp_eq_u64 vcc, 0")
    e(f"s_cbranch_scc1 L_pdone_{name}")
    e(f"s_sleep {max(OPT['pp'], OPT['ppq'])}")
    issue(A)
    e(f"s_waitcnt vmcnt({n})")
    check(B)
    e(f"s_cmp_eq_u64 vcc, 0")
    e(f"s_cbranch_scc1 L_pB_{name}")
    e(f"s_sub_u32 s{S_T0+10}, s{S_T0+10}, 1")
    e(f"s_cmp_eq_u32 s{S_T0+10}, 0")
    e(f"s_cbranch_scc0 L_poll_{name}")
    lab(f"L_pB_{name}")
    for q in quads:
        for i in range(4):
            e(f"v_mov_b32 v{q+i}, v{B(q)+i}")
    lab(f"L_pdone_{name}")


def lds_signal(cnt, vtmp):
    e("s_waitcnt lgkmcnt(0)")
    e(f"v_mov_b32 v{vtmp}, {L_CNT+cnt}")
    e(f"v_mov_b32 v{vtmp+1}, 1")
    e("s_mov_b64 exec, 1")
    e(f"ds_add_u32 v{vtmp}, v{vtmp+1}")
    e("s_mov_b64 exec, -1")


def lds_wait(cnt, target, vtmp):
    n = nid()
    e(f"v_mov_b32 v{vtmp}, {L_CNT+cnt}")
    e(f"s_mov_b32 s{S_T0+11}, 4000000")
    lab(f"L_lw{n}")
    e(f"ds_read_b32 v{vtmp+1}, v{vtmp}")
    e("s_waitcnt lgkmcnt(0)")
    e(f"v_readfirstlane_b32 s{S_T0+12}, v{vtmp+1}")
    if_dry_goto(f"L_lwd{n}")
    e("s_nop 1")
    e(f"s_cmp_ge_u32 s{S_T0+12}, {target}")
    e(f"s_cbranch_scc1 L_lwd{n}")
    e(f"s_sub_u32 s{S_T0+11}, s{S_T0+11}, 1")
    e(f"s_cmp_eq_u32 s{S_T0+11}, 0")
    e(f"s_cbranch_scc1 L_lwd{n}")
    if OPT["sleep_l"]:
        e(f"s_sleep {OPT['sleep_l']}")
    e(f"s_branch L_lw{n}")
    lab(f"L_lwd{n}")


def bf16_round_pair(dst_pk, a, b, lo, hi):
    e(f"v_cvt_pk_bf16_f32 v{dst_pk}, v{a}, v{b}")
    e(f"v_lshlrev_b32 v{lo}, 16, v{dst_pk}")
    e(f"v_and_b32 v{hi}, 0xffff0000, v{dst_pk}")


def dpp_reduce(op, regs, ctls):
    for ctl in ctls:
        e("s_nop 1")
        for r in regs:
            e(f"{op}_dpp v{r}, v{r}, v{r} {ctl} row_mask:0xf bank_mask:0xf")


ROW16 = ["quad_perm:[1,0,3,2]", "quad_perm:[2,3,0,1]", "row_half_mirror", "row_mirror"]


def swap_reduce(op, regs, tmps, sws=("v_permlane16_swap_b32", "v_permlane32_swap_b32")):
    for sw in sws:
        for r, t in zip(regs, tmps):
            e(f"v_mov_b32 v{t}, v{r}")
        e("s_nop 1")
        for r, t in zip(regs, tmps):
            e(f"{sw} v{r}, v{t}")
        e("s_nop 1")
        for r, t in zip(regs, tmps):
            e(f"{op} v{r}, v{r}, v{t}")


def set_exec(lo, hi):
    e(f"s_mov_b32 exec_lo, {lo}")
    e(f"s_mov_b32 exec_hi, {hi}")


VW, VK, VV, VB, VACC = 16, 80, 112, 144, 152
VA, VA2 = 12, 224
VX = 152
TMP = 192


def lane_setup():
    e("v_and_b32 v1, 7, v0")
    e("v_bfe_u32 v2, v0, 3, 1")
    e("v_lshrrev_b32 v3, 4, v0")
    e("v_lshlrev_b32 v4, 5, v2")
    e("v_lshl_add_u32 v4, v3, 3, v4")
    e("v_and_b32 v5, 3, v0")
    e("v_bfe_u32 v6, v0, 2, 1")
    e("v_lshlrev_b32 v6, 5, v6")
    e("v_lshl_add_u32 v6, v3, 3, v6")
    e("v_lshlrev_b32 v11, 1, v6")
    e("v_lshl_add_u32 v6, v5, 10, v11")
    e("v_lshl_add_u32 v11, v5, 8, v11")
    e("v_lshlrev_b32 v10, 5, v1")
    e("v_lshl_add_u32 v10, v2, 10, v10")


def gather_quads(G, ACC=None):
    ACC = VACC if ACC is None else ACC
    for b in range(4):
        for hf in range(2):
            for i in range(4):
                e(f"v_mov_b32 v{G+8*b+4*hf+i}, v{ACC+4*(4*hf+i)+b}")


def tile128(A1, A2, piece_off_sreg, W=None, B=None, ACC=None, G=120):
    W = VW if W is None else W
    B = VB if B is None else B
    ACC = VACC if ACC is None else ACC
    tile_mm(W, A1, B, ACC)
    tile_mm(W + 32, A2, B, ACC, acc_in=True)
    e("v_lshlrev_b32 v1, 4, v0")
    e(f"v_lshrrev_b32 v{TMP+8}, 4, v0")
    e(f"v_add_u32 v1, s{piece_off_sreg}, v1")
    e(f"v_add_u32 v2, s{piece_off_sreg}, v10")
    e("s_nop 7")
    gather_quads(G, ACC)
    with Guard():
        set_exec("0xff0000ff", 0)
        for b in range(4):
            for hf in range(2):
                e(f"ds_write_b128 v2, v[{G+8*b+4*hf}:{G+8*b+4*hf+3}] offset:{256*b+16*hf}")
        e("s_mov_b64 exec, -1")
    e("s_waitcnt lgkmcnt(0)")
    e(f"ds_read_b128 v[{TMP}:{TMP+3}], v1")
    e(f"ds_read_b128 v[{TMP+4}:{TMP+7}], v1 offset:1024")
    e("s_waitcnt lgkmcnt(0)")
    for i in range(4):
        e(f"v_add_f32 v{TMP+i}, v{TMP+i}, v{TMP+4+i}")
    tagq(TMP, [TMP, TMP + 1, TMP + 2, TMP + 3])


hdr = open(f"cdna_kernels/{NAME}.s.ref").read().split("\n")
top = [l for l in hdr if l.startswith(";") and "@launch" not in l]
out.extend(top)
out.append(f"; @launch grid=(256,1,1) block=(512,1,1) lds={LDS_BYTES}")
out.append('.amdgcn_target "amdgcn-amd-amdhsa--gfx950"')
out.append(".text")
out.append(f".globl {NAME}_kernel")
out.append(".p2align 8")
out.append(f".type {NAME}_kernel,@function")
lab(f"{NAME}_kernel")

e("s_cmp_ge_u32 s2, 256")
e("s_cbranch_scc1 L_exit")
e("s_load_dwordx16 s[16:31], s[0:1], 0")
e("s_load_dwordx8 s[32:39], s[0:1], 64")
e("s_load_dwordx4 s[40:43], s[0:1], 96")
e("v_lshrrev_b32 v1, 6, v0")
e("v_and_b32 v0, 63, v0")
e(f"s_mov_b32 s{S_SELLO}, 0x05040100")
e(f"s_mov_b32 s{S_SELHI}, 0x07060302")
e(f"s_mov_b32 s{S_MASK}, 0x3ff")
e(f"s_mov_b32 s{S_DRY}, 0")
e(f"v_readfirstlane_b32 s{S_WAVE}, v1")
lane_setup()
e("s_waitcnt lgkmcnt(0)")
srd(SRD_X, 16, 4096)
srd(SRD_WS, 42, WS_END)
e(f"s_cmp_ge_u32 s{S_WAVE}, 4")
e("s_cbranch_scc1 L_comm")

srd(SRD_K, 18, 33554432)
srd(SRD_V, 20, 33554432)
stamp(0)
if OPT["dbg"]:
    e(f"s_cmp_lg_u32 s{S_WAVE}, 0")
    e("s_cbranch_scc1 L_dbg0")
    e("s_cmp_eq_u32 s2, 0")
    e("s_cselect_b32 s4, 0, 4")
    e("s_cmp_eq_u32 s2, 0")
    e("s_cbranch_scc1 L_dbg0b")
    e("s_cmp_eq_u32 s2, 255")
    e("s_cbranch_scc0 L_dbg0")
    lab("L_dbg0b")
    e("s_memrealtime s[98:99]")
    srd(SRD_M, 40, 256)
    e("s_waitcnt lgkmcnt(0)")
    e("v_mov_b32 v236, s4")
    e("v_mov_b32 v237, s98")
    e("s_mov_b64 exec, 1")
    e(f"buffer_store_dword v237, v236, s[{SRD_M}:{SRD_M+3}], 0 offen")
    e("s_mov_b64 exec, -1")
    lab("L_dbg0")
e("s_lshr_b32 s10, s2, 3")
e("s_lshl_b32 s10, s10, 12")
e("s_and_b32 s11, s2, 7")
e("s_lshl_b32 s11, s11, 7")
e("s_add_u32 s10, s10, s11")
e(f"s_lshl_b32 s11, s{S_WAVE}, 5")
e("s_add_u32 s10, s10, s11")
e("s_add_u32 s10, s10, 3072")
e("s_lshl_b32 s10, s10, 8")
e("s_add_u32 s11, s10, 4096")
e("v_and_b32 v8, 15, v0")
e("v_lshlrev_b32 v9, 4, v8")
e("v_lshlrev_b32 v8, 8, v8")
e("v_lshl_add_u32 v8, v3, 4, v8")
e("v_lshl_add_u32 v9, v3, 10, v9")
load_tag(2)
D = OPT["depth"]
seq = []
if OPT["kdma"]:
    e("v_and_b32 v12, 15, v0")
    for i4 in range(4):
        e(f"v_add_u32 v13, {4*i4}, v3")
        e(f"v_xor_b32 v14, v12, v13")
        e(f"v_lshlrev_b32 v14, 4, v14")
        e(f"v_lshl_add_u32 v{TMP+20+i4}, v13, 8, v14")
    e(f"s_lshl_b32 s12, s{S_WAVE}, 13")
    e(f"s_add_u32 s12, s12, {L_K}")
    for i in range(8):
        seq.append([f"s_add_u32 m0, s12, {1024*i}", "s_nop 0",
                    f"buffer_load_dwordx4 v{TMP+20+(i&3)}, s[{SRD_K}:{SRD_K+3}], s{10+(i>>2)} offen{NT} lds"])
    for c in range(4):
        e(f"v_add_u32 v13, {4*c}, v3")
        e(f"v_xor_b32 v13, v13, v12")
        e(f"v_lshlrev_b32 v13, 4, v13")
        e(f"v_lshl_add_u32 v13, v12, 8, v13")
        e(f"v_add_u32 v{228+c}, s12, v13")
else:
  for kb in range(2):
    for c in range(4):
        r = VK + 16 * kb + 4 * c
        seq.append(f"buffer_load_dwordx4 v[{r}:{r+3}], v8, s[{SRD_K}:{SRD_K+3}], s{10+kb} offen offset:{64*c}{NT}")
for i in range(8):
    r = VV + 4 * i
    so = 10 if i < 4 else 11
    seq.append(f"buffer_load_dwordx4 v[{r}:{r+3}], v9, s[{SRD_V}:{SRD_V+3}], s{so} offen offset:{256*(i&3)}{NT}")
gated = OPT["k_after"] or OPT["go_pub"]
for i, l in enumerate(seq):
    if gated and i == OPT["pre"]:
        e("s_barrier")
        lds_wait(C_GO, 1, TMP)
    if i == D and not gated:
        e("s_barrier")
    if i >= D:
        e(f"s_waitcnt vmcnt({D-1})")
    if (OPT["jit"] & 1) and i == min(15, OPT["jit_k"] + D):
        lds_signal(C_K, TMP)
    for l_ in (l if isinstance(l, list) else [l]):
        e(l_)
finish_tag()
if OPT["vstamp"]:
    e("s_waitcnt vmcnt(0)")
    stamp(7)
lab("L_secA")
lds_wait(C_Q, 2 if OPT["q2"] else 4, TMP)
stamp(3)
VQ = TMP
e("v_and_b32 v1, 3, v0")
e("v_lshlrev_b32 v1, 8, v1")
e("v_lshl_add_u32 v1, v3, 4, v1")
for c in range(4):
    e(f"ds_read_b128 v[{VQ+4*c}:{VQ+4*c+3}], v1 offset:{L_QS+64*c}")
with Guard():
    e("s_waitcnt vmcnt(8)")
if OPT["kdma"]:
    for kb in range(2):
        for c in range(4):
            r = VK + 16 * kb + 4 * c
            e(f"ds_read_b128 v[{r}:{r+3}], v{228+c} offset:{4096*kb}")
e("s_waitcnt lgkmcnt(0)")
stamp(4)
VS = VACC
for kb in range(2):
    for c in range(4):
        src2 = "0" if c == 0 else f"v[{VS+4*kb}:{VS+4*kb+3}]"
        e(f"v_mfma_f32_16x16x32_bf16 v[{VS+4*kb}:{VS+4*kb+3}], v[{VK+16*kb+4*c}:{VK+16*kb+4*c+3}], v[{VQ+4*c}:{VQ+4*c+3}], {src2}")
e("s_nop 7")
e("s_nop 1")
SC = TMP + 16
T = TMP + 24
for kb in range(2):
    for h2 in range(2):
        a = VS + 4 * kb + 2 * h2
        d = SC + 4 * kb + 2 * h2
        bf16_round_pair(T, a, a + 1, d, d + 1)
        e(f"v_mul_f32 v{d}, 0x3db504f3, v{d}")
        e(f"v_mul_f32 v{d+1}, 0x3db504f3, v{d+1}")
        bf16_round_pair(T, d, d + 1, d, d + 1)
MX = TMP + 26
LS = TMP + 27
e(f"v_max3_f32 v{MX}, v{SC}, v{SC+1}, v{SC+2}")
e(f"v_max3_f32 v{MX}, v{MX}, v{SC+3}, v{SC+4}")
e(f"v_max3_f32 v{MX}, v{MX}, v{SC+5}, v{SC+6}")
e(f"v_max_f32 v{MX}, v{MX}, v{SC+7}")
swap_reduce("v_max_f32", [MX], [T])
for i in range(8):
    e(f"v_sub_f32 v{SC+i}, v{SC+i}, v{MX}")
    e(f"v_mul_f32 v{SC+i}, 0x3fb8aa3b, v{SC+i}")
    e(f"v_exp_f32 v{SC+i}, v{SC+i}")
e("s_nop 0")
e(f"v_add_f32 v{LS}, v{SC}, v{SC+1}")
for i in range(2, 8):
    e(f"v_add_f32 v{LS}, v{LS}, v{SC+i}")
swap_reduce("v_add_f32", [LS], [T])
VP = TMP + 28
for i in range(4):
    e(f"v_cvt_pk_bf16_f32 v{VP+i}, v{SC+2*i}, v{SC+2*i+1}")
with Guard():
    e("s_waitcnt vmcnt(0)")
stamp(5)
tile_mm(VV, VP, VB, VACC)
e(f"s_lshl_b32 s4, s{S_WAVE}, 11")
e("v_lshlrev_b32 v1, 5, v0")
e("v_add_u32 v1, s4, v1")
e(f"s_lshl_b32 s4, s{S_WAVE}, 5")
e("v_lshlrev_b32 v2, 3, v0")
e("v_add_u32 v2, s4, v2")
e("s_nop 7")
gather_quads(VK)
with Guard():
    set_exec("0xffff", 0)
    for r in range(4):
        for hf in range(2):
            e(f"ds_write_b128 v1, v[{VK+8*r+4*hf}:{VK+8*r+4*hf+3}] offset:{L_OW+512*r+16*hf}")
    e("s_mov_b64 exec, 15")
    e(f"ds_write_b64 v2, v[{MX}:{MX+1}] offset:{L_ML}")
    e("s_mov_b64 exec, -1")
    lds_signal(C_O, TMP)
stamp(1)
e(f"s_lshl_b32 s4, s{S_WAVE}, 3")
e("v_mov_b32 v1, s4")
e(f"s_lshl_b32 s4, s{S_WAVE}, 9")
e("v_and_b32 v2, 31, v0")
e("v_lshlrev_b32 v2, 4, v2")
e("v_add_u32 v2, s4, v2")
e("s_lshr_b32 s4, s2, 3")
e("s_lshl_b32 s4, s4, 2")
e(f"s_add_u32 s4, s4, s{S_WAVE}")
e("s_and_b32 s5, s2, 7")
e("s_lshl_b32 s6, s4, 12")
e("s_lshl_b32 s7, s5, 7")
e("s_add_u32 s6, s6, s7")
e(f"s_add_u32 s6, s6, {WS_APO}")
e("s_lshl_b32 s4, s4, 3")
e("s_add_u32 s4, s4, s5")
e(f"s_lshl_b32 s4, s4, {7 if OPT['apm128'] else 4}")
e(f"s_add_u32 s4, s4, {WS_APM}")
e("v_and_b32 v7, 7, v0")
e("v_lshlrev_b32 v7, 4, v7")
e(f"v_lshrrev_b32 v{TMP+12}, 3, v0")
e(f"v_lshl_add_u32 v7, v{TMP+12}, 10, v7")
lds_wait(C_O, 4, TMP)
stamp(2)
R = VACC
for w in range(4):
    e(f"ds_read_b64 v[{R+2*w}:{R+2*w+1}], v1 offset:{L_ML+32*w}")
for w in range(4):
    e(f"ds_read_b128 v[{R+8+4*w}:{R+11+4*w}], v2 offset:{L_OW+2048*w}")
e("s_waitcnt lgkmcnt(0)")
M_, L_ = R + 24, R + 25
e(f"v_max3_f32 v{M_}, v{R}, v{R+2}, v{R+4}")
e(f"v_max_f32 v{M_}, v{M_}, v{R+6}")
F_ = TMP
for w in range(4):
    e(f"v_sub_f32 v{F_+w}, v{R+2*w}, v{M_}")
    e(f"v_mul_f32 v{F_+w}, 0x3fb8aa3b, v{F_+w}")
    e(f"v_exp_f32 v{F_+w}, v{F_+w}")
e("s_nop 0")
O_ = TMP + 4
e(f"v_mul_f32 v{L_}, v{F_}, v{R+1}")
for i in range(4):
    e(f"v_mul_f32 v{O_+i}, v{F_}, v{R+8+i}")
for w in range(1, 4):
    e(f"v_fmac_f32 v{L_}, v{F_+w}, v{R+2*w+1}")
    for i in range(4):
        e(f"v_fmac_f32 v{O_+i}, v{F_+w}, v{R+8+4*w+i}")
tagq(O_, [O_, O_ + 1, O_ + 2, O_ + 3])
e(f"v_mov_b32 v{R+26}, 0")
e(f"v_mov_b32 v{R+27}, 0")
tagq(TMP + 8, [M_, L_, R + 26, R + 27])
e(f"v_mov_b32 v1, 0")
with Guard():
    set_exec("-1", 0)
    e(f"buffer_store_dwordx4 v[{O_}:{O_+3}], v7, s[{SRD_WS}:{SRD_WS+3}], s6 offen sc1")
    e("s_mov_b64 exec, 1")
    e(f"buffer_store_dwordx4 v[{TMP+8}:{TMP+11}], v1, s[{SRD_WS}:{SRD_WS+3}], s4 offen sc1")
    e("s_mov_b64 exec, -1")
stamp(6)
if OPT["adelay"]:
    if OPT["adelay"] == 1:
        e("s_waitcnt vmcnt(0)")
    lds_signal(C_PA, TMP + 16)
if_dry_goto("L_dry_done_data")
lab("L_exit_d")
dump_stamps(False)
e("s_endpgm")

lab("L_comm")
if OPT["padx"]:
    e("s_memrealtime s[94:95]")
e("s_setprio 2")
e(f"s_sub_u32 s{S_WAVE}, s{S_WAVE}, 4")
stamp(6, True)
load_tag(7)
e("s_mov_b32 s8, 0")
e(f"s_cmp_ge_u32 s{S_WAVE}, 2")
e("s_cbranch_scc1 L_p1_noload")
e(f"s_cmp_eq_u32 s{S_WAVE}, 1")
e("s_cbranch_scc1 L_p1_w1")
srd(SRD_W1, 22, 4194304)
e("s_mov_b32 s5, 8192")
e("s_lshr_b32 s6, s2, 6")
e("s_lshl_b32 s6, s6, 7")
e("s_and_b32 s7, s2, 63")
e("s_lshl_b32 s7, s7, 7")
e("s_mov_b32 s8, 1")
e("s_branch L_p1_go")
lab("L_p1_w1")
e("s_cmp_ge_u32 s2, 112")
e("s_cbranch_scc1 L_p1_noload")
srd(SRD_W1, 28, 512 * 1792 * 2)
e("s_mov_b32 s5, 3584")
e("s_and_b32 s6, s2, 3")
e("s_lshl_b32 s6, s6, 7")
e("s_lshr_b32 s7, s2, 2")
e("s_lshl_b32 s7, s7, 7")
e("s_mov_b32 s8, 2")
if OPT["w1_late"]:
    e("s_barrier")
    lds_wait(C_GO, 1, TMP)
lab("L_p1_go")
e("v_mul_lo_u32 v7, s5, v4")
e("v_lshl_add_u32 v7, v1, 4, v7")
e("s_mul_i32 s9, s6, s5")
e("s_add_u32 s9, s9, s7")
e("s_lshl_b32 s12, s6, 1")
e("s_mul_i32 s13, s5, 56")
for i in range(16):
    e(f"buffer_load_dwordx4 v[{VW+4*i}:{VW+4*i+3}], v7, s[{SRD_W1}:{SRD_W1+3}], s9 offen{NT}")
    if i < 15:
        e("s_add_u32 s9, s9, s5")
    if i == 7:
        e("s_add_u32 s9, s9, s13")
XA, XA2, XR = 96, 100, 104
e(f"buffer_load_dwordx4 v[{XA}:{XA+3}], v6, s[{SRD_X}:{SRD_X+3}], s12 offen")
e(f"buffer_load_dwordx4 v[{XA2}:{XA2+3}], v6, s[{SRD_X}:{SRD_X+3}], s12 offen offset:128")
e("v_lshlrev_b32 v1, 4, v0")
for b in range(4):
    e(f"buffer_load_dwordx4 v[{XR+4*b}:{XR+4*b+3}], v1, s[{SRD_X}:{SRD_X+3}], 0 offen offset:{1024*b}")
lab("L_p1_noload")
e(f"s_cmp_lg_u32 s{S_WAVE}, 0")
e("s_cbranch_scc1 L_c_noz")
e("v_mov_b32 v1, 0")
e("v_lshlrev_b32 v7, 2, v0")
e("s_mov_b64 exec, 0xffff")
e(f"ds_write_b32 v7, v1 offset:{L_CNT}")
e("s_mov_b64 exec, -1")
e("s_waitcnt lgkmcnt(0)")
lab("L_c_noz")
if OPT["w1_late"]:
    e("s_cmp_eq_u32 s8, 2")
    e("s_cbranch_scc1 L_skipb0")
e("s_barrier")
lab("L_skipb0")
e(f"s_lshl_b32 s15, s{S_WAVE}, 11")
e(f"s_add_u32 s15, s15, {L_PIECE + 4096}")
if OPT["dry"]:
    e(f"s_mov_b32 s{S_DRY}, 1")
    e("s_cmp_lg_u32 s8, 0")
    e("s_cbranch_scc1 L_secP1")
    e(f"s_cmp_eq_u32 s{S_WAVE}, 2")
    e("s_cbranch_scc1 L_secA")
    e("s_branch L_secQ")
    lab("L_dry_done_data")
    lab("L_dry_done_comm")
    e(f"s_mov_b32 s{S_DRY}, 0")
    lane_setup()
lab("L_real_start")
if OPT["k_after"]:
    e(f"s_cmp_eq_u32 s{S_WAVE}, 0")
    e("s_cbranch_scc0 L_nogo")
    e(f"s_waitcnt vmcnt({22-OPT['k_after']})")
    lds_signal(C_GO, TMP)
    lab("L_nogo")
e("s_waitcnt vmcnt(0) lgkmcnt(0)")
stamp(7, True)
finish_tag()
e("s_cmp_eq_u32 s8, 0")
e("s_cbranch_scc1 L_secQ")
lab("L_secP1")
for d in range(4):
    e(f"v_mov_b32 v{VA+d}, v{XA+d}")
    e(f"v_mov_b32 v{VA2+d}, v{XA2+d}")
e("s_cmp_eq_u32 s8, 1")
e("s_cbranch_scc1 L_p1_mm")
SUM = TMP
T = TMP + 4
for b in range(4):
    e(f"v_lshlrev_b32 v{T}, 16, v{XR+4*b}")
    e(f"v_and_b32 v{T+1}, 0xffff0000, v{XR+4*b}")
    e(f"v_add_f32 v{SUM+b}, v{T}, v{T+1}")
    for d in range(1, 4):
        e(f"v_lshlrev_b32 v{T}, 16, v{XR+4*b+d}")
        e(f"v_and_b32 v{T+1}, 0xffff0000, v{XR+4*b+d}")
        e(f"v_add_f32 v{SUM+b}, v{SUM+b}, v{T}")
        e(f"v_add_f32 v{SUM+b}, v{SUM+b}, v{T+1}")
dpp_reduce("v_add_f32", [SUM + b for b in range(4)], ROW16)
swap_reduce("v_add_f32", [SUM + b for b in range(4)], [T + b for b in range(4)])
for b in range(4):
    e(f"v_mul_f32 v{SUM+b}, 0x3b000000, v{SUM+b}")
SQ = TMP + 12
for b in range(4):
    for d in range(4):
        e(f"v_lshlrev_b32 v{T}, 16, v{XR+4*b+d}")
        e(f"v_and_b32 v{T+1}, 0xffff0000, v{XR+4*b+d}")
        e(f"v_sub_f32 v{T}, v{T}, v{SUM+b}")
        e(f"v_sub_f32 v{T+1}, v{T+1}, v{SUM+b}")
        if d == 0:
            e(f"v_mul_f32 v{SQ+b}, v{T}, v{T}")
        else:
            e(f"v_fmac_f32 v{SQ+b}, v{T}, v{T}")
        e(f"v_fmac_f32 v{SQ+b}, v{T+1}, v{T+1}")
dpp_reduce("v_add_f32", [SQ + b for b in range(4)], ROW16)
swap_reduce("v_add_f32", [SQ + b for b in range(4)], [T + b for b in range(4)])
for b in range(4):
    e(f"v_mul_f32 v{SQ+b}, 0x3b000000, v{SQ+b}")
MEAN, DEN, RCP = TMP + 16, TMP + 17, TMP + 18
e(f"v_mov_b32 v{MEAN}, v{SUM}")
e(f"v_mov_b32 v{DEN}, v{SQ}")
for b in range(1, 4):
    e(f"v_cmp_eq_u32 vcc, {b}, v5")
    e("s_nop 1")
    e(f"v_cndmask_b32 v{MEAN}, v{MEAN}, v{SUM+b}, vcc")
    e(f"v_cndmask_b32 v{DEN}, v{DEN}, v{SQ+b}, vcc")
bf16_round_pair(T, MEAN, DEN, MEAN, DEN)
e(f"v_add_f32 v{DEN}, 0x3727c5ac, v{DEN}")
e(f"v_cvt_pk_bf16_f32 v{T}, v{DEN}, v{DEN}")
e(f"v_lshlrev_b32 v{DEN}, 16, v{T}")
e(f"v_sqrt_f32 v{DEN}, v{DEN}")
e("s_nop 0")
e(f"v_cvt_pk_bf16_f32 v{T}, v{DEN}, v{DEN}")
e(f"v_lshlrev_b32 v{DEN}, 16, v{T}")
e(f"v_rcp_f32 v{RCP}, v{DEN}")
e("s_nop 0")
for AA in (VA, VA2):
    for d in range(4):
        a0, a1 = T + 2, T + 3
        e(f"v_lshlrev_b32 v{a0}, 16, v{AA+d}")
        e(f"v_and_b32 v{a1}, 0xffff0000, v{AA+d}")
        e(f"v_sub_f32 v{a0}, v{a0}, v{MEAN}")
        e(f"v_sub_f32 v{a1}, v{a1}, v{MEAN}")
        bf16_round_pair(T, a0, a1, a0, a1)
        for a in (a0, a1):
            e(f"v_mul_f32 v{T+4}, v{a}, v{RCP}")
            e(f"v_fma_f32 v{T+5}, -v{T+4}, v{DEN}, v{a}")
            e(f"v_fma_f32 v{a}, v{T+5}, v{RCP}, v{T+4}")
        e(f"v_cvt_pk_bf16_f32 v{AA+d}, v{a0}, v{a1}")
lab("L_p1_mm")
tile128(VA, VA2, 15)
e("v_and_b32 v1, 15, v0")
e("s_cmp_eq_u32 s8, 1")
e("s_cbranch_scc1 L_pub_q")
e("s_and_b32 s4, s2, 3")
e("s_mul_i32 s4, s4, 1792")
e("s_lshr_b32 s5, s2, 2")
e("s_lshl_b32 s5, s5, 4")
e("s_add_u32 s4, s4, s5")
e("s_lshl_b32 s4, s4, 4")
e(f"s_add_u32 s4, s4, {WS_HP}")
e(f"v_mul_u32_u24 v2, 448, v{TMP+8}")
e("v_add_u32 v1, v2, v1")
e("s_branch L_pub_go")
lab("L_pub_q")
e("s_lshr_b32 s4, s2, 6")
e("s_lshl_b32 s4, s4, 12")
e("s_and_b32 s5, s2, 63")
e("s_lshl_b32 s5, s5, 4")
e("s_add_u32 s4, s4, s5")
e("s_lshl_b32 s4, s4, 4")
e(f"s_add_u32 s4, s4, {WS_QP}")
e(f"v_lshl_add_u32 v1, v{TMP+8}, 10, v1")
lab("L_pub_go")
e("v_lshlrev_b32 v1, 4, v1")
if_dry_goto("L_dry_done_comm")
e(f"buffer_store_dwordx4 v[{TMP}:{TMP+3}], v1, s[{SRD_WS}:{SRD_WS+3}], s4 offen sc1")
if OPT["go_pub"]:
    e("s_cmp_eq_u32 s8, 1")
    e("s_cbranch_scc0 L_nogo2")
    lds_signal(C_GO, TMP + 10)
    stamp(0, True)
    lab("L_nogo2")
else:
    stamp(0, True)
if OPT["ackw"]:
    e("s_waitcnt vmcnt(0)")
if OPT["ackst"]:
    e("s_waitcnt vmcnt(0)")
    stamp(7, True)
if OPT["qdelay"]:
    e("s_cmp_eq_u32 s8, 1")
    e("s_cbranch_scc0 L_nop2")
    lds_signal(C_P, TMP + 10)
    lab("L_nop2")
lab("L_secQ")
e("v_lshlrev_b32 v3, 4, v0")
if OPT["q2"]:
    assert not OPT["dry"]
    e(f"s_lshl_b32 s4, s{S_WAVE}, 8")
    e("v_and_b32 v5, 31, v0")
    e("v_lshlrev_b32 v5, 3, v5")
    e("v_add_u32 v5, s4, v5")
    e(f"s_cmp_lt_u32 s{S_WAVE}, 2")
    e("s_cbranch_scc1 L_q_skip")
    e("s_lshr_b32 s4, s2, 6")
    e("s_lshl_b32 s4, s4, 10")
    e("s_lshr_b32 s5, s2, 3")
    e("s_and_b32 s5, s5, 7")
    e("s_lshl_b32 s5, s5, 7")
    e("s_add_u32 s4, s4, s5")
    e(f"s_sub_u32 s5, s{S_WAVE}, 2")
    e("s_lshl_b32 s5, s5, 6")
    e("s_add_u32 s4, s4, s5")
    e("s_lshl_b32 s4, s4, 4")
    e(f"s_add_u32 s4, s4, {WS_QP}")
    for k in range(1, 4):
        e(f"s_add_u32 s{4+k}, s4, {k*4*1024*16}")
    if OPT["qdelay"]:
        lds_wait(C_P, 1, 32)
        if OPT["qdelay"] > 1:
            e(f"s_sleep {OPT['qdelay']}")
    poll("q", [f"buffer_load_dwordx4 @, v3, s[{SRD_WS}:{SRD_WS+3}], s{4+k} offen sc1" for k in range(4)],
         [16, 20, 24, 28], 6, OPT["sleep_q"])
    for i in range(4):
        e(f"v_add_f32 v{32+i}, v{16+i}, v{20+i}")
        e(f"v_add_f32 v{36+i}, v{24+i}, v{28+i}")
    for i in range(4):
        e(f"v_add_f32 v{32+i}, v{32+i}, v{36+i}")
    e("v_cvt_pk_bf16_f32 v32, v32, v33")
    e("v_cvt_pk_bf16_f32 v33, v34, v35")
    e(f"s_sub_u32 s4, s{S_WAVE}, 2")
    e("s_lshl_b32 s4, s4, 9")
    e("v_lshlrev_b32 v4, 3, v0")
    e("v_add_u32 v4, s4, v4")
    e(f"ds_write_b64 v4, v[32:33] offset:{L_QS}")
    lds_signal(C_Q, 6)
    lab("L_q_skip")
else:
    e("s_lshr_b32 s4, s2, 6")
    e("s_lshl_b32 s4, s4, 10")
    e("s_lshr_b32 s5, s2, 3")
    e("s_and_b32 s5, s5, 7")
    e("s_lshl_b32 s5, s5, 7")
    e("s_add_u32 s4, s4, s5")
    e(f"s_lshl_b32 s5, s{S_WAVE}, 5")
    e("s_add_u32 s4, s4, s5")
    e("s_lshl_b32 s4, s4, 4")
    e(f"s_add_u32 s4, s4, {WS_QP}")
    e(f"s_add_u32 s5, s4, {4*1024*16}")
    e("v_and_b32 v4, 31, v0")
    e("v_lshlrev_b32 v4, 4, v4")
    e("v_lshrrev_b32 v5, 5, v0")
    e("v_lshl_add_u32 v4, v5, 17, v4")
    if OPT["qdelay"]:
        lds_wait(C_P, 1, 6)
        if OPT["qdelay"] > 1:
            e(f"s_sleep {OPT['qdelay']}")
    if OPT["jit"] & 1:
        lds_wait(C_K, 4, 6)
    poll("q", [f"buffer_load_dwordx4 @, v4, s[{SRD_WS}:{SRD_WS+3}], s{4+k} offen sc1" for k in range(2)],
         [16, 20], 6, OPT["sleep_q"], altbase=168)
    for i in range(4):
        e(f"v_add_f32 v{24+i}, v{16+i}, v{20+i}")
    swap_reduce("v_add_f32", [24, 25, 26, 27], [28, 29, 30, 31], ("v_permlane32_swap_b32",))
    e("v_cvt_pk_bf16_f32 v24, v24, v25")
    e("v_cvt_pk_bf16_f32 v25, v26, v27")
    e(f"s_lshl_b32 s4, s{S_WAVE}, 8")
    e("v_and_b32 v5, 31, v0")
    e("v_lshlrev_b32 v5, 3, v5")
    e("v_add_u32 v5, s4, v5")
    with Guard():
        e(f"ds_write_b64 v5, v[24:25] offset:{L_QS}")
        lds_signal(C_Q, 6)

stamp(1, True)
W3, B3, ACC3 = 96, 160, 16
e("s_mov_b32 s14, 0")
with Guard():
    e("v_lshrrev_b32 v9, 4, v0")
    e(f"s_cmp_lt_u32 s{S_WAVE}, 2")
    e("s_cbranch_scc1 L_nowo0")
    srd(SRD_W3, 24, 4194304)
    e("s_lshr_b32 s6, s2, 1")
    e("s_lshl_b32 s9, s6, 15")
    e("s_and_b32 s7, s2, 1")
    e("s_lshl_b32 s7, s7, 9")
    e("s_add_u32 s9, s9, s7")
    e(f"s_sub_u32 s7, s{S_WAVE}, 2")
    e("s_lshl_b32 s7, s7, 8")
    e("s_add_u32 s9, s9, s7")
    e("v_and_b32 v7, 15, v0")
    e("v_lshlrev_b32 v7, 4, v7")
    e("v_lshl_add_u32 v7, v9, 13, v7")
    for i in range(8):
        e(f"buffer_load_dwordx4 v[{W3+4*i}:{W3+4*i+3}], v7, s[{SRD_W3}:{SRD_W3+3}], s9 offen offset:{1024*(i&3)}{NT}")
        if i == 3:
            e("s_add_u32 s9, s9, 4096")
    e("s_branch L_now2")
    lab("L_nowo0")
    e(f"s_cmp_eq_u32 s{S_WAVE}, 1")
    e("s_cbranch_scc0 L_now2")
    e("s_cmp_lt_u32 s2, 112")
    e("s_cbranch_scc1 L_now2")
    e("s_cmp_ge_u32 s2, 224")
    e("s_cbranch_scc1 L_now2")
    e("s_mov_b32 s14, 1")
    srd(SRD_W3, 32, 1792 * 512 * 2)
    e("s_sub_u32 s9, s2, 112")
    e("s_lshr_b32 s6, s9, 3")
    e("s_lshl_b32 s6, s6, 17")
    e("s_and_b32 s7, s9, 7")
    e("s_lshl_b32 s7, s7, 7")
    e("s_add_u32 s9, s6, s7")
    e("v_bfe_u32 v7, v0, 3, 1")
    e("v_lshlrev_b32 v7, 5, v7")
    e("v_lshl_add_u32 v9, v9, 3, v7")
    e("v_and_b32 v7, 7, v0")
    e("v_lshlrev_b32 v7, 4, v7")
    e("v_lshl_add_u32 v7, v9, 10, v7")
    for i in range(16):
        e(f"buffer_load_dwordx4 v[{W3+4*i}:{W3+4*i+3}], v7, s[{SRD_W3}:{SRD_W3+3}], s9 offen offset:{1024*(i&3)}{NT}")
        if i == 7:
            e(f"s_add_u32 s9, s9, {4096 + 56*1024}")
        elif i & 3 == 3 and i < 15:
            e("s_add_u32 s9, s9, 4096")
    lab("L_now2")
e("s_lshr_b32 s4, s2, 4")
e("s_lshl_b32 s4, s4, 7")
e("s_and_b32 s5, s2, 15")
e("s_lshl_b32 s5, s5, 3")
e("s_add_u32 s4, s4, s5")
e("s_lshl_b32 s4, s4, 4")
e(f"s_add_u32 s4, s4, {WS_OP}")
e(f"s_lshl_b32 s5, s{S_WAVE}, 18")
e("s_add_u32 s86, s4, s5")
for k in range(1, 4):
    e(f"s_add_u32 s{86+k}, s86, {k*65536}")
e(f"s_lshl_b32 s5, s{S_WAVE}, 15")
e("s_add_u32 s5, s4, s5")
e(f"s_add_u32 s85, s5, {128*8192}")
e("v_and_b32 v60, 7, v0")
e("v_lshlrev_b32 v60, 4, v60")
e("v_lshrrev_b32 v61, 3, v0")
e("v_lshl_add_u32 v60, v61, 13, v60")
e("v_and_b32 v62, 3, v61")
e(f"s_lshl_b32 s5, s{S_WAVE}, 2")
e("s_sub_u32 s5, 13, s5")
e("v_min_u32 v62, s5, v62")
e("v_and_b32 v63, 7, v0")
e("v_lshlrev_b32 v63, 4, v63")
e("v_lshl_add_u32 v62, v62, 13, v63")
o_loads = [f"buffer_load_dwordx4 v[{32+4*k}:{35+4*k}], v60, s[{SRD_WS}:{SRD_WS+3}], s{86+k} offen sc1" for k in range(4)]
o_loads.append(f"buffer_load_dwordx4 v[48:51], v62, s[{SRD_WS}:{SRD_WS+3}], s85 offen sc1")
e("s_cmp_ge_u32 s2, 64")
e("s_cbranch_scc1 L_c_nowarm")
with Guard():
    if not (OPT["jit"] & 4):
        for l in o_loads:
            e(l)
    srd(SRD_M, 36, 1024)
    e(f"buffer_load_dwordx4 v[64:67], v3, s[{SRD_M}:{SRD_M+3}], 0 offen")
    e("s_lshr_b32 s4, s2, 4")
    e("s_lshl_b32 s4, s4, 10")
    e(f"buffer_load_dwordx4 v[68:71], v3, s[{SRD_X}:{SRD_X+3}], s4 offen")
    srd(SRD_OUT, 34, 1024)
    e("v_and_b32 v6, 31, v0")
    e("v_lshlrev_b32 v6, 1, v6")
    e("s_and_b32 s4, s2, 15")
    e("s_lshl_b32 s4, s4, 6")
    e(f"buffer_load_ushort v72, v6, s[{SRD_OUT}:{SRD_OUT+3}], s4 offen")
lab("L_c_nowarm")
if_dry_goto("L_secAG")
e("s_cmp_lt_u32 s2, 112")
e("s_cbranch_scc1 L_secAG")
e("s_cmp_ge_u32 s2, 224")
e("s_cbranch_scc1 L_secAG")
lab("L_secH")
e("s_sub_u32 s9, s2, 112")
e("s_lshr_b32 s9, s9, 3")
e("s_min_u32 s9, s9, 13")
e(f"s_mul_i32 s4, s{S_WAVE}, 448")
e("s_lshl_b32 s5, s9, 5")
e("s_add_u32 s4, s4, s5")
e("s_lshl_b32 s4, s4, 4")
e(f"s_add_u32 s4, s4, {WS_HP}")
e(f"s_add_u32 s5, s4, {4*448*16}")
srd(SRD_M, 30, 3584)
e("s_lshl_b32 s9, s9, 8")
e("v_and_b32 v6, 31, v0")
e("v_lshlrev_b32 v4, 4, v6")
e("v_lshlrev_b32 v6, 3, v6")
e(f"buffer_load_dwordx2 v[80:81], v6, s[{SRD_M}:{SRD_M+3}], s9 offen")
e("v_lshrrev_b32 v7, 5, v0")
e(f"s_mov_b32 s6, {2*4*448*16}")
e("v_mul_lo_u32 v7, s6, v7")
e("v_add_u32 v4, v7, v4")
poll("h", [f"buffer_load_dwordx4 @, v4, s[{SRD_WS}:{SRD_WS+3}], s{4+k} offen sc1" for k in range(2)],
     [16, 20], 6, OPT["sleep_q"])
for i in range(4):
    e(f"v_add_f32 v{24+i}, v{16+i}, v{20+i}")
swap_reduce("v_add_f32", [24, 25, 26, 27], [28, 29, 30, 31], ("v_permlane32_swap_b32",))
for p in range(2):
    a, b_ = 24 + 2 * p, 25 + 2 * p
    bf16_round_pair(28, a, b_, a, b_)
    e(f"v_lshlrev_b32 v28, 16, v{80+p}")
    e(f"v_and_b32 v29, 0xffff0000, v{80+p}")
    e(f"v_add_f32 v{a}, v{a}, v28")
    e(f"v_add_f32 v{b_}, v{b_}, v29")
    bf16_round_pair(28, a, b_, a, b_)
e("v_mov_b32 v31, 0x3d372713")
for r in (24, 25, 26, 27):
    e(f"v_mul_f32 v30, v{r}, v{r}")
    e(f"v_mul_f32 v30, v30, v{r}")
    e(f"v_fma_f32 v30, v30, v31, v{r}")
    e(f"v_mul_f32 v30, 0x40135761, v30")
    e(f"v_exp_f32 v30, v30")
    e("s_nop 0")
    e(f"v_add_f32 v30, 1.0, v30")
    e(f"v_rcp_f32 v30, v30")
    e("s_nop 0")
    e(f"v_fma_f32 v30, v30, -2.0, 2.0")
    e(f"v_mul_f32 v30, 0.5, v30")
    e(f"v_mul_f32 v{r}, v{r}, v30")
e("v_cvt_pk_bf16_f32 v24, v24, v25")
e("v_cvt_pk_bf16_f32 v25, v26, v27")
with Guard():
    e(f"ds_write_b64 v5, v[24:25] offset:{L_HA}")
    lds_signal(C_H, 6)
    e("s_cmp_eq_u32 s14, 1")
    e("s_cbranch_scc0 L_secAG")
lds_wait(C_H, 4, 6)
e(f"ds_read_b128 v[{VA}:{VA+3}], v11 offset:{L_HA}")
e(f"ds_read_b128 v[{VA2}:{VA2+3}], v11 offset:{L_HA+128}")
with Guard():
    e("s_waitcnt vmcnt(0)")
e("s_waitcnt lgkmcnt(0)")
tile128(VA, VA2, 15, W=W3, B=B3, ACC=ACC3, G=W3)
e("s_sub_u32 s5, s2, 112")
e("s_lshr_b32 s4, s5, 3")
e("s_add_u32 s4, s4, 128")
e("s_lshl_b32 s4, s4, 9")
e("s_and_b32 s5, s5, 7")
e("s_lshl_b32 s5, s5, 4")
e("s_add_u32 s4, s4, s5")
e("s_lshl_b32 s4, s4, 4")
e(f"s_add_u32 s4, s4, {WS_OP}")
e("v_and_b32 v1, 15, v0")
e(f"v_lshl_add_u32 v1, v{TMP+8}, 7, v1")
e("v_lshlrev_b32 v1, 4, v1")
if_dry_goto("L_dry_done_comm")
e(f"buffer_store_dwordx4 v[{TMP}:{TMP+3}], v1, s[{SRD_WS}:{SRD_WS+3}], s4 offen sc1")
lab("L_secAG")
e(f"s_lshl_b32 s4, s{S_WAVE}, 5")
e("s_lshr_b32 s5, s2, 3")
e("s_add_u32 s4, s4, s5")
e("s_lshl_b32 s6, s4, 2")
e("s_bfe_u32 s5, s2, 0x20001")
e("s_add_u32 s6, s6, s5")
e("s_lshl_b32 s6, s6, 10")
e(f"s_add_u32 s6, s6, {WS_APO}")
e(f"s_lshl_b32 s4, s4, {10 if OPT['apm128'] else 7}")
e(f"s_add_u32 s4, s4, {WS_APM}")
e(f"v_lshlrev_b32 v4, {7 if OPT['apm128'] else 4}, v61")
if OPT["adelay"]:
    lds_wait(C_PA, 4, 6)
if OPT["jit"] & 2:
    lds_wait(C_O, 4, 6)
poll("a", [f"buffer_load_dwordx4 @, v3, s[{SRD_WS}:{SRD_WS+3}], s6 offen sc1",
           f"buffer_load_dwordx4 @, v4, s[{SRD_WS}:{SRD_WS+3}], s4 offen sc1"], [16, 20], 6, OPT["sleep_t"], altbase=168)
stamp(3, True)
e("v_mov_b32 v24, v20")
dpp_reduce("v_max_f32", [24], ["row_ror:8"])
swap_reduce("v_max_f32", [24], [25])
e("v_sub_f32 v25, v20, v24")
e("v_mul_f32 v25, 0x3fb8aa3b, v25")
e("v_exp_f32 v25, v25")
e("s_nop 0")
e("v_mul_f32 v26, v25, v21")
for i in range(4):
    e(f"v_mul_f32 v{84+i}, v25, v{16+i}")
dpp_reduce("v_add_f32", [26, 84, 85, 86, 87], ["row_ror:8"])
swap_reduce("v_add_f32", [26, 84, 85, 86, 87], [27, 28, 29, 30, 31])
e("v_rcp_f32 v27, v26")
e("s_nop 0")
e("v_fma_f32 v28, -v26, v27, 2.0")
e("v_mul_f32 v27, v27, v28")
for i in range(4):
    e(f"v_mul_f32 v{84+i}, v27, v{84+i}")
e("v_cvt_pk_bf16_f32 v84, v84, v85")
e("v_cvt_pk_bf16_f32 v85, v86, v87")
e(f"s_lshl_b32 s4, s{S_WAVE}, 6")
e("v_lshlrev_b32 v4, 3, v0")
e("v_add_u32 v4, s4, v4")
with Guard():
    e("s_mov_b64 exec, 0xff")
    e(f"ds_write_b64 v4, v[84:85] offset:{L_OA}")
    e("s_mov_b64 exec, -1")
    lds_signal(C_A, 6)
stamp(4, True)
if_dry_goto("L_secC")
e(f"s_cmp_lt_u32 s{S_WAVE}, 2")
e("s_cbranch_scc1 L_secC_done")
lab("L_secC")
e("s_lshr_b32 s4, s2, 1")
e("s_lshl_b32 s4, s4, 9")
e("s_and_b32 s5, s2, 1")
e("s_lshl_b32 s5, s5, 6")
e("s_add_u32 s4, s4, s5")
e(f"s_sub_u32 s5, s{S_WAVE}, 2")
e("s_lshl_b32 s5, s5, 5")
e("s_add_u32 s4, s4, s5")
e("s_lshl_b32 s4, s4, 4")
e(f"s_add_u32 s4, s4, {WS_OP}")
e("s_add_u32 s5, s4, 4096")
e("v_lshlrev_b32 v2, 5, v0")
e("v_and_b32 v1, 3, v0")
e("v_lshlrev_b32 v1, 6, v1")
e("v_lshrrev_b32 v9, 4, v0")
e("v_lshl_add_u32 v1, v9, 4, v1")
lds_wait(C_A, 4, 6)
e(f"ds_read_b128 v[{VA}:{VA+3}], v1 offset:{L_OA}")
with Guard():
    e("s_waitcnt vmcnt(0)")
e("s_waitcnt lgkmcnt(0)")
tile_mm(W3, VA, B3, ACC3)
e("s_nop 7")
e("s_nop 1")
if not OPT["opfull"]:
    for b in range(4):
        for hf in range(2):
            d = TMP + 8 * b + 4 * hf
            tagq(d, [ACC3 + 4 * (4 * hf + i) + b for i in range(4)])
    with Guard():
        set_exec("0xffff", 0)
        for b in range(4):
            for hf in range(2):
                d = TMP + 8 * b + 4 * hf
                e(f"buffer_store_dwordx4 v[{d}:{d+3}], v2, s[{SRD_WS}:{SRD_WS+3}], s{4+(b>>1)} offen offset:{2048*(b&1)+16*hf} sc1")
        e("s_mov_b64 exec, -1")
else:
    e("v_and_b32 v6, 16, v0")
    e("v_cmp_ne_u32 s[90:91], 0, v6")
    e("v_cmp_lt_u32 s[92:93], 31, v0")
    e("s_nop 1")
    for k in range(2):
        for i in range(4):
            t0, t1 = TMP + 16, TMP + 17
            e(f"v_cndmask_b32 v{t0}, v{ACC3+4*i+k}, v{ACC3+4*(4+i)+k}, s[90:91]")
            e(f"v_cndmask_b32 v{t1}, v{ACC3+4*i+2+k}, v{ACC3+4*(4+i)+2+k}, s[90:91]")
            e(f"v_cndmask_b32 v{TMP+8+4*k+i}, v{t0}, v{t1}, s[92:93]")
        tagq(TMP + 4 * k, [TMP + 8 + 4 * k + i for i in range(4)])
    e("v_and_b32 v2, 15, v0")
    e("v_lshlrev_b32 v2, 5, v2")
    e("v_add_u32 v2, v6, v2")
    e("v_lshrrev_b32 v6, 5, v0")
    e("v_lshl_add_u32 v2, v6, 12, v2")
    with Guard():
        for k in range(2):
            e(f"buffer_store_dwordx4 v[{TMP+4*k}:{TMP+4*k+3}], v2, s[{SRD_WS}:{SRD_WS+3}], s4 offen offset:{2048*k} sc1")
stamp(2, True)
if OPT["odelay"]:
    if OPT["odelay"] == 1:
        e("s_waitcnt vmcnt(0)")
    lds_signal(C_PO, 6)
lab("L_secC_done")
e("s_cmp_lt_u32 s2, 64")
e("s_cbranch_scc1 L_secF")
if_dry_goto("L_secH")
e("s_branch L_exit_c")
lab("L_secF")
GS = 74
for d in range(4):
    e(f"v_lshlrev_b32 v76, 16, v{68+d}")
    e(f"v_and_b32 v77, 0xffff0000, v{68+d}")
    e(f"v_lshlrev_b32 v78, 16, v{64+d}")
    e(f"v_and_b32 v79, 0xffff0000, v{64+d}")
    e("v_mul_f32 v76, v76, v78")
    e("v_mul_f32 v77, v77, v79")
    bf16_round_pair(78, 76, 77, 76, 77)
    if d == 0:
        e(f"v_add_f32 v{GS}, v76, v77")
    else:
        e(f"v_add_f32 v{GS}, v{GS}, v76")
        e(f"v_add_f32 v{GS}, v{GS}, v77")
dpp_reduce("v_add_f32", [GS], ROW16)
swap_reduce("v_add_f32", [GS], [76])
e(f"v_cvt_pk_bf16_f32 v75, v{GS}, v{GS}")
e("v_lshlrev_b32 v75, 16, v75")
e("v_mul_f32 v75, 0xbfb8aa3b, v75")
e("v_exp_f32 v75, v75")
e("s_nop 0")
e("v_add_f32 v75, 1.0, v75")
e("v_rcp_f32 v76, v75")
e("s_nop 0")
e("v_fma_f32 v77, -v75, v76, 2.0")
e("v_mul_f32 v76, v76, v77")
e("v_cvt_pk_bf16_f32 v76, v76, v76")
e("v_lshlrev_b32 v75, 16, v76")
e("v_sub_f32 v76, 1.0, v75")
e("v_cvt_pk_bf16_f32 v76, v76, v76")
e("v_lshlrev_b32 v76, 16, v76")
e("v_lshlrev_b32 v73, 16, v72")
if OPT["odelay"]:
    lds_wait(C_PO, 2, 1)
poll("o", [re.sub(r"v\[\d+:\d+\]", "@", l, count=1) for l in o_loads], [32, 36, 40, 44, 48], 1, OPT["sleep_t"], altbase=128)
stamp(5, True)
e(f"s_lshl_b32 s5, s{S_WAVE}, 5")
e("s_sub_u32 s5, 112, s5")
e("s_min_u32 s5, s5, 32")
e("v_cmp_gt_u32 vcc, s5, v0")
e("s_nop 1")
for i in range(4):
    e(f"v_cndmask_b32 v{92+i}, 0, v{48+i}, vcc")
    e(f"v_add_f32 v{88+i}, v{32+i}, v{36+i}")
    e(f"v_add_f32 v{52+i}, v{40+i}, v{44+i}")
for i in range(4):
    e(f"v_add_f32 v{88+i}, v{88+i}, v{52+i}")
regs = [88 + i for i in range(8)]
dpp_reduce("v_add_f32", regs, ["row_ror:8"])
swap_reduce("v_add_f32", regs, [52 + i for i in range(8)])
e(f"s_lshl_b32 s4, s{S_WAVE}, 7")
e("v_add_u32 v4, s4, v3")
with Guard():
    e("s_mov_b64 exec, 0xff")
    e(f"ds_write_b128 v4, v[88:91] offset:{L_F}")
    e(f"ds_write_b128 v4, v[92:95] offset:{L_F+512}")
    e("s_mov_b64 exec, -1")
    lds_signal(C_F, 6)
    e(f"s_cmp_lg_u32 s{S_WAVE}, 0")
    e("s_cbranch_scc1 L_exit_c")
lds_wait(C_F, 4, 6)
e("v_and_b32 v6, 31, v0")
e("v_lshlrev_b32 v4, 2, v6")
for w in range(8):
    e(f"ds_read_b32 v{52+w}, v4 offset:{L_F+128*w}")
e("s_waitcnt lgkmcnt(0)")
e("v_add_f32 v52, v52, v53")
e("v_add_f32 v54, v54, v55")
e("v_add_f32 v56, v56, v57")
e("v_add_f32 v58, v58, v59")
e("v_add_f32 v52, v52, v54")
e("v_add_f32 v56, v56, v58")
bf16_round_pair(54, 52, 56, 52, 56)
e("v_add_f32 v56, v56, v73")
e("v_cvt_pk_bf16_f32 v54, v56, v56")
e("v_lshlrev_b32 v56, 16, v54")
e("v_mul_f32 v52, v75, v52")
e("v_mul_f32 v56, v76, v56")
bf16_round_pair(54, 52, 56, 52, 56)
e("v_add_f32 v52, v52, v56")
e("v_cvt_pk_bf16_f32 v52, v52, v52")
e("v_lshlrev_b32 v6, 1, v6")
e("s_lshl_b32 s4, s2, 6")
if_dry_goto("L_secH")
if OPT["padx"]:
    lab("L_pad")
    e("s_memrealtime s[98:99]")
    e("s_waitcnt lgkmcnt(0)")
    e("s_sub_u32 s98, s98, s94")
    e(f"s_cmp_lt_u32 s98, {OPT['padx']*100}")
    e("s_cbranch_scc1 L_pad")
srd(SRD_OUT, 38, 4096)
set_exec("-1", 0)
e(f"buffer_store_short v52, v6, s[{SRD_OUT}:{SRD_OUT+3}], s4 offen")
if OPT["dbg"]:
    e("s_cmp_ge_u32 s2, 14")
    e("s_cbranch_scc1 L_dbg1")
    e("s_memrealtime s[98:99]")
    srd(SRD_M, 40, 256)
    e("s_lshl_b32 s4, s2, 2")
    e("s_add_u32 s4, s4, 8")
    e("s_waitcnt lgkmcnt(0)")
    e("v_mov_b32 v236, s4")
    e("v_mov_b32 v237, s98")
    e("s_mov_b64 exec, 1")
    e(f"buffer_store_dword v237, v236, s[{SRD_M}:{SRD_M+3}], 0 offen")
    lab("L_dbg1")
e("s_cmp_lg_u32 s2, 0")
e("s_cbranch_scc1 L_exit_c")
e("s_mov_b64 exec, 1")
e(f"v_mov_b32 v1, 0")
e(f"v_mov_b32 v4, s{S_TAG}")
e(f"v_mov_b32 v5, s{S_TAG+1}")
e(f"buffer_store_dwordx2 v[4:5], v1, s[{SRD_WS}:{SRD_WS+3}], 0 offen offset:{WS_GEN} sc1")
lab("L_exit_c")
dump_stamps(True)
lab("L_exit")
e("s_endpgm")
if not OPT["dry"]:
    lab("L_dry_done_data")
    lab("L_dry_done_comm")
    e("s_endpgm")

out.append('.section .rodata,"a"')
out.append(".p2align 6")
out.append(f".amdhsa_kernel {NAME}_kernel")
out.append("  .amdhsa_next_free_vgpr 240")
out.append("  .amdhsa_next_free_sgpr 102")
out.append("  .amdhsa_accum_offset 240")
out.append("  .amdhsa_group_segment_fixed_size 0")
out.append("  .amdhsa_kernarg_size 112")
out.append("  .amdhsa_user_sgpr_count 2")
out.append("  .amdhsa_user_sgpr_kernarg_segment_ptr 1")
out.append("  .amdhsa_system_sgpr_workgroup_id_x 1")
out.append(".end_amdhsa_kernel")

dst = sys.argv[1] if len(sys.argv) > 1 else f"cdna_kernels/{NAME}.s"
open(dst, "w").write("\n".join(out) + "\n")
print("wrote", dst, len(out), "lines")
```

```python
import sys
import re

NAME = "gated_mix__sliding_block_cached__mixer_channel_mlp__decode"

OPT = dict(
    stamps=0,
    nt=1,
    depth=4,
    sleep_l=1,
    sleep_q=1,
    sleep_t=0,
    dry=0,
    k_after=0,
    pp=0,
    padx=0,
    adelay=0,
    odelay=0,
    ackw=0,
    ackst=0,
    ppq=0,
    qdelay=0,
    pre=0,
    dbg=0,
    q2=0,
    kdma=1,
    jit=0,
    jit_k=7,
    vstamp=0,
    w1_late=0,
    go_pub=0,
    opfull=1,
    apm128=1,
)
for a in sys.argv[2:]:
    k, v = a.split("=")
    OPT[k] = int(v)

WS_GEN = 0
WS_QP = 0x10000
WS_HP = WS_QP + 4 * 4 * 1024 * 16
WS_APO = WS_HP + 4 * 4 * 448 * 16
WS_APM = WS_APO + 4 * 32 * 4 * 8 * 8 * 16
WS_OP = WS_APM + 4 * 32 * 8 * 128
WS_ST = WS_OP + 142 * 4 * 128 * 16
WS_END = WS_ST + 256 * 8 * 16 * 8
open("gen_layout.py", "w").write(f"WS_ST = {WS_ST}\n")

L_PIECE = 0
L_QS = 8192
L_OW = 9216
L_ML = 17408
L_OA = 17536
L_HA = 17792
L_F = 18816
L_CNT = 19840
L_K = 20480
L_END = L_K + 32768
LDS_BYTES = 53248
assert L_END <= LDS_BYTES
C_Q, C_O, C_H, C_A, C_F, C_GO, C_K, C_P, C_PA, C_PO = 0, 4, 8, 12, 16, 20, 24, 28, 32, 36

out = []


def e(s):
    out.append("    " + s)


def lab(s):
    out.append(s + ":")


NT = " nt" if OPT["nt"] else ""
S_WAVE = 3
SRD_X, SRD_K, SRD_V, SRD_W1, SRD_W3, SRD_WS, SRD_OUT, SRD_M = 44, 48, 52, 56, 60, 64, 68, 72
S_TAG = 76
S_SELLO, S_SELHI = 78, 79
S_T0 = 80
S_MASK = 96
S_DRY = 97
S_STAMP = 100
V_ST = 236
uid = [0]


def nid():
    uid[0] += 1
    return uid[0]


class Guard:
    def __enter__(self):
        if not OPT["dry"]:
            return
        self.n = nid()
        e(f"s_cmp_lg_u32 s{S_DRY}, 0")
        e(f"s_cbranch_scc1 L_g{self.n}")

    def __exit__(self, *a):
        if not OPT["dry"]:
            return
        lab(f"L_g{self.n}")


def if_dry_goto(label):
    if not OPT["dry"]:
        e("s_nop 1")
        return
    e(f"s_cmp_lg_u32 s{S_DRY}, 0")
    e(f"s_cbranch_scc1 {label}")


def srd(dst, ptr, nbytes):
    e(f"s_mov_b32 s{dst}, s{ptr}")
    e(f"s_and_b32 s{dst+1}, s{ptr+1}, 0xffff")
    e(f"s_mov_b32 s{dst+2}, {nbytes}")
    e(f"s_mov_b32 s{dst+3}, 0x00020000")


def stamp_raw(i, comm):
    va, vt = V_ST, V_ST + 2
    e(f"s_lshl_b32 s98, s2, 3")
    e(f"s_add_u32 s98, s98, s{S_WAVE}")
    if comm:
        e("s_add_u32 s98, s98, 4")
    e(f"s_lshl_b32 s98, s98, 7")
    e(f"s_add_u32 s98, s98, {WS_ST + 8 * i}")
    e(f"v_mov_b32 v{va}, s98")
    e(f"v_mov_b32 v{vt}, s{S_STAMP}")
    e(f"v_mov_b32 v{vt+1}, s{S_STAMP+1}")
    e(f"s_mov_b64 s[98:99], exec")
    e(f"s_mov_b64 exec, 1")
    e(f"buffer_store_dwordx2 v[{vt}:{vt+1}], v{va}, s[{SRD_WS}:{SRD_WS+3}], 0 offen")
    e(f"s_mov_b64 exec, s[98:99]")


STAMP_MAP_D = {0: 0, 3: 1, 5: 2, 2: 3, 6: 4, 7: 5, 8: 6}
STAMP_MAP_C = {0: 0, 1: 1, 3: 2, 2: 3, 5: 4, 7: 6, 6: 5}


def stamp(i, comm=False):
    if not OPT["stamps"]:
        return
    m = STAMP_MAP_C if comm else STAMP_MAP_D
    if i not in m:
        return
    k = m[i]
    with Guard():
        e(f"s_memrealtime s[{16+2*k}:{17+2*k}]")


def dump_stamps(comm):
    if not OPT["stamps"]:
        return
    m = STAMP_MAP_C if comm else STAMP_MAP_D
    e("s_waitcnt lgkmcnt(0)")
    e("s_mov_b64 exec, -1")
    if OPT["stamps"] == 2:
        srd(SRD_M, 40, 256)
        e("s_mov_b64 exec, 1")
        for i, k in m.items():
            if comm and i in (6,):
                continue
            slot = i if not comm else {0: 9, 1: 10, 3: 11, 4: 12, 5: 13, 7: 14}[i]
            n_ = nid()
            if (not comm) and i in (7, 8):
                e(f"s_cmp_lt_u32 s{S_WAVE}, 2")
                e(f"s_cbranch_scc1 L_ds{n_}")
            if comm and i == 0:
                e("s_cmp_eq_u32 s8, 0")
                e(f"s_cbranch_scc1 L_ds{n_}")
            if comm and i == 5:
                e("s_cmp_ge_u32 s2, 64")
                e(f"s_cbranch_scc1 L_ds{n_}")
            e(f"v_mov_b32 v{V_ST}, {4*slot}")
            if (not comm) and i == 0:
                e(f"s_not_b32 s{S_STAMP}, s{16+2*k}")
                e(f"v_mov_b32 v{V_ST+1}, s{S_STAMP}")
            else:
                e(f"v_mov_b32 v{V_ST+1}, s{16+2*k}")
            e(f"buffer_atomic_umax v{V_ST+1}, v{V_ST}, s[{SRD_M}:{SRD_M+3}], 0 offen")
            e("s_nop 1")
            lab(f"L_ds{n_}")
        return
    for i, k in m.items():
        e(f"s_mov_b32 s{S_STAMP}, s{16+2*k}")
        e(f"s_mov_b32 s{S_STAMP+1}, s{17+2*k}")
        stamp_raw(i, comm)
        e("s_nop 1")


def tile_mm(W, A, B, ACC, acc_in=False):
    for q in range(4):
        for i in range(4):
            e(f"v_perm_b32 v{B+i}, v{W+4*(2*i+1)+q}, v{W+4*(2*i)+q}, s{S_SELLO}")
        for i in range(4):
            e(f"v_perm_b32 v{B+4+i}, v{W+4*(2*i+1)+q}, v{W+4*(2*i)+q}, s{S_SELHI}")
        e("s_nop 1")
        for jj in range(2):
            j = 2 * q + jj
            c = f"v[{ACC+4*j}:{ACC+4*j+3}]" if acc_in else "0"
            e(f"v_mfma_f32_16x16x32_bf16 v[{ACC+4*j}:{ACC+4*j+3}], v[{A}:{A+3}], v[{B+4*jj}:{B+4*jj+3}], {c}")


VT = 188
VTRAW = 186


def load_tag(vtmp):
    e(f"v_mov_b32 v{vtmp}, 0")
    e(f"buffer_load_dwordx2 v[{VTRAW}:{VTRAW+1}], v{vtmp}, s[{SRD_WS}:{SRD_WS+3}], 0 offen offset:{WS_GEN} sc1")


def finish_tag():
    e(f"v_readfirstlane_b32 s{S_TAG}, v{VTRAW}")
    e(f"v_readfirstlane_b32 s{S_TAG+1}, v{VTRAW+1}")
    e("s_nop 3")
    e(f"s_add_u32 s{S_TAG}, s{S_TAG}, 1")
    e(f"s_addc_u32 s{S_TAG+1}, s{S_TAG+1}, 0")
    e(f"s_and_b32 s{S_T0}, s{S_TAG}, 0x3ff")
    e(f"s_bfe_u32 s{S_T0+1}, s{S_TAG}, 0xa000a")
    e(f"s_bfe_u32 s{S_T0+2}, s{S_TAG}, 0xa0014")
    e(f"s_lshr_b64 s[{S_T0+4}:{S_T0+5}], s[{S_TAG}:{S_TAG+1}], 30")
    e(f"s_and_b32 s{S_T0+3}, s{S_T0+4}, 0x3ff")
    for i in range(4):
        e(f"v_mov_b32 v{VT+i}, s{S_T0+i}")


def tagq(dst, srcs):
    for i in range(4):
        e(f"v_add_u32 v{dst+i}, 0x200, v{srcs[i]}")
    for i in range(4):
        e(f"v_bfi_b32 v{dst+i}, s{S_MASK}, v{VT+i}, v{dst+i}")


def poll(name, loads, quads, vx, sleep, maxit=100000, altbase=None):
    n = len(loads)

    def issue(base_map):
        for l, q in zip(loads, quads):
            r = base_map(q)
            e(l.replace("@", f"v[{r}:{r+3}]"))

    def check(base_map):
        first = True
        for q in quads:
            r = base_map(q)
            for i in range(4):
                if first:
                    e(f"v_xor_b32 v{vx}, v{r+i}, v{VT+i}")
                    first = False
                else:
                    e(f"v_xor_b32 v{vx+1}, v{r+i}, v{VT+i}")
                    e(f"v_or_b32 v{vx}, v{vx}, v{vx+1}")
        e(f"v_and_b32 v{vx}, 0x3ff, v{vx}")
        e(f"v_cmp_ne_u32 vcc, 0, v{vx}")

    A = lambda q: q
    e(f"s_mov_b32 s{S_T0+10}, {maxit}")
    usepp = OPT["pp"] or (OPT["ppq"] and name == "q")
    if not usepp or altbase is None:
        lab(f"L_poll_{name}")
        issue(A)
        with Guard():
            e("s_waitcnt vmcnt(0)")
        check(A)
        if_dry_goto(f"L_pdone_{name}")
        e(f"s_cmp_eq_u64 vcc, 0")
        e(f"s_cbranch_scc1 L_pdone_{name}")
        e(f"s_sub_u32 s{S_T0+10}, s{S_T0+10}, 1")
        e(f"s_cmp_eq_u32 s{S_T0+10}, 0")
        e(f"s_cbranch_scc1 L_pdone_{name}")
        if sleep:
            e(f"s_sleep {sleep}")
        e(f"s_branch L_poll_{name}")
        lab(f"L_pdone_{name}")
        for q in quads:
            for i in range(4):
                e(f"v_and_b32 v{q+i}, 0xfffffc00, v{q+i}")
        return
    B = lambda q: altbase + (q - quads[0])
    issue(A)
    lab(f"L_poll_{name}")
    e(f"s_sleep {max(OPT['pp'], OPT['ppq'])}")
    issue(B)
    with Guard():
        e(f"s_waitcnt vmcnt({n})")
    check(A)
    if_dry_goto(f"L_pB_{name}")
    e(f"s_cmp_eq_u64 vcc, 0")
    e(f"s_cbranch_scc1 L_pdone_{name}")
    e(f"s_sleep {max(OPT['pp'], OPT['ppq'])}")
    issue(A)
    e(f"s_waitcnt vmcnt({n})")
    check(B)
    e(f"s_cmp_eq_u64 vcc, 0")
    e(f"s_cbranch_scc1 L_pB_{name}")
    e(f"s_sub_u32 s{S_T0+10}, s{S_T0+10}, 1")
    e(f"s_cmp_eq_u32 s{S_T0+10}, 0")
    e(f"s_cbranch_scc0 L_poll_{name}")
    lab(f"L_pB_{name}")
    for q in quads:
        for i in range(4):
            e(f"v_mov_b32 v{q+i}, v{B(q)+i}")
    lab(f"L_pdone_{name}")


def lds_signal(cnt, vtmp):
    e("s_waitcnt lgkmcnt(0)")
    e(f"v_mov_b32 v{vtmp}, {L_CNT+cnt}")
    e(f"v_mov_b32 v{vtmp+1}, 1")
    e("s_mov_b64 exec, 1")
    e(f"ds_add_u32 v{vtmp}, v{vtmp+1}")
    e("s_mov_b64 exec, -1")


def lds_wait(cnt, target, vtmp):
    n = nid()
    e(f"v_mov_b32 v{vtmp}, {L_CNT+cnt}")
    e(f"s_mov_b32 s{S_T0+11}, 4000000")
    lab(f"L_lw{n}")
    e(f"ds_read_b32 v{vtmp+1}, v{vtmp}")
    e("s_waitcnt lgkmcnt(0)")
    e(f"v_readfirstlane_b32 s{S_T0+12}, v{vtmp+1}")
    if_dry_goto(f"L_lwd{n}")
    e("s_nop 1")
    e(f"s_cmp_ge_u32 s{S_T0+12}, {target}")
    e(f"s_cbranch_scc1 L_lwd{n}")
    e(f"s_sub_u32 s{S_T0+11}, s{S_T0+11}, 1")
    e(f"s_cmp_eq_u32 s{S_T0+11}, 0")
    e(f"s_cbranch_scc1 L_lwd{n}")
    if OPT["sleep_l"]:
        e(f"s_sleep {OPT['sleep_l']}")
    e(f"s_branch L_lw{n}")
    lab(f"L_lwd{n}")


def bf16_round_pair(dst_pk, a, b, lo, hi):
    e(f"v_cvt_pk_bf16_f32 v{dst_pk}, v{a}, v{b}")
    e(f"v_lshlrev_b32 v{lo}, 16, v{dst_pk}")
    e(f"v_and_b32 v{hi}, 0xffff0000, v{dst_pk}")


def dpp_reduce(op, regs, ctls):
    for ctl in ctls:
        e("s_nop 1")
        for r in regs:
            e(f"{op}_dpp v{r}, v{r}, v{r} {ctl} row_mask:0xf bank_mask:0xf")


ROW16 = ["quad_perm:[1,0,3,2]", "quad_perm:[2,3,0,1]", "row_half_mirror", "row_mirror"]


def swap_reduce(op, regs, tmps, sws=("v_permlane16_swap_b32", "v_permlane32_swap_b32")):
    for sw in sws:
        for r, t in zip(regs, tmps):
            e(f"v_mov_b32 v{t}, v{r}")
        e("s_nop 1")
        for r, t in zip(regs, tmps):
            e(f"{sw} v{r}, v{t}")
        e("s_nop 1")
        for r, t in zip(regs, tmps):
            e(f"{op} v{r}, v{r}, v{t}")


def set_exec(lo, hi):
    e(f"s_mov_b32 exec_lo, {lo}")
    e(f"s_mov_b32 exec_hi, {hi}")


VW, VK, VV, VB, VACC = 16, 80, 112, 144, 152
VA, VA2 = 12, 224
VX = 152
TMP = 192


def lane_setup():
    e("v_and_b32 v1, 7, v0")
    e("v_bfe_u32 v2, v0, 3, 1")
    e("v_lshrrev_b32 v3, 4, v0")
    e("v_lshlrev_b32 v4, 5, v2")
    e("v_lshl_add_u32 v4, v3, 3, v4")
    e("v_and_b32 v5, 3, v0")
    e("v_bfe_u32 v6, v0, 2, 1")
    e("v_lshlrev_b32 v6, 5, v6")
    e("v_lshl_add_u32 v6, v3, 3, v6")
    e("v_lshlrev_b32 v11, 1, v6")
    e("v_lshl_add_u32 v6, v5, 10, v11")
    e("v_lshl_add_u32 v11, v5, 8, v11")
    e("v_lshlrev_b32 v10, 5, v1")
    e("v_lshl_add_u32 v10, v2, 10, v10")


def gather_quads(G, ACC=None):
    ACC = VACC if ACC is None else ACC
    for b in range(4):
        for hf in range(2):
            for i in range(4):
                e(f"v_mov_b32 v{G+8*b+4*hf+i}, v{ACC+4*(4*hf+i)+b}")


def tile128(A1, A2, piece_off_sreg, W=None, B=None, ACC=None, G=120):
    W = VW if W is None else W
    B = VB if B is None else B
    ACC = VACC if ACC is None else ACC
    tile_mm(W, A1, B, ACC)
    tile_mm(W + 32, A2, B, ACC, acc_in=True)
    e("v_lshlrev_b32 v1, 4, v0")
    e(f"v_lshrrev_b32 v{TMP+8}, 4, v0")
    e(f"v_add_u32 v1, s{piece_off_sreg}, v1")
    e(f"v_add_u32 v2, s{piece_off_sreg}, v10")
    e("s_nop 7")
    gather_quads(G, ACC)
    with Guard():
        set_exec("0xff0000ff", 0)
        for b in range(4):
            for hf in range(2):
                e(f"ds_write_b128 v2, v[{G+8*b+4*hf}:{G+8*b+4*hf+3}] offset:{256*b+16*hf}")
        e("s_mov_b64 exec, -1")
    e("s_waitcnt lgkmcnt(0)")
    e(f"ds_read_b128 v[{TMP}:{TMP+3}], v1")
    e(f"ds_read_b128 v[{TMP+4}:{TMP+7}], v1 offset:1024")
    e("s_waitcnt lgkmcnt(0)")
    for i in range(4):
        e(f"v_add_f32 v{TMP+i}, v{TMP+i}, v{TMP+4+i}")
    tagq(TMP, [TMP, TMP + 1, TMP + 2, TMP + 3])


hdr = open(f"cdna_kernels/{NAME}.s.ref").read().split("\n")
top = [l for l in hdr if l.startswith(";") and "@launch" not in l]
out.extend(top)
out.append(f"; @launch grid=(256,1,1) block=(512,1,1) lds={LDS_BYTES}")
out.append('.amdgcn_target "amdgcn-amd-amdhsa--gfx950"')
out.append(".text")
out.append(f".globl {NAME}_kernel")
out.append(".p2align 8")
out.append(f".type {NAME}_kernel,@function")
lab(f"{NAME}_kernel")

e("s_cmp_ge_u32 s2, 256")
e("s_cbranch_scc1 L_exit")
e("s_load_dwordx16 s[16:31], s[0:1], 0")
e("s_load_dwordx8 s[32:39], s[0:1], 64")
e("s_load_dwordx4 s[40:43], s[0:1], 96")
e("v_lshrrev_b32 v1, 6, v0")
e("v_and_b32 v0, 63, v0")
e(f"s_mov_b32 s{S_SELLO}, 0x05040100")
e(f"s_mov_b32 s{S_SELHI}, 0x07060302")
e(f"s_mov_b32 s{S_MASK}, 0x3ff")
e(f"s_mov_b32 s{S_DRY}, 0")
e(f"v_readfirstlane_b32 s{S_WAVE}, v1")
lane_setup()
e("s_waitcnt lgkmcnt(0)")
srd(SRD_X, 16, 4096)
srd(SRD_WS, 42, WS_END)
e(f"s_cmp_ge_u32 s{S_WAVE}, 4")
e("s_cbranch_scc1 L_comm")

srd(SRD_K, 18, 33554432)
srd(SRD_V, 20, 33554432)
stamp(0)
if OPT["dbg"]:
    e(f"s_cmp_lg_u32 s{S_WAVE}, 0")
    e("s_cbranch_scc1 L_dbg0")
    e("s_cmp_eq_u32 s2, 0")
    e("s_cselect_b32 s4, 0, 4")
    e("s_cmp_eq_u32 s2, 0")
    e("s_cbranch_scc1 L_dbg0b")
    e("s_cmp_eq_u32 s2, 255")
    e("s_cbranch_scc0 L_dbg0")
    lab("L_dbg0b")
    e("s_memrealtime s[98:99]")
    srd(SRD_M, 40, 256)
    e("s_waitcnt lgkmcnt(0)")
    e("v_mov_b32 v236, s4")
    e("v_mov_b32 v237, s98")
    e("s_mov_b64 exec, 1")
    e(f"buffer_store_dword v237, v236, s[{SRD_M}:{SRD_M+3}], 0 offen")
    e("s_mov_b64 exec, -1")
    lab("L_dbg0")
e("s_lshr_b32 s10, s2, 3")
e("s_lshl_b32 s10, s10, 12")
e("s_and_b32 s11, s2, 7")
e("s_lshl_b32 s11, s11, 7")
e("s_add_u32 s10, s10, s11")
e(f"s_lshl_b32 s11, s{S_WAVE}, 5")
e("s_add_u32 s10, s10, s11")
e("s_add_u32 s10, s10, 3072")
e("s_lshl_b32 s10, s10, 8")
e("s_add_u32 s11, s10, 4096")
e("v_and_b32 v8, 15, v0")
e("v_lshlrev_b32 v9, 4, v8")
e("v_lshlrev_b32 v8, 8, v8")
e("v_lshl_add_u32 v8, v3, 4, v8")
e("v_lshl_add_u32 v9, v3, 10, v9")
load_tag(2)
D = OPT["depth"]
seq = []
if OPT["kdma"]:
    e("v_and_b32 v12, 15, v0")
    for i4 in range(4):
        e(f"v_add_u32 v13, {4*i4}, v3")
        e(f"v_xor_b32 v14, v12, v13")
        e(f"v_lshlrev_b32 v14, 4, v14")
        e(f"v_lshl_add_u32 v{TMP+20+i4}, v13, 8, v14")
    e(f"s_lshl_b32 s12, s{S_WAVE}, 13")
    e(f"s_add_u32 s12, s12, {L_K}")
    for i in range(8):
        seq.append([f"s_add_u32 m0, s12, {1024*i}", "s_nop 0",
                    f"buffer_load_dwordx4 v{TMP+20+(i&3)}, s[{SRD_K}:{SRD_K+3}], s{10+(i>>2)} offen{NT} lds"])
    for c in range(4):
        e(f"v_add_u32 v13, {4*c}, v3")
        e(f"v_xor_b32 v13, v13, v12")
        e(f"v_lshlrev_b32 v13, 4, v13")
        e(f"v_lshl_add_u32 v13, v12, 8, v13")
        e(f"v_add_u32 v{228+c}, s12, v13")
else:
  for kb in range(2):
    for c in range(4):
        r = VK + 16 * kb + 4 * c
        seq.append(f"buffer_load_dwordx4 v[{r}:{r+3}], v8, s[{SRD_K}:{SRD_K+3}], s{10+kb} offen offset:{64*c}{NT}")
for i in range(8):
    r = VV + 4 * i
    so = 10 if i < 4 else 11
    seq.append(f"buffer_load_dwordx4 v[{r}:{r+3}], v9, s[{SRD_V}:{SRD_V+3}], s{so} offen offset:{256*(i&3)}{NT}")
gated = OPT["k_after"] or OPT["go_pub"]
for i, l in enumerate(seq):
    if gated and i == OPT["pre"]:
        e("s_barrier")
        lds_wait(C_GO, 1, TMP)
    if i == D and not gated:
        e("s_barrier")
    if i >= D:
        e(f"s_waitcnt vmcnt({D-1})")
    if (OPT["jit"] & 1) and i == min(15, OPT["jit_k"] + D):
        lds_signal(C_K, TMP)
    for l_ in (l if isinstance(l, list) else [l]):
        e(l_)
finish_tag()
if OPT["vstamp"]:
    e("s_waitcnt vmcnt(0)")
    stamp(7)
lab("L_secA")
lds_wait(C_Q, 2 if OPT["q2"] else 4, TMP)
stamp(3)
VQ = TMP
e("v_and_b32 v1, 3, v0")
e("v_lshlrev_b32 v1, 8, v1")
e("v_lshl_add_u32 v1, v3, 4, v1")
for c in range(4):
    e(f"ds_read_b128 v[{VQ+4*c}:{VQ+4*c+3}], v1 offset:{L_QS+64*c}")
with Guard():
    e("s_waitcnt vmcnt(8)")
if OPT["kdma"]:
    for kb in range(2):
        for c in range(4):
            r = VK + 16 * kb + 4 * c
            e(f"ds_read_b128 v[{r}:{r+3}], v{228+c} offset:{4096*kb}")
e("s_waitcnt lgkmcnt(0)")
stamp(4)
VS = VACC
for kb in range(2):
    for c in range(4):
        src2 = "0" if c == 0 else f"v[{VS+4*kb}:{VS+4*kb+3}]"
        e(f"v_mfma_f32_16x16x32_bf16 v[{VS+4*kb}:{VS+4*kb+3}], v[{VK+16*kb+4*c}:{VK+16*kb+4*c+3}], v[{VQ+4*c}:{VQ+4*c+3}], {src2}")
e("s_nop 7")
e("s_nop 1")
SC = TMP + 16
T = TMP + 24
for kb in range(2):
    for h2 in range(2):
        a = VS + 4 * kb + 2 * h2
        d = SC + 4 * kb + 2 * h2
        bf16_round_pair(T, a, a + 1, d, d + 1)
        e(f"v_mul_f32 v{d}, 0x3db504f3, v{d}")
        e(f"v_mul_f32 v{d+1}, 0x3db504f3, v{d+1}")
        bf16_round_pair(T, d, d + 1, d, d + 1)
MX = TMP + 26
LS = TMP + 27
e(f"v_max3_f32 v{MX}, v{SC}, v{SC+1}, v{SC+2}")
e(f"v_max3_f32 v{MX}, v{MX}, v{SC+3}, v{SC+4}")
e(f"v_max3_f32 v{MX}, v{MX}, v{SC+5}, v{SC+6}")
e(f"v_max_f32 v{MX}, v{MX}, v{SC+7}")
swap_reduce("v_max_f32", [MX], [T])
for i in range(8):
    e(f"v_sub_f32 v{SC+i}, v{SC+i}, v{MX}")
    e(f"v_mul_f32 v{SC+i}, 0x3fb8aa3b, v{SC+i}")
    e(f"v_exp_f32 v{SC+i}, v{SC+i}")
e("s_nop 0")
e(f"v_add_f32 v{LS}, v{SC}, v{SC+1}")
for i in range(2, 8):
    e(f"v_add_f32 v{LS}, v{LS}, v{SC+i}")
swap_reduce("v_add_f32", [LS], [T])
VP = TMP + 28
for i in range(4):
    e(f"v_cvt_pk_bf16_f32 v{VP+i}, v{SC+2*i}, v{SC+2*i+1}")
with Guard():
    e("s_waitcnt vmcnt(0)")
stamp(5)
tile_mm(VV, VP, VB, VACC)
e(f"s_lshl_b32 s4, s{S_WAVE}, 11")
e("v_lshlrev_b32 v1, 5, v0")
e("v_add_u32 v1, s4, v1")
e(f"s_lshl_b32 s4, s{S_WAVE}, 5")
e("v_lshlrev_b32 v2, 3, v0")
e("v_add_u32 v2, s4, v2")
e("s_nop 7")
gather_quads(VK)
with Guard():
    set_exec("0xffff", 0)
    for r in range(4):
        for hf in range(2):
            e(f"ds_write_b128 v1, v[{VK+8*r+4*hf}:{VK+8*r+4*hf+3}] offset:{L_OW+512*r+16*hf}")
    e("s_mov_b64 exec, 15")
    e(f"ds_write_b64 v2, v[{MX}:{MX+1}] offset:{L_ML}")
    e("s_mov_b64 exec, -1")
    lds_signal(C_O, TMP)
stamp(1)
e(f"s_lshl_b32 s4, s{S_WAVE}, 3")
e("v_mov_b32 v1, s4")
e(f"s_lshl_b32 s4, s{S_WAVE}, 9")
e("v_and_b32 v2, 31, v0")
e("v_lshlrev_b32 v2, 4, v2")
e("v_add_u32 v2, s4, v2")
e("s_lshr_b32 s4, s2, 3")
e("s_lshl_b32 s4, s4, 2")
e(f"s_add_u32 s4, s4, s{S_WAVE}")
e("s_and_b32 s5, s2, 7")
e("s_lshl_b32 s6, s4, 12")
e("s_lshl_b32 s7, s5, 7")
e("s_add_u32 s6, s6, s7")
e(f"s_add_u32 s6, s6, {WS_APO}")
e("s_lshl_b32 s4, s4, 3")
e("s_add_u32 s4, s4, s5")
e(f"s_lshl_b32 s4, s4, {7 if OPT['apm128'] else 4}")
e(f"s_add_u32 s4, s4, {WS_APM}")
e("v_and_b32 v7, 7, v0")
e("v_lshlrev_b32 v7, 4, v7")
e(f"v_lshrrev_b32 v{TMP+12}, 3, v0")
e(f"v_lshl_add_u32 v7, v{TMP+12}, 10, v7")
lds_wait(C_O, 4, TMP)
stamp(2)
R = VACC
for w in range(4):
    e(f"ds_read_b64 v[{R+2*w}:{R+2*w+1}], v1 offset:{L_ML+32*w}")
for w in range(4):
    e(f"ds_read_b128 v[{R+8+4*w}:{R+11+4*w}], v2 offset:{L_OW+2048*w}")
e("s_waitcnt lgkmcnt(0)")
M_, L_ = R + 24, R + 25
e(f"v_max3_f32 v{M_}, v{R}, v{R+2}, v{R+4}")
e(f"v_max_f32 v{M_}, v{M_}, v{R+6}")
F_ = TMP
for w in range(4):
    e(f"v_sub_f32 v{F_+w}, v{R+2*w}, v{M_}")
    e(f"v_mul_f32 v{F_+w}, 0x3fb8aa3b, v{F_+w}")
    e(f"v_exp_f32 v{F_+w}, v{F_+w}")
e("s_nop 0")
O_ = TMP + 4
e(f"v_mul_f32 v{L_}, v{F_}, v{R+1}")
for i in range(4):
    e(f"v_mul_f32 v{O_+i}, v{F_}, v{R+8+i}")
for w in range(1, 4):
    e(f"v_fmac_f32 v{L_}, v{F_+w}, v{R+2*w+1}")
    for i in range(4):
        e(f"v_fmac_f32 v{O_+i}, v{F_+w}, v{R+8+4*w+i}")
tagq(O_, [O_, O_ + 1, O_ + 2, O_ + 3])
e(f"v_mov_b32 v{R+26}, 0")
e(f"v_mov_b32 v{R+27}, 0")
tagq(TMP + 8, [M_, L_, R + 26, R + 27])
e(f"v_mov_b32 v1, 0")
with Guard():
    set_exec("-1", 0)
    e(f"buffer_store_dwordx4 v[{O_}:{O_+3}], v7, s[{SRD_WS}:{SRD_WS+3}], s6 offen sc1")
    e("s_mov_b64 exec, 1")
    e(f"buffer_store_dwordx4 v[{TMP+8}:{TMP+11}], v1, s[{SRD_WS}:{SRD_WS+3}], s4 offen sc1")
    e("s_mov_b64 exec, -1")
stamp(6)
if OPT["adelay"]:
    if OPT["adelay"] == 1:
        e("s_waitcnt vmcnt(0)")
    lds_signal(C_PA, TMP + 16)
if_dry_goto("L_dry_done_data")
lab("L_exit_d")
dump_stamps(False)
e("s_endpgm")

lab("L_comm")
if OPT["padx"]:
    e("s_memrealtime s[94:95]")
e("s_setprio 2")
e(f"s_sub_u32 s{S_WAVE}, s{S_WAVE}, 4")
stamp(6, True)
load_tag(7)
e("s_mov_b32 s8, 0")
e(f"s_cmp_ge_u32 s{S_WAVE}, 2")
e("s_cbranch_scc1 L_p1_noload")
e(f"s_cmp_eq_u32 s{S_WAVE}, 1")
e("s_cbranch_scc1 L_p1_w1")
srd(SRD_W1, 22, 4194304)
e("s_mov_b32 s5, 8192")
e("s_lshr_b32 s6, s2, 6")
e("s_lshl_b32 s6, s6, 7")
e("s_and_b32 s7, s2, 63")
e("s_lshl_b32 s7, s7, 7")
e("s_mov_b32 s8, 1")
e("s_branch L_p1_go")
lab("L_p1_w1")
e("s_cmp_ge_u32 s2, 112")
e("s_cbranch_scc1 L_p1_noload")
srd(SRD_W1, 28, 512 * 1792 * 2)
e("s_mov_b32 s5, 3584")
e("s_and_b32 s6, s2, 3")
e("s_lshl_b32 s6, s6, 7")
e("s_lshr_b32 s7, s2, 2")
e("s_lshl_b32 s7, s7, 7")
e("s_mov_b32 s8, 2")
if OPT["w1_late"]:
    e("s_barrier")
    lds_wait(C_GO, 1, TMP)
lab("L_p1_go")
e("v_mul_lo_u32 v7, s5, v4")
e("v_lshl_add_u32 v7, v1, 4, v7")
e("s_mul_i32 s9, s6, s5")
e("s_add_u32 s9, s9, s7")
e("s_lshl_b32 s12, s6, 1")
e("s_mul_i32 s13, s5, 56")
for i in range(16):
    e(f"buffer_load_dwordx4 v[{VW+4*i}:{VW+4*i+3}], v7, s[{SRD_W1}:{SRD_W1+3}], s9 offen{NT}")
    if i < 15:
        e("s_add_u32 s9, s9, s5")
    if i == 7:
        e("s_add_u32 s9, s9, s13")
XA, XA2, XR = 96, 100, 104
e(f"buffer_load_dwordx4 v[{XA}:{XA+3}], v6, s[{SRD_X}:{SRD_X+3}], s12 offen")
e(f"buffer_load_dwordx4 v[{XA2}:{XA2+3}], v6, s[{SRD_X}:{SRD_X+3}], s12 offen offset:128")
e("v_lshlrev_b32 v1, 4, v0")
for b in range(4):
    e(f"buffer_load_dwordx4 v[{XR+4*b}:{XR+4*b+3}], v1, s[{SRD_X}:{SRD_X+3}], 0 offen offset:{1024*b}")
lab("L_p1_noload")
e(f"s_cmp_lg_u32 s{S_WAVE}, 0")
e("s_cbranch_scc1 L_c_noz")
e("v_mov_b32 v1, 0")
e("v_lshlrev_b32 v7, 2, v0")
e("s_mov_b64 exec, 0xffff")
e(f"ds_write_b32 v7, v1 offset:{L_CNT}")
e("s_mov_b64 exec, -1")
e("s_waitcnt lgkmcnt(0)")
lab("L_c_noz")
if OPT["w1_late"]:
    e("s_cmp_eq_u32 s8, 2")
    e("s_cbranch_scc1 L_skipb0")
e("s_barrier")
lab("L_skipb0")
e(f"s_lshl_b32 s15, s{S_WAVE}, 11")
e(f"s_add_u32 s15, s15, {L_PIECE + 4096}")
if OPT["dry"]:
    e(f"s_mov_b32 s{S_DRY}, 1")
    e("s_cmp_lg_u32 s8, 0")
    e("s_cbranch_scc1 L_secP1")
    e(f"s_cmp_eq_u32 s{S_WAVE}, 2")
    e("s_cbranch_scc1 L_secA")
    e("s_branch L_secQ")
    lab("L_dry_done_data")
    lab("L_dry_done_comm")
    e(f"s_mov_b32 s{S_DRY}, 0")
    lane_setup()
lab("L_real_start")
if OPT["k_after"]:
    e(f"s_cmp_eq_u32 s{S_WAVE}, 0")
    e("s_cbranch_scc0 L_nogo")
    e(f"s_waitcnt vmcnt({22-OPT['k_after']})")
    lds_signal(C_GO, TMP)
    lab("L_nogo")
e("s_waitcnt vmcnt(0) lgkmcnt(0)")
stamp(7, True)
finish_tag()
e("s_cmp_eq_u32 s8, 0")
e("s_cbranch_scc1 L_secQ")
lab("L_secP1")
for d in range(4):
    e(f"v_mov_b32 v{VA+d}, v{XA+d}")
    e(f"v_mov_b32 v{VA2+d}, v{XA2+d}")
e("s_cmp_eq_u32 s8, 1")
e("s_cbranch_scc1 L_p1_mm")
SUM = TMP
T = TMP + 4
for b in range(4):
    e(f"v_lshlrev_b32 v{T}, 16, v{XR+4*b}")
    e(f"v_and_b32 v{T+1}, 0xffff0000, v{XR+4*b}")
    e(f"v_add_f32 v{SUM+b}, v{T}, v{T+1}")
    for d in range(1, 4):
        e(f"v_lshlrev_b32 v{T}, 16, v{XR+4*b+d}")
        e(f"v_and_b32 v{T+1}, 0xffff0000, v{XR+4*b+d}")
        e(f"v_add_f32 v{SUM+b}, v{SUM+b}, v{T}")
        e(f"v_add_f32 v{SUM+b}, v{SUM+b}, v{T+1}")
dpp_reduce("v_add_f32", [SUM + b for b in range(4)], ROW16)
swap_reduce("v_add_f32", [SUM + b for b in range(4)], [T + b for b in range(4)])
for b in range(4):
    e(f"v_mul_f32 v{SUM+b}, 0x3b000000, v{SUM+b}")
SQ = TMP + 12
for b in range(4):
    for d in range(4):
        e(f"v_lshlrev_b32 v{T}, 16, v{XR+4*b+d}")
        e(f"v_and_b32 v{T+1}, 0xffff0000, v{XR+4*b+d}")
        e(f"v_sub_f32 v{T}, v{T}, v{SUM+b}")
        e(f"v_sub_f32 v{T+1}, v{T+1}, v{SUM+b}")
        if d == 0:
            e(f"v_mul_f32 v{SQ+b}, v{T}, v{T}")
        else:
            e(f"v_fmac_f32 v{SQ+b}, v{T}, v{T}")
        e(f"v_fmac_f32 v{SQ+b}, v{T+1}, v{T+1}")
dpp_reduce("v_add_f32", [SQ + b for b in range(4)], ROW16)
swap_reduce("v_add_f32", [SQ + b for b in range(4)], [T + b for b in range(4)])
for b in range(4):
    e(f"v_mul_f32 v{SQ+b}, 0x3b000000, v{SQ+b}")
MEAN, DEN, RCP = TMP + 16, TMP + 17, TMP + 18
e(f"v_mov_b32 v{MEAN}, v{SUM}")
e(f"v_mov_b32 v{DEN}, v{SQ}")
for b in range(1, 4):
    e(f"v_cmp_eq_u32 vcc, {b}, v5")
    e("s_nop 1")
    e(f"v_cndmask_b32 v{MEAN}, v{MEAN}, v{SUM+b}, vcc")
    e(f"v_cndmask_b32 v{DEN}, v{DEN}, v{SQ+b}, vcc")
bf16_round_pair(T, MEAN, DEN, MEAN, DEN)
e(f"v_add_f32 v{DEN}, 0x3727c5ac, v{DEN}")
e(f"v_cvt_pk_bf16_f32 v{T}, v{DEN}, v{DEN}")
e(f"v_lshlrev_b32 v{DEN}, 16, v{T}")
e(f"v_sqrt_f32 v{DEN}, v{DEN}")
e("s_nop 0")
e(f"v_cvt_pk_bf16_f32 v{T}, v{DEN}, v{DEN}")
e(f"v_lshlrev_b32 v{DEN}, 16, v{T}")
e(f"v_rcp_f32 v{RCP}, v{DEN}")
e("s_nop 0")
for AA in (VA, VA2):
    for d in range(4):
        a0, a1 = T + 2, T + 3
        e(f"v_lshlrev_b32 v{a0}, 16, v{AA+d}")
        e(f"v_and_b32 v{a1}, 0xffff0000, v{AA+d}")
        e(f"v_sub_f32 v{a0}, v{a0}, v{MEAN}")
        e(f"v_sub_f32 v{a1}, v{a1}, v{MEAN}")
        bf16_round_pair(T, a0, a1, a0, a1)
        for a in (a0, a1):
            e(f"v_mul_f32 v{T+4}, v{a}, v{RCP}")
            e(f"v_fma_f32 v{T+5}, -v{T+4}, v{DEN}, v{a}")
            e(f"v_fma_f32 v{a}, v{T+5}, v{RCP}, v{T+4}")
        e(f"v_cvt_pk_bf16_f32 v{AA+d}, v{a0}, v{a1}")
lab("L_p1_mm")
tile128(VA, VA2, 15)
e("v_and_b32 v1, 15, v0")
e("s_cmp_eq_u32 s8, 1")
e("s_cbranch_scc1 L_pub_q")
e("s_and_b32 s4, s2, 3")
e("s_mul_i32 s4, s4, 1792")
e("s_lshr_b32 s5, s2, 2")
e("s_lshl_b32 s5, s5, 4")
e("s_add_u32 s4, s4, s5")
e("s_lshl_b32 s4, s4, 4")
e(f"s_add_u32 s4, s4, {WS_HP}")
e(f"v_mul_u32_u24 v2, 448, v{TMP+8}")
e("v_add_u32 v1, v2, v1")
e("s_branch L_pub_go")
lab("L_pub_q")
e("s_lshr_b32 s4, s2, 6")
e("s_lshl_b32 s4, s4, 12")
e("s_and_b32 s5, s2, 63")
e("s_lshl_b32 s5, s5, 4")
e("s_add_u32 s4, s4, s5")
e("s_lshl_b32 s4, s4, 4")
e(f"s_add_u32 s4, s4, {WS_QP}")
e(f"v_lshl_add_u32 v1, v{TMP+8}, 10, v1")
lab("L_pub_go")
e("v_lshlrev_b32 v1, 4, v1")
if_dry_goto("L_dry_done_comm")
e(f"buffer_store_dwordx4 v[{TMP}:{TMP+3}], v1, s[{SRD_WS}:{SRD_WS+3}], s4 offen sc1")
if OPT["go_pub"]:
    e("s_cmp_eq_u32 s8, 1")
    e("s_cbranch_scc0 L_nogo2")
    lds_signal(C_GO, TMP + 10)
    stamp(0, True)
    lab("L_nogo2")
else:
    stamp(0, True)
if OPT["ackw"]:
    e("s_waitcnt vmcnt(0)")
if OPT["ackst"]:
    e("s_waitcnt vmcnt(0)")
    stamp(7, True)
if OPT["qdelay"]:
    e("s_cmp_eq_u32 s8, 1")
    e("s_cbranch_scc0 L_nop2")
    lds_signal(C_P, TMP + 10)
    lab("L_nop2")
lab("L_secQ")
e("v_lshlrev_b32 v3, 4, v0")
if OPT["q2"]:
    assert not OPT["dry"]
    e(f"s_lshl_b32 s4, s{S_WAVE}, 8")
    e("v_and_b32 v5, 31, v0")
    e("v_lshlrev_b32 v5, 3, v5")
    e("v_add_u32 v5, s4, v5")
    e(f"s_cmp_lt_u32 s{S_WAVE}, 2")
    e("s_cbranch_scc1 L_q_skip")
    e("s_lshr_b32 s4, s2, 6")
    e("s_lshl_b32 s4, s4, 10")
    e("s_lshr_b32 s5, s2, 3")
    e("s_and_b32 s5, s5, 7")
    e("s_lshl_b32 s5, s5, 7")
    e("s_add_u32 s4, s4, s5")
    e(f"s_sub_u32 s5, s{S_WAVE}, 2")
    e("s_lshl_b32 s5, s5, 6")
    e("s_add_u32 s4, s4, s5")
    e("s_lshl_b32 s4, s4, 4")
    e(f"s_add_u32 s4, s4, {WS_QP}")
    for k in range(1, 4):
        e(f"s_add_u32 s{4+k}, s4, {k*4*1024*16}")
    if OPT["qdelay"]:
        lds_wait(C_P, 1, 32)
        if OPT["qdelay"] > 1:
            e(f"s_sleep {OPT['qdelay']}")
    poll("q", [f"buffer_load_dwordx4 @, v3, s[{SRD_WS}:{SRD_WS+3}], s{4+k} offen sc1" for k in range(4)],
         [16, 20, 24, 28], 6, OPT["sleep_q"])
    for i in range(4):
        e(f"v_add_f32 v{32+i}, v{16+i}, v{20+i}")
        e(f"v_add_f32 v{36+i}, v{24+i}, v{28+i}")
    for i in range(4):
        e(f"v_add_f32 v{32+i}, v{32+i}, v{36+i}")
    e("v_cvt_pk_bf16_f32 v32, v32, v33")
    e("v_cvt_pk_bf16_f32 v33, v34, v35")
    e(f"s_sub_u32 s4, s{S_WAVE}, 2")
    e("s_lshl_b32 s4, s4, 9")
    e("v_lshlrev_b32 v4, 3, v0")
    e("v_add_u32 v4, s4, v4")
    e(f"ds_write_b64 v4, v[32:33] offset:{L_QS}")
    lds_signal(C_Q, 6)
    lab("L_q_skip")
else:
    e("s_lshr_b32 s4, s2, 6")
    e("s_lshl_b32 s4, s4, 10")
    e("s_lshr_b32 s5, s2, 3")
    e("s_and_b32 s5, s5, 7")
    e("s_lshl_b32 s5, s5, 7")
    e("s_add_u32 s4, s4, s5")
    e(f"s_lshl_b32 s5, s{S_WAVE}, 5")
    e("s_add_u32 s4, s4, s5")
    e("s_lshl_b32 s4, s4, 4")
    e(f"s_add_u32 s4, s4, {WS_QP}")
    e(f"s_add_u32 s5, s4, {4*1024*16}")
    e("v_and_b32 v4, 31, v0")
    e("v_lshlrev_b32 v4, 4, v4")
    e("v_lshrrev_b32 v5, 5, v0")
    e("v_lshl_add_u32 v4, v5, 17, v4")
    if OPT["qdelay"]:
        lds_wait(C_P, 1, 6)
        if OPT["qdelay"] > 1:
            e(f"s_sleep {OPT['qdelay']}")
    if OPT["jit"] & 1:
        lds_wait(C_K, 4, 6)
    poll("q", [f"buffer_load_dwordx4 @, v4, s[{SRD_WS}:{SRD_WS+3}], s{4+k} offen sc1" for k in range(2)],
         [16, 20], 6, OPT["sleep_q"], altbase=168)
    for i in range(4):
        e(f"v_add_f32 v{24+i}, v{16+i}, v{20+i}")
    swap_reduce("v_add_f32", [24, 25, 26, 27], [28, 29, 30, 31], ("v_permlane32_swap_b32",))
    e("v_cvt_pk_bf16_f32 v24, v24, v25")
    e("v_cvt_pk_bf16_f32 v25, v26, v27")
    e(f"s_lshl_b32 s4, s{S_WAVE}, 8")
    e("v_and_b32 v5, 31, v0")
    e("v_lshlrev_b32 v5, 3, v5")
    e("v_add_u32 v5, s4, v5")
    with Guard():
        e(f"ds_write_b64 v5, v[24:25] offset:{L_QS}")
        lds_signal(C_Q, 6)

stamp(1, True)
W3, B3, ACC3 = 96, 160, 16
e("s_mov_b32 s14, 0")
with Guard():
    e("v_lshrrev_b32 v9, 4, v0")
    e(f"s_cmp_lt_u32 s{S_WAVE}, 2")
    e("s_cbranch_scc1 L_nowo0")
    srd(SRD_W3, 24, 4194304)
    e("s_lshr_b32 s6, s2, 1")
    e("s_lshl_b32 s9, s6, 15")
    e("s_and_b32 s7, s2, 1")
    e("s_lshl_b32 s7, s7, 9")
    e("s_add_u32 s9, s9, s7")
    e(f"s_sub_u32 s7, s{S_WAVE}, 2")
    e("s_lshl_b32 s7, s7, 8")
    e("s_add_u32 s9, s9, s7")
    e("v_and_b32 v7, 15, v0")
    e("v_lshlrev_b32 v7, 4, v7")
    e("v_lshl_add_u32 v7, v9, 13, v7")
    for i in range(8):
        e(f"buffer_load_dwordx4 v[{W3+4*i}:{W3+4*i+3}], v7, s[{SRD_W3}:{SRD_W3+3}], s9 offen offset:{1024*(i&3)}{NT}")
        if i == 3:
            e("s_add_u32 s9, s9, 4096")
    e("s_branch L_now2")
    lab("L_nowo0")
    e(f"s_cmp_eq_u32 s{S_WAVE}, 1")
    e("s_cbranch_scc0 L_now2")
    e("s_cmp_lt_u32 s2, 112")
    e("s_cbranch_scc1 L_now2")
    e("s_cmp_ge_u32 s2, 224")
    e("s_cbranch_scc1 L_now2")
    e("s_mov_b32 s14, 1")
    srd(SRD_W3, 32, 1792 * 512 * 2)
    e("s_sub_u32 s9, s2, 112")
    e("s_lshr_b32 s6, s9, 3")
    e("s_lshl_b32 s6, s6, 17")
    e("s_and_b32 s7, s9, 7")
    e("s_lshl_b32 s7, s7, 7")
    e("s_add_u32 s9, s6, s7")
    e("v_bfe_u32 v7, v0, 3, 1")
    e("v_lshlrev_b32 v7, 5, v7")
    e("v_lshl_add_u32 v9, v9, 3, v7")
    e("v_and_b32 v7, 7, v0")
    e("v_lshlrev_b32 v7, 4, v7")
    e("v_lshl_add_u32 v7, v9, 10, v7")
    for i in range(16):
        e(f"buffer_load_dwordx4 v[{W3+4*i}:{W3+4*i+3}], v7, s[{SRD_W3}:{SRD_W3+3}], s9 offen offset:{1024*(i&3)}{NT}")
        if i == 7:
            e(f"s_add_u32 s9, s9, {4096 + 56*1024}")
        elif i & 3 == 3 and i < 15:
            e("s_add_u32 s9, s9, 4096")
    lab("L_now2")
e("s_lshr_b32 s4, s2, 4")
e("s_lshl_b32 s4, s4, 7")
e("s_and_b32 s5, s2, 15")
e("s_lshl_b32 s5, s5, 3")
e("s_add_u32 s4, s4, s5")
e("s_lshl_b32 s4, s4, 4")
e(f"s_add_u32 s4, s4, {WS_OP}")
e(f"s_lshl_b32 s5, s{S_WAVE}, 18")
e("s_add_u32 s86, s4, s5")
for k in range(1, 4):
    e(f"s_add_u32 s{86+k}, s86, {k*65536}")
e(f"s_lshl_b32 s5, s{S_WAVE}, 15")
e("s_add_u32 s5, s4, s5")
e(f"s_add_u32 s85, s5, {128*8192}")
e("v_and_b32 v60, 7, v0")
e("v_lshlrev_b32 v60, 4, v60")
e("v_lshrrev_b32 v61, 3, v0")
e("v_lshl_add_u32 v60, v61, 13, v60")
e("v_and_b32 v62, 3, v61")
e(f"s_lshl_b32 s5, s{S_WAVE}, 2")
e("s_sub_u32 s5, 13, s5")
e("v_min_u32 v62, s5, v62")
e("v_and_b32 v63, 7, v0")
e("v_lshlrev_b32 v63, 4, v63")
e("v_lshl_add_u32 v62, v62, 13, v63")
o_loads = [f"buffer_load_dwordx4 v[{32+4*k}:{35+4*k}], v60, s[{SRD_WS}:{SRD_WS+3}], s{86+k} offen sc1" for k in range(4)]
o_loads.append(f"buffer_load_dwordx4 v[48:51], v62, s[{SRD_WS}:{SRD_WS+3}], s85 offen sc1")
e("s_cmp_ge_u32 s2, 64")
e("s_cbranch_scc1 L_c_nowarm")
with Guard():
    if not (OPT["jit"] & 4):
        for l in o_loads:
            e(l)
    srd(SRD_M, 36, 1024)
    e(f"buffer_load_dwordx4 v[64:67], v3, s[{SRD_M}:{SRD_M+3}], 0 offen")
    e("s_lshr_b32 s4, s2, 4")
    e("s_lshl_b32 s4, s4, 10")
    e(f"buffer_load_dwordx4 v[68:71], v3, s[{SRD_X}:{SRD_X+3}], s4 offen")
    srd(SRD_OUT, 34, 1024)
    e("v_and_b32 v6, 31, v0")
    e("v_lshlrev_b32 v6, 1, v6")
    e("s_and_b32 s4, s2, 15")
    e("s_lshl_b32 s4, s4, 6")
    e(f"buffer_load_ushort v72, v6, s[{SRD_OUT}:{SRD_OUT+3}], s4 offen")
lab("L_c_nowarm")
if_dry_goto("L_secAG")
e("s_cmp_lt_u32 s2, 112")
e("s_cbranch_scc1 L_secAG")
e("s_cmp_ge_u32 s2, 224")
e("s_cbranch_scc1 L_secAG")
lab("L_secH")
e("s_sub_u32 s9, s2, 112")
e("s_lshr_b32 s9, s9, 3")
e("s_min_u32 s9, s9, 13")
e(f"s_mul_i32 s4, s{S_WAVE}, 448")
e("s_lshl_b32 s5, s9, 5")
e("s_add_u32 s4, s4, s5")
e("s_lshl_b32 s4, s4, 4")
e(f"s_add_u32 s4, s4, {WS_HP}")
e(f"s_add_u32 s5, s4, {4*448*16}")
srd(SRD_M, 30, 3584)
e("s_lshl_b32 s9, s9, 8")
e("v_and_b32 v6, 31, v0")
e("v_lshlrev_b32 v4, 4, v6")
e("v_lshlrev_b32 v6, 3, v6")
e(f"buffer_load_dwordx2 v[80:81], v6, s[{SRD_M}:{SRD_M+3}], s9 offen")
e("v_lshrrev_b32 v7, 5, v0")
e(f"s_mov_b32 s6, {2*4*448*16}")
e("v_mul_lo_u32 v7, s6, v7")
e("v_add_u32 v4, v7, v4")
poll("h", [f"buffer_load_dwordx4 @, v4, s[{SRD_WS}:{SRD_WS+3}], s{4+k} offen sc1" for k in range(2)],
     [16, 20], 6, OPT["sleep_q"])
for i in range(4):
    e(f"v_add_f32 v{24+i}, v{16+i}, v{20+i}")
swap_reduce("v_add_f32", [24, 25, 26, 27], [28, 29, 30, 31], ("v_permlane32_swap_b32",))
for p in range(2):
    a, b_ = 24 + 2 * p, 25 + 2 * p
    bf16_round_pair(28, a, b_, a, b_)
    e(f"v_lshlrev_b32 v28, 16, v{80+p}")
    e(f"v_and_b32 v29, 0xffff0000, v{80+p}")
    e(f"v_add_f32 v{a}, v{a}, v28")
    e(f"v_add_f32 v{b_}, v{b_}, v29")
    bf16_round_pair(28, a, b_, a, b_)
e("v_mov_b32 v31, 0x3d372713")
for r in (24, 25, 26, 27):
    e(f"v_mul_f32 v30, v{r}, v{r}")
    e(f"v_mul_f32 v30, v30, v{r}")
    e(f"v_fma_f32 v30, v30, v31, v{r}")
    e(f"v_mul_f32 v30, 0x40135761, v30")
    e(f"v_exp_f32 v30, v30")
    e("s_nop 0")
    e(f"v_add_f32 v30, 1.0, v30")
    e(f"v_rcp_f32 v30, v30")
    e("s_nop 0")
    e(f"v_fma_f32 v30, v30, -2.0, 2.0")
    e(f"v_mul_f32 v30, 0.5, v30")
    e(f"v_mul_f32 v{r}, v{r}, v30")
e("v_cvt_pk_bf16_f32 v24, v24, v25")
e("v_cvt_pk_bf16_f32 v25, v26, v27")
with Guard():
    e(f"ds_write_b64 v5, v[24:25] offset:{L_HA}")
    lds_signal(C_H, 6)
    e("s_cmp_eq_u32 s14, 1")
    e("s_cbranch_scc0 L_secAG")
lds_wait(C_H, 4, 6)
e(f"ds_read_b128 v[{VA}:{VA+3}], v11 offset:{L_HA}")
e(f"ds_read_b128 v[{VA2}:{VA2+3}], v11 offset:{L_HA+128}")
with Guard():
    e("s_waitcnt vmcnt(0)")
e("s_waitcnt lgkmcnt(0)")
tile128(VA, VA2, 15, W=W3, B=B3, ACC=ACC3, G=W3)
e("s_sub_u32 s5, s2, 112")
e("s_lshr_b32 s4, s5, 3")
e("s_add_u32 s4, s4, 128")
e("s_lshl_b32 s4, s4, 9")
e("s_and_b32 s5, s5, 7")
e("s_lshl_b32 s5, s5, 4")
e("s_add_u32 s4, s4, s5")
e("s_lshl_b32 s4, s4, 4")
e(f"s_add_u32 s4, s4, {WS_OP}")
e("v_and_b32 v1, 15, v0")
e(f"v_lshl_add_u32 v1, v{TMP+8}, 7, v1")
e("v_lshlrev_b32 v1, 4, v1")
if_dry_goto("L_dry_done_comm")
e(f"buffer_store_dwordx4 v[{TMP}:{TMP+3}], v1, s[{SRD_WS}:{SRD_WS+3}], s4 offen sc1")
lab("L_secAG")
e(f"s_lshl_b32 s4, s{S_WAVE}, 5")
e("s_lshr_b32 s5, s2, 3")
e("s_add_u32 s4, s4, s5")
e("s_lshl_b32 s6, s4, 2")
e("s_bfe_u32 s5, s2, 0x20001")
e("s_add_u32 s6, s6, s5")
e("s_lshl_b32 s6, s6, 10")
e(f"s_add_u32 s6, s6, {WS_APO}")
e(f"s_lshl_b32 s4, s4, {10 if OPT['apm128'] else 7}")
e(f"s_add_u32 s4, s4, {WS_APM}")
e(f"v_lshlrev_b32 v4, {7 if OPT['apm128'] else 4}, v61")
if OPT["adelay"]:
    lds_wait(C_PA, 4, 6)
if OPT["jit"] & 2:
    lds_wait(C_O, 4, 6)
poll("a", [f"buffer_load_dwordx4 @, v3, s[{SRD_WS}:{SRD_WS+3}], s6 offen sc1",
           f"buffer_load_dwordx4 @, v4, s[{SRD_WS}:{SRD_WS+3}], s4 offen sc1"], [16, 20], 6, OPT["sleep_t"], altbase=168)
stamp(3, True)
e("v_mov_b32 v24, v20")
dpp_reduce("v_max_f32", [24], ["row_ror:8"])
swap_reduce("v_max_f32", [24], [25])
e("v_sub_f32 v25, v20, v24")
e("v_mul_f32 v25, 0x3fb8aa3b, v25")
e("v_exp_f32 v25, v25")
e("s_nop 0")
e("v_mul_f32 v26, v25, v21")
for i in range(4):
    e(f"v_mul_f32 v{84+i}, v25, v{16+i}")
dpp_reduce("v_add_f32", [26, 84, 85, 86, 87], ["row_ror:8"])
swap_reduce("v_add_f32", [26, 84, 85, 86, 87], [27, 28, 29, 30, 31])
e("v_rcp_f32 v27, v26")
e("s_nop 0")
e("v_fma_f32 v28, -v26, v27, 2.0")
e("v_mul_f32 v27, v27, v28")
for i in range(4):
    e(f"v_mul_f32 v{84+i}, v27, v{84+i}")
e("v_cvt_pk_bf16_f32 v84, v84, v85")
e("v_cvt_pk_bf16_f32 v85, v86, v87")
e(f"s_lshl_b32 s4, s{S_WAVE}, 6")
e("v_lshlrev_b32 v4, 3, v0")
e("v_add_u32 v4, s4, v4")
with Guard():
    e("s_mov_b64 exec, 0xff")
    e(f"ds_write_b64 v4, v[84:85] offset:{L_OA}")
    e("s_mov_b64 exec, -1")
    lds_signal(C_A, 6)
stamp(4, True)
if_dry_goto("L_secC")
e(f"s_cmp_lt_u32 s{S_WAVE}, 2")
e("s_cbranch_scc1 L_secC_done")
lab("L_secC")
e("s_lshr_b32 s4, s2, 1")
e("s_lshl_b32 s4, s4, 9")
e("s_and_b32 s5, s2, 1")
e("s_lshl_b32 s5, s5, 6")
e("s_add_u32 s4, s4, s5")
e(f"s_sub_u32 s5, s{S_WAVE}, 2")
e("s_lshl_b32 s5, s5, 5")
e("s_add_u32 s4, s4, s5")
e("s_lshl_b32 s4, s4, 4")
e(f"s_add_u32 s4, s4, {WS_OP}")
e("s_add_u32 s5, s4, 4096")
e("v_lshlrev_b32 v2, 5, v0")
e("v_and_b32 v1, 3, v0")
e("v_lshlrev_b32 v1, 6, v1")
e("v_lshrrev_b32 v9, 4, v0")
e("v_lshl_add_u32 v1, v9, 4, v1")
lds_wait(C_A, 4, 6)
e(f"ds_read_b128 v[{VA}:{VA+3}], v1 offset:{L_OA}")
with Guard():
    e("s_waitcnt vmcnt(0)")
e("s_waitcnt lgkmcnt(0)")
tile_mm(W3, VA, B3, ACC3)
e("s_nop 7")
e("s_nop 1")
if not OPT["opfull"]:
    for b in range(4):
        for hf in range(2):
            d = TMP + 8 * b + 4 * hf
            tagq(d, [ACC3 + 4 * (4 * hf + i) + b for i in range(4)])
    with Guard():
        set_exec("0xffff", 0)
        for b in range(4):
            for hf in range(2):
                d = TMP + 8 * b + 4 * hf
                e(f"buffer_store_dwordx4 v[{d}:{d+3}], v2, s[{SRD_WS}:{SRD_WS+3}], s{4+(b>>1)} offen offset:{2048*(b&1)+16*hf} sc1")
        e("s_mov_b64 exec, -1")
else:
    e("v_and_b32 v6, 16, v0")
    e("v_cmp_ne_u32 s[90:91], 0, v6")
    e("v_cmp_lt_u32 s[92:93], 31, v0")
    e("s_nop 1")
    for k in range(2):
        for i in range(4):
            t0, t1 = TMP + 16, TMP + 17
            e(f"v_cndmask_b32 v{t0}, v{ACC3+4*i+k}, v{ACC3+4*(4+i)+k}, s[90:91]")
            e(f"v_cndmask_b32 v{t1}, v{ACC3+4*i+2+k}, v{ACC3+4*(4+i)+2+k}, s[90:91]")
            e(f"v_cndmask_b32 v{TMP+8+4*k+i}, v{t0}, v{t1}, s[92:93]")
        tagq(TMP + 4 * k, [TMP + 8 + 4 * k + i for i in range(4)])
    e("v_and_b32 v2, 15, v0")
    e("v_lshlrev_b32 v2, 5, v2")
    e("v_add_u32 v2, v6, v2")
    e("v_lshrrev_b32 v6, 5, v0")
    e("v_lshl_add_u32 v2, v6, 12, v2")
    with Guard():
        for k in range(2):
            e(f"buffer_store_dwordx4 v[{TMP+4*k}:{TMP+4*k+3}], v2, s[{SRD_WS}:{SRD_WS+3}], s4 offen offset:{2048*k} sc1")
stamp(2, True)
if OPT["odelay"]:
    if OPT["odelay"] == 1:
        e("s_waitcnt vmcnt(0)")
    lds_signal(C_PO, 6)
lab("L_secC_done")
e("s_cmp_lt_u32 s2, 64")
e("s_cbranch_scc1 L_secF")
if_dry_goto("L_secH")
e("s_branch L_exit_c")
lab("L_secF")
GS = 74
for d in range(4):
    e(f"v_lshlrev_b32 v76, 16, v{68+d}")
    e(f"v_and_b32 v77, 0xffff0000, v{68+d}")
    e(f"v_lshlrev_b32 v78, 16, v{64+d}")
    e(f"v_and_b32 v79, 0xffff0000, v{64+d}")
    e("v_mul_f32 v76, v76, v78")
    e("v_mul_f32 v77, v77, v79")
    bf16_round_pair(78, 76, 77, 76, 77)
    if d == 0:
        e(f"v_add_f32 v{GS}, v76, v77")
    else:
        e(f"v_add_f32 v{GS}, v{GS}, v76")
        e(f"v_add_f32 v{GS}, v{GS}, v77")
dpp_reduce("v_add_f32", [GS], ROW16)
swap_reduce("v_add_f32", [GS], [76])
e(f"v_cvt_pk_bf16_f32 v75, v{GS}, v{GS}")
e("v_lshlrev_b32 v75, 16, v75")
e("v_mul_f32 v75, 0xbfb8aa3b, v75")
e("v_exp_f32 v75, v75")
e("s_nop 0")
e("v_add_f32 v75, 1.0, v75")
e("v_rcp_f32 v76, v75")
e("s_nop 0")
e("v_fma_f32 v77, -v75, v76, 2.0")
e("v_mul_f32 v76, v76, v77")
e("v_cvt_pk_bf16_f32 v76, v76, v76")
e("v_lshlrev_b32 v75, 16, v76")
e("v_sub_f32 v76, 1.0, v75")
e("v_cvt_pk_bf16_f32 v76, v76, v76")
e("v_lshlrev_b32 v76, 16, v76")
e("v_lshlrev_b32 v73, 16, v72")
if OPT["odelay"]:
    lds_wait(C_PO, 2, 1)
poll("o", [re.sub(r"v\[\d+:\d+\]", "@", l, count=1) for l in o_loads], [32, 36, 40, 44, 48], 1, OPT["sleep_t"], altbase=128)
stamp(5, True)
e(f"s_lshl_b32 s5, s{S_WAVE}, 5")
e("s_sub_u32 s5, 112, s5")
e("s_min_u32 s5, s5, 32")
e("v_cmp_gt_u32 vcc, s5, v0")
e("s_nop 1")
for i in range(4):
    e(f"v_cndmask_b32 v{92+i}, 0, v{48+i}, vcc")
    e(f"v_add_f32 v{88+i}, v{32+i}, v{36+i}")
    e(f"v_add_f32 v{52+i}, v{40+i}, v{44+i}")
for i in range(4):
    e(f"v_add_f32 v{88+i}, v{88+i}, v{52+i}")
regs = [88 + i for i in range(8)]
dpp_reduce("v_add_f32", regs, ["row_ror:8"])
swap_reduce("v_add_f32", regs, [52 + i for i in range(8)])
e(f"s_lshl_b32 s4, s{S_WAVE}, 7")
e("v_add_u32 v4, s4, v3")
with Guard():
    e("s_mov_b64 exec, 0xff")
    e(f"ds_write_b128 v4, v[88:91] offset:{L_F}")
    e(f"ds_write_b128 v4, v[92:95] offset:{L_F+512}")
    e("s_mov_b64 exec, -1")
    lds_signal(C_F, 6)
    e(f"s_cmp_lg_u32 s{S_WAVE}, 0")
    e("s_cbranch_scc1 L_exit_c")
lds_wait(C_F, 4, 6)
e("v_and_b32 v6, 31, v0")
e("v_lshlrev_b32 v4, 2, v6")
for w in range(8):
    e(f"ds_read_b32 v{52+w}, v4 offset:{L_F+128*w}")
e("s_waitcnt lgkmcnt(0)")
e("v_add_f32 v52, v52, v53")
e("v_add_f32 v54, v54, v55")
e("v_add_f32 v56, v56, v57")
e("v_add_f32 v58, v58, v59")
e("v_add_f32 v52, v52, v54")
e("v_add_f32 v56, v56, v58")
bf16_round_pair(54, 52, 56, 52, 56)
e("v_add_f32 v56, v56, v73")
e("v_cvt_pk_bf16_f32 v54, v56, v56")
e("v_lshlrev_b32 v56, 16, v54")
e("v_mul_f32 v52, v75, v52")
e("v_mul_f32 v56, v76, v56")
bf16_round_pair(54, 52, 56, 52, 56)
e("v_add_f32 v52, v52, v56")
e("v_cvt_pk_bf16_f32 v52, v52, v52")
e("v_lshlrev_b32 v6, 1, v6")
e("s_lshl_b32 s4, s2, 6")
if_dry_goto("L_secH")
if OPT["padx"]:
    lab("L_pad")
    e("s_memrealtime s[98:99]")
    e("s_waitcnt lgkmcnt(0)")
    e("s_sub_u32 s98, s98, s94")
    e(f"s_cmp_lt_u32 s98, {OPT['padx']*100}")
    e("s_cbranch_scc1 L_pad")
srd(SRD_OUT, 38, 4096)
set_exec("-1", 0)
e(f"buffer_store_short v52, v6, s[{SRD_OUT}:{SRD_OUT+3}], s4 offen")
if OPT["dbg"]:
    e("s_cmp_ge_u32 s2, 14")
    e("s_cbranch_scc1 L_dbg1")
    e("s_memrealtime s[98:99]")
    srd(SRD_M, 40, 256)
    e("s_lshl_b32 s4, s2, 2")
    e("s_add_u32 s4, s4, 8")
    e("s_waitcnt lgkmcnt(0)")
    e("v_mov_b32 v236, s4")
    e("v_mov_b32 v237, s98")
    e("s_mov_b64 exec, 1")
    e(f"buffer_store_dword v237, v236, s[{SRD_M}:{SRD_M+3}], 0 offen")
    lab("L_dbg1")
e("s_cmp_lg_u32 s2, 0")
e("s_cbranch_scc1 L_exit_c")
e("s_mov_b64 exec, 1")
e(f"v_mov_b32 v1, 0")
e(f"v_mov_b32 v4, s{S_TAG}")
e(f"v_mov_b32 v5, s{S_TAG+1}")
e(f"buffer_store_dwordx2 v[4:5], v1, s[{SRD_WS}:{SRD_WS+3}], 0 offen offset:{WS_GEN} sc1")
lab("L_exit_c")
dump_stamps(True)
lab("L_exit")
e("s_endpgm")
if not OPT["dry"]:
    lab("L_dry_done_data")
    lab("L_dry_done_comm")
    e("s_endpgm")

out.append('.section .rodata,"a"')
out.append(".p2align 6")
out.append(f".amdhsa_kernel {NAME}_kernel")
out.append("  .amdhsa_next_free_vgpr 240")
out.append("  .amdhsa_next_free_sgpr 102")
out.append("  .amdhsa_accum_offset 240")
out.append("  .amdhsa_group_segment_fixed_size 0")
out.append("  .amdhsa_kernarg_size 112")
out.append("  .amdhsa_user_sgpr_count 2")
out.append("  .amdhsa_user_sgpr_kernarg_segment_ptr 1")
out.append("  .amdhsa_system_sgpr_workgroup_id_x 1")
out.append(".end_amdhsa_kernel")

dst = sys.argv[1] if len(sys.argv) > 1 else f"cdna_kernels/{NAME}.s"
open(dst, "w").write("\n".join(out) + "\n")
print("wrote", dst, len(out), "lines")
```

```python
import sys
import re

NAME = "gated_mix__sliding_block_cached__mixer_channel_mlp__decode"

OPT = dict(
    stamps=0,
    nt=1,
    depth=4,
    sleep_l=1,
    sleep_q=1,
    sleep_t=0,
    dry=0,
    k_after=0,
    pp=0,
    dyn=0,
    padx=0,
    adelay=0,
    odelay=0,
    ackw=0,
    ackst=0,
    ppq=0,
    qdelay=0,
    pre=0,
    dbg=0,
    q2=0,
    kdma=1,
    jit=0,
    jit_k=7,
    vstamp=0,
    w1_late=0,
    go_pub=0,
    opfull=1,
    apm128=1,
)
for a in sys.argv[2:]:
    k, v = a.split("=")
    OPT[k] = int(v)

WS_GEN = 0
WS_QP = 0x10000
WS_HP = WS_QP + 4 * 4 * 1024 * 16
WS_APO = WS_HP + 4 * 4 * 448 * 16
WS_APM = WS_APO + 4 * 32 * 4 * 8 * 8 * 16
WS_OP = WS_APM + 4 * 32 * 8 * 128
WS_ST = WS_OP + 142 * 4 * 128 * 16
WS_END = WS_ST + 256 * 8 * 16 * 8
open("gen_layout.py", "w").write(f"WS_ST = {WS_ST}\n")

L_PIECE = 0
L_QS = 8192
L_OW = 9216
L_ML = 17408
L_OA = 17536
L_HA = 17792
L_F = 18816
L_CNT = 19840
L_K = 20480
L_END = L_K + (32768 if OPT['kdma'] else 0)
LDS_BYTES = 53248 if OPT['kdma'] else 20480
assert L_END <= LDS_BYTES
C_Q, C_O, C_H, C_A, C_F, C_GO, C_K, C_P, C_PA, C_PO = 0, 4, 8, 12, 16, 20, 24, 28, 32, 36

out = []


def e(s):
    out.append("    " + s)


def lab(s):
    out.append(s + ":")


NT = " nt" if OPT["nt"] else ""
S_WAVE = 3
SRD_X, SRD_K, SRD_V, SRD_W1, SRD_W3, SRD_WS, SRD_OUT, SRD_M = 44, 48, 52, 56, 60, 64, 68, 72
S_TAG = 76
S_SELLO, S_SELHI = 78, 79
S_T0 = 80
S_MASK = 96
S_DRY = 97
S_STAMP = 100
V_ST = 236
uid = [0]


def nid():
    uid[0] += 1
    return uid[0]


class Guard:
    def __enter__(self):
        if not OPT["dry"]:
            return
        self.n = nid()
        e(f"s_cmp_lg_u32 s{S_DRY}, 0")
        e(f"s_cbranch_scc1 L_g{self.n}")

    def __exit__(self, *a):
        if not OPT["dry"]:
            return
        lab(f"L_g{self.n}")


def if_dry_goto(label):
    if not OPT["dry"]:
        e("s_nop 1")
        return
    e(f"s_cmp_lg_u32 s{S_DRY}, 0")
    e(f"s_cbranch_scc1 {label}")


def srd(dst, ptr, nbytes):
    e(f"s_mov_b32 s{dst}, s{ptr}")
    e(f"s_and_b32 s{dst+1}, s{ptr+1}, 0xffff")
    e(f"s_mov_b32 s{dst+2}, {nbytes}")
    e(f"s_mov_b32 s{dst+3}, 0x00020000")


def stamp_raw(i, comm):
    va, vt = V_ST, V_ST + 2
    e(f"s_lshl_b32 s98, s2, 3")
    e(f"s_add_u32 s98, s98, s{S_WAVE}")
    if comm:
        e("s_add_u32 s98, s98, 4")
    e(f"s_lshl_b32 s98, s98, 7")
    e(f"s_add_u32 s98, s98, {WS_ST + 8 * i}")
    e(f"v_mov_b32 v{va}, s98")
    e(f"v_mov_b32 v{vt}, s{S_STAMP}")
    e(f"v_mov_b32 v{vt+1}, s{S_STAMP+1}")
    e(f"s_mov_b64 s[98:99], exec")
    e(f"s_mov_b64 exec, 1")
    e(f"buffer_store_dwordx2 v[{vt}:{vt+1}], v{va}, s[{SRD_WS}:{SRD_WS+3}], 0 offen")
    e(f"s_mov_b64 exec, s[98:99]")


STAMP_MAP_D = {0: 0, 3: 1, 5: 2, 2: 3, 6: 4, 7: 5, 8: 6}
STAMP_MAP_C = {0: 0, 1: 1, 3: 2, 2: 3, 5: 4, 7: 6, 6: 5}


def stamp(i, comm=False):
    if not OPT["stamps"]:
        return
    m = STAMP_MAP_C if comm else STAMP_MAP_D
    if i not in m:
        return
    k = m[i]
    with Guard():
        e(f"s_memrealtime s[{16+2*k}:{17+2*k}]")


def dump_stamps(comm):
    if not OPT["stamps"]:
        return
    m = STAMP_MAP_C if comm else STAMP_MAP_D
    e("s_waitcnt lgkmcnt(0)")
    e("s_mov_b64 exec, -1")
    if OPT["stamps"] == 2:
        srd(SRD_M, 40, 256)
        e("s_mov_b64 exec, 1")
        for i, k in m.items():
            if comm and i in (6,):
                continue
            slot = i if not comm else {0: 9, 1: 10, 3: 11, 4: 12, 5: 13, 7: 14}[i]
            n_ = nid()
            if (not comm) and i in (7, 8):
                e(f"s_cmp_lt_u32 s{S_WAVE}, 2")
                e(f"s_cbranch_scc1 L_ds{n_}")
            if comm and i == 0:
                e("s_cmp_eq_u32 s8, 0")
                e(f"s_cbranch_scc1 L_ds{n_}")
            if comm and i == 5:
                e("s_cmp_ge_u32 s2, 64")
                e(f"s_cbranch_scc1 L_ds{n_}")
            e(f"v_mov_b32 v{V_ST}, {4*slot}")
            if (not comm) and i == 0:
                e(f"s_not_b32 s{S_STAMP}, s{16+2*k}")
                e(f"v_mov_b32 v{V_ST+1}, s{S_STAMP}")
            else:
                e(f"v_mov_b32 v{V_ST+1}, s{16+2*k}")
            e(f"buffer_atomic_umax v{V_ST+1}, v{V_ST}, s[{SRD_M}:{SRD_M+3}], 0 offen")
            e("s_nop 1")
            lab(f"L_ds{n_}")
        return
    for i, k in m.items():
        e(f"s_mov_b32 s{S_STAMP}, s{16+2*k}")
        e(f"s_mov_b32 s{S_STAMP+1}, s{17+2*k}")
        stamp_raw(i, comm)
        e("s_nop 1")


def tile_mm(W, A, B, ACC, acc_in=False):
    for q in range(4):
        for i in range(4):
            e(f"v_perm_b32 v{B+i}, v{W+4*(2*i+1)+q}, v{W+4*(2*i)+q}, s{S_SELLO}")
        for i in range(4):
            e(f"v_perm_b32 v{B+4+i}, v{W+4*(2*i+1)+q}, v{W+4*(2*i)+q}, s{S_SELHI}")
        e("s_nop 1")
        for jj in range(2):
            j = 2 * q + jj
            c = f"v[{ACC+4*j}:{ACC+4*j+3}]" if acc_in else "0"
            e(f"v_mfma_f32_16x16x32_bf16 v[{ACC+4*j}:{ACC+4*j+3}], v[{A}:{A+3}], v[{B+4*jj}:{B+4*jj+3}], {c}")


VT = 188
VTRAW = 186


def load_tag(vtmp):
    e(f"v_mov_b32 v{vtmp}, 0")
    e(f"buffer_load_dwordx2 v[{VTRAW}:{VTRAW+1}], v{vtmp}, s[{SRD_WS}:{SRD_WS+3}], 0 offen offset:{WS_GEN} sc1")


def finish_tag():
    e(f"v_readfirstlane_b32 s{S_TAG}, v{VTRAW}")
    e(f"v_readfirstlane_b32 s{S_TAG+1}, v{VTRAW+1}")
    e("s_nop 3")
    e(f"s_add_u32 s{S_TAG}, s{S_TAG}, 1")
    e(f"s_addc_u32 s{S_TAG+1}, s{S_TAG+1}, 0")
    e(f"s_and_b32 s{S_T0}, s{S_TAG}, 0x3ff")
    e(f"s_bfe_u32 s{S_T0+1}, s{S_TAG}, 0xa000a")
    e(f"s_bfe_u32 s{S_T0+2}, s{S_TAG}, 0xa0014")
    e(f"s_lshr_b64 s[{S_T0+4}:{S_T0+5}], s[{S_TAG}:{S_TAG+1}], 30")
    e(f"s_and_b32 s{S_T0+3}, s{S_T0+4}, 0x3ff")
    for i in range(4):
        e(f"v_mov_b32 v{VT+i}, s{S_T0+i}")


def tagq(dst, srcs):
    for i in range(4):
        e(f"v_add_u32 v{dst+i}, 0x200, v{srcs[i]}")
    for i in range(4):
        e(f"v_bfi_b32 v{dst+i}, s{S_MASK}, v{VT+i}, v{dst+i}")


def poll(name, loads, quads, vx, sleep, maxit=100000, altbase=None):
    n = len(loads)

    def issue(base_map):
        for l, q in zip(loads, quads):
            r = base_map(q)
            e(l.replace("@", f"v[{r}:{r+3}]"))

    def check(base_map):
        first = True
        for q in quads:
            r = base_map(q)
            for i in range(4):
                if first:
                    e(f"v_xor_b32 v{vx}, v{r+i}, v{VT+i}")
                    first = False
                else:
                    e(f"v_xor_b32 v{vx+1}, v{r+i}, v{VT+i}")
                    e(f"v_or_b32 v{vx}, v{vx}, v{vx+1}")
        e(f"v_and_b32 v{vx}, 0x3ff, v{vx}")
        e(f"v_cmp_ne_u32 vcc, 0, v{vx}")

    A = lambda q: q
    e(f"s_mov_b32 s{S_T0+10}, {maxit}")
    usepp = OPT["pp"] or (OPT["ppq"] and name == "q")
    if not usepp or altbase is None:
        lab(f"L_poll_{name}")
        issue(A)
        with Guard():
            e("s_waitcnt vmcnt(0)")
        check(A)
        if_dry_goto(f"L_pdone_{name}")
        e(f"s_cmp_eq_u64 vcc, 0")
        e(f"s_cbranch_scc1 L_pdone_{name}")
        e(f"s_sub_u32 s{S_T0+10}, s{S_T0+10}, 1")
        e(f"s_cmp_eq_u32 s{S_T0+10}, 0")
        e(f"s_cbranch_scc1 L_pdone_{name}")
        if sleep:
            e(f"s_sleep {sleep}")
        e(f"s_branch L_poll_{name}")
        lab(f"L_pdone_{name}")
        for q in quads:
            for i in range(4):
                e(f"v_and_b32 v{q+i}, 0xfffffc00, v{q+i}")
        return
    B = lambda q: altbase + (q - quads[0])
    issue(A)
    lab(f"L_poll_{name}")
    e(f"s_sleep {max(OPT['pp'], OPT['ppq'])}")
    issue(B)
    with Guard():
        e(f"s_waitcnt vmcnt({n})")
    check(A)
    if_dry_goto(f"L_pB_{name}")
    e(f"s_cmp_eq_u64 vcc, 0")
    e(f"s_cbranch_scc1 L_pdone_{name}")
    e(f"s_sleep {max(OPT['pp'], OPT['ppq'])}")
    issue(A)
    e(f"s_waitcnt vmcnt({n})")
    check(B)
    e(f"s_cmp_eq_u64 vcc, 0")
    e(f"s_cbranch_scc1 L_pB_{name}")
    e(f"s_sub_u32 s{S_T0+10}, s{S_T0+10}, 1")
    e(f"s_cmp_eq_u32 s{S_T0+10}, 0")
    e(f"s_cbranch_scc0 L_poll_{name}")
    lab(f"L_pB_{name}")
    for q in quads:
        for i in range(4):
            e(f"v_mov_b32 v{q+i}, v{B(q)+i}")
    lab(f"L_pdone_{name}")


def lds_signal(cnt, vtmp):
    e("s_waitcnt lgkmcnt(0)")
    e(f"v_mov_b32 v{vtmp}, {L_CNT+cnt}")
    e(f"v_mov_b32 v{vtmp+1}, 1")
    e("s_mov_b64 exec, 1")
    e(f"ds_add_u32 v{vtmp}, v{vtmp+1}")
    e("s_mov_b64 exec, -1")


def lds_wait(cnt, target, vtmp):
    n = nid()
    e(f"v_mov_b32 v{vtmp}, {L_CNT+cnt}")
    e(f"s_mov_b32 s{S_T0+11}, 4000000")
    lab(f"L_lw{n}")
    e(f"ds_read_b32 v{vtmp+1}, v{vtmp}")
    e("s_waitcnt lgkmcnt(0)")
    e(f"v_readfirstlane_b32 s{S_T0+12}, v{vtmp+1}")
    if_dry_goto(f"L_lwd{n}")
    e("s_nop 1")
    e(f"s_cmp_ge_u32 s{S_T0+12}, {target}")
    e(f"s_cbranch_scc1 L_lwd{n}")
    e(f"s_sub_u32 s{S_T0+11}, s{S_T0+11}, 1")
    e(f"s_cmp_eq_u32 s{S_T0+11}, 0")
    e(f"s_cbranch_scc1 L_lwd{n}")
    if OPT["sleep_l"]:
        e(f"s_sleep {OPT['sleep_l']}")
    e(f"s_branch L_lw{n}")
    lab(f"L_lwd{n}")


def bf16_round_pair(dst_pk, a, b, lo, hi):
    e(f"v_cvt_pk_bf16_f32 v{dst_pk}, v{a}, v{b}")
    e(f"v_lshlrev_b32 v{lo}, 16, v{dst_pk}")
    e(f"v_and_b32 v{hi}, 0xffff0000, v{dst_pk}")


def dpp_reduce(op, regs, ctls):
    for ctl in ctls:
        e("s_nop 1")
        for r in regs:
            e(f"{op}_dpp v{r}, v{r}, v{r} {ctl} row_mask:0xf bank_mask:0xf")


ROW16 = ["quad_perm:[1,0,3,2]", "quad_perm:[2,3,0,1]", "row_half_mirror", "row_mirror"]


def swap_reduce(op, regs, tmps, sws=("v_permlane16_swap_b32", "v_permlane32_swap_b32")):
    for sw in sws:
        for r, t in zip(regs, tmps):
            e(f"v_mov_b32 v{t}, v{r}")
        e("s_nop 1")
        for r, t in zip(regs, tmps):
            e(f"{sw} v{r}, v{t}")
        e("s_nop 1")
        for r, t in zip(regs, tmps):
            e(f"{op} v{r}, v{r}, v{t}")


def set_exec(lo, hi):
    e(f"s_mov_b32 exec_lo, {lo}")
    e(f"s_mov_b32 exec_hi, {hi}")


VW, VK, VV, VB, VACC = 16, 80, 112, 144, 152
VA, VA2 = 12, 224
VX = 152
TMP = 192


def lane_setup():
    e("v_and_b32 v1, 7, v0")
    e("v_bfe_u32 v2, v0, 3, 1")
    e("v_lshrrev_b32 v3, 4, v0")
    e("v_lshlrev_b32 v4, 5, v2")
    e("v_lshl_add_u32 v4, v3, 3, v4")
    e("v_and_b32 v5, 3, v0")
    e("v_bfe_u32 v6, v0, 2, 1")
    e("v_lshlrev_b32 v6, 5, v6")
    e("v_lshl_add_u32 v6, v3, 3, v6")
    e("v_lshlrev_b32 v11, 1, v6")
    e("v_lshl_add_u32 v6, v5, 10, v11")
    e("v_lshl_add_u32 v11, v5, 8, v11")
    e("v_lshlrev_b32 v10, 5, v1")
    e("v_lshl_add_u32 v10, v2, 10, v10")


def gather_quads(G, ACC=None):
    ACC = VACC if ACC is None else ACC
    for b in range(4):
        for hf in range(2):
            for i in range(4):
                e(f"v_mov_b32 v{G+8*b+4*hf+i}, v{ACC+4*(4*hf+i)+b}")


def tile128(A1, A2, piece_off_sreg, W=None, B=None, ACC=None, G=120):
    W = VW if W is None else W
    B = VB if B is None else B
    ACC = VACC if ACC is None else ACC
    tile_mm(W, A1, B, ACC)
    tile_mm(W + 32, A2, B, ACC, acc_in=True)
    e("v_lshlrev_b32 v1, 4, v0")
    e(f"v_lshrrev_b32 v{TMP+8}, 4, v0")
    e(f"v_add_u32 v1, s{piece_off_sreg}, v1")
    e(f"v_add_u32 v2, s{piece_off_sreg}, v10")
    e("s_nop 7")
    gather_quads(G, ACC)
    with Guard():
        set_exec("0xff0000ff", 0)
        for b in range(4):
            for hf in range(2):
                e(f"ds_write_b128 v2, v[{G+8*b+4*hf}:{G+8*b+4*hf+3}] offset:{256*b+16*hf}")
        e("s_mov_b64 exec, -1")
    e("s_waitcnt lgkmcnt(0)")
    e(f"ds_read_b128 v[{TMP}:{TMP+3}], v1")
    e(f"ds_read_b128 v[{TMP+4}:{TMP+7}], v1 offset:1024")
    e("s_waitcnt lgkmcnt(0)")
    for i in range(4):
        e(f"v_add_f32 v{TMP+i}, v{TMP+i}, v{TMP+4+i}")
    tagq(TMP, [TMP, TMP + 1, TMP + 2, TMP + 3])


hdr = open(f"cdna_kernels/{NAME}.s.ref").read().split("\n")
top = [l for l in hdr if l.startswith(";") and "@launch" not in l]
out.extend(top)
out.append(f"; @launch grid=(256,1,1) block=(512,1,1) lds={LDS_BYTES}")
out.append('.amdgcn_target "amdgcn-amd-amdhsa--gfx950"')
out.append(".text")
out.append(f".globl {NAME}_kernel")
out.append(".p2align 8")
out.append(f".type {NAME}_kernel,@function")
lab(f"{NAME}_kernel")

e("s_cmp_ge_u32 s2, 256")
e("s_cbranch_scc1 L_exit")
e("s_load_dwordx16 s[16:31], s[0:1], 0")
e("s_load_dwordx8 s[32:39], s[0:1], 64")
e("s_load_dwordx4 s[40:43], s[0:1], 96")
e("v_lshrrev_b32 v1, 6, v0")
e("v_and_b32 v0, 63, v0")
e(f"s_mov_b32 s{S_SELLO}, 0x05040100")
e(f"s_mov_b32 s{S_SELHI}, 0x07060302")
e(f"s_mov_b32 s{S_MASK}, 0x3ff")
e(f"s_mov_b32 s{S_DRY}, 0")
e(f"v_readfirstlane_b32 s{S_WAVE}, v1")
lane_setup()
e("s_waitcnt lgkmcnt(0)")
srd(SRD_X, 16, 4096)
srd(SRD_WS, 42, WS_END)
e(f"s_cmp_ge_u32 s{S_WAVE}, 4")
e("s_cbranch_scc1 L_comm")

srd(SRD_K, 18, 33554432)
srd(SRD_V, 20, 33554432)
stamp(0)
if OPT["dbg"]:
    e(f"s_cmp_lg_u32 s{S_WAVE}, 0")
    e("s_cbranch_scc1 L_dbg0")
    e("s_cmp_eq_u32 s2, 0")
    e("s_cselect_b32 s4, 0, 4")
    e("s_cmp_eq_u32 s2, 0")
    e("s_cbranch_scc1 L_dbg0b")
    e("s_cmp_eq_u32 s2, 255")
    e("s_cbranch_scc0 L_dbg0")
    lab("L_dbg0b")
    e("s_memrealtime s[98:99]")
    srd(SRD_M, 40, 256)
    e("s_waitcnt lgkmcnt(0)")
    e("v_mov_b32 v236, s4")
    e("v_mov_b32 v237, s98")
    e("s_mov_b64 exec, 1")
    e(f"buffer_store_dword v237, v236, s[{SRD_M}:{SRD_M+3}], 0 offen")
    e("s_mov_b64 exec, -1")
    lab("L_dbg0")
e("s_lshr_b32 s10, s2, 3")
e("s_lshl_b32 s10, s10, 12")
e("s_and_b32 s11, s2, 7")
e("s_lshl_b32 s11, s11, 7")
e("s_add_u32 s10, s10, s11")
e(f"s_lshl_b32 s11, s{S_WAVE}, 5")
e("s_add_u32 s10, s10, s11")
e("s_add_u32 s10, s10, 3072")
e("s_lshl_b32 s10, s10, 8")
e("s_add_u32 s11, s10, 4096")
e("v_and_b32 v8, 15, v0")
e("v_lshlrev_b32 v9, 4, v8")
e("v_lshlrev_b32 v8, 8, v8")
e("v_lshl_add_u32 v8, v3, 4, v8")
e("v_lshl_add_u32 v9, v3, 10, v9")
load_tag(2)
D = OPT["depth"]
seq = []
if OPT["kdma"]:
    e("v_and_b32 v12, 15, v0")
    for i4 in range(4):
        e(f"v_add_u32 v13, {4*i4}, v3")
        e(f"v_xor_b32 v14, v12, v13")
        e(f"v_lshlrev_b32 v14, 4, v14")
        e(f"v_lshl_add_u32 v{TMP+20+i4}, v13, 8, v14")
    e(f"s_lshl_b32 s12, s{S_WAVE}, 13")
    e(f"s_add_u32 s12, s12, {L_K}")
    for i in range(8):
        seq.append([f"s_add_u32 m0, s12, {1024*i}", "s_nop 0",
                    f"buffer_load_dwordx4 v{TMP+20+(i&3)}, s[{SRD_K}:{SRD_K+3}], s{10+(i>>2)} offen{NT} lds"])
    for c in range(4):
        e(f"v_add_u32 v13, {4*c}, v3")
        e(f"v_xor_b32 v13, v13, v12")
        e(f"v_lshlrev_b32 v13, 4, v13")
        e(f"v_lshl_add_u32 v13, v12, 8, v13")
        e(f"v_add_u32 v{228+c}, s12, v13")
else:
  for kb in range(2):
    for c in range(4):
        r = VK + 16 * kb + 4 * c
        seq.append(f"buffer_load_dwordx4 v[{r}:{r+3}], v8, s[{SRD_K}:{SRD_K+3}], s{10+kb} offen offset:{64*c}{NT}")
for i in range(8):
    r = VV + 4 * i
    so = 10 if i < 4 else 11
    seq.append(f"buffer_load_dwordx4 v[{r}:{r+3}], v9, s[{SRD_V}:{SRD_V+3}], s{so} offen offset:{256*(i&3)}{NT}")
gated = OPT["k_after"] or OPT["go_pub"]
for i, l in enumerate(seq):
    if gated and i == OPT["pre"]:
        e("s_barrier")
        lds_wait(C_GO, 1, TMP)
    if i == D and not gated:
        e("s_barrier")
    if i >= D and OPT["dyn"]:
        n_ = nid()
        if i == D:
            e("s_mov_b32 s13, 0")
            e(f"v_mov_b32 v{TMP+30}, {L_CNT+C_P}")
        lab(f"L_dy{n_}")
        e("s_cmp_lg_u32 s13, 0")
        e(f"s_cbranch_scc1 L_dyd{n_}")
        e(f"ds_read_b32 v{TMP+31}, v{TMP+30}")
        e("s_waitcnt lgkmcnt(0)")
        e(f"v_readfirstlane_b32 s13, v{TMP+31}")
        e("s_nop 3")
        e("s_cmp_lg_u32 s13, 0")
        e(f"s_cbranch_scc1 L_dyd{n_}")
        e(f"s_waitcnt vmcnt({D-1})")
        lab(f"L_dyd{n_}")
    elif i >= D:
        e(f"s_waitcnt vmcnt({D-1})")
    if (OPT["jit"] & 1) and i == min(15, OPT["jit_k"] + D):
        lds_signal(C_K, TMP)
    for l_ in (l if isinstance(l, list) else [l]):
        e(l_)
finish_tag()
if OPT["vstamp"]:
    e("s_waitcnt vmcnt(0)")
    stamp(7)
lab("L_secA")
with Guard():
    e("s_waitcnt vmcnt(8)")
if OPT["kdma"]:
    for kb in range(2):
        for c in range(4):
            r = VK + 16 * kb + 4 * c
            e(f"ds_read_b128 v[{r}:{r+3}], v{228+c} offset:{4096*kb}")
e("v_and_b32 v1, 3, v0")
e("v_lshlrev_b32 v1, 8, v1")
e("v_lshl_add_u32 v1, v3, 4, v1")
lds_wait(C_Q, 2 if OPT["q2"] else 4, TMP)
stamp(3)
VQ = TMP
for c in range(4):
    e(f"ds_read_b128 v[{VQ+4*c}:{VQ+4*c+3}], v1 offset:{L_QS+64*c}")
e("s_waitcnt lgkmcnt(0)")
stamp(4)
VS = VACC
for kb in range(2):
    for c in range(4):
        src2 = "0" if c == 0 else f"v[{VS+4*kb}:{VS+4*kb+3}]"
        e(f"v_mfma_f32_16x16x32_bf16 v[{VS+4*kb}:{VS+4*kb+3}], v[{VK+16*kb+4*c}:{VK+16*kb+4*c+3}], v[{VQ+4*c}:{VQ+4*c+3}], {src2}")
e("s_nop 7")
e("s_nop 1")
SC = TMP + 16
T = TMP + 24
for kb in range(2):
    for h2 in range(2):
        a = VS + 4 * kb + 2 * h2
        d = SC + 4 * kb + 2 * h2
        bf16_round_pair(T, a, a + 1, d, d + 1)
        e(f"v_mul_f32 v{d}, 0x3db504f3, v{d}")
        e(f"v_mul_f32 v{d+1}, 0x3db504f3, v{d+1}")
        bf16_round_pair(T, d, d + 1, d, d + 1)
MX = TMP + 26
LS = TMP + 27
e(f"v_max3_f32 v{MX}, v{SC}, v{SC+1}, v{SC+2}")
e(f"v_max3_f32 v{MX}, v{MX}, v{SC+3}, v{SC+4}")
e(f"v_max3_f32 v{MX}, v{MX}, v{SC+5}, v{SC+6}")
e(f"v_max_f32 v{MX}, v{MX}, v{SC+7}")
swap_reduce("v_max_f32", [MX], [T])
for i in range(8):
    e(f"v_sub_f32 v{SC+i}, v{SC+i}, v{MX}")
    e(f"v_mul_f32 v{SC+i}, 0x3fb8aa3b, v{SC+i}")
    e(f"v_exp_f32 v{SC+i}, v{SC+i}")
e("s_nop 0")
e(f"v_add_f32 v{LS}, v{SC}, v{SC+1}")
for i in range(2, 8):
    e(f"v_add_f32 v{LS}, v{LS}, v{SC+i}")
swap_reduce("v_add_f32", [LS], [T])
VP = TMP + 28
for i in range(4):
    e(f"v_cvt_pk_bf16_f32 v{VP+i}, v{SC+2*i}, v{SC+2*i+1}")
with Guard():
    e("s_waitcnt vmcnt(0)")
stamp(5)
tile_mm(VV, VP, VB, VACC)
e(f"s_lshl_b32 s4, s{S_WAVE}, 11")
e("v_lshlrev_b32 v1, 5, v0")
e("v_add_u32 v1, s4, v1")
e(f"s_lshl_b32 s4, s{S_WAVE}, 5")
e("v_lshlrev_b32 v2, 3, v0")
e("v_add_u32 v2, s4, v2")
e("s_nop 7")
gather_quads(VK)
with Guard():
    set_exec("0xffff", 0)
    for r in range(4):
        for hf in range(2):
            e(f"ds_write_b128 v1, v[{VK+8*r+4*hf}:{VK+8*r+4*hf+3}] offset:{L_OW+512*r+16*hf}")
    e("s_mov_b64 exec, 15")
    e(f"ds_write_b64 v2, v[{MX}:{MX+1}] offset:{L_ML}")
    e("s_mov_b64 exec, -1")
    lds_signal(C_O, TMP)
stamp(1)
e(f"s_lshl_b32 s4, s{S_WAVE}, 3")
e("v_mov_b32 v1, s4")
e(f"s_lshl_b32 s4, s{S_WAVE}, 9")
e("v_and_b32 v2, 31, v0")
e("v_lshlrev_b32 v2, 4, v2")
e("v_add_u32 v2, s4, v2")
e("s_lshr_b32 s4, s2, 3")
e("s_lshl_b32 s4, s4, 2")
e(f"s_add_u32 s4, s4, s{S_WAVE}")
e("s_and_b32 s5, s2, 7")
e("s_lshl_b32 s6, s4, 12")
e("s_lshl_b32 s7, s5, 7")
e("s_add_u32 s6, s6, s7")
e(f"s_add_u32 s6, s6, {WS_APO}")
e("s_lshl_b32 s4, s4, 3")
e("s_add_u32 s4, s4, s5")
e(f"s_lshl_b32 s4, s4, {7 if OPT['apm128'] else 4}")
e(f"s_add_u32 s4, s4, {WS_APM}")
e("v_and_b32 v7, 7, v0")
e("v_lshlrev_b32 v7, 4, v7")
e(f"v_lshrrev_b32 v{TMP+12}, 3, v0")
e(f"v_lshl_add_u32 v7, v{TMP+12}, 10, v7")
lds_wait(C_O, 4, TMP)
stamp(2)
R = VACC
for w in range(4):
    e(f"ds_read_b64 v[{R+2*w}:{R+2*w+1}], v1 offset:{L_ML+32*w}")
for w in range(4):
    e(f"ds_read_b128 v[{R+8+4*w}:{R+11+4*w}], v2 offset:{L_OW+2048*w}")
e("s_waitcnt lgkmcnt(0)")
M_, L_ = R + 24, R + 25
e(f"v_max3_f32 v{M_}, v{R}, v{R+2}, v{R+4}")
e(f"v_max_f32 v{M_}, v{M_}, v{R+6}")
F_ = TMP
for w in range(4):
    e(f"v_sub_f32 v{F_+w}, v{R+2*w}, v{M_}")
    e(f"v_mul_f32 v{F_+w}, 0x3fb8aa3b, v{F_+w}")
    e(f"v_exp_f32 v{F_+w}, v{F_+w}")
e("s_nop 0")
O_ = TMP + 4
e(f"v_mul_f32 v{L_}, v{F_}, v{R+1}")
for i in range(4):
    e(f"v_mul_f32 v{O_+i}, v{F_}, v{R+8+i}")
for w in range(1, 4):
    e(f"v_fmac_f32 v{L_}, v{F_+w}, v{R+2*w+1}")
    for i in range(4):
        e(f"v_fmac_f32 v{O_+i}, v{F_+w}, v{R+8+4*w+i}")
tagq(O_, [O_, O_ + 1, O_ + 2, O_ + 3])
e(f"v_mov_b32 v{R+26}, 0")
e(f"v_mov_b32 v{R+27}, 0")
tagq(TMP + 8, [M_, L_, R + 26, R + 27])
e(f"v_mov_b32 v1, 0")
with Guard():
    set_exec("-1", 0)
    e(f"buffer_store_dwordx4 v[{O_}:{O_+3}], v7, s[{SRD_WS}:{SRD_WS+3}], s6 offen sc1")
    e("s_mov_b64 exec, 1")
    e(f"buffer_store_dwordx4 v[{TMP+8}:{TMP+11}], v1, s[{SRD_WS}:{SRD_WS+3}], s4 offen sc1")
    e("s_mov_b64 exec, -1")
stamp(6)
if OPT["adelay"]:
    if OPT["adelay"] == 1:
        e("s_waitcnt vmcnt(0)")
    lds_signal(C_PA, TMP + 16)
if_dry_goto("L_dry_done_data")
lab("L_exit_d")
dump_stamps(False)
e("s_endpgm")

lab("L_comm")
if OPT["padx"]:
    e("s_memrealtime s[94:95]")
e("s_setprio 2")
e(f"s_sub_u32 s{S_WAVE}, s{S_WAVE}, 4")
stamp(6, True)
load_tag(7)
e("s_mov_b32 s8, 0")
e(f"s_cmp_ge_u32 s{S_WAVE}, 2")
e("s_cbranch_scc1 L_p1_noload")
e(f"s_cmp_eq_u32 s{S_WAVE}, 1")
e("s_cbranch_scc1 L_p1_w1")
srd(SRD_W1, 22, 4194304)
e("s_mov_b32 s5, 8192")
e("s_lshr_b32 s6, s2, 6")
e("s_lshl_b32 s6, s6, 7")
e("s_and_b32 s7, s2, 63")
e("s_lshl_b32 s7, s7, 7")
e("s_mov_b32 s8, 1")
e("s_branch L_p1_go")
lab("L_p1_w1")
e("s_cmp_ge_u32 s2, 112")
e("s_cbranch_scc1 L_p1_noload")
srd(SRD_W1, 28, 512 * 1792 * 2)
e("s_mov_b32 s5, 3584")
e("s_and_b32 s6, s2, 3")
e("s_lshl_b32 s6, s6, 7")
e("s_lshr_b32 s7, s2, 2")
e("s_lshl_b32 s7, s7, 7")
e("s_mov_b32 s8, 2")
if OPT["w1_late"]:
    e("s_barrier")
    lds_wait(C_GO, 1, TMP)
lab("L_p1_go")
e("v_mul_lo_u32 v7, s5, v4")
e("v_lshl_add_u32 v7, v1, 4, v7")
e("s_mul_i32 s9, s6, s5")
e("s_add_u32 s9, s9, s7")
e("s_lshl_b32 s12, s6, 1")
e("s_mul_i32 s13, s5, 56")
for i in range(16):
    e(f"buffer_load_dwordx4 v[{VW+4*i}:{VW+4*i+3}], v7, s[{SRD_W1}:{SRD_W1+3}], s9 offen{NT}")
    if i < 15:
        e("s_add_u32 s9, s9, s5")
    if i == 7:
        e("s_add_u32 s9, s9, s13")
XA, XA2, XR = 96, 100, 104
e(f"buffer_load_dwordx4 v[{XA}:{XA+3}], v6, s[{SRD_X}:{SRD_X+3}], s12 offen")
e(f"buffer_load_dwordx4 v[{XA2}:{XA2+3}], v6, s[{SRD_X}:{SRD_X+3}], s12 offen offset:128")
e("v_lshlrev_b32 v1, 4, v0")
for b in range(4):
    e(f"buffer_load_dwordx4 v[{XR+4*b}:{XR+4*b+3}], v1, s[{SRD_X}:{SRD_X+3}], 0 offen offset:{1024*b}")
lab("L_p1_noload")
e(f"s_cmp_lg_u32 s{S_WAVE}, 0")
e("s_cbranch_scc1 L_c_noz")
e("v_mov_b32 v1, 0")
e("v_lshlrev_b32 v7, 2, v0")
e("s_mov_b64 exec, 0xffff")
e(f"ds_write_b32 v7, v1 offset:{L_CNT}")
e("s_mov_b64 exec, -1")
e("s_waitcnt lgkmcnt(0)")
lab("L_c_noz")
if OPT["w1_late"]:
    e("s_cmp_eq_u32 s8, 2")
    e("s_cbranch_scc1 L_skipb0")
e("s_barrier")
lab("L_skipb0")
e(f"s_lshl_b32 s15, s{S_WAVE}, 11")
e(f"s_add_u32 s15, s15, {L_PIECE + 4096}")
if OPT["dry"]:
    e(f"s_mov_b32 s{S_DRY}, 1")
    e("s_cmp_lg_u32 s8, 0")
    e("s_cbranch_scc1 L_secP1")
    e(f"s_cmp_eq_u32 s{S_WAVE}, 2")
    e("s_cbranch_scc1 L_secA")
    e("s_branch L_secQ")
    lab("L_dry_done_data")
    lab("L_dry_done_comm")
    e(f"s_mov_b32 s{S_DRY}, 0")
    lane_setup()
lab("L_real_start")
if OPT["k_after"]:
    e(f"s_cmp_eq_u32 s{S_WAVE}, 0")
    e("s_cbranch_scc0 L_nogo")
    e(f"s_waitcnt vmcnt({22-OPT['k_after']})")
    lds_signal(C_GO, TMP)
    lab("L_nogo")
e("s_waitcnt vmcnt(0) lgkmcnt(0)")
stamp(7, True)
finish_tag()
e("s_cmp_eq_u32 s8, 0")
e("s_cbranch_scc1 L_secQ")
lab("L_secP1")
for d in range(4):
    e(f"v_mov_b32 v{VA+d}, v{XA+d}")
    e(f"v_mov_b32 v{VA2+d}, v{XA2+d}")
e("s_cmp_eq_u32 s8, 1")
e("s_cbranch_scc1 L_p1_mm")
SUM = TMP
T = TMP + 4
for b in range(4):
    e(f"v_lshlrev_b32 v{T}, 16, v{XR+4*b}")
    e(f"v_and_b32 v{T+1}, 0xffff0000, v{XR+4*b}")
    e(f"v_add_f32 v{SUM+b}, v{T}, v{T+1}")
    for d in range(1, 4):
        e(f"v_lshlrev_b32 v{T}, 16, v{XR+4*b+d}")
        e(f"v_and_b32 v{T+1}, 0xffff0000, v{XR+4*b+d}")
        e(f"v_add_f32 v{SUM+b}, v{SUM+b}, v{T}")
        e(f"v_add_f32 v{SUM+b}, v{SUM+b}, v{T+1}")
dpp_reduce("v_add_f32", [SUM + b for b in range(4)], ROW16)
swap_reduce("v_add_f32", [SUM + b for b in range(4)], [T + b for b in range(4)])
for b in range(4):
    e(f"v_mul_f32 v{SUM+b}, 0x3b000000, v{SUM+b}")
SQ = TMP + 12
for b in range(4):
    for d in range(4):
        e(f"v_lshlrev_b32 v{T}, 16, v{XR+4*b+d}")
        e(f"v_and_b32 v{T+1}, 0xffff0000, v{XR+4*b+d}")
        e(f"v_sub_f32 v{T}, v{T}, v{SUM+b}")
        e(f"v_sub_f32 v{T+1}, v{T+1}, v{SUM+b}")
        if d == 0:
            e(f"v_mul_f32 v{SQ+b}, v{T}, v{T}")
        else:
            e(f"v_fmac_f32 v{SQ+b}, v{T}, v{T}")
        e(f"v_fmac_f32 v{SQ+b}, v{T+1}, v{T+1}")
dpp_reduce("v_add_f32", [SQ + b for b in range(4)], ROW16)
swap_reduce("v_add_f32", [SQ + b for b in range(4)], [T + b for b in range(4)])
for b in range(4):
    e(f"v_mul_f32 v{SQ+b}, 0x3b000000, v{SQ+b}")
MEAN, DEN, RCP = TMP + 16, TMP + 17, TMP + 18
e(f"v_mov_b32 v{MEAN}, v{SUM}")
e(f"v_mov_b32 v{DEN}, v{SQ}")
for b in range(1, 4):
    e(f"v_cmp_eq_u32 vcc, {b}, v5")
    e("s_nop 1")
    e(f"v_cndmask_b32 v{MEAN}, v{MEAN}, v{SUM+b}, vcc")
    e(f"v_cndmask_b32 v{DEN}, v{DEN}, v{SQ+b}, vcc")
bf16_round_pair(T, MEAN, DEN, MEAN, DEN)
e(f"v_add_f32 v{DEN}, 0x3727c5ac, v{DEN}")
e(f"v_cvt_pk_bf16_f32 v{T}, v{DEN}, v{DEN}")
e(f"v_lshlrev_b32 v{DEN}, 16, v{T}")
e(f"v_sqrt_f32 v{DEN}, v{DEN}")
e("s_nop 0")
e(f"v_cvt_pk_bf16_f32 v{T}, v{DEN}, v{DEN}")
e(f"v_lshlrev_b32 v{DEN}, 16, v{T}")
e(f"v_rcp_f32 v{RCP}, v{DEN}")
e("s_nop 0")
for AA in (VA, VA2):
    for d in range(4):
        a0, a1 = T + 2, T + 3
        e(f"v_lshlrev_b32 v{a0}, 16, v{AA+d}")
        e(f"v_and_b32 v{a1}, 0xffff0000, v{AA+d}")
        e(f"v_sub_f32 v{a0}, v{a0}, v{MEAN}")
        e(f"v_sub_f32 v{a1}, v{a1}, v{MEAN}")
        bf16_round_pair(T, a0, a1, a0, a1)
        for a in (a0, a1):
            e(f"v_mul_f32 v{T+4}, v{a}, v{RCP}")
            e(f"v_fma_f32 v{T+5}, -v{T+4}, v{DEN}, v{a}")
            e(f"v_fma_f32 v{a}, v{T+5}, v{RCP}, v{T+4}")
        e(f"v_cvt_pk_bf16_f32 v{AA+d}, v{a0}, v{a1}")
lab("L_p1_mm")
tile128(VA, VA2, 15)
e("v_and_b32 v1, 15, v0")
e("s_cmp_eq_u32 s8, 1")
e("s_cbranch_scc1 L_pub_q")
e("s_and_b32 s4, s2, 3")
e("s_mul_i32 s4, s4, 1792")
e("s_lshr_b32 s5, s2, 2")
e("s_lshl_b32 s5, s5, 4")
e("s_add_u32 s4, s4, s5")
e("s_lshl_b32 s4, s4, 4")
e(f"s_add_u32 s4, s4, {WS_HP}")
e(f"v_mul_u32_u24 v2, 448, v{TMP+8}")
e("v_add_u32 v1, v2, v1")
e("s_branch L_pub_go")
lab("L_pub_q")
e("s_lshr_b32 s4, s2, 6")
e("s_lshl_b32 s4, s4, 12")
e("s_and_b32 s5, s2, 63")
e("s_lshl_b32 s5, s5, 4")
e("s_add_u32 s4, s4, s5")
e("s_lshl_b32 s4, s4, 4")
e(f"s_add_u32 s4, s4, {WS_QP}")
e(f"v_lshl_add_u32 v1, v{TMP+8}, 10, v1")
lab("L_pub_go")
e("v_lshlrev_b32 v1, 4, v1")
if_dry_goto("L_dry_done_comm")
e(f"buffer_store_dwordx4 v[{TMP}:{TMP+3}], v1, s[{SRD_WS}:{SRD_WS+3}], s4 offen sc1")
if OPT["go_pub"]:
    e("s_cmp_eq_u32 s8, 1")
    e("s_cbranch_scc0 L_nogo2")
    lds_signal(C_GO, TMP + 10)
    stamp(0, True)
    lab("L_nogo2")
else:
    stamp(0, True)
if OPT["ackw"]:
    e("s_waitcnt vmcnt(0)")
if OPT["ackst"]:
    e("s_waitcnt vmcnt(0)")
    stamp(7, True)
if OPT["qdelay"]:
    e("s_cmp_eq_u32 s8, 1")
    e("s_cbranch_scc0 L_nop2")
    lds_signal(C_P, TMP + 10)
    lab("L_nop2")
lab("L_secQ")
e("v_lshlrev_b32 v3, 4, v0")
if OPT["q2"]:
    assert not OPT["dry"]
    e(f"s_lshl_b32 s4, s{S_WAVE}, 8")
    e("v_and_b32 v5, 31, v0")
    e("v_lshlrev_b32 v5, 3, v5")
    e("v_add_u32 v5, s4, v5")
    e(f"s_cmp_lt_u32 s{S_WAVE}, 2")
    e("s_cbranch_scc1 L_q_skip")
    e("s_lshr_b32 s4, s2, 6")
    e("s_lshl_b32 s4, s4, 10")
    e("s_lshr_b32 s5, s2, 3")
    e("s_and_b32 s5, s5, 7")
    e("s_lshl_b32 s5, s5, 7")
    e("s_add_u32 s4, s4, s5")
    e(f"s_sub_u32 s5, s{S_WAVE}, 2")
    e("s_lshl_b32 s5, s5, 6")
    e("s_add_u32 s4, s4, s5")
    e("s_lshl_b32 s4, s4, 4")
    e(f"s_add_u32 s4, s4, {WS_QP}")
    for k in range(1, 4):
        e(f"s_add_u32 s{4+k}, s4, {k*4*1024*16}")
    if OPT["qdelay"]:
        lds_wait(C_P, 1, 32)
        if OPT["qdelay"] > 1:
            e(f"s_sleep {OPT['qdelay']}")
    poll("q", [f"buffer_load_dwordx4 @, v3, s[{SRD_WS}:{SRD_WS+3}], s{4+k} offen sc1" for k in range(4)],
         [16, 20, 24, 28], 6, OPT["sleep_q"])
    for i in range(4):
        e(f"v_add_f32 v{32+i}, v{16+i}, v{20+i}")
        e(f"v_add_f32 v{36+i}, v{24+i}, v{28+i}")
    for i in range(4):
        e(f"v_add_f32 v{32+i}, v{32+i}, v{36+i}")
    e("v_cvt_pk_bf16_f32 v32, v32, v33")
    e("v_cvt_pk_bf16_f32 v33, v34, v35")
    e(f"s_sub_u32 s4, s{S_WAVE}, 2")
    e("s_lshl_b32 s4, s4, 9")
    e("v_lshlrev_b32 v4, 3, v0")
    e("v_add_u32 v4, s4, v4")
    e(f"ds_write_b64 v4, v[32:33] offset:{L_QS}")
    lds_signal(C_Q, 6)
    lab("L_q_skip")
else:
    e("s_lshr_b32 s4, s2, 6")
    e("s_lshl_b32 s4, s4, 10")
    e("s_lshr_b32 s5, s2, 3")
    e("s_and_b32 s5, s5, 7")
    e("s_lshl_b32 s5, s5, 7")
    e("s_add_u32 s4, s4, s5")
    e(f"s_lshl_b32 s5, s{S_WAVE}, 5")
    e("s_add_u32 s4, s4, s5")
    e("s_lshl_b32 s4, s4, 4")
    e(f"s_add_u32 s4, s4, {WS_QP}")
    e(f"s_add_u32 s5, s4, {4*1024*16}")
    e("v_and_b32 v4, 31, v0")
    e("v_lshlrev_b32 v4, 4, v4")
    e("v_lshrrev_b32 v5, 5, v0")
    e("v_lshl_add_u32 v4, v5, 17, v4")
    if OPT["qdelay"]:
        lds_wait(C_P, 1, 6)
        if OPT["qdelay"] > 1:
            e(f"s_sleep {OPT['qdelay']}")
    if OPT["jit"] & 1:
        lds_wait(C_K, 4, 6)
    poll("q", [f"buffer_load_dwordx4 @, v4, s[{SRD_WS}:{SRD_WS+3}], s{4+k} offen sc1" for k in range(2)],
         [16, 20], 6, OPT["sleep_q"], altbase=168)
    for i in range(4):
        e(f"v_add_f32 v{24+i}, v{16+i}, v{20+i}")
    swap_reduce("v_add_f32", [24, 25, 26, 27], [28, 29, 30, 31], ("v_permlane32_swap_b32",))
    e("v_cvt_pk_bf16_f32 v24, v24, v25")
    e("v_cvt_pk_bf16_f32 v25, v26, v27")
    e(f"s_lshl_b32 s4, s{S_WAVE}, 8")
    e("v_and_b32 v5, 31, v0")
    e("v_lshlrev_b32 v5, 3, v5")
    e("v_add_u32 v5, s4, v5")
    with Guard():
        e(f"ds_write_b64 v5, v[24:25] offset:{L_QS}")
        lds_signal(C_Q, 6)

stamp(1, True)
W3, B3, ACC3 = 96, 160, 16
e("s_mov_b32 s14, 0")
with Guard():
    e("v_lshrrev_b32 v9, 4, v0")
    e(f"s_cmp_lt_u32 s{S_WAVE}, 2")
    e("s_cbranch_scc1 L_nowo0")
    srd(SRD_W3, 24, 4194304)
    e("s_lshr_b32 s6, s2, 1")
    e("s_lshl_b32 s9, s6, 15")
    e("s_and_b32 s7, s2, 1")
    e("s_lshl_b32 s7, s7, 9")
    e("s_add_u32 s9, s9, s7")
    e(f"s_sub_u32 s7, s{S_WAVE}, 2")
    e("s_lshl_b32 s7, s7, 8")
    e("s_add_u32 s9, s9, s7")
    e("v_and_b32 v7, 15, v0")
    e("v_lshlrev_b32 v7, 4, v7")
    e("v_lshl_add_u32 v7, v9, 13, v7")
    for i in range(8):
        e(f"buffer_load_dwordx4 v[{W3+4*i}:{W3+4*i+3}], v7, s[{SRD_W3}:{SRD_W3+3}], s9 offen offset:{1024*(i&3)}{NT}")
        if i == 3:
            e("s_add_u32 s9, s9, 4096")
    e("s_branch L_now2")
    lab("L_nowo0")
    e(f"s_cmp_eq_u32 s{S_WAVE}, 1")
    e("s_cbranch_scc0 L_now2")
    e("s_cmp_lt_u32 s2, 112")
    e("s_cbranch_scc1 L_now2")
    e("s_cmp_ge_u32 s2, 224")
    e("s_cbranch_scc1 L_now2")
    e("s_mov_b32 s14, 1")
    srd(SRD_W3, 32, 1792 * 512 * 2)
    e("s_sub_u32 s9, s2, 112")
    e("s_lshr_b32 s6, s9, 3")
    e("s_lshl_b32 s6, s6, 17")
    e("s_and_b32 s7, s9, 7")
    e("s_lshl_b32 s7, s7, 7")
    e("s_add_u32 s9, s6, s7")
    e("v_bfe_u32 v7, v0, 3, 1")
    e("v_lshlrev_b32 v7, 5, v7")
    e("v_lshl_add_u32 v9, v9, 3, v7")
    e("v_and_b32 v7, 7, v0")
    e("v_lshlrev_b32 v7, 4, v7")
    e("v_lshl_add_u32 v7, v9, 10, v7")
    for i in range(16):
        e(f"buffer_load_dwordx4 v[{W3+4*i}:{W3+4*i+3}], v7, s[{SRD_W3}:{SRD_W3+3}], s9 offen offset:{1024*(i&3)}{NT}")
        if i == 7:
            e(f"s_add_u32 s9, s9, {4096 + 56*1024}")
        elif i & 3 == 3 and i < 15:
            e("s_add_u32 s9, s9, 4096")
    lab("L_now2")
e("s_lshr_b32 s4, s2, 4")
e("s_lshl_b32 s4, s4, 7")
e("s_and_b32 s5, s2, 15")
e("s_lshl_b32 s5, s5, 3")
e("s_add_u32 s4, s4, s5")
e("s_lshl_b32 s4, s4, 4")
e(f"s_add_u32 s4, s4, {WS_OP}")
e(f"s_lshl_b32 s5, s{S_WAVE}, 18")
e("s_add_u32 s86, s4, s5")
for k in range(1, 4):
    e(f"s_add_u32 s{86+k}, s86, {k*65536}")
e(f"s_lshl_b32 s5, s{S_WAVE}, 15")
e("s_add_u32 s5, s4, s5")
e(f"s_add_u32 s85, s5, {128*8192}")
e("v_and_b32 v60, 7, v0")
e("v_lshlrev_b32 v60, 4, v60")
e("v_lshrrev_b32 v61, 3, v0")
e("v_lshl_add_u32 v60, v61, 13, v60")
e("v_and_b32 v62, 3, v61")
e(f"s_lshl_b32 s5, s{S_WAVE}, 2")
e("s_sub_u32 s5, 13, s5")
e("v_min_u32 v62, s5, v62")
e("v_and_b32 v63, 7, v0")
e("v_lshlrev_b32 v63, 4, v63")
e("v_lshl_add_u32 v62, v62, 13, v63")
o_loads = [f"buffer_load_dwordx4 v[{32+4*k}:{35+4*k}], v60, s[{SRD_WS}:{SRD_WS+3}], s{86+k} offen sc1" for k in range(4)]
o_loads.append(f"buffer_load_dwordx4 v[48:51], v62, s[{SRD_WS}:{SRD_WS+3}], s85 offen sc1")
e("s_cmp_ge_u32 s2, 64")
e("s_cbranch_scc1 L_c_nowarm")
with Guard():
    if not (OPT["jit"] & 4):
        for l in o_loads:
            e(l)
    srd(SRD_M, 36, 1024)
    e(f"buffer_load_dwordx4 v[64:67], v3, s[{SRD_M}:{SRD_M+3}], 0 offen")
    e("s_lshr_b32 s4, s2, 4")
    e("s_lshl_b32 s4, s4, 10")
    e(f"buffer_load_dwordx4 v[68:71], v3, s[{SRD_X}:{SRD_X+3}], s4 offen")
    srd(SRD_OUT, 34, 1024)
    e("v_and_b32 v6, 31, v0")
    e("v_lshlrev_b32 v6, 1, v6")
    e("s_and_b32 s4, s2, 15")
    e("s_lshl_b32 s4, s4, 6")
    e(f"buffer_load_ushort v72, v6, s[{SRD_OUT}:{SRD_OUT+3}], s4 offen")
lab("L_c_nowarm")
if_dry_goto("L_secAG")
e("s_cmp_lt_u32 s2, 112")
e("s_cbranch_scc1 L_secAG")
e("s_cmp_ge_u32 s2, 224")
e("s_cbranch_scc1 L_secAG")
lab("L_secH")
e("s_sub_u32 s9, s2, 112")
e("s_lshr_b32 s9, s9, 3")
e("s_min_u32 s9, s9, 13")
e(f"s_mul_i32 s4, s{S_WAVE}, 448")
e("s_lshl_b32 s5, s9, 5")
e("s_add_u32 s4, s4, s5")
e("s_lshl_b32 s4, s4, 4")
e(f"s_add_u32 s4, s4, {WS_HP}")
e(f"s_add_u32 s5, s4, {4*448*16}")
srd(SRD_M, 30, 3584)
e("s_lshl_b32 s9, s9, 8")
e("v_and_b32 v6, 31, v0")
e("v_lshlrev_b32 v4, 4, v6")
e("v_lshlrev_b32 v6, 3, v6")
e(f"buffer_load_dwordx2 v[80:81], v6, s[{SRD_M}:{SRD_M+3}], s9 offen")
e("v_lshrrev_b32 v7, 5, v0")
e(f"s_mov_b32 s6, {2*4*448*16}")
e("v_mul_lo_u32 v7, s6, v7")
e("v_add_u32 v4, v7, v4")
poll("h", [f"buffer_load_dwordx4 @, v4, s[{SRD_WS}:{SRD_WS+3}], s{4+k} offen sc1" for k in range(2)],
     [16, 20], 6, OPT["sleep_q"])
for i in range(4):
    e(f"v_add_f32 v{24+i}, v{16+i}, v{20+i}")
swap_reduce("v_add_f32", [24, 25, 26, 27], [28, 29, 30, 31], ("v_permlane32_swap_b32",))
for p in range(2):
    a, b_ = 24 + 2 * p, 25 + 2 * p
    bf16_round_pair(28, a, b_, a, b_)
    e(f"v_lshlrev_b32 v28, 16, v{80+p}")
    e(f"v_and_b32 v29, 0xffff0000, v{80+p}")
    e(f"v_add_f32 v{a}, v{a}, v28")
    e(f"v_add_f32 v{b_}, v{b_}, v29")
    bf16_round_pair(28, a, b_, a, b_)
e("v_mov_b32 v31, 0x3d372713")
for r in (24, 25, 26, 27):
    e(f"v_mul_f32 v30, v{r}, v{r}")
    e(f"v_mul_f32 v30, v30, v{r}")
    e(f"v_fma_f32 v30, v30, v31, v{r}")
    e(f"v_mul_f32 v30, 0x40135761, v30")
    e(f"v_exp_f32 v30, v30")
    e("s_nop 0")
    e(f"v_add_f32 v30, 1.0, v30")
    e(f"v_rcp_f32 v30, v30")
    e("s_nop 0")
    e(f"v_fma_f32 v30, v30, -2.0, 2.0")
    e(f"v_mul_f32 v30, 0.5, v30")
    e(f"v_mul_f32 v{r}, v{r}, v30")
e("v_cvt_pk_bf16_f32 v24, v24, v25")
e("v_cvt_pk_bf16_f32 v25, v26, v27")
with Guard():
    e(f"ds_write_b64 v5, v[24:25] offset:{L_HA}")
    lds_signal(C_H, 6)
    e("s_cmp_eq_u32 s14, 1")
    e("s_cbranch_scc0 L_secAG")
lds_wait(C_H, 4, 6)
e(f"ds_read_b128 v[{VA}:{VA+3}], v11 offset:{L_HA}")
e(f"ds_read_b128 v[{VA2}:{VA2+3}], v11 offset:{L_HA+128}")
with Guard():
    e("s_waitcnt vmcnt(0)")
e("s_waitcnt lgkmcnt(0)")
tile128(VA, VA2, 15, W=W3, B=B3, ACC=ACC3, G=W3)
e("s_sub_u32 s5, s2, 112")
e("s_lshr_b32 s4, s5, 3")
e("s_add_u32 s4, s4, 128")
e("s_lshl_b32 s4, s4, 9")
e("s_and_b32 s5, s5, 7")
e("s_lshl_b32 s5, s5, 4")
e("s_add_u32 s4, s4, s5")
e("s_lshl_b32 s4, s4, 4")
e(f"s_add_u32 s4, s4, {WS_OP}")
e("v_and_b32 v1, 15, v0")
e(f"v_lshl_add_u32 v1, v{TMP+8}, 7, v1")
e("v_lshlrev_b32 v1, 4, v1")
if_dry_goto("L_dry_done_comm")
e(f"buffer_store_dwordx4 v[{TMP}:{TMP+3}], v1, s[{SRD_WS}:{SRD_WS+3}], s4 offen sc1")
lab("L_secAG")
e(f"s_lshl_b32 s4, s{S_WAVE}, 5")
e("s_lshr_b32 s5, s2, 3")
e("s_add_u32 s4, s4, s5")
e("s_lshl_b32 s6, s4, 2")
e("s_bfe_u32 s5, s2, 0x20001")
e("s_add_u32 s6, s6, s5")
e("s_lshl_b32 s6, s6, 10")
e(f"s_add_u32 s6, s6, {WS_APO}")
e(f"s_lshl_b32 s4, s4, {10 if OPT['apm128'] else 7}")
e(f"s_add_u32 s4, s4, {WS_APM}")
e(f"v_lshlrev_b32 v4, {7 if OPT['apm128'] else 4}, v61")
if OPT["adelay"]:
    lds_wait(C_PA, 4, 6)
if OPT["jit"] & 2:
    lds_wait(C_O, 4, 6)
poll("a", [f"buffer_load_dwordx4 @, v3, s[{SRD_WS}:{SRD_WS+3}], s6 offen sc1",
           f"buffer_load_dwordx4 @, v4, s[{SRD_WS}:{SRD_WS+3}], s4 offen sc1"], [16, 20], 6, OPT["sleep_t"], altbase=168)
stamp(3, True)
e("v_mov_b32 v24, v20")
dpp_reduce("v_max_f32", [24], ["row_ror:8"])
swap_reduce("v_max_f32", [24], [25])
e("v_sub_f32 v25, v20, v24")
e("v_mul_f32 v25, 0x3fb8aa3b, v25")
e("v_exp_f32 v25, v25")
e("s_nop 0")
e("v_mul_f32 v26, v25, v21")
for i in range(4):
    e(f"v_mul_f32 v{84+i}, v25, v{16+i}")
dpp_reduce("v_add_f32", [26, 84, 85, 86, 87], ["row_ror:8"])
swap_reduce("v_add_f32", [26, 84, 85, 86, 87], [27, 28, 29, 30, 31])
e("v_rcp_f32 v27, v26")
e("s_nop 0")
e("v_fma_f32 v28, -v26, v27, 2.0")
e("v_mul_f32 v27, v27, v28")
for i in range(4):
    e(f"v_mul_f32 v{84+i}, v27, v{84+i}")
e("v_cvt_pk_bf16_f32 v84, v84, v85")
e("v_cvt_pk_bf16_f32 v85, v86, v87")
e(f"s_lshl_b32 s4, s{S_WAVE}, 6")
e("v_lshlrev_b32 v4, 3, v0")
e("v_add_u32 v4, s4, v4")
with Guard():
    e("s_mov_b64 exec, 0xff")
    e(f"ds_write_b64 v4, v[84:85] offset:{L_OA}")
    e("s_mov_b64 exec, -1")
    lds_signal(C_A, 6)
stamp(4, True)
if_dry_goto("L_secC")
e(f"s_cmp_lt_u32 s{S_WAVE}, 2")
e("s_cbranch_scc1 L_secC_done")
lab("L_secC")
e("s_lshr_b32 s4, s2, 1")
e("s_lshl_b32 s4, s4, 9")
e("s_and_b32 s5, s2, 1")
e("s_lshl_b32 s5, s5, 6")
e("s_add_u32 s4, s4, s5")
e(f"s_sub_u32 s5, s{S_WAVE}, 2")
e("s_lshl_b32 s5, s5, 5")
e("s_add_u32 s4, s4, s5")
e("s_lshl_b32 s4, s4, 4")
e(f"s_add_u32 s4, s4, {WS_OP}")
e("s_add_u32 s5, s4, 4096")
e("v_lshlrev_b32 v2, 5, v0")
e("v_and_b32 v1, 3, v0")
e("v_lshlrev_b32 v1, 6, v1")
e("v_lshrrev_b32 v9, 4, v0")
e("v_lshl_add_u32 v1, v9, 4, v1")
lds_wait(C_A, 4, 6)
e(f"ds_read_b128 v[{VA}:{VA+3}], v1 offset:{L_OA}")
with Guard():
    e("s_waitcnt vmcnt(0)")
e("s_waitcnt lgkmcnt(0)")
tile_mm(W3, VA, B3, ACC3)
e("s_nop 7")
e("s_nop 1")
if not OPT["opfull"]:
    for b in range(4):
        for hf in range(2):
            d = TMP + 8 * b + 4 * hf
            tagq(d, [ACC3 + 4 * (4 * hf + i) + b for i in range(4)])
    with Guard():
        set_exec("0xffff", 0)
        for b in range(4):
            for hf in range(2):
                d = TMP + 8 * b + 4 * hf
                e(f"buffer_store_dwordx4 v[{d}:{d+3}], v2, s[{SRD_WS}:{SRD_WS+3}], s{4+(b>>1)} offen offset:{2048*(b&1)+16*hf} sc1")
        e("s_mov_b64 exec, -1")
else:
    e("v_and_b32 v6, 16, v0")
    e("v_cmp_ne_u32 s[90:91], 0, v6")
    e("v_cmp_lt_u32 s[92:93], 31, v0")
    e("s_nop 1")
    for k in range(2):
        for i in range(4):
            t0, t1 = TMP + 16, TMP + 17
            e(f"v_cndmask_b32 v{t0}, v{ACC3+4*i+k}, v{ACC3+4*(4+i)+k}, s[90:91]")
            e(f"v_cndmask_b32 v{t1}, v{ACC3+4*i+2+k}, v{ACC3+4*(4+i)+2+k}, s[90:91]")
            e(f"v_cndmask_b32 v{TMP+8+4*k+i}, v{t0}, v{t1}, s[92:93]")
        tagq(TMP + 4 * k, [TMP + 8 + 4 * k + i for i in range(4)])
    e("v_and_b32 v2, 15, v0")
    e("v_lshlrev_b32 v2, 5, v2")
    e("v_add_u32 v2, v6, v2")
    e("v_lshrrev_b32 v6, 5, v0")
    e("v_lshl_add_u32 v2, v6, 12, v2")
    with Guard():
        for k in range(2):
            e(f"buffer_store_dwordx4 v[{TMP+4*k}:{TMP+4*k+3}], v2, s[{SRD_WS}:{SRD_WS+3}], s4 offen offset:{2048*k} sc1")
stamp(2, True)
if OPT["odelay"]:
    if OPT["odelay"] == 1:
        e("s_waitcnt vmcnt(0)")
    lds_signal(C_PO, 6)
lab("L_secC_done")
e("s_cmp_lt_u32 s2, 64")
e("s_cbranch_scc1 L_secF")
if_dry_goto("L_secH")
e("s_branch L_exit_c")
lab("L_secF")
GS = 74
for d in range(4):
    e(f"v_lshlrev_b32 v76, 16, v{68+d}")
    e(f"v_and_b32 v77, 0xffff0000, v{68+d}")
    e(f"v_lshlrev_b32 v78, 16, v{64+d}")
    e(f"v_and_b32 v79, 0xffff0000, v{64+d}")
    e("v_mul_f32 v76, v76, v78")
    e("v_mul_f32 v77, v77, v79")
    bf16_round_pair(78, 76, 77, 76, 77)
    if d == 0:
        e(f"v_add_f32 v{GS}, v76, v77")
    else:
        e(f"v_add_f32 v{GS}, v{GS}, v76")
        e(f"v_add_f32 v{GS}, v{GS}, v77")
dpp_reduce("v_add_f32", [GS], ROW16)
swap_reduce("v_add_f32", [GS], [76])
e(f"v_cvt_pk_bf16_f32 v75, v{GS}, v{GS}")
e("v_lshlrev_b32 v75, 16, v75")
e("v_mul_f32 v75, 0xbfb8aa3b, v75")
e("v_exp_f32 v75, v75")
e("s_nop 0")
e("v_add_f32 v75, 1.0, v75")
e("v_rcp_f32 v76, v75")
e("s_nop 0")
e("v_fma_f32 v77, -v75, v76, 2.0")
e("v_mul_f32 v76, v76, v77")
e("v_cvt_pk_bf16_f32 v76, v76, v76")
e("v_lshlrev_b32 v75, 16, v76")
e("v_sub_f32 v76, 1.0, v75")
e("v_cvt_pk_bf16_f32 v76, v76, v76")
e("v_lshlrev_b32 v76, 16, v76")
e("v_lshlrev_b32 v73, 16, v72")
if OPT["odelay"]:
    lds_wait(C_PO, 2, 1)
poll("o", [re.sub(r"v\[\d+:\d+\]", "@", l, count=1) for l in o_loads], [32, 36, 40, 44, 48], 1, OPT["sleep_t"], altbase=128)
stamp(5, True)
e(f"s_lshl_b32 s5, s{S_WAVE}, 5")
e("s_sub_u32 s5, 112, s5")
e("s_min_u32 s5, s5, 32")
e("v_cmp_gt_u32 vcc, s5, v0")
e("s_nop 1")
for i in range(4):
    e(f"v_cndmask_b32 v{92+i}, 0, v{48+i}, vcc")
    e(f"v_add_f32 v{88+i}, v{32+i}, v{36+i}")
    e(f"v_add_f32 v{52+i}, v{40+i}, v{44+i}")
for i in range(4):
    e(f"v_add_f32 v{88+i}, v{88+i}, v{52+i}")
regs = [88 + i for i in range(8)]
dpp_reduce("v_add_f32", regs, ["row_ror:8"])
swap_reduce("v_add_f32", regs, [52 + i for i in range(8)])
e(f"s_lshl_b32 s4, s{S_WAVE}, 7")
e("v_add_u32 v4, s4, v3")
with Guard():
    e("s_mov_b64 exec, 0xff")
    e(f"ds_write_b128 v4, v[88:91] offset:{L_F}")
    e(f"ds_write_b128 v4, v[92:95] offset:{L_F+512}")
    e("s_mov_b64 exec, -1")
    lds_signal(C_F, 6)
    e(f"s_cmp_lg_u32 s{S_WAVE}, 0")
    e("s_cbranch_scc1 L_exit_c")
lds_wait(C_F, 4, 6)
e("v_and_b32 v6, 31, v0")
e("v_lshlrev_b32 v4, 2, v6")
for w in range(8):
    e(f"ds_read_b32 v{52+w}, v4 offset:{L_F+128*w}")
e("s_waitcnt lgkmcnt(0)")
e("v_add_f32 v52, v52, v53")
e("v_add_f32 v54, v54, v55")
e("v_add_f32 v56, v56, v57")
e("v_add_f32 v58, v58, v59")
e("v_add_f32 v52, v52, v54")
e("v_add_f32 v56, v56, v58")
bf16_round_pair(54, 52, 56, 52, 56)
e("v_add_f32 v56, v56, v73")
e("v_cvt_pk_bf16_f32 v54, v56, v56")
e("v_lshlrev_b32 v56, 16, v54")
e("v_mul_f32 v52, v75, v52")
e("v_mul_f32 v56, v76, v56")
bf16_round_pair(54, 52, 56, 52, 56)
e("v_add_f32 v52, v52, v56")
e("v_cvt_pk_bf16_f32 v52, v52, v52")
e("v_lshlrev_b32 v6, 1, v6")
e("s_lshl_b32 s4, s2, 6")
if_dry_goto("L_secH")
if OPT["padx"]:
    lab("L_pad")
    e("s_memrealtime s[98:99]")
    e("s_waitcnt lgkmcnt(0)")
    e("s_sub_u32 s98, s98, s94")
    e(f"s_cmp_lt_u32 s98, {OPT['padx']*100}")
    e("s_cbranch_scc1 L_pad")
srd(SRD_OUT, 38, 4096)
set_exec("-1", 0)
e(f"buffer_store_short v52, v6, s[{SRD_OUT}:{SRD_OUT+3}], s4 offen")
if OPT["dbg"]:
    e("s_cmp_ge_u32 s2, 14")
    e("s_cbranch_scc1 L_dbg1")
    e("s_memrealtime s[98:99]")
    srd(SRD_M, 40, 256)
    e("s_lshl_b32 s4, s2, 2")
    e("s_add_u32 s4, s4, 8")
    e("s_waitcnt lgkmcnt(0)")
    e("v_mov_b32 v236, s4")
    e("v_mov_b32 v237, s98")
    e("s_mov_b64 exec, 1")
    e(f"buffer_store_dword v237, v236, s[{SRD_M}:{SRD_M+3}], 0 offen")
    lab("L_dbg1")
e("s_cmp_lg_u32 s2, 0")
e("s_cbranch_scc1 L_exit_c")
e("s_mov_b64 exec, 1")
e(f"v_mov_b32 v1, 0")
e(f"v_mov_b32 v4, s{S_TAG}")
e(f"v_mov_b32 v5, s{S_TAG+1}")
e(f"buffer_store_dwordx2 v[4:5], v1, s[{SRD_WS}:{SRD_WS+3}], 0 offen offset:{WS_GEN} sc1")
lab("L_exit_c")
dump_stamps(True)
lab("L_exit")
e("s_endpgm")
if not OPT["dry"]:
    lab("L_dry_done_data")
    lab("L_dry_done_comm")
    e("s_endpgm")

out.append('.section .rodata,"a"')
out.append(".p2align 6")
out.append(f".amdhsa_kernel {NAME}_kernel")
out.append("  .amdhsa_next_free_vgpr 240")
out.append("  .amdhsa_next_free_sgpr 102")
out.append("  .amdhsa_accum_offset 240")
out.append("  .amdhsa_group_segment_fixed_size 0")
out.append("  .amdhsa_kernarg_size 112")
out.append("  .amdhsa_user_sgpr_count 2")
out.append("  .amdhsa_user_sgpr_kernarg_segment_ptr 1")
out.append("  .amdhsa_system_sgpr_workgroup_id_x 1")
out.append(".end_amdhsa_kernel")

dst = sys.argv[1] if len(sys.argv) > 1 else f"cdna_kernels/{NAME}.s"
open(dst, "w").write("\n".join(out) + "\n")
print("wrote", dst, len(out), "lines")
```
